```python
import torch

def _softmax(x, axis=-1):
    return torch.softmax(x, dim=axis)
def _gelu(x):
    return torch.nn.functional.gelu(x, approximate="tanh")
def _silu(x):
    return torch.nn.functional.silu(x)
def _sigmoid(x):
    return torch.sigmoid(x)
def _layernorm(x, axis=-1, eps=1e-5):
    m = x.mean(dim=axis, keepdim=True)
    v = x.var(dim=axis, keepdim=True, unbiased=False)
    return (x - m) / torch.sqrt(v + eps)
def _scatter_add(tgt, idx, src, axis=0):
    return tgt.clone().index_add_(axis, idx, src)
def _segment_sum(src, seg, n):
    out = torch.zeros((n,) + src.shape[1:], dtype=src.dtype)
    return out.index_add_(0, seg, src)
def _pad(x, pw):
    flat = tuple(v for pair in reversed(pw) for v in pair)
    return torch.nn.functional.pad(x, flat)

kernel_name = 'recurrent_scan__grouped_kv_mqa__moe_arch_mod__prompt'

def setup_inputs():

    _w = (lambda a: (lambda t: t.to(torch.bfloat16) if t.is_floating_point() else t)(torch.as_tensor(a)))
    def _A_setup():
        B, S, D, H = 1, 2048, 1024, 32
        Dh = D // H
        return {
            "x": _w((lambda *s: torch.randn(*s, dtype=torch.bfloat16) * 0.05)(B, S, D)),
            "wq": _w((lambda *s: torch.randn(*s, dtype=torch.bfloat16) * 0.05)(D, H * Dh)),
            "wk": _w((lambda *s: torch.randn(*s, dtype=torch.bfloat16) * 0.05)(D, Dh)),
            "wv": _w((lambda *s: torch.randn(*s, dtype=torch.bfloat16) * 0.05)(D, Dh)),
            "wo": _w((lambda *s: torch.randn(*s, dtype=torch.bfloat16) * 0.05)(H * Dh, D)),
        }
    _A_in = _A_setup()

    def _B_setup():
        B, S, D, F, C = 1, 2048, 1024, 3584, 1
        return {
            "x": _w((lambda *s: torch.randn(*s, dtype=torch.bfloat16) * 0.05)(B, S, D)),
            "w_r": _w((lambda *s: torch.randn(*s, dtype=torch.bfloat16) * 0.05)(D)),
            "w_gate": _w((lambda *s: torch.randn(*s, dtype=torch.bfloat16) * 0.05)(D, F)),
            "w_up": _w((lambda *s: torch.randn(*s, dtype=torch.bfloat16) * 0.05)(D, F)),
            "w_down": _w((lambda *s: torch.randn(*s, dtype=torch.bfloat16) * 0.05)(F, D)),
        }
    _B_in = _B_setup()

    return {
        "A_x": _A_in["x"],
        "A_wq": _A_in["wq"],
        "A_wk": _A_in["wk"],
        "A_wv": _A_in["wv"],
        "A_wo": _A_in["wo"],
        "B_x": _B_in["x"],
        "B_w_r": _B_in["w_r"],
        "B_w_gate": _B_in["w_gate"],
        "B_w_up": _B_in["w_up"],
        "B_w_down": _B_in["w_down"],
    }

def reference(A_x, A_wq, A_wk, A_wv, A_wo, B_x, B_w_r, B_w_gate, B_w_up, B_w_down):
    def _A_ref(x, wq, wk, wv, wo):
        B, S, D = x.shape
        H = 32
        Dh = D // H
        q = (lambda x, *d: x.permute(*d))((x @ wq).reshape(B, S, H, Dh), 0, 2, 1, 3)
        k = x @ wk
        v = x @ wv
        scores = torch.einsum("bhqd,bkd->bhqk", q, k) * (Dh ** -0.5)
        p = _softmax(scores, axis=-1)
        o = torch.einsum("bhqk,bkd->bhqd", p, v)
        return (lambda x, *d: x.permute(*d))(o, 0, 2, 1, 3).reshape(B, S, H * Dh) @ wo

    def _B_ref(x, w_r, w_gate, w_up, w_down):
        B, S, D = x.shape
        C = 1
        r = x @ w_r
        idx = torch.argsort(-r, axis=-1)[:, :C]
        idx_e = (lambda x, n, axis: torch.repeat_interleave(x, n, dim=axis))(idx.reshape(B, C, 1), D, axis=2)
        x_sel = (lambda x, i, axis: torch.take_along_dim(x, i, dim=axis))(x, idx_e, axis=1)
        g = _silu(x_sel @ w_gate)
        u = x_sel @ w_up
        y = (g * u) @ w_down
        r_sel = _sigmoid((lambda x, i, axis: torch.take_along_dim(x, i, dim=axis))(r, idx, axis=1))
        y = y * r_sel.reshape(B, C, 1)
        b_off = (torch.arange(B) * S).reshape(B, 1)
        flat_idx = (idx + b_off).reshape(B * C)
        zero = (x * 0.0).reshape(B * S, D)
        upd = _scatter_add(zero, flat_idx, y.reshape(B * C, D), axis=0)
        return x + upd.reshape(B, S, D)

    x = A_x
    xn = _layernorm(x, axis=-1)
    s = _A_ref(xn, A_wq, A_wk, A_wv, A_wo)
    g = _silu(_B_ref(xn, B_w_r, B_w_gate, B_w_up, B_w_down))
    return x + s * g
```

```python
import re

TRANS = ("v_exp_f32", "v_log_f32", "v_rcp_f32", "v_rsq_f32", "v_sqrt_f32", "v_sin_f32", "v_cos_f32",
         "v_rcp_iflag_f32", "v_exp_f16", "v_rcp_f16")

def _split_ops(s):
    ops, depth, cur = [], 0, ""
    for ch in s:
        if ch in "[(": depth += 1
        if ch in "])": depth -= 1
        if ch == "," and depth == 0:
            ops.append(cur.strip()); cur = ""
        else:
            cur += ch
    if cur.strip(): ops.append(cur.strip())
    return ops

_REG = re.compile(r"^-?\|?(?:abs\()?([vas])(?:(\d+)|\[(\d+):(\d+)\])\)?\|?$")

def regs(op):
    op = op.strip().split(" ")[0]
    if op in ("vcc", "vcc_lo", "vcc_hi"): return {"vcc"}
    if op in ("exec", "exec_lo", "exec_hi"): return {"exec"}
    if op == "m0": return {"m0"}
    m = _REG.match(op)
    if not m: return set()
    k = m.group(1)
    if m.group(2) is not None: return {f"{k}{m.group(2)}"}
    return {f"{k}{i}" for i in range(int(m.group(3)), int(m.group(4)) + 1)}

def mfma_passes(mn):
    if "32x32x16" in mn or "32x32x32" in mn or "32x32x8" in mn: return 8
    if "16x16x32" in mn or "16x16x64" in mn or "16x16x16" in mn: return 4
    raise ValueError(mn)

class I:
    __slots__ = ("text", "mn", "kind", "w", "r", "a", "b", "c", "passes", "states", "dpp", "wide", "lds", "sread", "data")
    def __init__(self, text):
        self.text = text
        t = text.split(";")[0].strip()
        parts = t.split(None, 1)
        mn = parts[0]; self.mn = mn
        ops = _split_ops(parts[1]) if len(parts) > 1 else []
        self.w = set(); self.r = set(); self.a = self.b = self.c = set(); self.passes = 0
        self.states = 1; self.dpp = False; self.wide = False; self.lds = False; self.sread = set(); self.data = set()
        R = [regs(o) for o in ops]
        if mn == "s_nop":
            self.kind = "nop"; self.states = int(ops[0], 0) + 1
        elif mn.startswith("v_mfma") or mn.startswith("v_smfmac"):
            self.kind = "mfma"; self.passes = mfma_passes(mn)
            self.w = R[0]; self.a = R[1]; self.b = R[2]
            if mn.startswith("v_smfmac"):
                self.c = R[0]; self.a = R[1] | R[3]
            else:
                self.c = R[3]
            self.r = self.a | self.b | self.c
        elif mn.startswith("v_"):
            self.kind = "valu"
            self.dpp = "_dpp" in mn or " row_" in t or "quad_perm" in t
            if mn.startswith("v_cmpx"):
                self.w = R[0] | {"exec"}; self.r = set().union(*R[1:])
            elif mn.startswith("v_permlane") and "swap" in mn or mn.startswith("v_swap"):
                self.w = R[0] | R[1]; self.r = R[0] | R[1]
            elif mn.startswith(("v_add_co", "v_sub_co", "v_addc_co", "v_subb_co", "v_subrev_co", "v_div_scale", "v_mad_u64")):
                self.w = R[0] | R[1]; self.r = set().union(*R[2:])
            else:
                self.w = R[0]; self.r = set().union(*R[1:]) if len(R) > 1 else set()
                if mn.startswith(("v_fmac", "v_dot2c", "v_pk_fmac", "v_writelane")) or self.dpp or "sdwa" in mn:
                    self.r |= R[0]
                if mn.startswith("v_cndmask") and len(ops) == 3: self.r |= {"vcc"}
                if mn.startswith("v_div_fmas"): self.r |= {"vcc"}
        elif mn.startswith("ds_"):
            self.kind = "ds"
            if mn.startswith(("ds_read", "ds_bpermute", "ds_permute", "ds_swizzle")) or "_rtn" in mn:
                self.w = R[0]; self.r = set().union(*R[1:])
            else:
                self.r = set().union(*R)
        elif mn.startswith("buffer_") or mn.startswith("global_"):
            self.kind = "vmem"
            self.lds = bool(re.search(r"\blds\b", t)) or "load_lds" in mn
            allr = set().union(*R) if R else set()
            if mn in ("buffer_inv", "buffer_wbl2"):
                pass
            elif "load" in mn and not self.lds:
                self.w = R[0]; self.r = set().union(*R[1:])
            elif "atomic" in mn and re.search(r"\bsc0\b", t):
                self.w = R[0]; self.r = allr
            else:
                self.r = allr
                if "store" in mn and ("x3" in mn or "x4" in mn):
                    self.wide = True
                    self.data = R[0] if mn.startswith("buffer_") else R[1]
            if self.lds: self.r |= {"m0"}
        elif mn.startswith("s_"):
            self.kind = "salu"
            if mn.startswith(("s_cmp", "s_cbranch", "s_branch", "s_waitcnt", "s_barrier", "s_endpgm", "s_setprio", "s_sleep", "s_bitcmp")):
                self.r = set().union(*R) if R else set()
            else:
                self.w = R[0] if R else set(); self.r = set().union(*R[1:]) if len(R) > 1 else set()
                if "saveexec" in mn: self.w |= {"exec"}
        else:
            raise ValueError("unknown instr " + text)

def need(p, c):
    n = 0
    vw = {x for x in p.w if x[0] in "va" and x != "vcc"}
    sw = {x for x in p.w if x[0] == "s" or x == "vcc"}
    if p.kind == "valu":
        if c.kind == "mfma" and vw & c.r: n = max(n, 2)
        if c.kind == "mfma" and "exec" in p.w: n = max(n, 4)
        if c.kind == "valu":
            if p.mn.startswith(TRANS) and not c.mn.startswith(TRANS) and vw & c.r: n = max(n, 1)
            if c.dpp and vw & c.r: n = max(n, 2)
            if c.dpp and "exec" in p.w: n = max(n, 5)
            if c.mn.startswith("v_permlane") and vw & c.r: n = max(n, 2)
            if c.mn.startswith(("v_readlane", "v_readfirstlane")) and vw & c.r: n = max(n, 1)
            if sw & c.r:
                n = max(n, 4 if c.mn.startswith(("v_readlane", "v_writelane", "v_div_fmas")) else 2)
            if "exec" in p.w and c.mn.startswith(("v_readlane", "v_readfirstlane", "v_writelane", "v_permlane")): n = max(n, 4)
            if p.mn.startswith("v_dot") and (vw & (c.r | c.w)) and not (c.mn == p.mn): n = max(n, 3)
            if ("sdwa" in p.mn or "op_sel" in p.text) and vw & (c.r | c.w): n = max(n, 1)
        if c.kind == "vmem" and sw & c.r: n = max(n, 5)
        if c.kind == "salu" and sw & c.r: n = max(n, 1)
        if c.kind in ("vmem", "ds") and p.mn.startswith(TRANS) and vw & c.r: n = max(n, 1)
        if p.mn.startswith("v_dot") and c.kind in ("vmem", "ds") and vw & c.r: n = max(n, 3)
    if p.kind == "salu":
        if "m0" in p.w and c.kind in ("vmem", "ds") and "m0" in c.r: n = max(n, 1)
    if p.kind == "vmem" and p.wide and p.data & c.w:
        n = max(n, 2 if c.kind == "valu" else 1)
    if p.kind == "mfma":
        big = {4: 8, 8: 12}[p.passes]
        if c.kind == "mfma":
            if p.w & (c.a | c.b): n = max(n, big)
            if p.w & c.c:
                if not (p.w == c.c and p.passes == c.passes): n = max(n, big - 2)
            elif p.w & c.w:
                if not (p.passes == c.passes): n = max(n, big - 2)
        elif c.kind in ("valu", "vmem", "ds"):
            if p.w & (c.r | c.w): n = max(n, big)
            if c.kind == "valu" and p.c & c.w: n = max(n, {4: 3, 8: 7}[p.passes])
    return n

class Asm:
    def __init__(self):
        self.out = []
        self.hist = []
        self.alts = []
        self.nops_inserted = 0
        self.log = []
    def raw(self, s):
        self.out.append(s)
    def comment(self, s):
        self.out.append("    ; " + s)
    def _required(self, ins, hist):
        dist = 0; req = 0
        for p in reversed(hist):
            if dist >= 20: break
            n = need(p, ins)
            if n > dist: req = max(req, n - dist)
            dist += p.states
        return req
    def __call__(self, text):
        for line in text.split("\n"):
            line = line.strip()
            if not line or line.startswith(";"): continue
            ins = I(line)
            req = max([self._required(ins, self.hist)] + [self._required(ins, h) for h, _ in self.alts])
            if req:
                self.nops_inserted += 1
                self.log.append((len(self.out), req, line))
                while req > 0:
                    k = min(req, 16)
                    nop = I(f"s_nop {k-1}")
                    self.out.append(f"    s_nop {k-1}")
                    self.hist.append(nop); req -= k
                    for h, _ in self.alts: h.append(nop)
            self.out.append("    " + line)
            self.hist.append(ins)
            for h, _ in self.alts: h.append(ins)
            self.alts = [(h, n + 1) for h, n in self.alts if n < 24]
            if len(self.hist) > 64: self.hist = self.hist[-40:]
    def label(self, name, align=None):
        if align: self.out.append(f".p2align {align}")
        self.out.append(f"{name}:")
    def flush(self):
        self("s_nop 15")
        self.hist = []
        self.alts = []
    def snapshot(self):
        return [list(self.hist)] + [list(h) for h, _ in self.alts]
    def join(self, snap):
        self.alts += [(h, 0) for h in snap]
    def mark(self):
        return len(self.out)
    def seam(self, start):
        body = [l.strip() for l in self.out[start:] if l.startswith("    ") and not l.strip().startswith(";")][:24]
        hist = list(self.hist) + [I("s_branch x")]
        worst = 0
        for l in body:
            ins = I(l)
            worst = max(worst, self._required(ins, hist))
            hist.append(ins)
        if worst:
            self.log.append((len(self.out), worst, "loop seam"))
            self(f"s_nop {worst-1}")
    def text(self):
        return "\n".join(self.out) + "\n"
```

```python
import sys, struct
from asmlib import Asm

NAME = "recurrent_scan__grouped_kv_mqa__moe_arch_mod__prompt"
KN = NAME + "_kernel"
WS_KV, WS_STAT, WS_RKEY, WS_SY, WS_YACC, WS_STAMP, WS_OF = 0x0, 0x40000, 0x46000, 0x48000, 0x50000, 0x80000, 0x100000
WS_SIZE = 0x500000
SY1, SY2, SY3 = WS_SY, WS_SY + 32 * 128, WS_SY + 64 * 128
ONES = 0x3F803F80
LOG2E = 1.4426950408889634
QSCALE = 0.17677669529663687 * LOG2E
def f32(x): return "0x%08x" % struct.unpack("<I", struct.pack("<f", x))[0]
STAMPS = False
VAR = set()
SPIN_MAX = 200000

S_X, S_W, S_KW, S_WS, S_KV, S_WR, S_WG, S_WU = 4, 8, 12, 16, 20, 24, 28, 32
S_OUT, S_WD = S_WR, S_KW
RB, HB, ROT, T0, T1, T2, T3 = 36, 37, 38, 39, 40, 41, 42
W1K, W2K, W4K, XSO, WSO0, WSO1, RT, HD, ROWT, RG = 43, 44, 45, 46, 47, 48, 49, 50, 51, 52
SEL, IDX, RKEY, FCG, RB2, CB2, OSO, XO2, CNT, XBASE = 53, 54, 55, 56, 57, 58, 59, 60, 61, 62
W8K = 63
EXS = 64
PT = 68
P_X, P_WQ, P_WK, P_WV, P_WO, P_BX, P_WR, P_WG, P_WU, P_WD, P_OUT, P_DBG, P_WS = [PT + 2 * i for i in range(13)]
STMP = 96
def sr(b): return f"s[{b}:{b+3}]"

def srd(a, d, base, nbytes):
    a(f"s_mov_b32 s{d}, s{base}")
    a(f"s_and_b32 s{d+1}, s{base+1}, 0xffff")
    a(f"s_mov_b32 s{d+2}, {nbytes:#x}")
    a(f"s_mov_b32 s{d+3}, 0x20000")

def bf16r(a, dst, src):
    a(f"v_cvt_pk_bf16_f32 v{dst}, v{src}, v{src}")
    a(f"v_lshlrev_b32 v{dst}, 16, v{dst}")

class VM:
    def __init__(self): self.tags = []
    def add(self, tag, n=1): self.tags += [tag] * n
    def count_after(self, tag):
        idx = max(i for i, t in enumerate(self.tags) if t == tag)
        return len(self.tags) - 1 - idx
    def wait(self, a, tag):
        if tag not in self.tags: return
        n = self.count_after(tag)
        a(f"s_waitcnt vmcnt({n})")
        self.tags = self.tags[len(self.tags) - n:]

VST = 156
def stamp(a, vm, slot):
    if not STAMPS: return
    k, sl = slot // 8, slot % 8
    a(f"s_memrealtime s[{STMP}:{STMP+1}]")
    a(f"s_memtime s[{STMP+2}:{STMP+3}]")
    a("s_waitcnt lgkmcnt(0)")
    a(f"s_lshl_b32 s{STMP+1}, s2, 9")
    a(f"s_lshl_b32 s{STMP+3}, s3, 6")
    a(f"s_add_u32 s{STMP+1}, s{STMP+1}, s{STMP+3}")
    a(f"s_add_u32 s{STMP+1}, s{STMP+1}, {WS_STAMP + k * 0x20000 + sl * 8:#x}")
    a(f"v_mov_b32 v{VST}, s{STMP}")
    a(f"v_mov_b32 v{VST+1}, s{STMP+2}")
    a(f"v_mov_b32 v{VST+2}, s{STMP+1}")
    a(f"buffer_store_dwordx2 v[{VST}:{VST+1}], v{VST+2}, {sr(S_WS)}, 0 offen")
    if vm is not None: vm.add("st")

_lbl = [0]
def L(p="L"):
    _lbl[0] += 1
    return f"{p}_{_lbl[0]}"

def poll(a, vaddr, vdat, soff, expect, first_done=False):
    top, chk, done = L("poll"), L("pchk"), L("pdone")
    a(f"s_mov_b32 s{CNT}, 0")
    if first_done: a(f"s_branch {chk}")
    a.label(top)
    a(f"buffer_load_dword v{vdat}, v{vaddr}, {sr(S_WS)}, {soff} offen sc1")
    a("s_waitcnt vmcnt(0)")
    a.label(chk)
    a(f"v_cmp_ne_u32 vcc, {expect}, v{vdat}")
    a(f"s_add_u32 s{CNT}, s{CNT}, 1")
    a(f"s_cbranch_vccz {done}")
    a("s_sleep 4")
    a(f"s_cmp_lt_u32 s{CNT}, {SPIN_MAX}")
    a(f"s_cbranch_scc1 {top}")
    a.label(done)

def kernel(a):
    a.raw(f".globl {KN}"); a.raw(".p2align 8"); a.raw(f".type {KN},@function"); a.raw(f"{KN}:")
    vm = VM()
    a("s_cmp_ge_u32 s2, 256")
    a("s_cbranch_scc1 L_end")
    a(f"s_load_dwordx16 s[{PT}:{PT+15}], s[0:1], 0")
    a(f"s_load_dwordx8 s[{PT+16}:{PT+23}], s[0:1], 64")
    a(f"s_load_dwordx2 s[{PT+24}:{PT+25}], s[0:1], 96")
    a("s_getpc_b64 s[94:95]")
    VL16, VN, VH = 20, 3, 4
    a("v_lshrrev_b32 v1, 6, v0")
    a("v_and_b32 v2, 63, v0")
    a("v_readfirstlane_b32 s3, v1")
    a(f"v_lshlrev_b32 v{VL16}, 4, v2")
    a(f"v_and_b32 v{VN}, 31, v2")
    a(f"v_lshrrev_b32 v{VH}, 5, v2")
    a(f"s_and_b32 s{T0}, s2, 7")
    a(f"s_lshr_b32 s{T1}, s2, 3")
    a(f"s_lshr_b32 s{RB}, s{T0}, 1")
    a(f"s_lshl_b32 s{RB}, s{RB}, 3")
    a(f"s_and_b32 s{SEL}, s{T0}, 1")
    a(f"s_lshl_b32 s{T2}, s{SEL}, 2")
    a(f"s_add_u32 s{RB2}, s{RB}, s{T2}")
    a(f"s_and_b32 s{T3}, s{T1}, 3")
    a(f"s_add_u32 s{RB2}, s{RB2}, s{T3}")
    a(f"s_lshr_b32 s{CB2}, s{T1}, 2")
    a(f"s_and_b32 s{ROT}, s{T1}, 7")
    a(f"s_add_u32 s{RB}, s{RB}, s{ROT}")
    a(f"s_lshl_b32 s{ROT}, s{ROT}, 1")
    a(f"s_lshr_b32 s{T3}, s{T1}, 3")
    a(f"s_add_u32 s{HB}, s{T2}, s{T3}")
    a(f"s_lshl_b32 s{RG}, s{RB}, 2")
    a(f"s_add_u32 s{RG}, s{RG}, s{T3}")
    a(f"s_mul_i32 s{FCG}, s{T0}, 28")
    a(f"s_add_u32 s{FCG}, s{FCG}, s{T1}")
    a(f"s_lshl_b32 s{W1K}, s3, 10")
    a(f"s_lshl_b32 s{W2K}, s3, 11")
    a(f"s_lshl_b32 s{W4K}, s3, 12")
    a(f"s_lshl_b32 s{W8K}, s3, 13")
    a(f"s_and_b32 s{RT}, s3, 1")
    a(f"s_lshr_b32 s{HD}, s3, 1")
    a(f"s_lshl_b32 s{ROWT}, s{RB}, 1")
    a(f"s_add_u32 s{ROWT}, s{ROWT}, s{RT}")
    XB = 65536
    a(f"s_mul_i32 s{XBASE}, s3, 4864")
    a(f"s_add_u32 s{XBASE}, s{XBASE}, {XB}")
    VOA, VOX, VOW = 17, 18, 19
    a("v_lshrrev_b32 v5, 4, v2")
    a("v_xor_b32 v6, v5, v2")
    a("v_and_b32 v6, 15, v6")
    a("v_lshlrev_b32 v6, 4, v6")
    a(f"v_lshl_add_u32 v{VOA}, v5, 11, v6")
    a("v_lshlrev_b32 v7, 2, v2")
    a(f"s_lshl_b32 s{T0}, s3, 2")
    a(f"v_add_u32 v6, s{T0}, v5")
    a("v_xor_b32 v6, v6, v2")
    a("v_and_b32 v6, 7, v6")
    a("v_lshlrev_b32 v6, 4, v6")
    a("v_lshrrev_b32 v8, 3, v2")
    a("v_lshl_add_u32 v6, v8, 11, v6")
    a(f"s_lshl_b32 s{T0}, s3, 14")
    a(f"v_add_u32 v{VOX}, s{T0}, v6")
    a("v_lshlrev_b32 v6, 2, v5")
    a("v_xor_b32 v6, v6, v2")
    a("v_and_b32 v6, 15, v6")
    a("v_lshlrev_b32 v6, 4, v6")
    a("v_lshl_add_u32 v6, v5, 11, v6")
    a(f"v_add_u32 v{VOW}, s{T0}, v6")
    a(f"s_lshl_b32 s{T0}, s{RG}, 15")
    a(f"s_lshl_b32 s{T1}, s3, 8")
    a(f"s_add_u32 s{T0}, s{T0}, s{T1}")
    a("s_waitcnt lgkmcnt(0)")
    srd(a, S_X, P_X, 2048 * 2048)
    a(f"s_cmp_eq_u32 s{SEL}, 0")
    a(f"s_cselect_b32 s{S_KW}, s{P_WK}, s{P_WV}")
    a(f"s_cselect_b32 s{S_KW+1}, s{P_WK+1}, s{P_WV+1}")
    a(f"s_and_b32 s{S_KW+1}, s{S_KW+1}, 0xffff")
    a(f"s_mov_b32 s{S_KW+2}, 0x10000")
    a(f"s_mov_b32 s{S_KW+3}, 0x20000")
    srd(a, S_WS, P_WS, WS_SIZE)
    a(f"s_lshl_b32 s{CNT}, s2, 3")
    a(f"s_add_u32 s{CNT}, s{CNT}, s3")
    a("v_mov_b32 v9, 0")
    a(f"s_cmp_eq_u32 s{CNT}, 3")
    l1 = L(); a(f"s_cbranch_scc0 {l1}")
    a("v_lshlrev_b32 v8, 7, v2")
    a(f"s_mov_b32 s{T2}, {WS_SY:#x}")
    a(f"s_mov_b32 s{T3}, {WS_SY + 8192:#x}")
    a(f"buffer_store_dword v9, v8, {sr(S_WS)}, s{T2} offen sc1")
    a(f"buffer_store_dword v9, v8, {sr(S_WS)}, s{T3} offen sc1")
    a.label(l1)
    for i in range(4):
        a(f"s_add_u32 m0, s{XBASE}, {i*1088}")
        a(f"s_add_u32 s{T2}, s{T0}, {i*8192}")
        a(f"buffer_load_dwordx4 v{VOA}, {sr(S_X)}, s{T2} offen lds"); vm.add("A")
    for i in range(8):
        if i % 4 == 0:
            a(f"s_add_u32 m0, s{W8K}, {i*1024}")
            a(f"s_add_u32 s{T2}, s{W8K}, {i*1024}")
        a(f"buffer_load_dwordx4 v{VL16}, {sr(S_KW)}, s{T2} offen offset:{(i%4)*1024} lds"); vm.add("A")
    srd(a, S_WR, P_WR, 2048)
    a(f"s_add_u32 m0, s{XBASE}, 4608")
    srd(a, S_W, P_WQ, 1024 * 2048)
    a(f"buffer_load_dword v7, {sr(S_WR)}, s{T1} offen lds"); vm.add("A")
    SLOTS = [114688, 139264, 65536, 90112, 0, 24576]
    def slot(c): return SLOTS[c % 6]
    a(f"s_lshl_b32 s{XO2}, s{RB}, 17")
    a(f"s_lshl_b32 s{OSO}, s{HB}, 8")
    def dmaB(c):
        a(f"s_lshl_b32 s{XSO}, s{ROT}, 7")
        a(f"s_add_u32 s{XSO}, s{XSO}, s{XO2}")
        a(f"s_add_u32 m0, s{W1K}, {slot(c)}")
        a(f"s_lshl_b32 s{WSO0}, s{ROT}, 17")
        a(f"buffer_load_dwordx4 v{VOX}, {sr(S_X)}, s{XSO} offen lds"); vm.add(("q", c))
        a(f"s_add_u32 s{WSO0}, s{WSO0}, s{OSO}")
        a(f"s_add_u32 m0, s{W2K}, {slot(c) + 8192}")
        a(f"s_add_u32 s{WSO1}, s{WSO0}, 8192")
        a(f"buffer_load_dwordx4 v{VOW}, {sr(S_W)}, s{WSO0} offen lds"); vm.add(("q", c))
        a(f"s_add_u32 m0, s{W2K}, {slot(c) + 8192 + 1024}")
        a(f"s_add_u32 s{ROT}, s{ROT}, 1")
        a(f"buffer_load_dwordx4 v{VOW}, {sr(S_W)}, s{WSO1} offen lds"); vm.add(("q", c))
        a(f"s_and_b32 s{ROT}, s{ROT}, 15")
    dmaB(0); dmaB(1)
    a("v_lshlrev_b32 v8, 7, v0")
    a("v_subrev_u32 v8, 0x8000, v8")
    a("s_cmp_lt_u32 s3, 4")
    l1 = L(); a(f"s_cbranch_scc1 {l1}")
    a("v_cmp_gt_u32 vcc, CODE_BYTES, v8")
    a(f"s_and_saveexec_b64 s[{EXS}:{EXS+1}], vcc")
    l2 = L(); a(f"s_cbranch_execz {l2}")
    a("global_load_dword v155, v8, s[94:95]")
    a.label(l2)
    a(f"s_mov_b64 exec, s[{EXS}:{EXS+1}]")
    a.label(l1)
    a(f"s_cmp_eq_u32 s{CNT}, 3")
    l1 = L(); a(f"s_cbranch_scc0 {l1}")
    a("s_waitcnt vmcnt(19)")
    a("v_mov_b32 v8, 1")
    a(f"global_store_dword v9, v8, s[{P_DBG}:{P_DBG+1}] sc1")
    a.label(l1)
    stamp(a, vm, 0)
    srd(a, S_KV, P_WS, 0x40000)
    srd(a, S_WG, P_WG, 1024 * 7168)
    srd(a, S_WU, P_WU, 1024 * 7168)
    XA, WA, D1, D2 = 160, 192, 224, 240
    a(f"v_mov_b32 v8, {ONES:#x}")
    a(f"v_add_u32 v9, s{XBASE}, v7")
    a("ds_write_b32 v9, v8 offset:4352")
    a(f"v_lshrrev_b32 v9, 2, v{VN}")
    a("v_mul_u32_u24 v9, 1088, v9")
    a(f"v_and_b32 v10, 3, v{VN}")
    a("v_lshl_add_u32 v9, v10, 8, v9")
    a(f"v_cmp_gt_u32 vcc, 16, v{VN}")
    a("v_mov_b32 v11, 4352")
    a("v_cndmask_b32 v9, v11, v9, vcc")
    a("v_cndmask_b32 v10, 0, v10, vcc")
    a(f"v_cmp_eq_u32 vcc, 17, v{VN}")
    a("v_mov_b32 v11, 4608")
    a("v_cndmask_b32 v9, v9, v11, vcc")
    a(f"v_add_u32 v9, s{XBASE}, v9")
    a(f"v_xor_b32 v10, v10, v{VH}")
    a("v_lshl_add_u32 v11, v10, 4, v9")
    a("v_xor_b32 v10, 2, v10")
    a("v_lshl_add_u32 v12, v10, 4, v9")
    a("v_bfe_u32 v13, v2, 2, 2")
    a(f"v_lshl_add_u32 v13, v{VH}, 3, v13")
    a("v_lshlrev_b32 v13, 6, v13")
    a("v_bfe_u32 v10, v2, 4, 1")
    a("v_lshl_add_u32 v13, v10, 5, v13")
    a("v_and_b32 v10, 3, v2")
    a("v_lshl_add_u32 v13, v10, 3, v13")
    a(f"v_add_u32 v13, s{W8K}, v13")
    a(f"v_add_u32 v14, s{W8K}, v{VL16}")
    vm.wait(a, "A")
    stamp(a, vm, 1)
    for s in range(8):
        a(f"ds_read_b128 v[{XA+4*s}:{XA+4*s+3}], v{11 + (s & 1)} offset:{(s >> 1) * 64}")
    for s in range(8):
        for u in range(2):
            a(f"ds_read_b64_tr_b16 v[{WA+4*s+2*u}:{WA+4*s+2*u+1}], v13 offset:{(16*s+4*u)*64}")
    a("s_waitcnt lgkmcnt(15)")
    for s in range(8):
        c = "0" if s == 0 else f"v[{D2}:{D2+15}]"
        a(f"v_mfma_f32_32x32x16_bf16 v[{D2}:{D2+15}], v[{XA+4*s}:{XA+4*s+3}], v[{XA+4*s}:{XA+4*s+3}], {c}")
    a("s_waitcnt lgkmcnt(0)")
    a(f"s_cmp_eq_u32 s{SEL}, 0")
    lv, lj = L(), L()
    a(f"s_cbranch_scc0 {lv}")
    for s in range(8):
        c = "0" if s == 0 else f"v[{D1}:{D1+15}]"
        a(f"v_mfma_f32_32x32x16_bf16 v[{D1}:{D1+15}], v[{WA+4*s}:{WA+4*s+3}], v[{XA+4*s}:{XA+4*s+3}], {c}")
    a(f"s_branch {lj}")
    a.label(lv)
    for s in range(8):
        c = "0" if s == 0 else f"v[{D1}:{D1+15}]"
        a(f"v_mfma_f32_32x32x16_bf16 v[{D1}:{D1+15}], v[{XA+4*s}:{XA+4*s+3}], v[{WA+4*s}:{WA+4*s+3}], {c}")
    a.label(lj)
    for q in range(3):
        a(f"ds_write_b128 v14, v[{D2+4*q}:{D2+4*q+3}] offset:{(4+q)*1024}")
    VXA, VW = 8, 21
    VXA = 32
    VW = 44
    MA, IDXC, IDXD, STAT = 24, 28, 29, 30
    XF, WF, ACC, CS = 64, 96, 128, 144
    BASES = [0, 65536, 114688]
    a(f"v_bfe_u32 v5, v{VN}, 1, 3")
    a(f"v_xor_b32 v5, v5, v{VH}")
    a(f"s_lshl_b32 s{T0}, s{RT}, 12")
    a(f"v_lshlrev_b32 v6, 7, v{VN}")
    a(f"v_add_u32 v6, s{T0}, v6")
    for s in range(4):
        a(f"v_xor_b32 v8, {2*s}, v5")
        a(f"v_lshl_add_u32 v{VXA+s}, v8, 4, v6")
    for q in range(4):
        a(f"ds_write_b128 v14, v[{D1+4*q}:{D1+4*q+3}] offset:{q*1024}")
    for s in range(4):
        a(f"v_add_u32 v{VXA+4+s}, {BASES[1]}, v{VXA+s}")
        a(f"v_add_u32 v{VXA+8+s}, {BASES[2]}, v{VXA+s}")
    a("v_bfe_u32 v5, v2, 2, 2")
    a(f"v_lshl_add_u32 v6, v{VH}, 3, v5")
    a("v_lshlrev_b32 v6, 8, v6")
    a(f"v_xor_b32 v5, s{HD}, v5")
    a("v_lshl_add_u32 v6, v5, 6, v6")
    a("v_bfe_u32 v5, v2, 4, 1")
    a("v_lshl_add_u32 v6, v5, 5, v6")
    a("v_and_b32 v5, 3, v2")
    a("v_lshl_add_u32 v6, v5, 3, v6")
    for i in range(3): a(f"v_add_u32 v{VW+i}, {BASES[i] + 8192}, v6")
    a("v_bfe_u32 v5, v2, 2, 1")
    a("v_cmp_eq_u32 vcc, 0, v5")
    a(f"v_mov_b32 v6, {ONES:#x}")
    a(f"v_cndmask_b32 v{MA}, 0, v6, vcc")
    a(f"v_cndmask_b32 v{MA+1}, 0, v6, vcc")
    a(f"v_cndmask_b32 v{MA+2}, v6, 0, vcc")
    a(f"v_cndmask_b32 v{MA+3}, v6, 0, vcc")
    a("v_and_b32 v5, 1, v2")
    a("v_cmp_eq_u32 vcc, 0, v5")
    a("v_mov_b32 v6, 0x44444444")
    a("v_mov_b32 v8, 0xeeeeeeee")
    a(f"v_cndmask_b32 v{IDXC}, v8, v6, vcc")
    a(f"v_mov_b32 v{IDXD}, 0xdddddddd")
    for i in range(4): a(f"v_mov_b32 v{CS+i}, 0")
    def base_of(so):
        bi = max(i for i in range(3) if BASES[i] <= so)
        return bi, so - BASES[bi]
    def readsB(c):
        b = c & 1
        bi, so = base_of(slot(c))
        out = []
        for s in range(4):
            out.append(f"ds_read_b128 v[{XF+16*b+4*s}:{XF+16*b+4*s+3}], v{VXA+4*bi+s} offset:{so}")
            for u in range(2):
                r0 = WF + 16*b + 4*s + 2*u
                out.append(f"ds_read_b64_tr_b16 v[{r0}:{r0+1}], v{VW+bi} offset:{so + (16*s+4*u)*256}")
        return out
    def mfmasB(c):
        b = c & 1
        out = []
        for s in range(4):
            cc = "0" if (c == 0 and s == 0) else f"v[{ACC}:{ACC+15}]"
            out.append(f"v_mfma_f32_32x32x16_bf16 v[{ACC}:{ACC+15}], v[{WF+16*b+4*s}:{WF+16*b+4*s+3}], v[{XF+16*b+4*s}:{XF+16*b+4*s+3}], {cc}")
            if s & 1:
                out.append(f"v_smfmac_f32_16x16x64_bf16 v[{CS}:{CS+3}], v[{MA}:{MA+3}], v[{WF+16*b+4*s-4}:{WF+16*b+4*s+3}], v{IDXC}")
        return out
    def kv_dma(i, chunk, ldsbase):
        if i == 0:
            a(f"s_add_u32 m0, s{W4K}, {ldsbase}")
            a(f"s_add_u32 s{XSO}, s{W4K}, {chunk * 32768}")
        a(f"buffer_load_dwordx4 v{VL16}, {sr(S_KV)}, s{XSO} offen offset:{i*1024} sc1 lds"); vm.add(("kv", chunk))

    F = 160
    def fin_reads():
        a("v_and_b32 v5, 15, v2")
        a("v_lshlrev_b32 v6, 4, v5")
        for w in range(8):
            a(f"ds_read_b64 v[{F+2*w}:{F+2*w+1}], v6 offset:{w*8192+6*1024}")
        a("v_bfe_u32 v8, v5, 2, 1")
        a("v_lshl_add_u32 v8, v8, 9, v6")
        a("v_lshrrev_b32 v9, 3, v5")
        a("v_lshl_add_u32 v8, v9, 10, v8")
        a("v_and_b32 v9, 3, v5")
        a("v_lshl_add_u32 v8, v9, 2, v8")
        for w in range(8):
            a(f"ds_read_b32 v{F+16+w}, v8 offset:{w*8192+4*1024}")
        a(f"v_mov_b32 v9, {16*16 + 4}")
        for w in range(8):
            a(f"ds_read_b32 v{F+24+w}, v9 offset:{w*8192+6*1024}")
        a(f"s_cmp_eq_u32 s{SEL}, 0")
        lv, lj = L(), L()
        a(f"s_cbranch_scc0 {lv}")
        a("v_bfe_u32 v9, v2, 4, 1")
        a("v_lshlrev_b32 v8, 9, v9")
        a(f"v_lshl_add_u32 v8, v{VH}, 10, v8")
        a(f"v_add_u32 v8, s{W2K}, v8")
        a("v_add_u32 v9, v8, v6")
        for w in range(8):
            a(f"ds_read_b128 v[{F+32+4*w}:{F+35+4*w}], v9 offset:{w*8192}")
        for w in range(8):
            a(f"ds_read_b128 v[{F+64+4*w}:{F+67+4*w}], v8 offset:{w*8192+256}")
        a(f"s_branch {lj}")
        a.label(lv)
        a(f"v_add_u32 v9, s{W1K}, v{VL16}")
        for w in range(8):
            a(f"ds_read_b128 v[{F+32+4*w}:{F+35+4*w}], v9 offset:{w*8192}")
        a(f"v_lshlrev_b32 v8, 4, v{VN}")
        for w in range(8):
            a(f"ds_read_b32 v{F+64+w}, v8 offset:{w*8192+2048}")
        a.label(lj)
    def fin_compute():
        a("v_mov_b32 v9, 0")
        a(f"global_load_dword v154, v9, s[{P_DBG}:{P_DBG+1}] sc1")
        for w in range(1, 8):
            a(f"v_add_f32 v{F}, v{F}, v{F+2*w}")
            a(f"v_add_f32 v{F+1}, v{F+1}, v{F+2*w+1}")
            a(f"v_add_f32 v{F+16}, v{F+16}, v{F+16+w}")
            a(f"v_add_f32 v{F+24}, v{F+24}, v{F+24+w}")
        M, RI = F + 2, F + 3
        a(f"v_mul_f32 v{F}, {f32(1/1024)}, v{F}")
        a(f"v_mul_f32 v{F+16}, {f32(1/1024)}, v{F+16}")
        a(f"v_fma_f32 v{F+16}, -v{F}, v{F}, v{F+16}")
        a(f"v_max_f32 v{F+16}, 0, v{F+16}")
        bf16r(a, M, F)
        bf16r(a, F+16, F+16)
        a(f"v_add_f32 v{F+16}, {f32(1e-5)}, v{F+16}")
        bf16r(a, F+16, F+16)
        a(f"v_sqrt_f32 v{F+16}, v{F+16}")
        for e in range(4): a(f"v_add_f32 v{F+32+e}, v{F+32+e}, v{F+36+e}")
        bf16r(a, F+16, F+16)
        a(f"v_rcp_f32 v{RI}, v{F+16}")
        for w in range(2, 8):
            for e in range(4): a(f"v_add_f32 v{F+32+e}, v{F+32+e}, v{F+32+4*w+e}")
        a(f"s_lshr_b32 s{T0}, s{RG}, 1")
        a(f"s_lshl_b32 s{T0}, s{T0}, 12")
        a(f"s_and_b32 s{T1}, s{RG}, 1")
        a(f"s_cmp_eq_u32 s{SEL}, 0")
        lv, lj = L(), L()
        a(f"s_cbranch_scc0 {lv}")
        for w in range(1, 8):
            for e in range(4): a(f"v_add_f32 v{F+64+e}, v{F+64+e}, v{F+64+4*w+e}")
        a("v_and_b32 v8, 3, v5")
        a("v_bfe_u32 v9, v5, 2, 1")
        a("v_lshl_add_u32 v8, v9, 3, v8")
        a("v_bfe_u32 v9, v5, 3, 1")
        a("v_lshl_add_u32 v8, v9, 2, v8")
        a("v_bfe_u32 v9, v2, 4, 1")
        a("v_lshl_add_u32 v8, v9, 5, v8")
        a("v_lshlrev_b32 v8, 4, v8")
        a(f"v_lshl_add_u32 v8, v{VH}, 3, v8")
        a(f"s_add_u32 s{T0}, s{T0}, s{W1K}")
        a(f"s_lshl_b32 s{T1}, s{T1}, 8")
        a(f"s_add_u32 s{T0}, s{T0}, s{T1}")
        for e in range(4): a(f"v_fma_f32 v{F+32+e}, -v{M}, v{F+64+e}, v{F+32+e}")
        for e in range(4): a(f"v_mul_f32 v{F+32+e}, v{F+32+e}, v{RI}")
        a(f"v_cvt_pk_bf16_f32 v{F+36}, v{F+32}, v{F+33}")
        a(f"v_cvt_pk_bf16_f32 v{F+37}, v{F+34}, v{F+35}")
        a(f"buffer_store_dwordx2 v[{F+36}:{F+37}], v8, {sr(S_WS)}, s{T0} offen sc1")
        a("s_cmp_eq_u32 s3, 0")
        a(f"s_cbranch_scc0 {lj}")
        R = F + 1
        a(f"v_fma_f32 v{R}, -v{M}, v{F+24}, v{R}")
        a(f"v_mul_f32 v{R}, v{R}, v{RI}")
        a(f"v_cvt_pk_bf16_f32 v{R}, v{R}, v{R}")
        a(f"v_ashrrev_i32 v8, 31, v{R}")
        a("v_or_b32 v8, 0x80000000, v8")
        a(f"v_xor_b32 v{R}, v{R}, v8")
        a(f"v_and_b32 v{R}, 0xffff0000, v{R}")
        a(f"s_lshl_b32 s{T0}, s{RG}, 4")
        a(f"v_add_u32 v8, s{T0}, v5")
        a("v_sub_u32 v8, 0xffff, v8")
        a(f"v_or_b32 v{R}, v{R}, v8")
        for sh in (8, 4, 2, 1):
            a(f"v_max_u32_dpp v{R}, v{R}, v{R} row_ror:{sh} row_mask:0xf bank_mask:0xf")
        a("v_lshlrev_b32 v8, 3, v5")
        a(f"s_lshl_b32 s{T0}, s{RG}, 7")
        a(f"s_add_u32 s{T0}, s{T0}, {WS_STAT:#x}")
        a(f"s_lshl_b32 s{T1}, s{RG}, 2")
        a(f"s_add_u32 s{T1}, s{T1}, {WS_RKEY:#x}")
        a("s_mov_b64 exec, 0xffff")
        a(f"buffer_store_dwordx2 v[{M}:{RI}], v8, {sr(S_WS)}, s{T0} offen sc1")
        a("s_mov_b64 exec, 1")
        a(f"buffer_store_dword v{R}, v8, {sr(S_WS)}, s{T1} offen sc1")
        a("s_mov_b64 exec, -1")
        a(f"s_branch {lj}")
        a.label(lv)
        a.flush()
        a(f"s_lshl_b32 s{T2}, s3, 5")
        a(f"v_lshlrev_b32 v8, 4, v{VH}")
        a(f"v_add_u32 v8, s{T2}, v8")
        for e in range(4):
            a(f"ds_bpermute_b32 v{F+4+e}, v8, v{M} offset:{4*e}")
            a(f"ds_bpermute_b32 v{F+8+e}, v8, v{RI} offset:{4*e}")
        for w in range(1, 8): a(f"v_add_f32 v{F+64}, v{F+64}, v{F+64+w}")
        a(f"s_lshl_b32 s{T1}, s{T1}, 10")
        a(f"s_add_u32 s{T0}, s{T0}, s{T1}")
        a(f"s_lshl_b32 s{T1}, s3, 3")
        a(f"s_add_u32 s{T0}, s{T0}, s{T1}")
        a(f"s_add_u32 s{T0}, s{T0}, 2048")
        a("s_waitcnt lgkmcnt(0)")
        for e in range(4): a(f"v_fma_f32 v{F+32+e}, -v{F+4+e}, v{F+64}, v{F+32+e}")
        for e in range(4): a(f"v_mul_f32 v{F+32+e}, v{F+32+e}, v{F+8+e}")
        a(f"v_cvt_pk_bf16_f32 v{F+36}, v{F+32}, v{F+33}")
        a(f"v_cvt_pk_bf16_f32 v{F+37}, v{F+34}, v{F+35}")
        a(f"buffer_store_dwordx2 v[{F+36}:{F+37}], v{VL16}, {sr(S_WS)}, s{T0} offen sc1")
        a.label(lj)
        a.flush()
        a("v_mov_b32 v8, 0")
        a(f"s_lshl_b32 s{T0}, s2, 7")
        a(f"s_lshl_b32 s{T1}, s3, 6")
        a(f"s_add_u32 s{T0}, s{T0}, s{T1}")
        a(f"s_add_u32 s{T0}, s{T0}, {WS_YACC:#x}")
        a("v_lshlrev_b32 v9, 2, v2")
        a("s_mov_b64 exec, 0xffff")
        a(f"buffer_store_dword v8, v9, {sr(S_WS)}, s{T0} offen sc1")
        a("s_mov_b64 exec, -1")
    def fin_arrive(n_after):
        a(f"s_waitcnt vmcnt({n_after})")
        top, done = L(), L()
        a(f"s_mov_b32 s{CNT}, 0")
        a("v_mov_b32 v9, 0")
        a.label(top)
        a("v_cmp_eq_u32 vcc, 0, v154")
        a(f"s_add_u32 s{CNT}, s{CNT}, 1")
        a(f"s_cbranch_vccz {done}")
        a(f"global_load_dword v154, v9, s[{P_DBG}:{P_DBG+1}] sc1")
        a("s_waitcnt vmcnt(0)")
        a(f"s_cmp_lt_u32 s{CNT}, {SPIN_MAX}")
        a(f"s_cbranch_scc1 {top}")
        a.label(done)
        a(f"s_lshr_b32 s{T0}, s2, 3")
        a(f"s_lshl_b32 s{T0}, s{T0}, 7")
        a(f"s_add_u32 s{T0}, s{T0}, {SY1:#x}")
        a("v_mov_b32 v8, 1")
        a("s_mov_b64 exec, 1")
        a(f"buffer_atomic_add v8, v9, {sr(S_WS)}, s{T0} offen sc1")
        a("s_mov_b64 exec, -1")
    def only(cond_cmp, fn):
        skip = L()
        a(cond_cmp)
        a(f"s_cbranch_scc0 {skip}")
        snap = a.snapshot()
        fn()
        a.label(skip)
        a.join(snap)

    RK = 150
    for c in range(16):
        vm.wait(a, ("q", c))
        if c == 0: a("s_waitcnt lgkmcnt(0)")
        if c == 14:
            def chk():
                a(f"s_waitcnt vmcnt({vm_poll_after})")
                poll(a, 152, 153, f"s{T3}", 16, first_done=True)
                if "noinv" not in VAR: a("buffer_inv sc1")
            only("s_cmp_eq_u32 s3, 7", chk)
        a("s_barrier")
        if c == 0:
            stamp(a, vm, 2)
            dmaB(2); dmaB(3)
            only("s_cmp_lt_u32 s3, 2", fin_reads)
        r = readsB(c)
        m = mfmasB(c - 1) if c > 0 else []
        if c == 1:
            for i in range(6):
                a(r[2*i]); a(r[2*i+1]); a(m[i])
            only("s_cmp_lt_u32 s3, 2", fin_compute)
            dmaB(4); dmaB(5); dmaB(6)
            a("s_waitcnt lgkmcnt(0)")
            continue
        if 2 <= c <= 10: dmaB(c + 5)
        if c == 13:
            a("v_lshlrev_b32 v152, 7, v3")
            a(f"s_mov_b32 s{T3}, {SY1:#x}")
            def issue():
                a(f"buffer_load_dword v153, v152, {sr(S_WS)}, s{T3} offen sc1")
            only("s_cmp_eq_u32 s3, 7", issue)
            vm_poll_after = 0
        if c == 14:
            for i in range(4): kv_dma(i, 0, 0)
            a(f"s_lshl_b32 s{T0}, s{ROWT}, 8")
            a(f"s_add_u32 s{T0}, s{T0}, {WS_STAT:#x}")
            a(f"v_lshlrev_b32 v5, 3, v{VN}")
            a(f"buffer_load_dwordx2 v[{STAT}:{STAT+1}], v5, {sr(S_WS)}, s{T0} offen sc1"); vm.add("stat")
            a("v_lshlrev_b32 v5, 3, v2")
            a(f"s_mov_b32 s{T0}, {WS_RKEY:#x}")
            a(f"buffer_load_dwordx2 v[{RK}:{RK+1}], v5, {sr(S_WS)}, s{T0} offen sc1"); vm.add("rk")
            for i in range(4): kv_dma(i, 1, 32768)
        for i in range(6):
            a(r[2*i]); a(r[2*i+1])
            if m: a(m[i])
        if c == 2:
            only("s_cmp_lt_u32 s3, 2", lambda: fin_arrive(12))
        a("s_waitcnt lgkmcnt(0)")
    for x in mfmasB(15): a(x)
    stamp(a, vm, 3)
    QF, NM, SA, SB, OA, LS, KA, VA = 32, 40, 64, 80, 96, 112, 116, 56
    a(f"v_add_f32 v6, v{CS}, v{CS+1}")
    a("v_cvt_pk_bf16_f32 v5, v6, v6")
    a("v_lshlrev_b32 v5, 16, v5")
    a("v_sub_f32 v5, v6, v5")
    a("v_cvt_pk_bf16_f32 v8, v6, v5")
    a("v_and_b32 v6, 0xffff0000, v8")
    a("v_sub_f32 v5, v5, v6")
    a("v_cvt_pk_bf16_f32 v9, v5, 0")
    a("v_mov_b32 v10, 0"); a("v_mov_b32 v11, 0"); a("v_mov_b32 v14, 0"); a("v_mov_b32 v15, 0")
    a("v_and_b32 v5, 3, v2")
    a("v_cmp_eq_u32 vcc, 0, v5")
    for i in range(16): a(f"v_mov_b32 v{OA+i}, 0")
    for i in range(4): a(f"v_cndmask_b32 v{MA+i}, 0, v{MA+i}, vcc")
    for i in range(4): a(f"v_mov_b32 v{LS+i}, 0")
    for i in range(8): a(f"v_mov_b32 v{SB+8+i}, 0")
    for i in range(4): a(f"v_mov_b32 v{VA+4+i}, 0")
    a(f"v_cmp_eq_u32 vcc, 0, v{VH}")
    vm.wait(a, "stat")
    a("s_barrier")
    a(f"ds_read_b128 v[{KA}:{KA+3}], v{VL16}")
    a(f"ds_read_b128 v[{KA+4}:{KA+7}], v{VL16} offset:1024")
    a(f"v_cvt_pk_bf16_f32 v12, -v{STAT}, -v{STAT}")
    a("v_cndmask_b32 v12, 0, v12, vcc")
    a("v_mov_b32 v13, v12")
    a(f"v_mul_f32 v6, {f32(QSCALE)}, v{STAT+1}")
    a(f"v_mfma_f32_32x32x16_bf16 v[{ACC}:{ACC+15}], v[8:11], v[12:15], v[{ACC}:{ACC+15}]")
    ffn = FFN(a, vm, locals())
    ffn.setup()
    for i in range(16): a(f"v_mul_f32 v{ACC+i}, v{ACC+i}, v6")
    for i in range(8): a(f"v_cvt_pk_bf16_f32 v{QF+i}, v{ACC+2*i}, v{ACC+2*i+1}")
    a("s_waitcnt lgkmcnt(0)")
    a(f"v_mfma_f32_32x32x16_bf16 v[{SA}:{SA+15}], v[{KA}:{KA+3}], v[{QF}:{QF+3}], 0")
    a(f"v_mfma_f32_32x32x16_bf16 v[{SA}:{SA+15}], v[{KA+4}:{KA+7}], v[{QF+4}:{QF+7}], v[{SA}:{SA+15}]")
    VK1 = 21
    a(f"v_add_u32 v{VK1}, 0x10000, v{VL16}")
    ffn.argmax()
    a(f"v_max3_f32 v6, v{SA}, v{SA+1}, v{SA+2}")
    for i in range(3, 15, 2): a(f"v_max3_f32 v6, v6, v{SA+i}, v{SA+i+1}")
    a(f"v_max_f32 v6, v6, v{SA+15}")
    a("v_mov_b32 v5, v6")
    a("v_permlane32_swap_b32 v6, v5")
    a("v_max_f32 v6, v6, v5")
    for i in range(16): a(f"v_sub_f32 v{NM+i}, 0, v6")
    a(f"v_mfma_f32_32x32x16_bf16 v[{SA}:{SA+15}], v[{KA}:{KA+3}], v[{QF}:{QF+3}], v[{NM}:{NM+15}]")
    a(f"v_mfma_f32_32x32x16_bf16 v[{SA}:{SA+15}], v[{KA+4}:{KA+7}], v[{QF+4}:{QF+7}], v[{SA}:{SA+15}]")
    def kvaddr(tile, off):
        p = ((tile >> 3) % 3) * 32768 + (tile & 7) * 4096 + off
        return (f"v{VL16} offset:{p}" if p < 65536 else f"v{VK1} offset:{p - 65536}")
    a(f"ds_read_b128 v[{KA}:{KA+3}], {kvaddr(1, 0)}")
    a(f"ds_read_b128 v[{KA+4}:{KA+7}], {kvaddr(1, 1024)}")
    a(f"ds_read_b128 v[{VA}:{VA+3}], {kvaddr(0, 2048)}")
    stamp(a, vm, 4)
    for T in range(64):
        c, t = T >> 3, T & 7
        S, P = (SA, SB) if T % 2 == 0 else (SB, SA)
        e = lambda i: a(f"v_exp_f32 v{S+i}, v{S+i}")
        a(f"s_setprio {3 - ((T + 1) & 3)}")
        e(0); e(1)
        a("s_waitcnt lgkmcnt(3)")
        a(f"v_smfmac_f32_32x32x32_bf16 v[{OA}:{OA+15}], v[{VA+4}:{VA+7}], v[{P+8}:{P+15}], v{IDXD}")
        a(f"ds_read_b128 v[{VA+4}:{VA+7}], {kvaddr(T, 3072)}")
        e(2); e(3); e(4)
        a(f"v_smfmac_f32_16x16x64_bf16 v[{LS}:{LS+3}], v[{MA}:{MA+3}], v[{P+8}:{P+15}], v{IDXD}")
        e(5)
        if T < 63:
            a("s_waitcnt lgkmcnt(2)")
            a(f"v_mfma_f32_32x32x16_bf16 v[{P}:{P+15}], v[{KA}:{KA+3}], v[{QF}:{QF+3}], v[{NM}:{NM+15}]")
        e(6); e(7); e(8)
        if T < 63:
            a(f"v_mfma_f32_32x32x16_bf16 v[{P}:{P+15}], v[{KA+4}:{KA+7}], v[{QF+4}:{QF+7}], v[{P}:{P+15}]")
        if t == 6 and c < 7:
            ffn.before_barrier(c)
            vm.wait(a, ("kv", c + 1))
            a("s_barrier")
        if t == 7 and c + 2 <= 7: kv_dma(0, c + 2, ((c + 2) % 3) * 32768)
        if t <= 2 and c >= 1 and c + 1 <= 7: kv_dma(t + 1, c + 1, ((c + 1) % 3) * 32768)
        tk = min(T + 2, 63)
        a(f"ds_read_b128 v[{KA}:{KA+3}], {kvaddr(tk, 0)}")
        a(f"ds_read_b128 v[{KA+4}:{KA+7}], {kvaddr(tk, 1024)}")
        e(9); e(10); e(11)
        a("s_waitcnt lgkmcnt(3)")
        a(f"v_smfmac_f32_32x32x32_bf16 v[{OA}:{OA+15}], v[{VA}:{VA+3}], v[{S}:{S+7}], v{IDXD}")
        a(f"ds_read_b128 v[{VA}:{VA+3}], {kvaddr(min(T + 1, 63), 2048)}")
        e(12); e(13); e(14)
        a(f"v_smfmac_f32_16x16x64_bf16 v[{LS}:{LS+3}], v[{MA}:{MA+3}], v[{S}:{S+7}], v{IDXD}")
        e(15)
        ffn.tile_end(T)
    a("s_setprio 0")
    a("s_waitcnt lgkmcnt(0)")
    a(f"v_smfmac_f32_32x32x32_bf16 v[{OA}:{OA+15}], v[{VA+4}:{VA+7}], v[{SB+8}:{SB+15}], v{IDXD}")
    a(f"v_smfmac_f32_16x16x64_bf16 v[{LS}:{LS+3}], v[{MA}:{MA+3}], v[{SB+8}:{SB+15}], v{IDXD}")
    stamp(a, vm, 5)
    phaseD(a, vm, locals())
    a.label("L_end")
    a("s_endpgm")
    fallback(a, locals())

FBASE = 98304
class FFN:
    VGU, VTR, VOD, VTD, XSL, XST, TMP, XS, WB, DG, DU = 160, 161, 162, 163, 164, 166, 168, 176, 192, 224, 228
    XR2, ST2, VXO = 232, 240, 242
    FB, GSO, DSO, YSO = 66, 67, 94, 95
    def __init__(self, a, vm, env):
        self.a, self.vm, self.env = a, vm, env
    def setup(self):
        a = self.a; VH, VL16 = self.env["VH"], self.env["VL16"]
        a(f"s_add_u32 s{self.FB}, s{W8K}, {FBASE}")
        a(f"s_lshl_b32 s{self.GSO}, s{FCG}, 5")
        a(f"s_lshl_b32 s{self.DSO}, s{FCG}, 15")
        a(f"s_and_b32 s{self.YSO}, s2, 7")
        a(f"s_lshl_b32 s{self.YSO}, s{self.YSO}, 12")
        a(f"s_lshl_b32 s{T0}, s3, 9")
        a(f"s_add_u32 s{self.YSO}, s{self.YSO}, s{T0}")
        a(f"s_add_u32 s{self.YSO}, s{self.YSO}, {WS_YACC:#x}")
        a("s_cmp_lt_u32 s2, 224")
        a(f"s_cselect_b32 s{self.GSO}, s{self.GSO}, 0x40000000")
        a(f"s_cselect_b32 s{self.DSO}, s{self.DSO}, 0x40000000")
        a(f"s_cselect_b32 s{self.YSO}, s{self.YSO}, 0x40000000")
        srd(a, S_WD, P_WD, 3584 * 2048)
        srd(a, S_W, P_WO, 1024 * 2048)
        srd(a, S_OUT, P_OUT, 2048 * 2048)
    def setup2(self):
        a = self.a; VH, VOW = self.env["VH"], self.env["VOW"]
        t = self.TMP
        a(f"v_lshrrev_b32 v{t}, 1, v2")
        a(f"s_lshl_b32 s{T0}, s3, 7")
        a(f"v_add_u32 v{t}, s{T0}, v{t}")
        a(f"v_mul_u32_u24 v{t}, 7168, v{t}")
        a(f"v_and_b32 v{t+1}, 1, v2")
        a(f"v_lshl_add_u32 v{self.VGU}, v{t+1}, 4, v{t}")
    def setup3(self):
        a = self.a; VH, VOW = self.env["VH"], self.env["VOW"]
        t = self.TMP
        a(f"v_and_b32 v{t}, 15, v2")
        a(f"v_lshrrev_b32 v{t+1}, 4, v2")
        a(f"v_lshlrev_b32 v{t+1}, 8, v{t+1}")
        a(f"v_lshl_add_u32 v{t}, v{t}, 3, v{t+1}")
        a(f"v_add_u32 v{self.VTR}, s{self.FB}, v{t}")
        a(f"s_mul_i32 s{T0}, s3, {16384 - 256}")
        a(f"v_subrev_u32 v{self.VOD}, s{T0}, v{VOW}")
    def setup4(self):
        a = self.a; VH = self.env["VH"]
        t = self.TMP
        a(f"v_bfe_u32 v{t}, v2, 2, 2")
        a(f"v_mul_u32_u24 v{t}, 320, v{t}")
        a(f"v_lshl_add_u32 v{t}, v{VH}, 11, v{t}")
        a(f"v_bfe_u32 v{t+1}, v2, 4, 1")
        a(f"v_lshl_add_u32 v{t}, v{t+1}, 5, v{t}")
        a(f"v_and_b32 v{t+1}, 3, v2")
        a(f"v_lshl_add_u32 v{t}, v{t+1}, 3, v{t}")
        a(f"v_add_u32 v{self.VTD}, s{self.FB}, v{t}")
    def argmax(self):
        a, vm = self.a, self.vm; RK = self.env["RK"]
        vm.wait(a, "rk")
        a(f"v_max_u32 v{RK}, v{RK}, v{RK+1}")
        for sh in (8, 4, 2, 1):
            a(f"v_max_u32_dpp v{RK}, v{RK}, v{RK} row_ror:{sh} row_mask:0xf bank_mask:0xf")
        a(f"v_lshlrev_b32 v{self.TMP}, 2, v2")
        a(f"v_readlane_b32 s{T0}, v{RK}, 0")
        a(f"v_readlane_b32 s{T1}, v{RK}, 16")
        a(f"v_readlane_b32 s{T2}, v{RK}, 32")
        a(f"v_readlane_b32 s{T3}, v{RK}, 48")
        a(f"v_mov_b32 v{self.TMP+1}, 0")
        a(f"s_max_u32 s{T0}, s{T0}, s{T1}")
        a(f"s_max_u32 s{T2}, s{T2}, s{T3}")
        a(f"s_max_u32 s{RKEY}, s{T0}, s{T2}")
        a(f"s_and_b32 s{IDX}, s{RKEY}, 0xffff")
        a(f"s_sub_u32 s{IDX}, 0xffff, s{IDX}")
        a(f"s_and_b32 s{IDX}, s{IDX}, 2047")
        a(f"s_lshl_b32 s{T0}, s{IDX}, 11")
        a(f"s_lshl_b32 s{T1}, s3, 8")
        a(f"s_add_u32 s{T0}, s{T0}, s{T1}")
        a(f"buffer_load_dword v{self.XSL}, v{self.TMP}, {sr(S_X)}, s{T0} offen"); vm.add("xs")
        a(f"s_lshl_b32 s{T0}, s{IDX}, 3")
        a(f"s_add_u32 s{T0}, s{T0}, {WS_STAT:#x}")
        a(f"buffer_load_dwordx2 v[{self.XST}:{self.XST+1}], v{self.TMP+1}, {sr(S_WS)}, s{T0} offen sc1"); vm.add("xs")
    def gu_dma(self, mat, j):
        a = self.a
        a(f"s_add_u32 m0, s{self.FB}, {mat*4096 + j*1024}")
        a(f"s_add_u32 s{T0}, s{self.GSO}, {j*32*7168}")
        a(f"buffer_load_dwordx4 v{self.VGU}, {sr(S_WU if mat else S_WG)}, s{T0} offen nt lds"); self.vm.add("gu")
    def before_barrier(self, c):
        pass
    def tile_end(self, T):
        a, vm, t = self.a, self.vm, self.TMP
        VH, VL16, VN = self.env["VH"], self.env["VL16"], self.env["VN"]
        only = self.env["only"]
        if T == 0: self.setup2()
        if T == 1: self.setup3()
        if 2 <= T <= 5: self.gu_dma(0, T - 2)
        if T == 7: self.setup4()
        if T == 8:
            vm.wait(a, "xs")
            a(f"v_lshlrev_b32 v{t}, 16, v{self.XSL}")
            a(f"v_and_b32 v{t+1}, 0xffff0000, v{self.XSL}")
            a(f"v_sub_f32 v{t}, v{t}, v{self.XST}")
            a(f"v_sub_f32 v{t+1}, v{t+1}, v{self.XST}")
            a(f"v_cvt_pk_bf16_f32 v{t+2}, v{t}, v{t+1}")
            a(f"v_lshlrev_b32 v{t}, 16, v{t+2}")
            a(f"v_and_b32 v{t+1}, 0xffff0000, v{t+2}")
            a(f"v_mul_f32 v{t}, v{t}, v{self.XST+1}")
            a(f"v_mul_f32 v{t+1}, v{t+1}, v{self.XST+1}")
            a(f"v_cvt_pk_bf16_f32 v{t+2}, v{t}, v{t+1}")
            a(f"v_lshlrev_b32 v{t+3}, 2, v2")
            a(f"v_add_u32 v{t+3}, s{self.FB}, v{t+3}")
            a(f"ds_write_b32 v{t+3}, v{t+2} offset:7168")
            a(f"v_and_b32 v{t+4}, 0x30, v2")
            a(f"v_add_u32 v{t+4}, s{self.FB}, v{t+4}")
            for s in range(4):
                a(f"ds_read_b128 v[{self.XS+4*s}:{self.XS+4*s+3}], v{t+4} offset:{7168 + 64*s}")
        if 10 <= T <= 13: self.gu_dma(1, T - 10)
        if T == 14:
            a(f"s_lshr_b32 s{T0}, s2, 3")
            a(f"s_lshl_b32 s{T0}, s{T0}, 16")
            a(f"v_lshlrev_b32 v{t}, 7, v0")
            a(f"buffer_load_dword v155, v{t}, {sr(S_W)}, s{T0} offen"); vm.add("pf")
        if T in (24, 25):
            if T == 24: vm.wait(a, "gu")
            m = T - 24
            for s in range(4):
                for u in range(2):
                    r0 = self.WB + 16*m + 4*s + 2*u
                    a(f"ds_read_b64_tr_b16 v[{r0}:{r0+1}], v{self.VTR} offset:{m*4096 + (32*s+4*u)*32}")
        if T in (25, 26):
            m = T - 25
            D = self.DU if m else self.DG
            for s in range(4):
                c = "0" if s == 0 else f"v[{D}:{D+3}]"
                a(f"v_mfma_f32_16x16x32_bf16 v[{D}:{D+3}], v[{self.XS+4*s}:{self.XS+4*s+3}], v[{self.WB+16*m+4*s}:{self.WB+16*m+4*s+3}], {c}")
        if 26 <= T <= 29:
            j = T - 26
            a(f"s_add_u32 m0, s{self.FB}, {j*1024}")
            a(f"s_add_u32 s{T0}, s{self.DSO}, {j*8192}")
            a(f"buffer_load_dwordx4 v{self.VOD}, {sr(S_WD)}, s{T0} offen nt lds"); vm.add("wd")
        if T == 27:
            a(f"v_mov_b32_dpp v{self.DG}, v{self.DU} quad_perm:[0,1,2,3] row_mask:0xa bank_mask:0xf")
            a(f"ds_write_b32 v{t+3}, v{self.DG} offset:4096")
        if T == 31:
            def rd():
                a(f"v_lshlrev_b32 v{t}, 2, v{VN}")
                a(f"v_lshl_add_u32 v{t}, v{VH}, 15, v{t}")
                a(f"v_add_u32 v{t}, {FBASE + 4096}, v{t}")
                for w in range(4): a(f"ds_read_b32 v{self.DG+w}, v{t} offset:{w*8192}")
            only("s_cmp_eq_u32 s3, 0", rd)
        if T == 32:
            def hh():
                G = self.DG
                a(f"v_add_f32 v{G}, v{G}, v{G+1}")
                a(f"v_add_f32 v{G+2}, v{G+2}, v{G+3}")
                a(f"v_add_f32 v{G}, v{G}, v{G+2}")
                a(f"v_mov_b32 v{G+1}, v{G}")
                a(f"v_permlane32_swap_b32 v{G}, v{G+1}")
                a(f"v_add_f32 v{G}, v{G}, v{G+1}")
                bf16r(a, G, G)
                a(f"v_mov_b32 v{G+1}, v{G}")
                a(f"v_permlane16_swap_b32 v{G}, v{G+1}")
                a(f"v_mul_f32 v{G+2}, {f32(-LOG2E)}, v{G}")
                a(f"v_exp_f32 v{G+2}, v{G+2}")
                a(f"v_add_f32 v{G+2}, 1.0, v{G+2}")
                a(f"v_rcp_f32 v{G+2}, v{G+2}")
                a(f"v_mul_f32 v{G}, v{G}, v{G+2}")
                bf16r(a, G, G)
                a(f"v_mul_f32 v{G}, v{G}, v{G+1}")
                a(f"v_cvt_pk_bf16_f32 v{G}, v{G}, v{G}")
                a(f"v_and_b32 v{t}, 15, v2")
                a(f"v_lshlrev_b32 v{t}, 1, v{t}")
                a(f"v_add_u32 v{t}, {FBASE + 4096 + 256}, v{t}")
                a(f"ds_write_b16 v{t}, v{G}")
            only("s_cmp_eq_u32 s3, 0", hh)
        HF, WD, DD = 168, 176, 192
        if T == 39:
            vm.wait(a, "wd")
            a(f"v_lshlrev_b32 v{t+4}, 4, v{VH}")
            a(f"v_add_u32 v{t+4}, {FBASE + 4096 + 256}, v{t+4}")
            a(f"ds_read_b128 v[{HF}:{HF+3}], v{t+4}")
            for j in range(4):
                if j: a(f"v_xor_b32 v{t+4+j}, {64*j}, v{self.VTD}")
                ad = (t + 4 + j) if j else self.VTD
                for u in range(2):
                    a(f"ds_read_b64_tr_b16 v[{WD+4*j+2*u}:{WD+4*j+2*u+1}], v{ad} offset:{u*1024}")
        if T in (40, 41):
            for j in (2*(T-40), 2*(T-40)+1):
                a(f"v_mfma_f32_32x32x16_bf16 v[{DD+16*j}:{DD+16*j+15}], v[{HF}:{HF+3}], v[{WD+4*j}:{WD+4*j+3}], 0")
        if T == 42:
            a(f"v_mov_b32_dpp v{DD}, v{DD+16} quad_perm:[0,1,2,3] row_mask:0xc bank_mask:0xf")
            a(f"v_mov_b32_dpp v{DD+32}, v{DD+48} quad_perm:[0,1,2,3] row_mask:0xc bank_mask:0xf")
            a(f"v_lshlrev_b32 v{t+4}, 2, v2")
            a(f"buffer_atomic_add_f32 v{DD}, v{t+4}, {sr(S_WS)}, s{self.YSO} offen"); vm.add("at")
            a(f"buffer_atomic_add_f32 v{DD+32}, v{t+4}, {sr(S_WS)}, s{self.YSO} offen offset:256"); vm.add("at")
        if T == 55:
            def arr():
                a(f"s_lshr_b32 s{T0}, s2, 3")
                a(f"s_lshl_b32 s{T0}, s{T0}, 7")
                a(f"s_add_u32 s{T0}, s{T0}, {SY3:#x}")
                a(f"v_mov_b32 v{t}, 1")
                a(f"v_mov_b32 v{t+1}, 0")
                a("s_mov_b64 exec, 1")
                a(f"buffer_atomic_add v{t}, v{t+1}, {sr(S_WS)}, s{T0} offen sc1")
                a("s_mov_b64 exec, -1")
            only("s_cmp_eq_u32 s3, 0", arr)
        if T == 56:
            a(f"v_lshlrev_b32 v{self.VXO}, 11, v{VN}")
            a(f"v_lshl_add_u32 v{self.VXO}, v{VH}, 5, v{self.VXO}")
            a(f"s_lshl_b32 s{T1}, s{RB2}, 1")
            a(f"s_add_u32 s{T1}, s{T1}, s{RT}")
            a(f"s_lshl_b32 s{XO2}, s{T1}, 16")
            a(f"s_lshl_b32 s{T0}, s{CB2}, 8")
            a(f"s_add_u32 s{XO2}, s{XO2}, s{T0}")
            a(f"s_lshl_b32 s{T0}, s{HD}, 6")
            a(f"s_add_u32 s{XO2}, s{XO2}, s{T0}")
            a(f"buffer_load_dwordx4 v[{self.XR2}:{self.XR2+3}], v{self.VXO}, {sr(S_X)}, s{XO2} offen"); vm.add("x2")
            a(f"s_lshl_b32 s{T0}, s{T1}, 8")
            a(f"s_add_u32 s{T0}, s{T0}, {WS_STAT:#x}")
            a(f"v_lshlrev_b32 v{t}, 3, v{VN}")
            a(f"buffer_load_dwordx2 v[{self.ST2}:{self.ST2+1}], v{t}, {sr(S_WS)}, s{T0} offen sc1"); vm.add("x2")
        if T == 59:
            a(f"buffer_load_dwordx4 v[{self.XR2+4}:{self.XR2+7}], v{self.VXO}, {sr(S_X)}, s{XO2} offen offset:16"); vm.add("x2")

def phaseD(a, vm, env):
    VL16, VN, VH, VOW, only = env["VL16"], env["VN"], env["VH"], env["VOW"], env["only"]
    OA, LS, SA = env["OA"], env["LS"], env["SA"]
    XR, ST, VXO = FFN.XR2, FFN.ST2, FFN.VXO
    a(f"s_lshl_b32 s{T0}, s{ROWT}, 5")
    a(f"s_lshl_b32 s{T1}, s{HB}, 2")
    a(f"s_add_u32 s{T0}, s{T0}, s{T1}")
    a(f"s_add_u32 s{T0}, s{T0}, s{HD}")
    a(f"s_lshl_b32 s{T0}, s{T0}, 11")
    a(f"s_add_u32 s{OSO}, s{T0}, {WS_OF:#x}")
    a(f"s_lshl_b32 s{ROT}, s{CB2}, 1")
    a(f"s_mov_b32 s{RG}, s{ROT}")
    a(f"s_lshl_b32 s{SEL}, s{CB2}, 8")
    a("v_mov_b32 v5, 0")
    a(f"v_mov_b32 v6, {f32(2.0**64)}")
    for i in range(16): a(f"v_fma_f32 v5, v{OA+i}, 0, v5")
    a(f"v_add_f32 v5, v5, v{LS}")
    a("v_cmp_nlt_f32 vcc, v5, v6")
    a("s_nop 1")
    if "forcefb" in VAR: a("s_branch L_fallback")
    a("s_cbranch_vccnz L_fallback")
    a.label("L_fin")
    a(f"v_rcp_f32 v6, v{LS}")
    for i in range(16): a(f"v_mul_f32 v{OA+i}, v{OA+i}, v6")
    for i in range(8): a(f"v_cvt_pk_bf16_f32 v{SA+i}, v{OA+2*i}, v{OA+2*i+1}")
    a(f"buffer_store_dwordx4 v[{SA}:{SA+3}], v{VL16}, {sr(S_WS)}, s{OSO} offen sc1"); vm.add("ost")
    a(f"buffer_store_dwordx4 v[{SA+4}:{SA+7}], v{VL16}, {sr(S_WS)}, s{OSO} offen offset:1024 sc1"); vm.add("ost")
    WS_ = [98304, 114688, 131072, 147456, 49152, 65536, 81920]
    def wslot(c): return WS_[c % 7]
    def oslot(c): return (c % 6) * 8192
    def dmaW(c):
        a(f"s_lshl_b32 s{WSO0}, s{ROT}, 17")
        a(f"s_add_u32 m0, s{W2K}, {wslot(c)}")
        a(f"s_add_u32 s{WSO0}, s{WSO0}, s{SEL}")
        a(f"buffer_load_dwordx4 v{VOW}, {sr(S_W)}, s{WSO0} offen lds"); vm.add(("w", c))
        a(f"s_add_u32 m0, s{W2K}, {wslot(c) + 1024}")
        a(f"s_add_u32 s{WSO1}, s{WSO0}, 8192")
        a(f"buffer_load_dwordx4 v{VOW}, {sr(S_W)}, s{WSO1} offen lds"); vm.add(("w", c))
        a(f"s_add_u32 s{ROT}, s{ROT}, 1")
        a(f"s_and_b32 s{ROT}, s{ROT}, 15")
    def dmaO(c):
        a(f"s_lshl_b32 s{XSO}, s{RG}, 12")
        a(f"s_add_u32 m0, s{W1K}, {oslot(c)}")
        a(f"s_add_u32 s{XSO}, s{XSO}, s{XBASE}")
        a(f"buffer_load_dwordx4 v{VL16}, {sr(S_WS)}, s{XSO} offen sc1 lds"); vm.add(("o", c))
        a(f"s_add_u32 s{RG}, s{RG}, 1")
        a(f"s_and_b32 s{RG}, s{RG}, 15")
    for c in range(4): dmaW(c)
    a(f"s_lshl_b32 s{XBASE}, s{RB2}, 1")
    a(f"s_lshr_b32 s{T0}, s3, 2")
    a(f"s_add_u32 s{XBASE}, s{XBASE}, s{T0}")
    a(f"s_lshl_b32 s{XBASE}, s{XBASE}, 16")
    a(f"s_and_b32 s{T0}, s3, 3")
    a(f"s_lshl_b32 s{T0}, s{T0}, 10")
    a(f"s_add_u32 s{XBASE}, s{XBASE}, s{T0}")
    a(f"s_add_u32 s{XBASE}, s{XBASE}, {WS_OF:#x}")
    VOF, VWD = 8, 9
    XFL, G, XF, WF, ACC, YV = 32, 48, 64, 96, 128, 160
    a(f"s_lshl_b32 s{T0}, s{RT}, 12")
    a(f"v_add_u32 v{VOF}, s{T0}, v{VL16}")
    a("v_bfe_u32 v5, v2, 2, 2")
    a(f"v_lshl_add_u32 v6, v{VH}, 2, v5")
    a("v_lshlrev_b32 v6, 8, v6")
    a(f"v_xor_b32 v5, s{HD}, v5")
    a("v_lshl_add_u32 v6, v5, 6, v6")
    a("v_and_b32 v5, 1, v2")
    a("v_lshl_add_u32 v6, v5, 5, v6")
    a("v_bfe_u32 v5, v2, 4, 1")
    a("v_lshl_add_u32 v6, v5, 4, v6")
    a("v_bfe_u32 v5, v2, 1, 1")
    a("v_lshl_add_u32 v6, v5, 3, v6")
    a(f"v_add_u32 v{VWD}, 49152, v6")
    a(f"v_add_u32 v{VWD+1}, 98304, v6")
    vm.wait(a, "ost")
    a("s_barrier")
    def arr():
        a(f"s_lshl_b32 s{T0}, s{RB}, 7")
        a(f"s_add_u32 s{T0}, s{T0}, {SY2:#x}")
        a("v_mov_b32 v5, 1")
        a("v_mov_b32 v6, 0")
        a("s_mov_b64 exec, 1")
        a(f"buffer_atomic_add v5, v6, {sr(S_WS)}, s{T0} offen sc1")
        a("s_mov_b64 exec, -1")
    only("s_cmp_eq_u32 s3, 0", arr)
    stamp(a, vm, 6)
    for c in range(4, 7): dmaW(c)
    a(f"s_lshl_b32 s{T1}, s{RB2}, 1")
    a(f"s_add_u32 s{T1}, s{T1}, s{RT}")
    a(f"s_lshr_b32 s{T0}, s{IDX}, 5")
    a(f"s_cmp_eq_u32 s{T0}, s{T1}")
    a(f"s_cselect_b32 s{FCG}, 1, 0")
    def ypath():
        a(f"v_lshlrev_b32 v5, 7, v{VN}")
        a(f"s_mov_b32 s{T3}, {SY3:#x}")
        poll(a, 5, 6, f"s{T3}", 8)
        if "noinv" not in VAR: a("buffer_inv sc1")
        a(f"s_lshl_b32 s{T0}, s{CB2}, 9")
        a(f"s_lshl_b32 s{T1}, s{HD}, 7")
        a(f"s_add_u32 s{T0}, s{T0}, s{T1}")
        a(f"s_add_u32 s{T0}, s{T0}, {WS_YACC:#x}")
        a(f"v_lshlrev_b32 v5, 6, v{VH}")
        for rep in range(8):
            dst = YV if rep == 0 else XF + 16 * ((rep - 1) % 4)
            if rep == 5:
                a("s_waitcnt vmcnt(0)")
                for k in range(4):
                    for i in range(16): a(f"v_add_f32 v{YV+i}, v{YV+i}, v{XF+16*k+i}")
            for q in range(4):
                a(f"buffer_load_dwordx4 v[{dst+4*q}:{dst+4*q+3}], v5, {sr(S_WS)}, s{T0} offen offset:{16*q} sc1")
            a(f"s_add_u32 s{T0}, s{T0}, 4096")
        a(f"s_and_b32 s{T1}, s{RKEY}, 0xffff0000")
        a(f"s_xor_b32 s{T2}, s{T1}, 0x80000000")
        a(f"s_xor_b32 s{T3}, s{T1}, 0xffff0000")
        a(f"s_bitcmp1_b32 s{T1}, 31")
        a(f"s_cselect_b32 s{T1}, s{T2}, s{T3}")
        a(f"v_mov_b32 v6, s{T1}")
        a(f"v_mul_f32 v6, {f32(-LOG2E)}, v6")
        a("v_exp_f32 v6, v6")
        a("v_add_f32 v6, 1.0, v6")
        a("v_rcp_f32 v6, v6")
        bf16r(a, 6, 6)
        a(f"s_and_b32 s{T1}, s{IDX}, 31")
        a(f"v_cmp_eq_u32 vcc, s{T1}, v{VN}")
        a("s_waitcnt vmcnt(0)")
        for k in range(3):
            for i in range(16): a(f"v_add_f32 v{YV+i}, v{YV+i}, v{XF+16*k+i}")
        for i in range(16):
            bf16r(a, YV+i, YV+i)
            a(f"v_mul_f32 v{YV+i}, v{YV+i}, v6")
            bf16r(a, YV+i, YV+i)
            a(f"v_cndmask_b32 v{YV+i}, 0, v{YV+i}, vcc")
    only(f"s_cmp_eq_u32 s{FCG}, 1", ypath)
    def chk():
        a("v_mov_b32 v5, 0")
        a(f"s_lshl_b32 s{T3}, s{RB2}, 7")
        a(f"s_add_u32 s{T3}, s{T3}, {SY2:#x}")
        poll(a, 5, 6, f"s{T3}", 8)
        if "noinv" not in VAR: a("buffer_inv sc1")
    only("s_cmp_eq_u32 s3, 7", chk)
    a("s_barrier")
    stamp(a, vm, 7)
    for c in range(6): dmaO(c)
    def reads(c):
        b = c & 1
        ws_ = wslot(c)
        wb, wo_ = (VWD, ws_ - 49152) if ws_ < 98304 else (VWD + 1, ws_ - 98304)
        out = []
        for s in range(4):
            out.append(f"ds_read_b128 v[{XF+16*b+4*s}:{XF+16*b+4*s+3}], v{VOF} offset:{oslot(c) + s*1024}")
            for u in range(2):
                r0 = WF + 16*b + 4*s + 2*u
                out.append(f"ds_read_b64_tr_b16 v[{r0}:{r0+1}], v{wb} offset:{wo_ + (16*s+8*u)*256}")
        return out
    def mfmas(c):
        b = c & 1
        return [f"v_mfma_f32_32x32x16_bf16 v[{ACC}:{ACC+15}], v[{WF+16*b+4*s}:{WF+16*b+4*s+3}], v[{XF+16*b+4*s}:{XF+16*b+4*s+3}], " +
                ("0" if (c == 0 and s == 0) else f"v[{ACC}:{ACC+15}]") for s in range(4)]
    gate, gatey, gate2 = [], [], []
    for p in range(8):
        lo, hi, g0, g1 = XFL + 2*p, XFL + 2*p + 1, G + 2*p, G + 2*p + 1
        gate += [f"v_lshlrev_b32 v{lo}, 16, v{XR+p}", f"v_and_b32 v{hi}, 0xffff0000, v{XR+p}",
                 f"v_sub_f32 v{g0}, v{lo}, v{ST}", f"v_sub_f32 v{g1}, v{hi}, v{ST}",
                 f"v_cvt_pk_bf16_f32 v12, v{g0}, v{g1}",
                 f"v_lshlrev_b32 v{g0}, 16, v12", f"v_and_b32 v{g1}, 0xffff0000, v12",
                 f"v_mul_f32 v{g0}, v{g0}, v{ST+1}", f"v_mul_f32 v{g1}, v{g1}, v{ST+1}",
                 f"v_cvt_pk_bf16_f32 v12, v{g0}, v{g1}",
                 f"v_lshlrev_b32 v{g0}, 16, v12", f"v_and_b32 v{g1}, 0xffff0000, v12"]
        gatey += [f"v_add_f32 v{g0}, v{g0}, v{YV+2*p}", f"v_add_f32 v{g1}, v{g1}, v{YV+2*p+1}",
                  f"v_cvt_pk_bf16_f32 v12, v{g0}, v{g1}",
                  f"v_lshlrev_b32 v{g0}, 16, v12", f"v_and_b32 v{g1}, 0xffff0000, v12"]
        gate2 += [f"v_mul_f32 v12, {f32(-LOG2E)}, v{g0}", f"v_mul_f32 v13, {f32(-LOG2E)}, v{g1}",
                  "v_exp_f32 v12, v12", "v_exp_f32 v13, v13",
                  "v_add_f32 v12, 1.0, v12", "v_add_f32 v13, 1.0, v13",
                  "v_rcp_f32 v12, v12", "v_rcp_f32 v13, v13",
                  f"v_mul_f32 v{g0}, v{g0}, v12", f"v_mul_f32 v{g1}, v{g1}, v13",
                  f"v_cvt_pk_bf16_f32 v12, v{g0}, v{g1}",
                  f"v_lshlrev_b32 v{g0}, 16, v12", f"v_and_b32 v{g1}, 0xffff0000, v12"]
    for x in gate: a(x)
    only(f"s_cmp_eq_u32 s{FCG}, 1", lambda: [a(x) for x in gatey])
    for c in range(16):
        vm.wait(a, ("w", c)); vm.wait(a, ("o", c))
        a("s_barrier")
        if c >= 1:
            if c + 5 < 16: dmaO(c + 5)
            if c + 6 < 16: dmaW(c + 6)
        r = reads(c)
        m = mfmas(c - 1) if c > 0 else []
        g2 = gate2[13*(c-1):13*c] if 1 <= c <= 8 else []
        for i in range(4):
            a(r[3*i]); a(r[3*i+1]); a(r[3*i+2])
            if m: a(m[i])
            for x in g2[4*i:4*i+4]: a(x)
        a("s_waitcnt lgkmcnt(0)")
    for x in mfmas(15): a(x)
    stamp(a, vm, 8)
    for i in range(16): a(f"v_fma_f32 v{ACC+i}, v{ACC+i}, v{G+i}, v{XFL+i}")
    for i in range(8): a(f"v_cvt_pk_bf16_f32 v{XR+i}, v{ACC+2*i}, v{ACC+2*i+1}")
    a(f"buffer_store_dwordx4 v[{XR}:{XR+3}], v{VXO}, {sr(S_OUT)}, s{XO2} offen")
    a(f"buffer_store_dwordx4 v[{XR+4}:{XR+7}], v{VXO}, {sr(S_OUT)}, s{XO2} offen offset:16")
    stamp(a, vm, 9)

def fallback(a, env):
    VL16, QF, NM, SA, OA, LS, KA, VA, MA, IDXD = [env[k] for k in "VL16 QF NM SA OA LS KA VA MA IDXD".split()]
    a.label("L_fallback")
    a.flush()
    a("v_mov_b32 v6, 0xff800000")
    a(f"s_mov_b32 s{T0}, 0")
    a.label("L_fb1")
    a(f"buffer_load_dwordx4 v[{KA}:{KA+3}], v{VL16}, {sr(S_KV)}, s{T0} offen sc1")
    a(f"buffer_load_dwordx4 v[{KA+4}:{KA+7}], v{VL16}, {sr(S_KV)}, s{T0} offen offset:1024 sc1")
    a("s_waitcnt vmcnt(0)")
    a(f"v_mfma_f32_32x32x16_bf16 v[{SA}:{SA+15}], v[{KA}:{KA+3}], v[{QF}:{QF+3}], 0")
    a(f"v_mfma_f32_32x32x16_bf16 v[{SA}:{SA+15}], v[{KA+4}:{KA+7}], v[{QF+4}:{QF+7}], v[{SA}:{SA+15}]")
    for i in range(0, 16, 2): a(f"v_max3_f32 v6, v6, v{SA+i}, v{SA+i+1}")
    a(f"s_add_u32 s{T0}, s{T0}, 4096")
    a(f"s_cmp_lt_u32 s{T0}, 0x40000")
    a("s_cbranch_scc1 L_fb1")
    a("v_mov_b32 v5, v6")
    a("v_permlane32_swap_b32 v6, v5")
    a("v_max_f32 v6, v6, v5")
    for i in range(16): a(f"v_sub_f32 v{NM+i}, 0, v6")
    for i in range(16): a(f"v_mov_b32 v{OA+i}, 0")
    for i in range(4): a(f"v_mov_b32 v{LS+i}, 0")
    a(f"s_mov_b32 s{T0}, 0")
    a.label("L_fb2")
    a(f"buffer_load_dwordx4 v[{KA}:{KA+3}], v{VL16}, {sr(S_KV)}, s{T0} offen sc1")
    a(f"buffer_load_dwordx4 v[{KA+4}:{KA+7}], v{VL16}, {sr(S_KV)}, s{T0} offen offset:1024 sc1")
    a(f"buffer_load_dwordx4 v[{VA}:{VA+3}], v{VL16}, {sr(S_KV)}, s{T0} offen offset:2048 sc1")
    a(f"buffer_load_dwordx4 v[{VA+4}:{VA+7}], v{VL16}, {sr(S_KV)}, s{T0} offen offset:3072 sc1")
    a("s_waitcnt vmcnt(0)")
    a(f"v_mfma_f32_32x32x16_bf16 v[{SA}:{SA+15}], v[{KA}:{KA+3}], v[{QF}:{QF+3}], v[{NM}:{NM+15}]")
    a(f"v_mfma_f32_32x32x16_bf16 v[{SA}:{SA+15}], v[{KA+4}:{KA+7}], v[{QF+4}:{QF+7}], v[{SA}:{SA+15}]")
    for i in range(16): a(f"v_exp_f32 v{SA+i}, v{SA+i}")
    a(f"v_smfmac_f32_32x32x32_bf16 v[{OA}:{OA+15}], v[{VA}:{VA+3}], v[{SA}:{SA+7}], v{IDXD}")
    a(f"v_smfmac_f32_16x16x64_bf16 v[{LS}:{LS+3}], v[{MA}:{MA+3}], v[{SA}:{SA+7}], v{IDXD}")
    a(f"v_smfmac_f32_32x32x32_bf16 v[{OA}:{OA+15}], v[{VA+4}:{VA+7}], v[{SA+8}:{SA+15}], v{IDXD}")
    a(f"v_smfmac_f32_16x16x64_bf16 v[{LS}:{LS+3}], v[{MA}:{MA+3}], v[{SA+8}:{SA+15}], v{IDXD}")
    a(f"s_add_u32 s{T0}, s{T0}, 4096")
    a(f"s_cmp_lt_u32 s{T0}, 0x40000")
    a("s_nop 7")
    a("s_cbranch_scc1 L_fb2")
    a.flush()
    a("s_branch L_fin")
    a.label("L_code_end")

def build(path):
    a = Asm()
    kernel(a)
    top = open("cdna_kernels/" + NAME + ".s.ref").read().split("; Override launch geometry")[0]
    top += "; @launch grid=(256,1,1) block=(512,1,1) lds=163840\n"
    top += '.amdgcn_target "amdgcn-amd-amdhsa--gfx950"\n.text\n'
    top += f".set CODE_BYTES, L_code_end - {KN} - 64\n"
    kd = f""".section .rodata,"a"
.p2align 6
.amdhsa_kernel {KN}
  .amdhsa_next_free_vgpr 256
  .amdhsa_next_free_sgpr 102
  .amdhsa_accum_offset 256
  .amdhsa_group_segment_fixed_size 0
  .amdhsa_kernarg_size 104
  .amdhsa_user_sgpr_count 2
  .amdhsa_user_sgpr_kernarg_segment_ptr 1
  .amdhsa_system_sgpr_workgroup_id_x 1
.end_amdhsa_kernel
"""
    open(path, "w").write(top + a.text() + kd)
    return a

if __name__ == "__main__":
    out = sys.argv[1] if len(sys.argv) > 1 else "cdna_kernels/" + NAME + ".s"
    if len(sys.argv) > 2 and sys.argv[2] == "stamps": STAMPS = True
    VAR.update(sys.argv[3:])
    a = build(out)
    if "-v" in VAR:
        for l in a.log: print("nop", l)
```

```python
import sys, struct
from asmlib import Asm

NAME = "recurrent_scan__grouped_kv_mqa__moe_arch_mod__prompt"
KN = NAME + "_kernel"
WS_KV, WS_STAT, WS_RKEY, WS_SY, WS_YACC, WS_GU, WS_STAMP, WS_OF = 0x0, 0x40000, 0x46000, 0x48000, 0x50000, 0x58000, 0x80000, 0x100000
WS_SIZE = 0x500000
SY1, SY2, SY3, SY4 = 0x60000, WS_SY + 32 * 128, WS_SY + 64 * 128, WS_SY + 128 * 128
ONES = 0x3F803F80
LOG2E = 1.4426950408889634
QSCALE = 0.17677669529663687 * LOG2E
def f32(x): return "0x%08x" % struct.unpack("<I", struct.pack("<f", x))[0]
STAMPS = False
VAR = set()
SPIN_MAX = 200000
N_INIT = 9
CHK, PI = 11, 9
VAR.add('hold')
D_POLL = 4
WT_IT, WT_POS = 3, 2
ALIGN = 0

S_X, S_W, S_KW, S_WS, S_KV, S_WR, S_WG, S_WU = 4, 8, 12, 16, 20, 24, 28, 32
S_OUT, S_WD = S_WR, S_KW
RB, HB, ROT, T0, T1, T2, T3 = 36, 37, 38, 39, 40, 41, 42
W1K, MODE, W4K, XSO, TD, SP, RT, HD, ROWT, RG = 43, 44, 45, 46, 47, 48, 49, 50, 51, 52
SEL, IDX, RKEY, FCG, RB2, CB2, OSO, XO2, CNT, OBASE = 53, 54, 55, 56, 57, 58, 59, 60, 61, 62
W8K, EXS, FW = 63, 64, 66
PT = 68
P_X, P_WQ, P_WK, P_WV, P_WO, P_BX, P_WR, P_WG, P_WU, P_WD, P_OUT, P_DBG, P_WS = [PT + 2 * i for i in range(13)]
STMP = 96
def sr(b): return f"s[{b}:{b+3}]"
def vr(b, n): return f"v[{b}:{b+n-1}]"

VN, VH, VOX, VOW, VL16, VST = 3, 4, 18, 19, 20, 21
MA, IDXC, IDXD, STAT = 24, 28, 29, 30

def srd(a, d, base, nbytes):
    a(f"s_mov_b32 s{d}, s{base}")
    a(f"s_and_b32 s{d+1}, s{base+1}, 0xffff")
    a(f"s_mov_b32 s{d+2}, {nbytes:#x}")
    a(f"s_mov_b32 s{d+3}, 0x20000")

def bf16r(a, dst, src):
    a(f"v_cvt_pk_bf16_f32 v{dst}, v{src}, v{src}")
    a(f"v_lshlrev_b32 v{dst}, 16, v{dst}")

_lbl = [0]
def L(p="L"):
    _lbl[0] += 1
    return f"{p}_{_lbl[0]}"

class Cnt:
    def __init__(self, a, name, mx): self.a, self.name, self.mx, self.tags, self.total, self.marks = a, name, mx, [], 0, {}
    def add(self, tag, n=1): self.tags += [tag] * n; self.total += n
    def mark(self, m): self.marks[m] = self.total
    def since(self, m): return min(self.total - self.marks[m], self.mx)
    def wait(self, *tags):
        idx = [i for i, t in enumerate(self.tags) if t in tags]
        if not idx: return
        n = min(len(self.tags) - 1 - max(idx), self.mx)
        self.a(f"s_waitcnt {self.name}({n})")
        self.tags = self.tags[len(self.tags) - n:] if n else []
    def wait_all(self):
        self.a(f"s_waitcnt {self.name}(0)"); self.tags = []

STAMP_NAMES = []
class K:
    def __init__(self):
        self.a = Asm()
        self.vm = Cnt(self.a, "vmcnt", 63)
        self.lg = Cnt(self.a, "lgkmcnt", 15)
    def stamp(self, name):
        if not STAMPS: return
        a = self.a
        slot = len(STAMP_NAMES); STAMP_NAMES.append(str(name)); assert slot < 32
        if name != "entry":
            a(f"s_memrealtime s[{STMP}:{STMP+1}]")
            a(f"s_memtime s[{STMP+2}:{STMP+3}]")
        a("s_waitcnt lgkmcnt(0)")
        a(f"s_lshl_b32 s{STMP+1}, s2, 11")
        a(f"s_lshl_b32 s{STMP+3}, s3, 8")
        a(f"s_add_u32 s{STMP+1}, s{STMP+1}, s{STMP+3}")
        a(f"s_add_u32 s{STMP+1}, s{STMP+1}, {WS_STAMP + slot * 8:#x}")
        a(f"v_mov_b32 v{VST+1}, s{STMP}")
        a(f"v_mov_b32 v{VST+2}, s{STMP+2}")
        a(f"v_mov_b32 v{VST}, s{STMP+1}")
        a(f"buffer_store_dwordx2 v[{VST+1}:{VST+2}], v{VST}, {sr(S_WS)}, 0 offen")
        self.vm.add("st")
    def only(self, cond, fn):
        a = self.a; skip = L()
        a(cond); a(f"s_cbranch_scc0 {skip}")
        snap = a.snapshot(); fn(); a.label(skip); a.join(snap)
    def ifelse(self, cond, f1, f2):
        a = self.a; lv, lj = L(), L()
        a(cond); a(f"s_cbranch_scc0 {lv}")
        snap = a.snapshot(); f1(); a(f"s_branch {lj}"); snap2 = a.snapshot()
        a.label(lv); a.hist = snap[0]; a.alts = [(h, 0) for h in snap[1:]]
        f2(); a.label(lj); a.join(snap2)
    def poll(self, vaddr, vdat, soff, expect, cnt=CNT):
        a = self.a; top, chk, done = L("poll"), L("pchk"), L("pdone")
        a(f"s_mov_b32 s{cnt}, 0")
        a(f"s_branch {chk}")
        a.label(top)
        a(f"buffer_load_dword v{vdat}, v{vaddr}, {sr(S_WS)}, s{soff} offen sc1")
        a("s_waitcnt vmcnt(0)")
        a.label(chk)
        a(f"v_cmp_ne_u32 vcc, {expect}, v{vdat}")
        a(f"s_add_u32 s{cnt}, s{cnt}, 1")
        a(f"s_cbranch_vccz {done}")
        a("s_sleep 2")
        a(f"s_cmp_lt_u32 s{cnt}, {SPIN_MAX}")
        a(f"s_cbranch_scc1 {top}")
        a.label(done)
    def ds(self, text, tag):
        self.a(text); self.lg.add(tag)

class Pager:
    def __init__(self, k, free, seq):
        self.k, self.free, self.seq, self.pos, self.page, self.rel = k, list(free), seq, 0, {}, {}
        self.hold, self.hold_until, self.log = set(), 0, []
    def release(self, it):
        for p in self.rel.pop(it, []): self.free.append(p)
    def take(self, n, stop=None):
        out = []
        while len(out) < n and self.pos < len(self.seq):
            tag, emit, last, pref = self.seq[self.pos]
            if stop is not None and tag == stop: break
            cand = [p for p in pref if p in self.free and not (p in self.hold and (last is None or last + 2 > self.hold_until))]
            if not cand: break
            p = cand[0]; self.free.remove(p); self.page[tag] = p
            if last is not None: self.rel.setdefault(last + 2, []).append(p)
            out.append((tag, emit(p))); self.pos += 1
        self.log.append([(t, self.page[t]) for t, _ in out])
        return out
    def issue(self, grp):
        tag, text = grp
        self.k.a(text); self.k.vm.add(tag)

def spread(groups, extra, first=True):
    n = len(groups)
    per = -(-len(extra) // max(n, 1)) if extra else 0
    for i, g in enumerate(groups):
        for e in extra[i * per:(i + 1) * per]: e()
        g()
    for e in extra[n * per:]: e()

def prologue(k):
    a, vm = k.a, k.vm
    a.raw(f".globl {KN}"); a.raw(".p2align 8"); a.raw(f".type {KN},@function"); a.raw(f"{KN}:")
    if STAMPS:
        a(f"s_memrealtime s[{STMP}:{STMP+1}]")
        a(f"s_memtime s[{STMP+2}:{STMP+3}]")
    a("s_cmp_ge_u32 s2, 256")
    a("s_cbranch_scc1 L_end")
    a(f"s_load_dwordx16 s[{PT}:{PT+15}], s[0:1], 0")
    a(f"s_load_dwordx8 s[{PT+16}:{PT+23}], s[0:1], 64")
    a(f"s_load_dwordx2 s[{PT+24}:{PT+25}], s[0:1], 96")
    a("s_getpc_b64 s[94:95]")
    a("v_lshrrev_b32 v1, 6, v0")
    a("v_and_b32 v2, 63, v0")
    a("v_readfirstlane_b32 s3, v1")
    a("s_and_b32 s4, s2, 0xf8")
    a("s_lshl_b32 s4, s4, 7")
    a("v_lshlrev_b32 v8, 7, v0")
    a("v_cmp_gt_u32 vcc, 8, v0")
    a("v_add_u32 v8, s4, v8")
    a("v_min_u32 v8, CODE_BYTES, v8")
    a(f"s_and_saveexec_b64 s[{EXS}:{EXS+1}], vcc")
    l2 = L(); a(f"s_cbranch_execz {l2}")
    a("global_load_dword v47, v8, s[94:95]")
    a.label(l2)
    a(f"s_mov_b64 exec, s[{EXS}:{EXS+1}]")
    a(f"v_lshlrev_b32 v{VL16}, 4, v2")
    a(f"v_and_b32 v{VN}, 31, v2")
    a(f"v_lshrrev_b32 v{VH}, 5, v2")
    a(f"s_and_b32 s{T0}, s2, 7")
    a(f"s_lshr_b32 s{T1}, s2, 3")
    a(f"s_lshr_b32 s{RB}, s{T0}, 1")
    a(f"s_lshl_b32 s{RB}, s{RB}, 3")
    a(f"s_and_b32 s{SEL}, s{T0}, 1")
    a(f"s_lshl_b32 s{T2}, s{SEL}, 2")
    a(f"s_add_u32 s{RB2}, s{RB}, s{T2}")
    a(f"s_and_b32 s{T3}, s{T1}, 3")
    a(f"s_add_u32 s{RB2}, s{RB2}, s{T3}")
    a(f"s_lshr_b32 s{CB2}, s{T1}, 2")
    a(f"s_and_b32 s{ROT}, s{T1}, 7")
    a(f"s_add_u32 s{RB}, s{RB}, s{ROT}")
    a(f"s_lshr_b32 s{T3}, s{T1}, 3")
    a(f"s_add_u32 s{HB}, s{T2}, s{T3}")
    a(f"s_lshl_b32 s{RG}, s{RB}, 2")
    a(f"s_add_u32 s{RG}, s{RG}, s{T3}")
    a(f"s_mul_i32 s{FCG}, s{T0}, 28")
    a(f"s_add_u32 s{FCG}, s{FCG}, s{T1}")
    a(f"s_lshl_b32 s{W1K}, s3, 10")
    a(f"s_lshl_b32 s{W4K}, s3, 12")
    a(f"s_lshl_b32 s{W8K}, s3, 13")
    a(f"s_and_b32 s{RT}, s3, 1")
    a(f"s_lshr_b32 s{HD}, s3, 1")
    a(f"s_lshl_b32 s{ROWT}, s{RB}, 1")
    a(f"s_add_u32 s{ROWT}, s{ROWT}, s{RT}")
    a(f"s_lshl_b32 s{XO2}, s{RB}, 17")
    a(f"s_lshl_b32 s{OSO}, s{HB}, 8")
    a(f"s_sub_u32 s{FW}, s3, 1")
    a("s_cmp_lt_u32 s3, 4")
    a(f"s_cselect_b32 s{MODE}, s{SEL}, 2")
    a("v_lshrrev_b32 v5, 4, v2")
    a(f"s_lshl_b32 s{T0}, s3, 2")
    a(f"v_add_u32 v6, s{T0}, v5")
    a("v_xor_b32 v7, v6, v2")
    a("v_and_b32 v7, 7, v7")
    a("v_lshlrev_b32 v7, 4, v7")
    a("v_lshrrev_b32 v8, 3, v2")
    a("v_lshl_add_u32 v7, v8, 11, v7")
    a(f"s_lshl_b32 s{T0}, s3, 14")
    a(f"v_add_u32 v{VOX}, s{T0}, v7")
    a("v_lshrrev_b32 v7, 2, v2")
    a("v_lshlrev_b32 v7, 11, v7")
    a("v_and_b32 v8, 3, v2")
    a("v_lshl_add_u32 v7, v8, 4, v7")
    a(f"s_lshl_b32 s{T0}, s{RT}, 16")
    a(f"s_lshl_b32 s{T1}, s{HD}, 6")
    a(f"s_add_u32 s{T0}, s{T0}, s{T1}")
    a(f"v_add_u32 v{VOW}, s{T0}, v7")
    a("v_lshlrev_b32 v7, 2, v2")
    a("v_mov_b32 v9, 0")
    a("v_mov_b32 v17, 0")
    a("v_mov_b32 v16, 1")
    a(f"s_xor_b32 s{CNT}, s3, 7")
    a(f"s_lshl_b32 s{CNT}, s{CNT}, 8")
    a(f"s_add_u32 s{CNT}, s{CNT}, s2")
    a("v_and_b32 v1, 28, v7")
    a("s_waitcnt lgkmcnt(0)")
    srd(a, S_X, P_X, 2048 * 2048)
    a(f"s_cmp_eq_u32 s{SEL}, 0")
    a(f"s_cselect_b32 s{S_KW}, s{P_WK}, s{P_WV}")
    a(f"s_cselect_b32 s{S_KW+1}, s{P_WK+1}, s{P_WV+1}")
    a(f"s_and_b32 s{S_KW+1}, s{S_KW+1}, 0xffff")
    a(f"s_mov_b32 s{S_KW+2}, 0x10000")
    a(f"s_mov_b32 s{S_KW+3}, 0x20000")
    srd(a, S_WS, P_WS, WS_SIZE)
    srd(a, S_WR, P_WR, 2048)
    k.stamp("entry")
    def zero():
        a("v_mov_b32 v10, 0"); a("v_mov_b32 v11, 0"); a("v_mov_b32 v8, 0")
        a(f"s_lshl_b32 s{T2}, s2, 12")
        a(f"s_add_u32 s{T2}, s{T2}, {SY1:#x}")
        for i in range(4): a(f"buffer_store_dwordx4 v[8:11], v{VL16}, {sr(S_WS)}, s{T2} offen offset:{i*1024} sc1")
        a(f"s_lshl_b32 s{T2}, s2, 2")
        a("s_waitcnt vmcnt(0)")
        a(f"v_mov_b32 v10, s{T2}")
        a(f"global_store_dword v10, v16, s[{P_DBG}:{P_DBG+1}] sc1")
    k.only(f"s_cmp_lt_u32 s{CNT}, 8", zero)

AUX = 19 * 8192
TAB = AUX + 2304
RED = 4 * 8192

def phaseAB(k):
    a, vm, lg = k.a, k.vm, k.lg
    VXA, VW, ACC, WF, FT, XREG, CS = 32, 44, 48, 64, 96, 128, 12
    XF, ACCX, ACCO = XREG, 48, 80
    def rot(j, shift, extra, base):
        return f"""s_add_u32 s{TD}, s{ROT}, {j}
        s_and_b32 s{TD}, s{TD}, 7
        s_lshl_b32 s{TD}, s{TD}, {shift}
        s_add_u32 s{TD}, s{TD}, s{base}""" + (f"\ns_add_u32 s{TD}, s{TD}, {extra}" if extra else "")
    def ldx(c): return lambda p: f"s_add_u32 m0, s{W1K}, {p*8192}\n" + rot(c >> 1, 8, (c & 1) * 128, XO2) + f"\nbuffer_load_dwordx4 v{VOX}, {sr(S_X)}, s{TD} offen lds"
    def ldk(j): return lambda p: f"s_add_u32 m0, s{W1K}, {p*8192}\n" + rot(j, 13, 0, W1K) + f"\nbuffer_load_dwordx4 v{VL16}, {sr(S_KW)}, s{TD} offen lds"
    def ldw(c, h): return lambda p: f"s_add_u32 m0, s{W1K}, {p*8192}\n" + rot(c >> 1, 18, ((c & 1) * 64 + h * 16) * 2048, OSO) + f"\nbuffer_load_dwordx4 v{VOW}, {sr(S_W)}, s{TD} offen lds"
    seq = []
    hi = list(range(8, 19))
    for j in range(8):
        seq.append((("k", j), ldk(j), j, [4, 5, 6, 7] if 2 <= j <= 5 else hi[::-1]))
        for e in range(2):
            c = 2 * j + e
            seq.append((("x", c), ldx(c), j if c < 8 else None, [0, 1, 2, 3] if 8 <= c <= 11 else hi[::-1] if c < 8 else hi[:3:-1]))
    for c in range(16):
        for h in range(2):
            seq.append((("w", c, h), ldw(c, h), None, hi + [4, 5, 6, 7]))
    pg = Pager(k, range(19), seq)
    pg.hold, pg.hold_until = {4, 5, 6, 7}, 7
    k.pgAB = pg
    srd(a, S_W, P_WQ, 1024 * 2048)
    a(f"v_lshlrev_b32 v8, 7, v{VN}")
    a(f"s_lshl_b32 s{T0}, s{RG}, 15")
    a(f"s_add_u32 s{T0}, s{T0}, s{W4K}")
    a(f"buffer_load_dword v47, v8, {sr(S_X)}, s{T0} offen"); vm.add("xt")
    def wtouch():
        a(f"v_lshrrev_b32 v8, 1, v{VN}")
        a("v_lshlrev_b32 v8, 11, v8")
        a("v_and_b32 v10, 1, v2")
        a("v_lshl_add_u32 v8, v10, 7, v8")
        a(f"s_lshl_b32 s{T0}, s{ROT}, 3")
        a(f"s_add_u32 s{T0}, s{T0}, s3")
        a(f"s_lshl_b32 s{T0}, s{T0}, 15")
        a(f"s_add_u32 s{T0}, s{T0}, s{OSO}")
        a(f"buffer_load_dword v47, v8, {sr(S_W)}, s{T0} offen"); vm.add("wt")
    if WT_IT < 0: wtouch()
    a(f"s_lshl_b32 s{T1}, s3, 8")
    a(f"s_add_u32 m0, s{T1}, {AUX}")
    a(f"s_add_u32 s{TD}, s{ROT}, s3")
    a(f"s_and_b32 s{TD}, s{TD}, 7")
    a(f"s_lshl_b32 s{TD}, s{TD}, 8")
    a(f"buffer_load_dword v7, {sr(S_WR)}, s{TD} offen lds"); vm.add("wr")
    first = pg.take(N_INIT)
    for g_ in first[:3]: pg.issue(g_)
    k.stamp("issued")
    srd(a, S_KV, P_WS, 0x40000)
    srd(a, S_WG, P_WG, 1024 * 7168)
    srd(a, S_WU, P_WU, 1024 * 7168)
    a(f"v_mov_b32 v8, {ONES:#x}")
    a(f"v_add_u32 v9, {AUX + 2048}, v7")
    k.ds("ds_write_b32 v9, v8", "ones")
    k.ds("ds_write_b32 v9, v17 offset:384", "ones")
    a(f"v_bfe_u32 v5, v{VN}, 1, 3")
    a(f"v_xor_b32 v5, v5, v{VH}")
    a(f"s_lshl_b32 s{T0}, s{RT}, 12")
    a(f"s_lshl_b32 s{T1}, s{RT}, 2")
    a(f"v_lshlrev_b32 v6, 7, v{VN}")
    a(f"v_add_u32 v8, s{T0}, v6")
    a(f"v_xor_b32 v9, s{T1}, v5")
    a(f"v_lshl_add_u32 v{VXA}, v9, 4, v8")
    a(f"v_xor_b32 v{VXA+1}, 32, v{VXA}")
    a(f"v_xor_b32 v{VXA+2}, 0x1000, v{VXA}")
    a(f"v_xor_b32 v{VXA+3}, 0x1020, v{VXA}")
    for s in range(4):
        a(f"v_add_u32 v{VXA+4+s}, 0x10000, v{VXA+s}")
        a(f"v_add_u32 v{VXA+8+s}, 0x20000, v{VXA+s}")
    BX, MX, I17, AX, AW, BW = FT, FT + 2, FT + 3, FT + 4, FT + 6, FT + 7
    a(f"s_and_b32 s{T0}, s{HB}, 3")
    a(f"s_lshl_b32 s{T0}, s{T0}, 11")
    a(f"v_add_u32 v8, s{T0}, v6")
    a(f"s_lshl_b32 s{T1}, s{RT}, 2")
    a(f"v_xor_b32 v9, s{T1}, v5")
    a(f"v_lshl_add_u32 v{BX}, v9, 4, v8")
    a("v_xor_b32 v9, 2, v9")
    a(f"v_lshl_add_u32 v{BX+1}, v9, 4, v8")
    a(f"s_and_b32 s{T2}, s3, 3")
    a(f"s_lshl_b32 s{T3}, s{T2}, 6")
    a(f"s_add_u32 s{T3}, s{T3}, {AUX}")
    a(f"v_lshlrev_b32 v8, 4, v{VH}")
    a(f"v_add_u32 v8, s{T3}, v8")
    a(f"v_mov_b32 v9, {AUX + 2048}")
    a(f"v_cmp_eq_u32 vcc, 17, v{VN}")
    a("v_mov_b32 v10, 256")
    a("v_cndmask_b32 v8, v9, v8, vcc")
    a(f"v_cndmask_b32 v{I17}, 0, v10, vcc")
    a("v_add_u32 v9, 32, v8")
    a(f"v_cmp_gt_u32 vcc, 16, v{VN}")
    a(f"v_cndmask_b32 v{MX}, 0, 1, vcc")
    a(f"v_cndmask_b32 v{BX}, v8, v{BX}, vcc")
    a(f"v_cndmask_b32 v{BX+1}, v9, v{BX+1}, vcc")
    a("v_bfe_u32 v5, v2, 2, 2")
    a(f"v_lshl_add_u32 v6, v{VH}, 3, v5")
    a("v_bfe_u32 v8, v2, 4, 1")
    a("v_lshlrev_b32 v8, 5, v8")
    a("v_and_b32 v9, 3, v2")
    a("v_lshl_add_u32 v8, v9, 3, v8")
    a("v_lshl_add_u32 v9, v6, 6, v8")
    a(f"s_lshl_b32 s{T3}, s{T2}, 11")
    a(f"v_add_u32 v{BW}, s{T3}, v9")
    a(f"v_add_u32 v{VW}, s{W1K}, v9")
    a(f"v_add_u32 v{VW+1}, 0x10000, v{VW}")
    a(f"v_add_u32 v{VW+2}, 0x20000, v{VW}")
    a("v_bfe_u32 v5, v2, 2, 1")
    a("v_cmp_eq_u32 vcc, 0, v5")
    a(f"v_mov_b32 v6, {ONES:#x}")
    a(f"v_cndmask_b32 v{MA}, 0, v6, vcc")
    a(f"v_cndmask_b32 v{MA+1}, 0, v6, vcc")
    a(f"v_cndmask_b32 v{MA+2}, v6, 0, vcc")
    a(f"v_cndmask_b32 v{MA+3}, v6, 0, vcc")
    a("v_and_b32 v5, 2, v2")
    a("v_cmp_eq_u32 vcc, 0, v5")
    for i in range(4): a(f"v_cndmask_b32 v{MA+i}, 0, v{MA+i}, vcc")
    a("v_and_b32 v5, 1, v2")
    a("v_cmp_eq_u32 vcc, 0, v5")
    a("v_mov_b32 v6, 0x44444444")
    a("v_mov_b32 v8, 0xeeeeeeee")
    a(f"v_cndmask_b32 v{IDXC}, v8, v6, vcc")
    a(f"v_mov_b32 v{IDXD}, 0xdddddddd")
    for i in range(4): a(f"v_mov_b32 v{CS+i}, 0")
    for g_ in first[3:]: pg.issue(g_)
    lg.wait_all()

    def xread(c, s, dst, tag):
        p = pg.page[("x", c)]
        k.ds(f"ds_read_b128 {vr(dst, 4)}, v{VXA + 4*(p >> 3) + s} offset:{(p & 7) * 8192}", tag)
    def kv_mfma(j):
        b = WF + 16 * (j & 1)
        def mm(x, y):
            for e in range(2):
                c = "0" if (j == 0 and e == 0) else vr(ACC, 16)
                a(f"v_mfma_f32_32x32x16_bf16 {vr(ACC,16)}, {vr(b+x+4*e,4)}, {vr(b+y+4*e,4)}, {c}")
        k.ifelse(f"s_cmp_eq_u32 s{MODE}, 2", lambda: mm(0, 0),
                 lambda: k.ifelse(f"s_cmp_eq_u32 s{MODE}, 0", lambda: mm(8, 0), lambda: mm(0, 8)))
    for j in range(8):
        vm.wait(("x", 2*j), ("x", 2*j+1), ("k", j))
        a("s_barrier")
        if j == 0: k.stamp(f"S{j}")
        pg.release(j)
        d = [lambda g=g: pg.issue(g) for g in pg.take(6 if j < 2 else 4, stop=(('w', 0, 0) if 'hold' in VAR else None))]
        b = WF + 16 * (j & 1)
        def g0():
            a("s_bitcmp1_b32 s3, 1")
            a(f"s_mov_b32 s{SP}, {pg.page[('x', 2*j)]*8192}")
            a(f"s_cselect_b32 s{SP}, {pg.page[('x', 2*j+1)]*8192}, s{SP}")
            a(f"v_mul_u32_u24 v8, s{SP}, v{MX}")
            a(f"v_add_u32 v{AX}, v8, v{BX}")
            a(f"v_add_u32 v{AX+1}, v8, v{BX+1}")
            a(f"v_add_u32 v{AW}, {pg.page[('k', j)]*8192}, v{BW}")
            for e in range(2): k.ds(f"ds_read_b128 {vr(b+4*e,4)}, v{AX+e}", ("s", j))
            for e in range(2):
                for u in range(2):
                    k.ds(f"ds_read_b64_tr_b16 {vr(b+8+4*e+2*u,2)}, v{AW} offset:{(16*e+4*u)*64}", ("s", j))
            a(f"v_add_u32 v{BX}, v{I17}, v{BX}")
            a(f"v_add_u32 v{BX+1}, v{I17}, v{BX+1}")
        def g1():
            if j > 0:
                lg.wait(("s", j - 1), ("xr", j - 1))
                kv_mfma(j - 1)
        def g2(e):
            if j < 4:
                for s in range(4): xread(2*j+e, s, XREG + 16*(2*j+e) + 4*s, ("xr", j))
        if j == WT_IT: d.insert(WT_POS, wtouch)
        if j == 3: d.insert(2, lambda: k.only('s_cmp_eq_u32 s3, 0', lambda: a(f'global_load_dword v16, v1, s[{P_DBG}:{P_DBG+1}] sc1')))
        g2(0)
        spread([g0, g1, lambda: g2(1)], d)
    F = FT
    R2 = RED + 16384
    def st_reads():
        a("v_and_b32 v5, 15, v2")
        a("v_lshlrev_b32 v6, 4, v5")
        for w in range(4): a(f"ds_read_b64 {vr(F+2*w,2)}, v6 offset:{R2+w*4096+2*1024}")
        a("v_bfe_u32 v8, v5, 2, 1")
        a("v_lshl_add_u32 v8, v8, 9, v6")
        a("v_lshrrev_b32 v9, 3, v5")
        a("v_lshl_add_u32 v8, v9, 10, v8")
        a("v_and_b32 v9, 3, v5")
        a("v_lshl_add_u32 v8, v9, 2, v8")
        for w in range(4): a(f"ds_read_b32 v{F+8+w}, v8 offset:{R2+w*4096}")
        a(f"v_mov_b32 v9, {16*16 + 4}")
        for w in range(4): a(f"ds_read_b32 v{F+12+w}, v9 offset:{R2+w*4096+2*1024}")
        a("s_waitcnt lgkmcnt(0)")
        st_compute()
    def da_reads():
        a("v_and_b32 v5, 15, v2")
        def kk():
            a("v_bfe_u32 v9, v2, 4, 1")
            a("v_lshlrev_b32 v8, 9, v9")
            a(f"v_lshl_add_u32 v8, v{VH}, 10, v8")
            a(f"s_lshl_b32 s{T0}, s{FW}, 11")
            a(f"v_add_u32 v8, s{T0}, v8")
            a("v_lshl_add_u32 v9, v5, 4, v8")
            for w in range(4): a(f"ds_read_b128 {vr(F+4*w,4)}, v9 offset:{RED+w*4096}")
            for w in range(4): a(f"ds_read_b128 {vr(F+16+4*w,4)}, v8 offset:{RED+w*4096+256}")
        def vv():
            a(f"s_lshl_b32 s{T0}, s{FW}, 10")
            a(f"v_add_u32 v9, s{T0}, v{VL16}")
            for w in range(4): a(f"ds_read_b128 {vr(F+4*w,4)}, v9 offset:{RED+w*4096}")
            a(f"v_lshlrev_b32 v8, 4, v{VN}")
            for w in range(4): a(f"ds_read_b32 v{F+16+4*w}, v8 offset:{RED+w*4096+2048}")
        k.ifelse(f"s_cmp_eq_u32 s{SEL}, 0", kk, vv)
        a(f"s_lshr_b32 s{T2}, s{RG}, 1")
        a(f"s_lshl_b32 s{T2}, s{T2}, 12")
        a(f"s_and_b32 s{T1}, s{RG}, 1")
        def kk2():
            a("v_and_b32 v8, 3, v5")
            a("v_bfe_u32 v9, v5, 2, 1")
            a("v_lshl_add_u32 v8, v9, 3, v8")
            a("v_bfe_u32 v9, v5, 3, 1")
            a("v_lshl_add_u32 v8, v9, 2, v8")
            a("v_bfe_u32 v9, v2, 4, 1")
            a("v_lshl_add_u32 v8, v9, 5, v8")
            a("v_lshlrev_b32 v8, 4, v8")
            a(f"v_lshl_add_u32 v8, v{VH}, 3, v8")
            a(f"s_lshl_b32 s{T0}, s{FW}, 10")
            a(f"s_add_u32 s{T2}, s{T2}, s{T0}")
            a(f"s_lshl_b32 s{T1}, s{T1}, 8")
            a(f"s_add_u32 s{T2}, s{T2}, s{T1}")
            a("v_lshlrev_b32 v6, 2, v5")
        def vv2():
            a(f"v_mov_b32 v8, v{VL16}")
            a(f"s_lshl_b32 s{T1}, s{T1}, 10")
            a(f"s_add_u32 s{T2}, s{T2}, s{T1}")
            a(f"s_lshl_b32 s{T1}, s{FW}, 3")
            a(f"s_add_u32 s{T2}, s{T2}, s{T1}")
            a(f"s_add_u32 s{T2}, s{T2}, 2048")
            a(f"s_lshl_b32 s{T0}, s{FW}, 5")
            a(f"v_lshlrev_b32 v6, 4, v{VH}")
            a(f"v_add_u32 v6, s{T0}, v6")
        k.ifelse(f"s_cmp_eq_u32 s{SEL}, 0", kk2, vv2)
        a(f"v_add_u32 v6, {TAB}, v6")
        a("s_waitcnt lgkmcnt(0)")
        for w in range(1, 4):
            for e in range(4):
                a(f"v_add_f32 v{F+e}, v{F+e}, v{F+4*w+e}")
                a(f"v_add_f32 v{F+16+e}, v{F+16+e}, v{F+16+4*w+e}")
    def dbg_load():
        a(f"global_load_dword v16, v17, s[{P_DBG}:{P_DBG+1}] sc1")
    def st_compute():
        M, RI, R, V = F + 2, F + 3, F + 1, F + 8
        for w in range(1, 4):
            a(f"v_add_f32 v{F}, v{F}, v{F+2*w}")
            a(f"v_add_f32 v{V}, v{V}, v{V+w}")
            a(f"v_add_f32 v{F+1}, v{F+1}, v{F+2*w+1}")
        a(f"v_mul_f32 v{F}, {f32(1/1024)}, v{F}")
        a(f"v_mul_f32 v{V}, {f32(1/1024)}, v{V}")
        a(f"v_fma_f32 v{V}, -v{F}, v{F}, v{V}")
        a(f"v_max_f32 v{V}, 0, v{V}")
        bf16r(a, M, F)
        bf16r(a, V, V)
        a(f"v_add_f32 v{V}, {f32(1e-5)}, v{V}")
        bf16r(a, V, V)
        a(f"v_sqrt_f32 v{V}, v{V}")
        a("v_lshlrev_b32 v8, 2, v5")
        bf16r(a, V, V)
        a(f"v_rcp_f32 v{RI}, v{V}")
        a(f"v_add_u32 v8, {TAB}, v8")
        a(f"ds_write_b32 v8, v{M}")
        a(f"ds_write_b32 v8, v{RI} offset:64")
        a("s_waitcnt lgkmcnt(0)")
    def st_store():
        M, RI, R = F + 2, F + 3, F + 1
        a(f"s_lshl_b32 s{T0}, s2, 8")
        a(f"s_add_u32 s{T0}, s{T0}, {WS_YACC:#x}")
        a("v_lshlrev_b32 v8, 2, v2")
        a(f"buffer_store_dword v17, v8, {sr(S_WS)}, s{T0} offen sc1")
        a(f"s_lshl_b32 s{T0}, s2, 7")
        a(f"s_add_u32 s{T0}, s{T0}, {WS_SY:#x}")
        a("v_and_b32 v8, 127, v8")
        a(f"buffer_store_dword v17, v8, {sr(S_WS)}, s{T0} offen sc1")
        def rk():
            for w in range(1, 4): a(f"v_add_f32 v{F+12}, v{F+12}, v{F+12+w}")
            a(f"v_fma_f32 v{R}, -v{M}, v{F+12}, v{R}")
            a(f"v_mul_f32 v{R}, v{R}, v{RI}")
            a(f"v_cvt_pk_bf16_f32 v{R}, v{R}, v{R}")
            a(f"v_ashrrev_i32 v8, 31, v{R}")
            a("v_or_b32 v8, 0x80000000, v8")
            a(f"v_xor_b32 v{R}, v{R}, v8")
            a(f"v_and_b32 v{R}, 0xffff0000, v{R}")
            a(f"s_lshl_b32 s{T0}, s{RG}, 4")
            a(f"v_add_u32 v8, s{T0}, v5")
            a("v_sub_u32 v8, 0xffff, v8")
            a(f"v_or_b32 v{R}, v{R}, v8")
            for sh in (8, 4, 2, 1):
                a(f"v_max_u32_dpp v{R}, v{R}, v{R} row_ror:{sh} row_mask:0xf bank_mask:0xf")
            a("v_lshlrev_b32 v8, 3, v5")
            a(f"s_lshl_b32 s{T0}, s{RG}, 7")
            a(f"s_add_u32 s{T0}, s{T0}, {WS_STAT:#x}")
            a(f"s_lshl_b32 s{T1}, s{RG}, 2")
            a(f"s_add_u32 s{T1}, s{T1}, {WS_RKEY:#x}")
            a("s_mov_b64 exec, 0xffff")
            a(f"buffer_store_dwordx2 v[{M}:{RI}], v8, {sr(S_WS)}, s{T0} offen sc1")
            a("s_mov_b64 exec, 1")
            a(f"buffer_store_dword v{R}, v8, {sr(S_WS)}, s{T1} offen sc1")
            a("s_mov_b64 exec, -1")
        k.only(f"s_cmp_eq_u32 s{SEL}, 0", rk)
    def da_store():
        def kk():
            a(f"ds_read_b32 v{F+4}, v6")
            a(f"ds_read_b32 v{F+8}, v6 offset:64")
            a("s_waitcnt lgkmcnt(0)")
            for e in range(4): a(f"v_fma_f32 v{F+e}, -v{F+4}, v{F+16+e}, v{F+e}")
            for e in range(4): a(f"v_mul_f32 v{F+e}, v{F+e}, v{F+8}")
        def vv():
            a(f"ds_read_b128 {vr(F+4,4)}, v6")
            a(f"ds_read_b128 {vr(F+8,4)}, v6 offset:64")
            a("s_waitcnt lgkmcnt(0)")
            for e in range(4): a(f"v_fma_f32 v{F+e}, -v{F+4+e}, v{F+16}, v{F+e}")
            for e in range(4): a(f"v_mul_f32 v{F+e}, v{F+e}, v{F+8+e}")
        k.ifelse(f"s_cmp_eq_u32 s{SEL}, 0", kk, vv)
        a(f"v_cvt_pk_bf16_f32 v{F+12}, v{F}, v{F+1}")
        a(f"v_cvt_pk_bf16_f32 v{F+13}, v{F+2}, v{F+3}")
        a(f"buffer_store_dwordx2 {vr(F+12,2)}, v8, {sr(S_WS)}, s{T2} offen sc1")
    def fin_arrive():
        a(f"s_waitcnt vmcnt({vm.since('fs')})")
        top, done = L(), L()
        a(f"s_mov_b32 s{CNT}, 0")
        a.label(top)
        a("v_cmp_eq_u32 vcc, 0, v16")
        a(f"s_add_u32 s{CNT}, s{CNT}, 1")
        a(f"s_cbranch_vccz {done}")
        a(f"global_load_dword v16, v1, s[{P_DBG}:{P_DBG+1}] sc1")
        a("s_waitcnt vmcnt(0)")
        a(f"s_cmp_lt_u32 s{CNT}, {SPIN_MAX}")
        a(f"s_cbranch_scc1 {top}")
        a.label(done)
        a("v_mov_b32 v8, 1")
        a(f"v_mov_b32 v9, {TAB + 128}")
        a("s_mov_b64 exec, 1")
        a("ds_add_rtn_u32 v9, v9, v8")
        a("s_waitcnt lgkmcnt(0)")
        a("v_cmp_eq_u32 vcc, 2, v9")
        a("s_mov_b64 exec, 0xff")
        nl = L()
        a(f"s_cbranch_vccz {nl}")
        a(f"s_lshr_b32 s{T0}, s2, 3")
        a(f"s_lshl_b32 s{T0}, s{T0}, 7")
        a(f"s_add_u32 s{T0}, s{T0}, {SY1:#x}")
        a("v_lshlrev_b32 v9, 12, v2")
        a(f"buffer_atomic_add v8, v9, {sr(S_WS)}, s{T0} offen sc1")
        a.label(nl)
        a("s_mov_b64 exec, -1")
    W0, W12, W012 = "s_cmp_eq_u32 s3, 0", f"s_cmp_lt_u32 s{FW}, 2", "s_cmp_lt_u32 s3, 3"
    def kv_dma(i, chunk):
        a(f"s_add_u32 m0, s{W4K}, {chunk*32768 + i*1024}")
        a(f"s_add_u32 s{XSO}, s{W4K}, {chunk*32768 + i*1024}")
        a(f"buffer_load_dwordx4 v{VL16}, {sr(S_KV)}, s{XSO} offen sc1 lds"); vm.add(("kv", chunk))
    RK, PV, ST2 = 120, 122, 124
    def rd(c):
        vm.wait(("w", c, 0), ("w", c, 1))
        for e in range(2):
            p = pg.page[("w", c, e)]
            for u in range(2):
                k.ds(f"ds_read_b64_tr_b16 {vr(WF+8*(c&1)+4*e+2*u,2)}, v{VW + (p >> 3)} offset:{(p & 7)*8192 + 4*u*64}", ("q", c, e))
            if c >= 8:
                for t in range(2): xread(c, 2*t+e, XF + 16*(c & 1) + 4*(2*t+e), ("q", c, e))
    def mm(c):
        xb = (XREG + 16*c) if c < 8 else (XF + 16*(c & 1))
        for e in range(2):
            lg.wait(("q", c, e))
            for t, acc in ((0, ACCO), (1, ACCX)):
                cc = "0" if (c == 0 and e == 0) else vr(acc, 16)
                a(f"v_mfma_f32_32x32x16_bf16 {vr(acc,16)}, {vr(WF+8*(c&1)+4*e,4)}, {vr(xb+4*(2*t+e),4)}, {cc}")
        a(f"v_smfmac_f32_16x16x64_bf16 {vr(CS,4)}, {vr(MA,4)}, {vr(WF+8*(c&1),8)}, v{IDXC}")
        for e in range(2): pg.free.append(pg.page[("w", c, e)])
    def dmas(n):
        for g_ in pg.take(n): pg.issue(g_)
    k.stamp("B0")
    lg.wait(("s", 7)); kv_mfma(7)
    a(f"v_add_u32 v8, s{W4K}, v{VL16}")
    for q in range(4): k.ds(f"ds_write_b128 v8, {vr(ACC+4*q,4)} offset:{RED + q*1024}", "red")
    lg.wait_all()
    a("s_barrier"); pg.release(8); pg.release(9)
    k.only(W0, st_reads); k.only(W12, da_reads)
    if "hold" in VAR:
        first = pg.take(7)
        def early_w():
            for t_, x in first: a(x)
        k.only("s_cmp_ge_u32 s3, 3", early_w)
        a("s_barrier"); pg.hold = set()
        k.only(W0, st_store); k.only(W12, da_store); vm.mark("fs")
        k.only(W012, early_w)
        for t_, x in first: vm.add(t_)
        rd(0); rd(1)
    else:
        dmas(2)
        rd(0); rd(1)
    k.stamp('R1')
    for c in range(16):
        mm(c)
        if 'fine' in VAR and c in (1, 2, 4, 6, 8, 10, 12, 13, 14): k.stamp(f'M{c}')
        if c == 0 and "hold" not in VAR:
            a("s_barrier"); pg.hold = set()
            k.only(W0, st_store); k.only(W12, da_store); vm.mark("fs")
        if c == PI:
            a(f"v_lshlrev_b32 v{PV}, 7, v{VN}")
            a(f"s_and_b32 s{T3}, s2, 7")
            a(f"s_lshl_b32 s{T3}, s{T3}, 12")
            a(f"s_add_u32 s{T3}, s{T3}, {SY1:#x}")
            k.only("s_cmp_eq_u32 s3, 7", lambda: a(f"buffer_load_dword v{PV+1}, v{PV}, {sr(S_WS)}, s{T3} offen sc1"))
            vm.mark("poll")
        if ALIGN and c >= 2 and c % ALIGN == 0 and c <= 10: a("s_barrier")
        dmas(3 if ALIGN < 2 else (6 if c % 2 == 0 or c < 2 else 0))
        if c + 2 < 16: rd(c + 2)
        if c == (0 if 'hold' in VAR else 2): k.only(W012, fin_arrive)
        if c in (5, 6, 7): k.ffn.early(c - 5)
        if c == CHK:
            def chk():
                a(f"s_waitcnt vmcnt({vm.since('poll')})")
                k.poll(PV, PV + 1, T3, 8)
            k.only("s_cmp_eq_u32 s3, 7", chk)
            a("s_barrier")
            assert pg.pos == len(pg.seq)
            a(f"s_lshl_b32 s{T0}, s{ROWT}, 8")
            a(f"s_add_u32 s{T0}, s{T0}, {WS_STAT:#x}")
            a(f"v_lshlrev_b32 v5, 3, v{VN}")
            a(f"buffer_load_dwordx2 {vr(STAT,2)}, v5, {sr(S_WS)}, s{T0} offen sc1"); vm.add("stat")
            a(f"s_xor_b32 s{T0}, s{T0}, 0x100")
            a(f"buffer_load_dword v{ST2}, v5, {sr(S_WS)}, s{T0} offen sc1"); vm.add("stat")
            kv_dma(0, 0); kv_dma(1, 0)
        if c == CHK + 1:
            kv_dma(2, 0); kv_dma(3, 0)
            a("v_lshlrev_b32 v5, 3, v2")
            a(f"s_mov_b32 s{T0}, {WS_RKEY:#x}")
            a(f"buffer_load_dwordx2 {vr(RK,2)}, v5, {sr(S_WS)}, s{T0} offen sc1"); vm.add("rk")
            def kvt():
                a(f"s_lshr_b32 s{T0}, s2, 3")
                a(f"s_lshl_b32 s{T0}, s{T0}, 13")
                a("v_lshlrev_b32 v5, 7, v2")
                a(f"buffer_load_dword v16, v5, {sr(S_KV)}, s{T0} offen sc1")
            k.only("s_cmp_eq_u32 s3, 6", kvt)
    for p in (8, 9, 10, 11): assert p in pg.free
    k.stamp("B_end")
    k.ACCX, k.ACCO, k.ST2 = ACCX, ACCO, ST2
    k.ACC, k.CS, k.RK = ACC, CS, RK

QF, NM, VA, SA, SB, OA, LS, KA, VK1 = 32, 40, 56, 64, 80, 96, 112, 116, 17

def attention(k):
    a, vm, lg, ffn = k.a, k.vm, k.lg, k.ffn
    ACCX, ACC, CS, ST2 = k.ACCX, k.ACCO, k.CS, k.ST2
    EX = 96
    a(f"v_cmp_eq_u32 vcc, 0, v{VH}")
    vm.wait("stat")
    a(f"v_cvt_pk_bf16_f32 v{EX}, -v{STAT}, -v{STAT}")
    a(f"v_cvt_pk_bf16_f32 v{EX+4}, -v{ST2}, -v{ST2}")
    a(f"v_cndmask_b32 v{EX}, 0, v{EX}, vcc")
    a(f"v_cndmask_b32 v{EX+4}, 0, v{EX+4}, vcc")
    a(f"v_mov_b32 v{EX+1}, v{EX}"); a(f"v_mov_b32 v{EX+5}, v{EX+4}")
    for i in (2, 3, 6, 7): a(f"v_mov_b32 v{EX+i}, 0")
    a("v_mov_b32 v10, 0"); a("v_mov_b32 v11, 0")
    a(f"v_add_f32 v6, v{CS}, v{CS+1}")
    a("v_cvt_pk_bf16_f32 v5, v6, v6")
    a("v_lshlrev_b32 v5, 16, v5")
    a("v_sub_f32 v5, v6, v5")
    a("v_cvt_pk_bf16_f32 v8, v6, v5")
    a("v_and_b32 v6, 0xffff0000, v8")
    a("v_sub_f32 v5, v5, v6")
    a("v_cvt_pk_bf16_f32 v9, v5, 0")
    a(f"v_add_u32 v12, s{W1K}, v{VL16}")
    a("v_add_u32 v12, 0x10000, v12")
    a(f"v_mfma_f32_32x32x16_bf16 {vr(ACCX,16)}, v[8:11], {vr(EX+4,4)}, {vr(ACCX,16)}")
    a(f"v_mfma_f32_32x32x16_bf16 {vr(ACC,16)}, v[8:11], {vr(EX,4)}, {vr(ACC,16)}")
    a(f"v_mul_f32 v6, {f32(QSCALE)}, v{STAT+1}")
    a("v_and_b32 v5, 1, v2")
    a("v_cmp_eq_u32 vcc, 0, v5")
    a("v_xor_b32 v13, 0x400, v12")
    for i in range(4): a(f"v_cndmask_b32 v{MA+i}, 0, v{MA+i}, vcc")
    vm.wait("rk", ("kv", 0))
    for q in range(4): a(f"ds_write_b128 v12, {vr(ACCX+4*q,4)} offset:{q*8192}")
    ffn.argmax1()
    a("s_waitcnt lgkmcnt(0)")
    a("s_barrier")
    for q in range(4): a(f"ds_read_b128 {vr(EX+4*q,4)}, v13 offset:{q*8192}")
    a(f"ds_read_b128 {vr(KA,4)}, v{VL16}")
    a(f"ds_read_b128 {vr(KA+4,4)}, v{VL16} offset:1024")
    a(f"s_add_u32 m0, s{W4K}, 32768")
    a(f"s_add_u32 s{XSO}, s{W4K}, 32768")
    a(f"buffer_load_dwordx4 v{VL16}, {sr(S_KV)}, s{XSO} offen sc1 lds"); vm.add(("kv", 1))
    for q in range(4):
        a(f"s_waitcnt lgkmcnt({5-q})")
        for i in (2*q, 2*q+1): a(f"v_pk_add_f32 {vr(ACC+2*i,2)}, {vr(ACC+2*i,2)}, {vr(EX+2*i,2)}")
        for i in (2*q, 2*q+1): a(f"v_pk_mul_f32 {vr(ACC+2*i,2)}, {vr(ACC+2*i,2)}, v[6:7] op_sel_hi:[1,0]")
        for i in (2*q, 2*q+1): a(f"v_cvt_pk_bf16_f32 v{QF+i}, v{ACC+2*i}, v{ACC+2*i+1}")
    a("s_waitcnt lgkmcnt(0)")
    a(f"v_mfma_f32_32x32x16_bf16 {vr(SA,16)}, {vr(KA,4)}, {vr(QF,4)}, 0")
    a(f"v_mfma_f32_32x32x16_bf16 {vr(SA,16)}, {vr(KA+4,4)}, {vr(QF+4,4)}, {vr(SA,16)}")
    def kvaddr(tile, off):
        p = ((tile >> 3) % 3) * 32768 + (tile & 7) * 4096 + off
        return (f"v{VL16} offset:{p}" if p < 65536 else f"v{VK1} offset:{p - 65536}")
    a(f"ds_read_b128 {vr(KA,4)}, {kvaddr(1, 0)}")
    a(f"ds_read_b128 {vr(KA+4,4)}, {kvaddr(1, 1024)}")
    a(f"ds_read_b128 {vr(VA,4)}, {kvaddr(0, 2048)}")
    a(f"v_add_u32 v{VK1}, 0x10000, v{VL16}")
    for i in range(16): a(f"v_mov_b32 v{OA+i}, 0")
    for i in range(4): a(f"v_mov_b32 v{LS+i}, 0")
    ffn.argmax2()
    a(f"v_max3_f32 v6, v{SA}, v{SA+1}, v{SA+2}")
    a(f"v_max3_f32 v5, v{SA+3}, v{SA+4}, v{SA+5}")
    a(f"v_max3_f32 v6, v6, v{SA+6}, v{SA+7}")
    a(f"v_max3_f32 v5, v5, v{SA+8}, v{SA+9}")
    a(f"v_max3_f32 v6, v6, v{SA+10}, v{SA+11}")
    a(f"v_max3_f32 v5, v5, v{SA+12}, v{SA+13}")
    a(f"v_max3_f32 v6, v6, v{SA+14}, v{SA+15}")
    a("v_max_f32 v6, v6, v5")
    a("v_mov_b32 v5, v6")
    a("v_permlane32_swap_b32 v6, v5")
    a("v_max_f32 v6, v6, v5")
    a(f"v_sub_f32 v{NM}, 0, v6")
    a(f"v_sub_f32 v{NM+1}, 0, v6")
    for i in range(8): a(f"v_pk_add_f32 {vr(SA+2*i,2)}, {vr(SA+2*i,2)}, {vr(NM,2)}")
    for i in range(1, 8): a(f"v_pk_mov_b32 {vr(NM+2*i,2)}, {vr(NM,2)}, {vr(NM,2)}")
    k.stamp("loop_start")
    for T in range(64):
        c, t = T >> 3, T & 7
        S, P = (SA, SB) if T % 2 == 0 else (SB, SA)
        e = lambda i: a(f"v_exp_f32 v{S+i}, v{S+i}")
        a(f"s_setprio {3 - ((T + 1) & 3)}")
        e(0); e(1)
        if T > 0:
            a("s_waitcnt lgkmcnt(3)")
            a(f"v_smfmac_f32_32x32x32_bf16 {vr(OA,16)}, {vr(VA+4,4)}, {vr(P+8,8)}, v{IDXD}")
        a(f"ds_read_b128 {vr(VA+4,4)}, {kvaddr(T, 3072)}")
        e(2); e(3); e(4)
        if T > 0: a(f"v_smfmac_f32_16x16x64_bf16 {vr(LS,4)}, {vr(MA,4)}, {vr(P+8,8)}, v{IDXD}")
        e(5)
        if T < 63:
            a("s_waitcnt lgkmcnt(2)")
            a(f"v_mfma_f32_32x32x16_bf16 {vr(P,16)}, {vr(KA,4)}, {vr(QF,4)}, {vr(NM,16)}")
        e(6); e(7); e(8)
        if T < 63:
            a(f"v_mfma_f32_32x32x16_bf16 {vr(P,16)}, {vr(KA+4,4)}, {vr(QF+4,4)}, {vr(P,16)}")
        if t == 6 and c < 7:
            vm.wait(("kv", c + 1))
            a("s_barrier")
        kc, kp = (c + 2, 0) if t == 7 else (c + 1, t + 1)
        if (t == 7 or t <= 2) and kc <= 7:
            a(f"s_add_u32 m0, s{W4K}, {(kc % 3) * 32768 + kp * 1024}")
            a(f"s_add_u32 s{XSO}, s{W4K}, {kc * 32768 + kp * 1024}")
            a(f"buffer_load_dwordx4 v{VL16}, {sr(S_KV)}, s{XSO} offen sc1 lds"); vm.add(("kv", kc))
        tk = min(T + 2, 63)
        a(f"ds_read_b128 {vr(KA,4)}, {kvaddr(tk, 0)}")
        a(f"ds_read_b128 {vr(KA+4,4)}, {kvaddr(tk, 1024)}")
        e(9); e(10); e(11)
        a("s_waitcnt lgkmcnt(3)")
        a(f"v_smfmac_f32_32x32x32_bf16 {vr(OA,16)}, {vr(VA,4)}, {vr(S,8)}, v{IDXD}")
        a(f"ds_read_b128 {vr(VA,4)}, {kvaddr(min(T + 1, 63), 2048)}")
        e(12); e(13); e(14)
        a(f"v_smfmac_f32_16x16x64_bf16 {vr(LS,4)}, {vr(MA,4)}, {vr(S,8)}, v{IDXD}")
        e(15)
        ffn.tile_end(T)
        k.D.tile_end(T)
    a("s_setprio 0")
    a("s_waitcnt lgkmcnt(0)")
    a(f"v_smfmac_f32_32x32x32_bf16 {vr(OA,16)}, {vr(VA+4,4)}, {vr(SB+8,8)}, v{IDXD}")
    a(f"v_smfmac_f32_16x16x64_bf16 {vr(LS,4)}, {vr(MA,4)}, {vr(SB+8,8)}, v{IDXD}")
    k.stamp("loop_end")

FBASE = 98304
class FFN:
    VGU, VTR, VOD, VTD, XSL, VL4, XST, TMP, XS, WB, DD = 160, 161, 162, 163, 164, 165, 166, 168, 176, 192, 224
    FB, GSO, DSO, YSO, ASO = 66, 67, 94, 95, 65
    def __init__(self, k): self.k, self.a, self.vm = k, k.a, k.vm
    def early(self, part):
        t = self.TMP
        lines = []
        a = lines.append
        a(f"s_add_u32 s{self.FB}, s{W8K}, {FBASE}")
        a(f"v_lshrrev_b32 v{t}, 3, v2")
        a(f"v_mul_u32_u24 v{t}, 7168, v{t}")
        a(f"v_and_b32 v{t+1}, 7, v2")
        a(f"v_lshl_add_u32 v{self.VGU}, v{t+1}, 4, v{t}")
        a(f"v_bfe_u32 v{t}, v2, 2, 2")
        a(f"v_lshrrev_b32 v{t+1}, 4, v2")
        a(f"v_lshl_add_u32 v{t+1}, v{t+1}, 3, v{t}")
        a(f"v_lshlrev_b32 v{t+1}, 7, v{t+1}")
        a(f"v_and_b32 v{t+2}, 3, v2")
        a(f"v_lshl_add_u32 v{t+1}, v{t+2}, 3, v{t+1}")
        a(f"v_add_u32 v{self.VTR}, s{self.FB}, v{t+1}")
        a(f"v_lshrrev_b32 v{t+1}, 4, v2")
        a(f"v_lshlrev_b32 v{t+3}, 2, v{t+1}")
        a(f"v_xor_b32 v{t+3}, v{t+3}, v2")
        a(f"v_and_b32 v{t+3}, 15, v{t+3}")
        a(f"v_lshlrev_b32 v{t+3}, 4, v{t+3}")
        a(f"v_lshl_add_u32 v{t+3}, v{t+1}, 11, v{t+3}")
        a(f"s_lshl_b32 s{T0}, s3, 8")
        a(f"v_add_u32 v{self.VOD}, s{T0}, v{t+3}")
        a(f"v_mul_u32_u24 v{t}, 320, v{t}")
        a(f"v_lshl_add_u32 v{t}, v{VH}, 11, v{t}")
        a(f"v_bfe_u32 v{t+1}, v2, 4, 1")
        a(f"v_lshl_add_u32 v{t}, v{t+1}, 5, v{t}")
        a(f"v_lshl_add_u32 v{t}, v{t+2}, 3, v{t}")
        a(f"v_add_u32 v{self.VTD}, s{self.FB}, v{t}")
        a(f"v_lshlrev_b32 v{self.VL4}, 2, v2")
        a(f"v_and_b32 v{t}, 60, v{self.VL4}")
        a(f"v_mov_b32 v{t+1}, 0")
        a(f"s_and_b32 s{T0}, s{FCG}, 3")
        a(f"s_lshl_b32 s{T0}, s{T0}, 3")
        a(f"s_add_u32 s{T0}, s{T0}, s3")
        a(f"s_lshl_b32 s{SP}, s{T0}, 6")
        a(f"s_mul_i32 s{self.GSO}, s{T0}, {32*7168}")
        a(f"s_lshr_b32 s{T1}, s{FCG}, 2")
        a(f"s_lshl_b32 s{T2}, s{T1}, 7")
        a(f"s_add_u32 s{self.GSO}, s{self.GSO}, s{T2}")
        a(f"s_lshl_b32 s{self.ASO}, s{T1}, 8")
        a(f"s_add_u32 s{self.ASO}, s{self.ASO}, {WS_GU:#x}")
        a(f"s_lshl_b32 s{self.DSO}, s{FCG}, 15")
        a(f"s_and_b32 s{self.YSO}, s2, 7")
        a(f"s_lshl_b32 s{self.YSO}, s{self.YSO}, 12")
        a(f"s_lshl_b32 s{T0}, s3, 9")
        a(f"s_add_u32 s{self.YSO}, s{self.YSO}, s{T0}")
        a(f"s_add_u32 s{self.YSO}, s{self.YSO}, {WS_YACC:#x}")
        a("s_cmp_lt_u32 s2, 224")
        for r in (self.GSO, self.DSO, self.YSO, self.ASO):
            a(f"s_cselect_b32 s{r}, s{r}, 0x40000000")
        srd(a, S_WD, P_WD, 3584 * 2048)
        srd(a, S_OUT, P_OUT, 2048 * 2048)
        cut = [0, 12, 29, len(lines)]
        for x in lines[cut[part]:cut[part+1]]: self.a(x)
    def argmax1(self):
        a, RK = self.a, self.k.RK
        a(f"v_max_u32 v5, v{RK}, v{RK+1}")
        for sh in (8, 4, 2, 1):
            a(f"v_max_u32_dpp v5, v5, v5 row_ror:{sh} row_mask:0xf bank_mask:0xf")
        srd(a, S_W, P_WO, 1024 * 2048)
        for i, s in enumerate((T0, T1, T2, T3)): a(f"v_readlane_b32 s{s}, v5, {16*i}")
    def argmax2(self):
        a, vm = self.a, self.vm
        a(f"s_max_u32 s{T0}, s{T0}, s{T1}")
        a(f"s_max_u32 s{T2}, s{T2}, s{T3}")
        a(f"s_max_u32 s{RKEY}, s{T0}, s{T2}")
        a(f"s_and_b32 s{IDX}, s{RKEY}, 0xffff")
        a(f"s_sub_u32 s{IDX}, 0xffff, s{IDX}")
        a(f"s_and_b32 s{IDX}, s{IDX}, 2047")
    def arrive(self, soff):
        a, t = self.a, self.TMP
        a(f"v_mov_b32 v{t+6}, 1")
        a("s_mov_b64 exec, 1")
        a(f"buffer_atomic_add v{t+6}, v{self.VL4}, {sr(S_WS)}, s{soff} offen sc1"); self.vm.add("arr")
        a("s_mov_b64 exec, -1")
    def tile_end(self, T):
        k, a, vm, t = self.k, self.a, self.vm, self.TMP
        GU_T = [2, 4, 6, 10, 12, 14, 18, 20]
        WD_T = [28, 30, 34, 36]
        if T == 0:
            a(f"s_lshl_b32 s{T0}, s{IDX}, 11")
            a(f"s_add_u32 s{T0}, s{T0}, s{SP}")
            a(f"buffer_load_dword v{self.XSL}, v{t}, {sr(S_X)}, s{T0} offen"); vm.add("xs")
        if T == 1:
            a(f"s_lshl_b32 s{T0}, s{IDX}, 3")
            a(f"s_add_u32 s{T0}, s{T0}, {WS_STAT:#x}")
            a(f"buffer_load_dwordx2 {vr(self.XST,2)}, v{t+1}, {sr(S_WS)}, s{T0} offen sc1"); vm.add("xs")
        if T in GU_T:
            i = GU_T.index(T); mat, j = i >> 2, i & 3
            a(f"s_add_u32 m0, s{self.FB}, {i*1024}")
            a(f"s_add_u32 s{T0}, s{self.GSO}, {j*8*7168}")
            a(f"buffer_load_dwordx4 v{self.VGU}, {sr(S_WU if mat else S_WG)}, s{T0} offen lds"); vm.add("gu")
        if T == 8:
            vm.wait("xs")
            a(f"v_lshlrev_b32 v{t}, 16, v{self.XSL}")
            a(f"v_and_b32 v{t+1}, 0xffff0000, v{self.XSL}")
            a(f"v_sub_f32 v{t}, v{t}, v{self.XST}")
            a(f"v_sub_f32 v{t+1}, v{t+1}, v{self.XST}")
            a(f"v_cvt_pk_bf16_f32 v{t+2}, v{t}, v{t+1}")
            a(f"v_lshlrev_b32 v{t}, 16, v{t+2}")
            a(f"v_and_b32 v{t+1}, 0xffff0000, v{t+2}")
            a(f"v_mul_f32 v{t}, v{t}, v{self.XST+1}")
            a(f"v_mul_f32 v{t+1}, v{t+1}, v{self.XST+1}")
            a(f"v_cvt_pk_bf16_f32 v{t+2}, v{t}, v{t+1}")
            a(f"v_and_b32 v{t+3}, 0x30, v2")
            for j in range(4):
                a(f"ds_bpermute_b32 v{self.XS+j}, v{t+3}, v{t+2} offset:{4*j}")
        if T in (25, 26):
            if T == 25: vm.wait("gu")
            m = T - 25
            for ct in range(4):
                for u in range(2):
                    a(f"ds_read_b64_tr_b16 {vr(self.WB+16*m+4*ct+2*u,2)}, v{self.VTR} offset:{m*4096 + u*512 + ct*32}")
        if T in (26, 27):
            m = T - 26
            for ct in range(4):
                a(f"v_mfma_f32_16x16x32_bf16 {vr(self.DD+16*m+4*ct,4)}, {vr(self.XS,4)}, {vr(self.WB+16*m+4*ct,4)}, 0")
        if T == 28:
            for ct in range(1, 4):
                for m in range(2):
                    D = self.DD + 16*m
                    a(f"v_mov_b32_dpp v{D}, v{D+4*ct} quad_perm:[0,1,2,3] row_mask:{1 << ct:#x} bank_mask:0xf")
            a(f"s_add_u32 s{T0}, s{self.ASO}, {3584*4}")
            a(f"buffer_atomic_add_f32 v{self.DD}, v{self.VL4}, {sr(S_WS)}, s{self.ASO} offen"); vm.add("at1")
            a(f"buffer_atomic_add_f32 v{self.DD+16}, v{self.VL4}, {sr(S_WS)}, s{T0} offen"); vm.add("at1")
        if T in WD_T:
            j = WD_T.index(T)
            a(f"s_add_u32 m0, s{self.FB}, {j*1024}")
            a(f"s_add_u32 s{T0}, s{self.DSO}, {j*8192}")
            a(f"buffer_load_dwordx4 v{self.VOD}, {sr(S_WD)}, s{T0} offen lds"); vm.add("wd")
        if T == 35:
            vm.wait("at1")
            a(f"s_lshr_b32 s{self.GSO}, s{FCG}, 2")
            a(f"s_lshl_b32 s{self.GSO}, s{self.GSO}, 7")
            a(f"s_add_u32 s{self.GSO}, s{self.GSO}, {SY4:#x}")
            a("s_cmp_lt_u32 s2, 224")
            a(f"s_cselect_b32 s{self.GSO}, s{self.GSO}, 0x40000000")
            self.arrive(self.GSO)
        G = self.DD
        W0F = f"s_cmp_lt_u32 s{CNT}, 224"
        if T == 40:
            a(f"s_lshl_b32 s{CNT}, s3, 8")
            a(f"s_add_u32 s{CNT}, s{CNT}, s2")
            a(f"v_mov_b32 v{t}, 0")
            k.only(W0F, lambda: a(f"buffer_load_dword v{t+1}, v{t}, {sr(S_WS)}, s{self.GSO} offen sc1"))
            vm.mark("p4")
        if T == 42:
            def p2():
                a(f"s_waitcnt vmcnt({vm.since('p4')})")
                k.poll(t, t + 1, self.GSO, 32, cnt=T3)
                a(f"v_and_b32 v{t}, 60, v{self.VL4}")
                a(f"v_bfe_u32 v{t+1}, v2, 4, 1")
                a(f"v_mul_u32_u24 v{t+1}, {3584*4}, v{t+1}")
                a(f"v_add_u32 v{t+1}, v{t+1}, v{t}")
                a(f"s_lshl_b32 s{T0}, s{FCG}, 6")
                a(f"s_add_u32 s{T0}, s{T0}, {WS_GU:#x}")
                a(f"buffer_load_dword v{G}, v{t+1}, {sr(S_WS)}, s{T0} offen sc1")
            k.only(W0F, p2)
            vm.mark("gl")
        if T == 45:
            def hh():
                a(f"s_waitcnt vmcnt({vm.since('gl')})")
                bf16r(a, G, G)
                a(f"v_mov_b32 v{G+1}, v{G}")
                a(f"v_permlane16_swap_b32 v{G}, v{G+1}")
                a(f"v_mul_f32 v{G+2}, {f32(-LOG2E)}, v{G}")
                a(f"v_exp_f32 v{G+2}, v{G+2}")
                a(f"v_add_f32 v{G+2}, 1.0, v{G+2}")
                a(f"v_rcp_f32 v{G+2}, v{G+2}")
                a(f"v_mul_f32 v{G}, v{G}, v{G+2}")
                bf16r(a, G, G)
                a(f"v_mul_f32 v{G}, v{G}, v{G+1}")
                a(f"v_cvt_pk_bf16_f32 v{G}, v{G}, v{G}")
                a(f"v_lshrrev_b32 v{t}, 1, v{t}")
                a(f"v_add_u32 v{t}, {FBASE + 4096}, v{t}")
                a(f"ds_write_b16 v{t}, v{G}")
                a("s_waitcnt lgkmcnt(0)")
            k.only(W0F, hh)
        HF, WD, DD = 168, 176, 192
        if T == 47:
            vm.wait("wd")
            a(f"v_lshlrev_b32 v{t+4}, 4, v{VH}")
            a(f"v_add_u32 v{t+4}, {FBASE + 4096}, v{t+4}")
            a(f"ds_read_b128 {vr(HF,4)}, v{t+4}")
            for j in range(4):
                if j: a(f"v_xor_b32 v{t+4+j}, {64*j}, v{self.VTD}")
                ad = (t + 4 + j) if j else self.VTD
                for u in range(2):
                    a(f"ds_read_b64_tr_b16 {vr(WD+4*j+2*u,2)}, v{ad} offset:{u*1024}")
        if T in (48, 49):
            for j in (2*(T-48), 2*(T-48)+1):
                a(f"v_mfma_f32_32x32x16_bf16 {vr(DD+16*j,16)}, {vr(HF,4)}, {vr(WD+4*j,4)}, 0")
        if T == 50:
            a(f"v_mov_b32_dpp v{DD}, v{DD+16} quad_perm:[0,1,2,3] row_mask:0xc bank_mask:0xf")
            a(f"v_mov_b32_dpp v{DD+32}, v{DD+48} quad_perm:[0,1,2,3] row_mask:0xc bank_mask:0xf")
            a(f"buffer_atomic_add_f32 v{DD}, v{self.VL4}, {sr(S_WS)}, s{self.YSO} offen"); vm.add("at")
            a(f"buffer_atomic_add_f32 v{DD+32}, v{self.VL4}, {sr(S_WS)}, s{self.YSO} offen offset:256"); vm.add("at")
        if T == 58:
            vm.wait("at")
            a(f"s_lshr_b32 s{T0}, s2, 3")
            a(f"s_lshl_b32 s{T0}, s{T0}, 7")
            a(f"s_add_u32 s{T0}, s{T0}, {SY3:#x}")
            self.arrive(T0)

class PhaseD:
    XR, ST, VXO = 8, 30, 16
    VOF, VWD = 24, (17, 18, 1)
    XFL, G, XF, ACCO, ACCX, WREG = 32, 48, 64, 96, 112, 128
    def __init__(self, k):
        self.k, self.a, self.vm = k, k.a, k.vm
        def rot(c, shift, extra, base):
            return f"""s_add_u32 s{TD}, s{ROT}, {c}
            s_and_b32 s{TD}, s{TD}, 15
            s_lshl_b32 s{TD}, s{TD}, {shift}
            s_add_u32 s{TD}, s{TD}, s{base}""" + (f"\ns_add_u32 s{TD}, s{TD}, {extra}" if extra else "")
        def ldw(n): return lambda p: f"s_add_u32 m0, s{W1K}, {p*8192}\n" + rot(n >> 1, 17, (n & 1) * 16 * 2048, SEL) + f"\nbuffer_load_dwordx4 v{VOW}, {sr(S_W)}, s{TD} offen lds"
        def ldo(c): return lambda p: f"s_add_u32 m0, s{W1K}, {p*8192}\n" + rot(c, 12, 0, OBASE) + f"\nbuffer_load_dwordx4 v{VL16}, {sr(S_WS)}, s{TD} offen sc1 lds"
        seq = [(("w", n), ldw(n), None, list(range(19, -1, -1))) for n in range(24)]
        seq += [(("o", c), ldo(c), None, list(range(16))) for c in range(16)]
        seq += [(("w", n), ldw(n), None, [16, 17, 18, 19]) for n in range(24, 32)]
        self.pg = Pager(k, range(8, 20), seq)
    def tile_end(self, T):
        k, a, vm = self.k, self.a, self.vm
        if T == 44:
            a(f"s_lshr_b32 s{T0}, s2, 3")
            a(f"s_lshl_b32 s{T0}, s{T0}, 16")
            a(f"v_lshlrev_b32 v{self.VXO}, 7, v0")
            a(f"buffer_load_dword v{self.XR}, v{self.VXO}, {sr(S_W)}, s{T0} offen"); vm.add("pf")
        if T == 51:
            a(f"v_lshlrev_b32 v{self.VXO}, 11, v{VN}")
            a(f"v_lshl_add_u32 v{self.VXO}, v{VH}, 5, v{self.VXO}")
            a(f"s_lshl_b32 s{T1}, s{RB2}, 1")
            a(f"s_add_u32 s{T1}, s{T1}, s{RT}")
            a(f"s_lshl_b32 s{XO2}, s{T1}, 16")
            a(f"s_lshl_b32 s{SEL}, s{CB2}, 8")
            a(f"s_add_u32 s{XO2}, s{XO2}, s{SEL}")
            a(f"s_lshl_b32 s{T0}, s{HD}, 6")
            a(f"s_add_u32 s{XO2}, s{XO2}, s{T0}")
            a(f"buffer_load_dwordx4 {vr(self.XR,4)}, v{self.VXO}, {sr(S_X)}, s{XO2} offen"); vm.add("x2")
            a(f"s_lshl_b32 s{ROT}, s{CB2}, 1")
            a(f"s_lshr_b32 s{T0}, s{IDX}, 5")
            a(f"s_cmp_eq_u32 s{T0}, s{T1}")
            a(f"s_cselect_b32 s{MODE}, 1, 0")
        if T == 52:
            a(f"s_lshl_b32 s{T1}, s{RB2}, 1")
            a(f"s_add_u32 s{T1}, s{T1}, s{RT}")
            a(f"s_lshl_b32 s{T0}, s{T1}, 8")
            a(f"s_add_u32 s{T0}, s{T0}, {WS_STAT:#x}")
            a(f"v_lshlrev_b32 v5, 3, v{VN}")
            a(f"buffer_load_dwordx2 {vr(self.ST,2)}, v5, {sr(S_WS)}, s{T0} offen sc1"); vm.add("x2")
        if T == 53:
            a(f"buffer_load_dwordx4 {vr(self.XR+4,4)}, v{self.VXO}, {sr(S_X)}, s{XO2} offen offset:16"); vm.add("x2")
            a(f"s_lshl_b32 s{T0}, s{ROWT}, 5")
            a(f"s_lshl_b32 s{T1}, s{HB}, 2")
            a(f"s_add_u32 s{T0}, s{T0}, s{T1}")
            a(f"s_add_u32 s{T0}, s{T0}, s{HD}")
            a(f"s_lshl_b32 s{T0}, s{T0}, 11")
            a(f"s_add_u32 s{OSO}, s{T0}, {WS_OF:#x}")
        if 54 <= T <= 61:
            for g in self.pg.take(2 if T < 58 else 1): self.pg.issue(g)
    def run(self):
        k, a, vm, lg, pg = self.k, self.a, self.vm, self.k.lg, self.pg
        XR, ST, VXO, VOF, VWD, XFL, G, XF, ACCO, ACCX, WREG = (self.XR, self.ST, self.VXO, self.VOF, self.VWD, self.XFL,
                                                              self.G, self.XF, self.ACCO, self.ACCX, self.WREG)
        a("v_bfe_u32 v5, v2, 2, 2")
        a(f"v_lshl_add_u32 v6, v{VH}, 2, v5")
        a("v_lshlrev_b32 v6, 6, v6")
        a("v_and_b32 v5, 1, v2")
        a("v_lshl_add_u32 v6, v5, 5, v6")
        a("v_bfe_u32 v5, v2, 4, 1")
        a("v_lshl_add_u32 v6, v5, 4, v6")
        a("v_bfe_u32 v5, v2, 1, 1")
        a("v_lshl_add_u32 v6, v5, 3, v6")
        a(f"v_add_u32 v{VWD[0]}, s{W1K}, v6")
        a(f"v_add_u32 v{VWD[1]}, 0x10000, v{VWD[0]}")
        a(f"v_add_u32 v{VWD[2]}, 0x20000, v{VWD[0]}")
        a(f"v_mov_b32 v6, {f32(2.0**64)}")
        for i in range(4): a(f"v_pk_add_f32 {vr(SA+2*i,2)}, {vr(OA+4*i,2)}, {vr(OA+4*i+2,2)}")
        a(f"v_pk_add_f32 {vr(SA,2)}, {vr(SA,2)}, {vr(SA+2,2)}")
        a(f"v_pk_add_f32 {vr(SA+4,2)}, {vr(SA+4,2)}, {vr(SA+6,2)}")
        a(f"v_pk_add_f32 {vr(SA,2)}, {vr(SA,2)}, {vr(SA+4,2)}")
        a(f"v_add_f32 v5, v{SA}, v{SA+1}")
        a(f"v_fma_f32 v5, v5, 0, v{LS}")
        a("v_cmp_nlt_f32 vcc, v5, v6")
        a("s_nop 1")
        if "forcefb" in VAR: a("s_branch L_fallback")
        a("s_cbranch_vccnz L_fallback")
        a.label("L_fin")
        a(f"v_rcp_f32 v6, v{LS}")
        for i in range(8): a(f"v_pk_mul_f32 {vr(OA+2*i,2)}, {vr(OA+2*i,2)}, v[6:7] op_sel_hi:[1,0]")
        for i in range(8): a(f"v_cvt_pk_bf16_f32 v{SA+i}, v{OA+2*i}, v{OA+2*i+1}")
        a(f"buffer_store_dwordx4 {vr(SA,4)}, v{VL16}, {sr(S_WS)}, s{OSO} offen sc1"); vm.add("ost")
        a(f"buffer_store_dwordx4 {vr(SA+4,4)}, v{VL16}, {sr(S_WS)}, s{OSO} offen offset:1024 sc1"); vm.add("ost")
        def wread(n):
            vm.wait(("w", n))
            p = pg.page[("w", n)]
            for u in range(2):
                k.ds(f"ds_read_b64_tr_b16 {vr(WREG+4*n+2*u,2)}, v{VWD[p >> 3]} offset:{(p & 7)*8192 + 8*u*64}", ("wr", n))
        def wfree(n):
            lg.wait(("wr", n)); pg.free.append(pg.page[("w", n)])
        def xn_ops(src, lo, hi, g0, g1, m, ri):
            return [f"v_lshlrev_b32 v{lo}, 16, v{src}", f"v_and_b32 v{hi}, 0xffff0000, v{src}",
                    f"v_sub_f32 v{g0}, v{lo}, v{m}", f"v_sub_f32 v{g1}, v{hi}, v{m}",
                    f"v_cvt_pk_bf16_f32 v6, v{g0}, v{g1}",
                    f"v_lshlrev_b32 v{g0}, 16, v6", f"v_and_b32 v{g1}, 0xffff0000, v6",
                    f"v_mul_f32 v{g0}, v{g0}, v{ri}", f"v_mul_f32 v{g1}, v{g1}, v{ri}",
                    f"v_cvt_pk_bf16_f32 v6, v{g0}, v{g1}",
                    f"v_lshlrev_b32 v{g0}, 16, v6", f"v_and_b32 v{g1}, 0xffff0000, v6"]
        def silu_ops(g0, g1):
            return [f"v_mul_f32 v6, {f32(-LOG2E)}, v{g0}", f"v_mul_f32 v7, {f32(-LOG2E)}, v{g1}",
                    "v_exp_f32 v6, v6", "v_exp_f32 v7, v7",
                    "v_add_f32 v6, 1.0, v6", "v_add_f32 v7, 1.0, v7",
                    "v_rcp_f32 v6, v6", "v_rcp_f32 v7, v7",
                    f"v_mul_f32 v{g0}, v{g0}, v6", f"v_mul_f32 v{g1}, v{g1}, v7",
                    f"v_cvt_pk_bf16_f32 v6, v{g0}, v{g1}",
                    f"v_lshlrev_b32 v{g0}, 16, v6", f"v_and_b32 v{g1}, 0xffff0000, v6"]
        gate = []
        for p in range(8): gate += xn_ops(XR+p, XFL+2*p, XFL+2*p+1, G+2*p, G+2*p+1, ST, ST+1)
        for p in range(8): gate += silu_ops(G+2*p, G+2*p+1)
        def gops(n):
            for _ in range(min(n, len(gate))): a(gate.pop(0))
        for n in range(12): wread(n)
        for n in range(4):
            wfree(n)
            for g in pg.take(1): pg.issue(g)
        vm.wait("ost")
        a("s_barrier")
        def arr():
            a(f"s_lshl_b32 s{T0}, s{RB}, 7")
            a(f"s_add_u32 s{T0}, s{T0}, {SY2:#x}")
            a("v_mov_b32 v5, 1")
            a("v_mov_b32 v6, 0")
            a("s_mov_b64 exec, 1")
            a(f"buffer_atomic_add v5, v6, {sr(S_WS)}, s{T0} offen sc1")
            a("s_mov_b64 exec, -1")
        k.only("s_cmp_eq_u32 s3, 0", arr)
        k.stamp("E1")
        for n in range(4, 12): wfree(n)
        PV = XF
        a(f"v_mov_b32 v{PV}, 0")
        a(f"s_lshl_b32 s{T3}, s{RB2}, 7")
        a(f"s_add_u32 s{T3}, s{T3}, {SY2:#x}")
        nxt = 12
        for i, g in enumerate(pg.take(16, stop=("o", 0))):
            pg.issue(g); gops(8)
            if i >= 2: wread(nxt); nxt += 1
            if i == D_POLL:
                k.only("s_cmp_eq_u32 s3, 7", lambda: a(f"buffer_load_dword v{PV+1}, v{PV}, {sr(S_WS)}, s{T3} offen sc1"))
        a(f"s_lshl_b32 s{OBASE}, s{RB2}, 1")
        a(f"s_lshr_b32 s{T0}, s3, 2")
        a(f"s_add_u32 s{OBASE}, s{OBASE}, s{T0}")
        a(f"s_lshl_b32 s{OBASE}, s{OBASE}, 16")
        a(f"s_and_b32 s{T0}, s3, 3")
        a(f"s_lshl_b32 s{T0}, s{T0}, 10")
        a(f"s_add_u32 s{OBASE}, s{OBASE}, s{T0}")
        a(f"s_add_u32 s{OBASE}, s{OBASE}, {WS_OF:#x}")
        a(f"s_mul_i32 s{T0}, s{RT}, {4096 + 2048}")
        a(f"v_add_u32 v{VOF}, s{T0}, v{VL16}")
        a(f"v_xor_b32 v{VOF+1}, 0x1000, v{VOF}")
        a(f"v_add_u32 v{VOF+2}, 0x10000, v{VOF}")
        a(f"v_add_u32 v{VOF+3}, 0x10000, v{VOF+1}")
        while nxt < 24:
            wread(nxt); nxt += 1; gops(6)
        lg.wait_all()
        k.only("s_cmp_eq_u32 s3, 7", lambda: k.poll(PV, PV + 1, T3, 8))
        a("s_barrier")
        k.stamp("E2")
        pg.free = list(range(20))
        OWN = f"s_cmp_eq_u32 s{MODE}, 1"
        YA, YD = 28, 29
        a(f"v_lshlrev_b32 v{YA}, 7, v{VN}")
        a(f"s_mov_b32 s{T3}, {SY3:#x}")
        od = pg.take(20)
        for g in od[:6]:
            pg.issue(g); gops(8)
        k.only(OWN, lambda: a(f"buffer_load_dword v{YD}, v{YA}, {sr(S_WS)}, s{T3} offen sc1"))
        od = od[6:]
        gops(1000)
        Y, X4, XN, YS, YB = WREG, WREG + 4, WREG + 8, WREG + 12, WREG + 16
        def y_load():
            k.poll(YA, YD, T3, 64)
            a(f"v_lshrrev_b32 v{YA}, 3, v2")
            a(f"v_lshlrev_b32 v{YA}, 12, v{YA}")
            a(f"v_and_b32 v{YD}, 7, v2")
            a(f"v_lshl_add_u32 v{YA}, v{YD}, 4, v{YA}")
            a(f"s_lshl_b32 s{T0}, s{CB2}, 9")
            a(f"s_lshl_b32 s{T1}, s{HD}, 7")
            a(f"s_add_u32 s{T0}, s{T0}, s{T1}")
            a(f"s_add_u32 s{T1}, s{T0}, {WS_YACC:#x}")
            a(f"buffer_load_dwordx4 {vr(Y,4)}, v{YA}, {sr(S_WS)}, s{T1} offen sc1")
            a(f"s_lshr_b32 s{T0}, s{T0}, 1")
            a(f"s_lshl_b32 s{T1}, s{IDX}, 11")
            a(f"s_add_u32 s{T0}, s{T0}, s{T1}")
            a(f"v_lshlrev_b32 v{YD}, 3, v{YD}")
            a(f"buffer_load_dwordx2 {vr(X4,2)}, v{YD}, {sr(S_X)}, s{T0} offen")
            a(f"s_lshl_b32 s{T0}, s{IDX}, 3")
            a(f"s_add_u32 s{T0}, s{T0}, {WS_STAT:#x}")
            a(f"v_mov_b32 v{YD}, 0")
            a(f"buffer_load_dwordx2 {vr(YS,2)}, v{YD}, {sr(S_WS)}, s{T0} offen sc1")
            a(f"s_and_b32 s{T1}, s{RKEY}, 0xffff0000")
            a(f"s_xor_b32 s{T2}, s{T1}, 0x80000000")
            a(f"s_xor_b32 s{T0}, s{T1}, 0xffff0000")
            a(f"s_bitcmp1_b32 s{T1}, 31")
            a(f"s_cselect_b32 s{T1}, s{T2}, s{T0}")
            a(f"v_mov_b32 v{YA}, s{T1}")
            a(f"v_mul_f32 v{YA}, {f32(-LOG2E)}, v{YA}")
            a(f"v_exp_f32 v{YA}, v{YA}")
            a(f"v_add_f32 v{YA}, 1.0, v{YA}")
            a(f"v_rcp_f32 v{YA}, v{YA}")
            bf16r(a, YA, YA)
        def y_sum():
            a("s_waitcnt vmcnt(0)")
            for e in range(4): a(f"v_add_f32_dpp v{Y+e}, v{Y+e}, v{Y+e} row_ror:8 row_mask:0xf bank_mask:0xf")
            for sw in ("v_permlane16_swap_b32", "v_permlane32_swap_b32"):
                for e in range(4): a(f"v_mov_b32 v{XN+e}, v{Y+e}")
                for e in range(4): a(f"{sw} v{Y+e}, v{XN+e}")
                for e in range(4): a(f"v_add_f32 v{Y+e}, v{Y+e}, v{XN+e}")
        def y_scale():
            for e in range(4):
                bf16r(a, Y+e, Y+e)
                a(f"v_mul_f32 v{Y+e}, v{Y+e}, v{YA}")
                bf16r(a, Y+e, Y+e)
        def y_xn():
            for p in range(2):
                for x in xn_ops(X4+p, YB, YB+1, XN+2*p, XN+2*p+1, YS, YS+1): a(x)
        def y_add():
            for e in range(4):
                a(f"v_add_f32 v{XN+e}, v{XN+e}, v{Y+e}")
                bf16r(a, XN+e, XN+e)
            for x in silu_ops(XN, XN+1): a(x)
        def y_perm():
            for x in silu_ops(XN+2, XN+3): a(x)
            a(f"v_lshlrev_b32 v{YD}, 4, v{VH}")
            for q in range(4):
                for e in range(4): a(f"ds_bpermute_b32 v{YB+4*q+e}, v{YD}, v{XN+e} offset:{4*q}")
        def y_put():
            a("s_waitcnt lgkmcnt(0)")
            a(f"s_and_b32 s{T1}, s{IDX}, 31")
            a(f"v_cmp_eq_u32 vcc, s{T1}, v{VN}")
            for i in range(16): a(f"v_cndmask_b32 v{G+i}, v{G+i}, v{YB+i}, vcc")
        ysteps = {5: y_load, 8: y_sum, 9: y_scale, 10: y_xn, 11: y_add, 12: y_perm}
        avail = {0: 2, 2: 4, 4: 8, 8: 12, 12: 16}
        def rd(c):
            if c in avail:
                vm.wait(*[("o", i) for i in range(avail[c])])
                a("s_barrier")
            p = pg.page[("o", c)]
            for e in range(2):
                for t in range(2):
                    k.ds(f"ds_read_b128 {vr(XF+16*(c&1)+4*(2*t+e),4)}, v{VOF + 2*(p >> 3) + t} offset:{(p & 7)*8192 + e*1024}", ("d", c, e))
        rd(0); k.stamp("D0"); rd(1)
        def mf(c, e, t):
            acc = ACCX if t else ACCO
            cc = "0" if (c == 0 and e == 0) else vr(acc, 16)
            a(f"v_mfma_f32_32x32x16_bf16 {vr(acc,16)}, {vr(WREG+4*(2*c+e),4)}, {vr(XF+16*(c&1)+4*(2*t+e),4)}, {cc}")
        for c in range(14):
            for e in range(2):
                lg.wait(("d", c, e), ("wr", 2*c+e))
                mf(c, e, 0); mf(c, e, 1)
                if od: pg.issue(od.pop(0))
            rd(c + 2)
            if c == 8:
                for n in range(24, 28): wread(n)
            if c == 9:
                for n in range(24, 28): wfree(n)
                od = pg.take(4)
            if c == 12:
                for n in range(28, 32): wread(n)
            if c in ysteps: k.only(OWN, ysteps[c])
        lg.wait_all()
        a(f"v_add_u32 v5, s{W1K}, v{VL16}")
        for c in (14, 15):
            for e in range(2): mf(c, e, 1)
        a("v_add_u32 v5, 0x20000, v5")
        k.only(OWN, y_put)
        a("v_xor_b32 v6, 0x400, v5")
        mf(14, 0, 0); mf(14, 1, 0); mf(15, 0, 0)
        a("s_nop 6")
        for q in range(4): a(f"ds_write_b128 v5, {vr(ACCX+4*q,4)} offset:{q*8192}")
        mf(15, 1, 0)
        k.stamp("D_end")
        a("s_waitcnt lgkmcnt(0)")
        a("s_barrier")
        for q in range(4): a(f"ds_read_b128 {vr(XF+4*q,4)}, v6 offset:{q*8192}")
        for q in range(4):
            a(f"s_waitcnt lgkmcnt({3-q})")
            for i in (2*q, 2*q+1): a(f"v_pk_add_f32 {vr(ACCO+2*i,2)}, {vr(ACCO+2*i,2)}, {vr(XF+2*i,2)}")
            for i in (2*q, 2*q+1): a(f"v_pk_fma_f32 {vr(ACCO+2*i,2)}, {vr(ACCO+2*i,2)}, {vr(G+2*i,2)}, {vr(XFL+2*i,2)}")
            for i in (2*q, 2*q+1): a(f"v_cvt_pk_bf16_f32 v{XR+i}, v{ACCO+2*i}, v{ACCO+2*i+1}")
            if q == 1: a(f"buffer_store_dwordx4 {vr(XR,4)}, v{VXO}, {sr(S_OUT)}, s{XO2} offen")
        a(f"buffer_store_dwordx4 {vr(XR+4,4)}, v{VXO}, {sr(S_OUT)}, s{XO2} offen offset:16")
        k.stamp("end")

def fallback(k):
    a = k.a
    a.label("L_fallback")
    a.flush()
    a("v_mov_b32 v6, 0xff800000")
    a(f"s_mov_b32 s{T0}, 0")
    a.label("L_fb1")
    a(f"buffer_load_dwordx4 {vr(KA,4)}, v{VL16}, {sr(S_KV)}, s{T0} offen sc1")
    a(f"buffer_load_dwordx4 {vr(KA+4,4)}, v{VL16}, {sr(S_KV)}, s{T0} offen offset:1024 sc1")
    a("s_waitcnt vmcnt(0)")
    a(f"v_mfma_f32_32x32x16_bf16 {vr(SA,16)}, {vr(KA,4)}, {vr(QF,4)}, 0")
    a(f"v_mfma_f32_32x32x16_bf16 {vr(SA,16)}, {vr(KA+4,4)}, {vr(QF+4,4)}, {vr(SA,16)}")
    for i in range(0, 16, 2): a(f"v_max3_f32 v6, v6, v{SA+i}, v{SA+i+1}")
    a(f"s_add_u32 s{T0}, s{T0}, 4096")
    a(f"s_cmp_lt_u32 s{T0}, 0x40000")
    a("s_cbranch_scc1 L_fb1")
    a("v_mov_b32 v5, v6")
    a("v_permlane32_swap_b32 v6, v5")
    a("v_max_f32 v6, v6, v5")
    for i in range(16): a(f"v_sub_f32 v{NM+i}, 0, v6")
    for i in range(16): a(f"v_mov_b32 v{OA+i}, 0")
    for i in range(4): a(f"v_mov_b32 v{LS+i}, 0")
    a(f"s_mov_b32 s{T0}, 0")
    a.label("L_fb2")
    a(f"buffer_load_dwordx4 {vr(KA,4)}, v{VL16}, {sr(S_KV)}, s{T0} offen sc1")
    a(f"buffer_load_dwordx4 {vr(KA+4,4)}, v{VL16}, {sr(S_KV)}, s{T0} offen offset:1024 sc1")
    a(f"buffer_load_dwordx4 {vr(VA,4)}, v{VL16}, {sr(S_KV)}, s{T0} offen offset:2048 sc1")
    a(f"buffer_load_dwordx4 {vr(VA+4,4)}, v{VL16}, {sr(S_KV)}, s{T0} offen offset:3072 sc1")
    a("s_waitcnt vmcnt(0)")
    a(f"v_mfma_f32_32x32x16_bf16 {vr(SA,16)}, {vr(KA,4)}, {vr(QF,4)}, {vr(NM,16)}")
    a(f"v_mfma_f32_32x32x16_bf16 {vr(SA,16)}, {vr(KA+4,4)}, {vr(QF+4,4)}, {vr(SA,16)}")
    for i in range(16): a(f"v_exp_f32 v{SA+i}, v{SA+i}")
    a(f"v_smfmac_f32_32x32x32_bf16 {vr(OA,16)}, {vr(VA,4)}, {vr(SA,8)}, v{IDXD}")
    a(f"v_smfmac_f32_16x16x64_bf16 {vr(LS,4)}, {vr(MA,4)}, {vr(SA,8)}, v{IDXD}")
    a(f"v_smfmac_f32_32x32x32_bf16 {vr(OA,16)}, {vr(VA+4,4)}, {vr(SA+8,8)}, v{IDXD}")
    a(f"v_smfmac_f32_16x16x64_bf16 {vr(LS,4)}, {vr(MA,4)}, {vr(SA+8,8)}, v{IDXD}")
    a(f"s_add_u32 s{T0}, s{T0}, 4096")
    a(f"s_cmp_lt_u32 s{T0}, 0x40000")
    a("s_nop 7")
    a("s_cbranch_scc1 L_fb2")
    a.flush()
    a("s_branch L_fin")
    a.label("L_code_end")

def build(path):
    k = K()
    k.ffn = FFN(k); k.D = PhaseD(k)
    prologue(k); phaseAB(k); attention(k); k.D.run()
    k.a.label("L_end"); k.a("s_endpgm")
    fallback(k)
    top = open("cdna_kernels/" + NAME + ".s.ref").read().split("; Override launch geometry")[0]
    if STAMPS: top += "; stamps: " + " ".join(STAMP_NAMES) + "\n"
    top += "; @launch grid=(256,1,1) block=(512,1,1) lds=163840\n"
    top += '.amdgcn_target "amdgcn-amd-amdhsa--gfx950"\n.text\n'
    top += f".set CODE_BYTES, L_code_end - {KN} - 64\n"
    kd = f""".section .rodata,"a"
.p2align 6
.amdhsa_kernel {KN}
  .amdhsa_next_free_vgpr 256
  .amdhsa_next_free_sgpr 102
  .amdhsa_accum_offset 256
  .amdhsa_group_segment_fixed_size 0
  .amdhsa_kernarg_size 104
  .amdhsa_user_sgpr_count 2
  .amdhsa_user_sgpr_kernarg_segment_ptr 1
  .amdhsa_system_sgpr_workgroup_id_x 1
.end_amdhsa_kernel
"""
    open(path, "w").write(top + k.a.text() + kd)
    return k

if __name__ == "__main__":
    out = sys.argv[1] if len(sys.argv) > 1 else "cdna_kernels/" + NAME + ".s"
    if len(sys.argv) > 2 and sys.argv[2] == "stamps": STAMPS = True
    VAR.update(sys.argv[3:])
    for v in VAR:
        if v.startswith('init'): N_INIT = int(v[4:])
        if v.startswith('wt'): WT_IT, WT_POS = [int(x) for x in v[2:].split('_')]
        if v.startswith('chk'): CHK, PI = [int(x) for x in v[3:].split('_')]
        if v.startswith('dp'): D_POLL = int(v[2:])
        if v.startswith('al'): ALIGN = int(v[2:])
    k = build(out)
    if "-v" in VAR:
        for l in k.a.log: print("nop", l)
        for l in k.pgAB.log: print("AB", l)
        for l in k.D.pg.log: print("D", l)
```

```python
import sys, struct
from asmlib import Asm

NAME = "recurrent_scan__grouped_kv_mqa__moe_arch_mod__prompt"
KN = NAME + "_kernel"
WS_KV, WS_STAT, WS_RKEY, WS_SY, WS_YACC, WS_GU, WS_STAMP, WS_OF = 0x0, 0x40000, 0x46000, 0x48000, 0x50000, 0x58000, 0x80000, 0x100000
WS_SIZE = 0x500000
SY1, SY2, SY3, SY4 = 0x60000, WS_SY + 32 * 128, WS_SY + 64 * 128, WS_SY + 128 * 128
ONES = 0x3F803F80
LOG2E = 1.4426950408889634
QSCALE = 0.17677669529663687 * LOG2E
def f32(x): return "0x%08x" % struct.unpack("<I", struct.pack("<f", x))[0]
STAMPS = False
VAR = set()
SPIN_MAX = 200000
N_INIT = 9
CHK, PI = 11, 9
VAR.add('hold')
D_POLL = 4
WT_IT, WT_POS = 3, 2
ALIGN = 0

S_X, S_W, S_KW, S_WS, S_KV, S_WR, S_WG, S_WU = 4, 8, 12, 16, 20, 24, 28, 32
S_OUT, S_WD = S_WR, S_KW
RB, HB, ROT, T0, T1, T2, T3 = 36, 37, 38, 39, 40, 41, 42
W1K, MODE, W4K, XSO, TD, SP, RT, HD, ROWT, RG = 43, 44, 45, 46, 47, 48, 49, 50, 51, 52
SEL, IDX, RKEY, FCG, RB2, CB2, OSO, XO2, CNT, OBASE = 53, 54, 55, 56, 57, 58, 59, 60, 61, 62
W8K, EXS, FW = 63, 64, 66
PT = 68
P_X, P_WQ, P_WK, P_WV, P_WO, P_BX, P_WR, P_WG, P_WU, P_WD, P_OUT, P_DBG, P_WS = [PT + 2 * i for i in range(13)]
STMP = 96
def sr(b): return f"s[{b}:{b+3}]"
def vr(b, n): return f"v[{b}:{b+n-1}]"

VN, VH, VOX, VOW, VL16, VST = 3, 4, 18, 19, 20, 21
MA, IDXC, IDXD, STAT = 24, 28, 29, 30

def srd(a, d, base, nbytes):
    a(f"s_mov_b32 s{d}, s{base}")
    a(f"s_and_b32 s{d+1}, s{base+1}, 0xffff")
    a(f"s_mov_b32 s{d+2}, {nbytes:#x}")
    a(f"s_mov_b32 s{d+3}, 0x20000")

def bf16r(a, dst, src):
    a(f"v_cvt_pk_bf16_f32 v{dst}, v{src}, v{src}")
    a(f"v_lshlrev_b32 v{dst}, 16, v{dst}")

_lbl = [0]
def L(p="L"):
    _lbl[0] += 1
    return f"{p}_{_lbl[0]}"

class Cnt:
    def __init__(self, a, name, mx): self.a, self.name, self.mx, self.tags, self.total, self.marks = a, name, mx, [], 0, {}
    def add(self, tag, n=1): self.tags += [tag] * n; self.total += n
    def mark(self, m): self.marks[m] = self.total
    def since(self, m): return min(self.total - self.marks[m], self.mx)
    def wait(self, *tags):
        idx = [i for i, t in enumerate(self.tags) if t in tags]
        if not idx: return
        n = min(len(self.tags) - 1 - max(idx), self.mx)
        self.a(f"s_waitcnt {self.name}({n})")
        self.tags = self.tags[len(self.tags) - n:] if n else []
    def wait_all(self):
        self.a(f"s_waitcnt {self.name}(0)"); self.tags = []

STAMP_NAMES = []
class K:
    def __init__(self):
        self.a = Asm()
        self.vm = Cnt(self.a, "vmcnt", 63)
        self.lg = Cnt(self.a, "lgkmcnt", 15)
    def stamp(self, name):
        if "dbgstamp" in VAR:
            a = self.a
            names = ["entry", "S0", "B0", "B_end", "loop_start", "loop_end", "E2", "end"]
            if name not in names: return
            slot = 8 + names.index(name)
            if name == "entry":
                a(f"s_memrealtime s[{STMP+2}:{STMP+3}]"); a("s_waitcnt lgkmcnt(0)")
                a("s_and_b32 s100, s2, 31"); a("s_lshl_b32 s101, s3, 8"); a("s_add_u32 s100, s100, s101"); return
            def st():
                a(f"s_memrealtime s[{STMP}:{STMP+1}]"); a("s_waitcnt lgkmcnt(0)")
                a(f"s_sub_u32 s{STMP}, s{STMP}, s{STMP+2}")
                a(f"v_mov_b32 v{VST+1}, s{STMP}")
                a(f"v_mov_b32 v{VST}, {slot*4}")
                a("s_mov_b64 exec, 1")
                a(f"global_atomic_umax v{VST}, v{VST+1}, s[{P_DBG}:{P_DBG+1}]")
                a("s_mov_b64 exec, -1")
            self.only("s_cmp_eq_u32 s100, 9", st)
            return
        if not STAMPS: return
        a = self.a
        slot = len(STAMP_NAMES); STAMP_NAMES.append(str(name)); assert slot < 32
        if name != "entry":
            a(f"s_memrealtime s[{STMP}:{STMP+1}]")
            a(f"s_memtime s[{STMP+2}:{STMP+3}]")
        a("s_waitcnt lgkmcnt(0)")
        a(f"s_lshl_b32 s{STMP+1}, s2, 11")
        a(f"s_lshl_b32 s{STMP+3}, s3, 8")
        a(f"s_add_u32 s{STMP+1}, s{STMP+1}, s{STMP+3}")
        a(f"s_add_u32 s{STMP+1}, s{STMP+1}, {WS_STAMP + slot * 8:#x}")
        a(f"v_mov_b32 v{VST+1}, s{STMP}")
        a(f"v_mov_b32 v{VST+2}, s{STMP+2}")
        a(f"v_mov_b32 v{VST}, s{STMP+1}")
        a(f"buffer_store_dwordx2 v[{VST+1}:{VST+2}], v{VST}, {sr(S_WS)}, 0 offen")
        self.vm.add("st")
    def only(self, cond, fn):
        a = self.a; skip = L()
        a(cond); a(f"s_cbranch_scc0 {skip}")
        snap = a.snapshot(); fn(); a.label(skip); a.join(snap)
    def ifelse(self, cond, f1, f2):
        a = self.a; lv, lj = L(), L()
        a(cond); a(f"s_cbranch_scc0 {lv}")
        snap = a.snapshot(); f1(); a(f"s_branch {lj}"); snap2 = a.snapshot()
        a.label(lv); a.hist = snap[0]; a.alts = [(h, 0) for h in snap[1:]]
        f2(); a.label(lj); a.join(snap2)
    def poll(self, vaddr, vdat, soff, expect, cnt=CNT):
        a = self.a; top, chk, done = L("poll"), L("pchk"), L("pdone")
        a(f"s_mov_b32 s{cnt}, 0")
        a(f"s_branch {chk}")
        a.label(top)
        a(f"buffer_load_dword v{vdat}, v{vaddr}, {sr(S_WS)}, s{soff} offen sc1")
        a("s_waitcnt vmcnt(0)")
        a.label(chk)
        a(f"v_cmp_ne_u32 vcc, {expect}, v{vdat}")
        a(f"s_add_u32 s{cnt}, s{cnt}, 1")
        a(f"s_cbranch_vccz {done}")
        a("s_sleep 2")
        a(f"s_cmp_lt_u32 s{cnt}, {SPIN_MAX}")
        a(f"s_cbranch_scc1 {top}")
        a.label(done)
    def ds(self, text, tag):
        self.a(text); self.lg.add(tag)

class Pager:
    def __init__(self, k, free, seq):
        self.k, self.free, self.seq, self.pos, self.page, self.rel = k, list(free), seq, 0, {}, {}
        self.hold, self.hold_until, self.log = set(), 0, []
    def release(self, it):
        for p in self.rel.pop(it, []): self.free.append(p)
    def take(self, n, stop=None):
        out = []
        while len(out) < n and self.pos < len(self.seq):
            tag, emit, last, pref = self.seq[self.pos]
            if stop is not None and tag == stop: break
            cand = [p for p in pref if p in self.free and not (p in self.hold and (last is None or last + 2 > self.hold_until))]
            if not cand: break
            p = cand[0]; self.free.remove(p); self.page[tag] = p
            if last is not None: self.rel.setdefault(last + 2, []).append(p)
            out.append((tag, emit(p))); self.pos += 1
        self.log.append([(t, self.page[t]) for t, _ in out])
        return out
    def issue(self, grp):
        tag, text = grp
        self.k.a(text); self.k.vm.add(tag)

def spread(groups, extra, first=True):
    n = len(groups)
    per = -(-len(extra) // max(n, 1)) if extra else 0
    for i, g in enumerate(groups):
        for e in extra[i * per:(i + 1) * per]: e()
        g()
    for e in extra[n * per:]: e()

def prologue(k):
    a, vm = k.a, k.vm
    a.raw(f".globl {KN}"); a.raw(".p2align 8"); a.raw(f".type {KN},@function"); a.raw(f"{KN}:")
    if STAMPS:
        a(f"s_memrealtime s[{STMP}:{STMP+1}]")
        a(f"s_memtime s[{STMP+2}:{STMP+3}]")
    a("s_cmp_ge_u32 s2, 256")
    a("s_cbranch_scc1 L_end")
    a(f"s_load_dwordx16 s[{PT}:{PT+15}], s[0:1], 0")
    a(f"s_load_dwordx8 s[{PT+16}:{PT+23}], s[0:1], 64")
    a(f"s_load_dwordx2 s[{PT+24}:{PT+25}], s[0:1], 96")
    a("s_getpc_b64 s[94:95]")
    a("v_lshrrev_b32 v1, 6, v0")
    a("v_and_b32 v2, 63, v0")
    a("v_readfirstlane_b32 s3, v1")
    a("s_and_b32 s4, s2, 0xf8")
    a("s_lshl_b32 s4, s4, 7")
    a("v_lshlrev_b32 v8, 7, v0")
    a("v_cmp_gt_u32 vcc, 8, v0")
    a("v_add_u32 v8, s4, v8")
    a("v_min_u32 v8, CODE_BYTES, v8")
    a(f"s_and_saveexec_b64 s[{EXS}:{EXS+1}], vcc")
    l2 = L(); a(f"s_cbranch_execz {l2}")
    a("global_load_dword v47, v8, s[94:95]")
    a.label(l2)
    a(f"s_mov_b64 exec, s[{EXS}:{EXS+1}]")
    a(f"v_lshlrev_b32 v{VL16}, 4, v2")
    a(f"v_and_b32 v{VN}, 31, v2")
    a(f"v_lshrrev_b32 v{VH}, 5, v2")
    a(f"s_and_b32 s{T0}, s2, 7")
    a(f"s_lshr_b32 s{T1}, s2, 3")
    a(f"s_lshr_b32 s{RB}, s{T0}, 1")
    a(f"s_lshl_b32 s{RB}, s{RB}, 3")
    a(f"s_and_b32 s{SEL}, s{T0}, 1")
    a(f"s_lshl_b32 s{T2}, s{SEL}, 2")
    a(f"s_add_u32 s{RB2}, s{RB}, s{T2}")
    a(f"s_and_b32 s{T3}, s{T1}, 3")
    a(f"s_add_u32 s{RB2}, s{RB2}, s{T3}")
    a(f"s_lshr_b32 s{CB2}, s{T1}, 2")
    a(f"s_and_b32 s{ROT}, s{T1}, 7")
    a(f"s_add_u32 s{RB}, s{RB}, s{ROT}")
    a(f"s_lshr_b32 s{T3}, s{T1}, 3")
    a(f"s_add_u32 s{HB}, s{T2}, s{T3}")
    a(f"s_lshl_b32 s{RG}, s{RB}, 2")
    a(f"s_add_u32 s{RG}, s{RG}, s{T3}")
    a(f"s_mul_i32 s{FCG}, s{T0}, 28")
    a(f"s_add_u32 s{FCG}, s{FCG}, s{T1}")
    a(f"s_lshl_b32 s{W1K}, s3, 10")
    a(f"s_lshl_b32 s{W4K}, s3, 12")
    a(f"s_lshl_b32 s{W8K}, s3, 13")
    a(f"s_and_b32 s{RT}, s3, 1")
    a(f"s_lshr_b32 s{HD}, s3, 1")
    a(f"s_lshl_b32 s{ROWT}, s{RB}, 1")
    a(f"s_add_u32 s{ROWT}, s{ROWT}, s{RT}")
    a(f"s_lshl_b32 s{XO2}, s{RB}, 17")
    a(f"s_lshl_b32 s{OSO}, s{HB}, 8")
    a(f"s_sub_u32 s{FW}, s3, 1")
    a("s_cmp_lt_u32 s3, 4")
    a(f"s_cselect_b32 s{MODE}, s{SEL}, 2")
    a("v_lshrrev_b32 v5, 4, v2")
    a(f"s_lshl_b32 s{T0}, s3, 2")
    a(f"v_add_u32 v6, s{T0}, v5")
    a("v_xor_b32 v7, v6, v2")
    a("v_and_b32 v7, 7, v7")
    a("v_lshlrev_b32 v7, 4, v7")
    a("v_lshrrev_b32 v8, 3, v2")
    a("v_lshl_add_u32 v7, v8, 11, v7")
    a(f"s_lshl_b32 s{T0}, s3, 14")
    a(f"v_add_u32 v{VOX}, s{T0}, v7")
    a("v_lshrrev_b32 v7, 2, v2")
    a("v_lshlrev_b32 v7, 11, v7")
    a("v_and_b32 v8, 3, v2")
    a("v_lshl_add_u32 v7, v8, 4, v7")
    a(f"s_lshl_b32 s{T0}, s{RT}, 16")
    a(f"s_lshl_b32 s{T1}, s{HD}, 6")
    a(f"s_add_u32 s{T0}, s{T0}, s{T1}")
    a(f"v_add_u32 v{VOW}, s{T0}, v7")
    a("v_lshlrev_b32 v7, 2, v2")
    a("v_mov_b32 v9, 0")
    a("v_mov_b32 v17, 0")
    a("v_mov_b32 v16, 1")
    a(f"s_xor_b32 s{CNT}, s3, 7")
    a(f"s_lshl_b32 s{CNT}, s{CNT}, 8")
    a(f"s_add_u32 s{CNT}, s{CNT}, s2")
    a("v_and_b32 v1, 28, v7")
    a("s_waitcnt lgkmcnt(0)")
    srd(a, S_X, P_X, 2048 * 2048)
    a(f"s_cmp_eq_u32 s{SEL}, 0")
    a(f"s_cselect_b32 s{S_KW}, s{P_WK}, s{P_WV}")
    a(f"s_cselect_b32 s{S_KW+1}, s{P_WK+1}, s{P_WV+1}")
    a(f"s_and_b32 s{S_KW+1}, s{S_KW+1}, 0xffff")
    a(f"s_mov_b32 s{S_KW+2}, 0x10000")
    a(f"s_mov_b32 s{S_KW+3}, 0x20000")
    srd(a, S_WS, P_WS, WS_SIZE)
    srd(a, S_WR, P_WR, 2048)
    k.stamp("entry")
    def zero():
        a("v_mov_b32 v10, 0"); a("v_mov_b32 v11, 0"); a("v_mov_b32 v8, 0")
        a(f"s_lshl_b32 s{T2}, s2, 12")
        a(f"s_add_u32 s{T2}, s{T2}, {SY1:#x}")
        for i in range(4): a(f"buffer_store_dwordx4 v[8:11], v{VL16}, {sr(S_WS)}, s{T2} offen offset:{i*1024} sc1")
        a(f"s_lshl_b32 s{T2}, s2, 2")
        a("s_waitcnt vmcnt(0)")
        a(f"v_mov_b32 v10, s{T2}")
        a(f"global_store_dword v10, v16, s[{P_DBG}:{P_DBG+1}] sc1")
    k.only(f"s_cmp_lt_u32 s{CNT}, 8", zero)

AUX = 19 * 8192
TAB = AUX + 2304
RED = 4 * 8192

def phaseAB(k):
    a, vm, lg = k.a, k.vm, k.lg
    VXA, VW, ACC, WF, FT, XREG, CS = 32, 44, 48, 64, 96, 128, 12
    XF, ACCX, ACCO = XREG, 48, 80
    def rot(j, shift, extra, base):
        return f"""s_add_u32 s{TD}, s{ROT}, {j}
        s_and_b32 s{TD}, s{TD}, 7
        s_lshl_b32 s{TD}, s{TD}, {shift}
        s_add_u32 s{TD}, s{TD}, s{base}""" + (f"\ns_add_u32 s{TD}, s{TD}, {extra}" if extra else "")
    def ldx(c): return lambda p: f"s_add_u32 m0, s{W1K}, {p*8192}\n" + rot(c >> 1, 8, (c & 1) * 128, XO2) + f"\nbuffer_load_dwordx4 v{VOX}, {sr(S_X)}, s{TD} offen lds"
    def ldk(j): return lambda p: f"s_add_u32 m0, s{W1K}, {p*8192}\n" + rot(j, 13, 0, W1K) + f"\nbuffer_load_dwordx4 v{VL16}, {sr(S_KW)}, s{TD} offen lds"
    def ldw(c, h): return lambda p: f"s_add_u32 m0, s{W1K}, {p*8192}\n" + rot(c >> 1, 18, ((c & 1) * 64 + h * 16) * 2048, OSO) + f"\nbuffer_load_dwordx4 v{VOW}, {sr(S_W)}, s{TD} offen lds"
    seq = []
    hi = list(range(8, 19))
    for j in range(8):
        seq.append((("k", j), ldk(j), j, [4, 5, 6, 7] if 2 <= j <= 5 else hi[::-1]))
        for e in range(2):
            c = 2 * j + e
            seq.append((("x", c), ldx(c), j if c < 8 else None, [0, 1, 2, 3] if 8 <= c <= 11 else hi[::-1] if c < 8 else hi[:3:-1]))
    for c in range(16):
        for h in range(2):
            seq.append((("w", c, h), ldw(c, h), None, hi + [4, 5, 6, 7]))
    pg = Pager(k, range(19), seq)
    pg.hold, pg.hold_until = {4, 5, 6, 7}, 7
    k.pgAB = pg
    srd(a, S_W, P_WQ, 1024 * 2048)
    a(f"v_lshlrev_b32 v8, 7, v{VN}")
    a(f"s_lshl_b32 s{T0}, s{RG}, 15")
    a(f"s_add_u32 s{T0}, s{T0}, s{W4K}")
    a(f"buffer_load_dword v47, v8, {sr(S_X)}, s{T0} offen"); vm.add("xt")
    def wtouch():
        a(f"v_lshrrev_b32 v8, 1, v{VN}")
        a("v_lshlrev_b32 v8, 11, v8")
        a("v_and_b32 v10, 1, v2")
        a("v_lshl_add_u32 v8, v10, 7, v8")
        a(f"s_lshl_b32 s{T0}, s{ROT}, 3")
        a(f"s_add_u32 s{T0}, s{T0}, s3")
        a(f"s_lshl_b32 s{T0}, s{T0}, 15")
        a(f"s_add_u32 s{T0}, s{T0}, s{OSO}")
        a(f"buffer_load_dword v47, v8, {sr(S_W)}, s{T0} offen"); vm.add("wt")
    if WT_IT < 0: wtouch()
    a(f"s_lshl_b32 s{T1}, s3, 8")
    a(f"s_add_u32 m0, s{T1}, {AUX}")
    a(f"s_add_u32 s{TD}, s{ROT}, s3")
    a(f"s_and_b32 s{TD}, s{TD}, 7")
    a(f"s_lshl_b32 s{TD}, s{TD}, 8")
    a(f"buffer_load_dword v7, {sr(S_WR)}, s{TD} offen lds"); vm.add("wr")
    first = pg.take(N_INIT)
    for g_ in first[:3]: pg.issue(g_)
    k.stamp("issued")
    srd(a, S_KV, P_WS, 0x40000)
    srd(a, S_WG, P_WG, 1024 * 7168)
    srd(a, S_WU, P_WU, 1024 * 7168)
    a(f"v_mov_b32 v8, {ONES:#x}")
    a(f"v_add_u32 v9, {AUX + 2048}, v7")
    k.ds("ds_write_b32 v9, v8", "ones")
    k.ds("ds_write_b32 v9, v17 offset:384", "ones")
    a(f"v_bfe_u32 v5, v{VN}, 1, 3")
    a(f"v_xor_b32 v5, v5, v{VH}")
    a(f"s_lshl_b32 s{T0}, s{RT}, 12")
    a(f"s_lshl_b32 s{T1}, s{RT}, 2")
    a(f"v_lshlrev_b32 v6, 7, v{VN}")
    a(f"v_add_u32 v8, s{T0}, v6")
    a(f"v_xor_b32 v9, s{T1}, v5")
    a(f"v_lshl_add_u32 v{VXA}, v9, 4, v8")
    a(f"v_xor_b32 v{VXA+1}, 32, v{VXA}")
    a(f"v_xor_b32 v{VXA+2}, 0x1000, v{VXA}")
    a(f"v_xor_b32 v{VXA+3}, 0x1020, v{VXA}")
    for s in range(4):
        a(f"v_add_u32 v{VXA+4+s}, 0x10000, v{VXA+s}")
        a(f"v_add_u32 v{VXA+8+s}, 0x20000, v{VXA+s}")
    BX, MX, I17, AX, AW, BW = FT, FT + 2, FT + 3, FT + 4, FT + 6, FT + 7
    a(f"s_and_b32 s{T0}, s{HB}, 3")
    a(f"s_lshl_b32 s{T0}, s{T0}, 11")
    a(f"v_add_u32 v8, s{T0}, v6")
    a(f"s_lshl_b32 s{T1}, s{RT}, 2")
    a(f"v_xor_b32 v9, s{T1}, v5")
    a(f"v_lshl_add_u32 v{BX}, v9, 4, v8")
    a("v_xor_b32 v9, 2, v9")
    a(f"v_lshl_add_u32 v{BX+1}, v9, 4, v8")
    a(f"s_and_b32 s{T2}, s3, 3")
    a(f"s_lshl_b32 s{T3}, s{T2}, 6")
    a(f"s_add_u32 s{T3}, s{T3}, {AUX}")
    a(f"v_lshlrev_b32 v8, 4, v{VH}")
    a(f"v_add_u32 v8, s{T3}, v8")
    a(f"v_mov_b32 v9, {AUX + 2048}")
    a(f"v_cmp_eq_u32 vcc, 17, v{VN}")
    a("v_mov_b32 v10, 256")
    a("v_cndmask_b32 v8, v9, v8, vcc")
    a(f"v_cndmask_b32 v{I17}, 0, v10, vcc")
    a("v_add_u32 v9, 32, v8")
    a(f"v_cmp_gt_u32 vcc, 16, v{VN}")
    a(f"v_cndmask_b32 v{MX}, 0, 1, vcc")
    a(f"v_cndmask_b32 v{BX}, v8, v{BX}, vcc")
    a(f"v_cndmask_b32 v{BX+1}, v9, v{BX+1}, vcc")
    a("v_bfe_u32 v5, v2, 2, 2")
    a(f"v_lshl_add_u32 v6, v{VH}, 3, v5")
    a("v_bfe_u32 v8, v2, 4, 1")
    a("v_lshlrev_b32 v8, 5, v8")
    a("v_and_b32 v9, 3, v2")
    a("v_lshl_add_u32 v8, v9, 3, v8")
    a("v_lshl_add_u32 v9, v6, 6, v8")
    a(f"s_lshl_b32 s{T3}, s{T2}, 11")
    a(f"v_add_u32 v{BW}, s{T3}, v9")
    a(f"v_add_u32 v{VW}, s{W1K}, v9")
    a(f"v_add_u32 v{VW+1}, 0x10000, v{VW}")
    a(f"v_add_u32 v{VW+2}, 0x20000, v{VW}")
    a("v_bfe_u32 v5, v2, 2, 1")
    a("v_cmp_eq_u32 vcc, 0, v5")
    a(f"v_mov_b32 v6, {ONES:#x}")
    a(f"v_cndmask_b32 v{MA}, 0, v6, vcc")
    a(f"v_cndmask_b32 v{MA+1}, 0, v6, vcc")
    a(f"v_cndmask_b32 v{MA+2}, v6, 0, vcc")
    a(f"v_cndmask_b32 v{MA+3}, v6, 0, vcc")
    a("v_and_b32 v5, 2, v2")
    a("v_cmp_eq_u32 vcc, 0, v5")
    for i in range(4): a(f"v_cndmask_b32 v{MA+i}, 0, v{MA+i}, vcc")
    a("v_and_b32 v5, 1, v2")
    a("v_cmp_eq_u32 vcc, 0, v5")
    a("v_mov_b32 v6, 0x44444444")
    a("v_mov_b32 v8, 0xeeeeeeee")
    a(f"v_cndmask_b32 v{IDXC}, v8, v6, vcc")
    a(f"v_mov_b32 v{IDXD}, 0xdddddddd")
    for i in range(4): a(f"v_mov_b32 v{CS+i}, 0")
    for g_ in first[3:]: pg.issue(g_)
    lg.wait_all()

    def xread(c, s, dst, tag):
        p = pg.page[("x", c)]
        k.ds(f"ds_read_b128 {vr(dst, 4)}, v{VXA + 4*(p >> 3) + s} offset:{(p & 7) * 8192}", tag)
    def kv_mfma(j):
        b = WF + 16 * (j & 1)
        def mm(x, y):
            for e in range(2):
                c = "0" if (j == 0 and e == 0) else vr(ACC, 16)
                a(f"v_mfma_f32_32x32x16_bf16 {vr(ACC,16)}, {vr(b+x+4*e,4)}, {vr(b+y+4*e,4)}, {c}")
        k.ifelse(f"s_cmp_eq_u32 s{MODE}, 2", lambda: mm(0, 0),
                 lambda: k.ifelse(f"s_cmp_eq_u32 s{MODE}, 0", lambda: mm(8, 0), lambda: mm(0, 8)))
    for j in range(8):
        vm.wait(("x", 2*j), ("x", 2*j+1), ("k", j))
        a("s_barrier")
        if j == 0: k.stamp(f"S{j}")
        pg.release(j)
        d = [lambda g=g: pg.issue(g) for g in pg.take(6 if j < 2 else 4, stop=(('w', 0, 0) if 'hold' in VAR else None))]
        b = WF + 16 * (j & 1)
        def g0():
            a("s_bitcmp1_b32 s3, 1")
            a(f"s_mov_b32 s{SP}, {pg.page[('x', 2*j)]*8192}")
            a(f"s_cselect_b32 s{SP}, {pg.page[('x', 2*j+1)]*8192}, s{SP}")
            a(f"v_mul_u32_u24 v8, s{SP}, v{MX}")
            a(f"v_add_u32 v{AX}, v8, v{BX}")
            a(f"v_add_u32 v{AX+1}, v8, v{BX+1}")
            a(f"v_add_u32 v{AW}, {pg.page[('k', j)]*8192}, v{BW}")
            for e in range(2): k.ds(f"ds_read_b128 {vr(b+4*e,4)}, v{AX+e}", ("s", j))
            for e in range(2):
                for u in range(2):
                    k.ds(f"ds_read_b64_tr_b16 {vr(b+8+4*e+2*u,2)}, v{AW} offset:{(16*e+4*u)*64}", ("s", j))
            a(f"v_add_u32 v{BX}, v{I17}, v{BX}")
            a(f"v_add_u32 v{BX+1}, v{I17}, v{BX+1}")
        def g1():
            if j > 0:
                lg.wait(("s", j - 1), ("xr", j - 1))
                kv_mfma(j - 1)
        def g2(e):
            if j < 4:
                for s in range(4): xread(2*j+e, s, XREG + 16*(2*j+e) + 4*s, ("xr", j))
        if j == WT_IT: d.insert(WT_POS, wtouch)
        if j == 3: d.insert(2, lambda: k.only('s_cmp_eq_u32 s3, 0', lambda: a(f'global_load_dword v16, v1, s[{P_DBG}:{P_DBG+1}] sc1')))
        g2(0)
        spread([g0, g1, lambda: g2(1)], d)
    F = FT
    R2 = RED + 16384
    def st_reads():
        a("v_and_b32 v5, 15, v2")
        a("v_lshlrev_b32 v6, 4, v5")
        for w in range(4): a(f"ds_read_b64 {vr(F+2*w,2)}, v6 offset:{R2+w*4096+2*1024}")
        a("v_bfe_u32 v8, v5, 2, 1")
        a("v_lshl_add_u32 v8, v8, 9, v6")
        a("v_lshrrev_b32 v9, 3, v5")
        a("v_lshl_add_u32 v8, v9, 10, v8")
        a("v_and_b32 v9, 3, v5")
        a("v_lshl_add_u32 v8, v9, 2, v8")
        for w in range(4): a(f"ds_read_b32 v{F+8+w}, v8 offset:{R2+w*4096}")
        a(f"v_mov_b32 v9, {16*16 + 4}")
        for w in range(4): a(f"ds_read_b32 v{F+12+w}, v9 offset:{R2+w*4096+2*1024}")
        a("s_waitcnt lgkmcnt(0)")
        st_compute()
    def da_reads():
        a("v_and_b32 v5, 15, v2")
        def kk():
            a("v_bfe_u32 v9, v2, 4, 1")
            a("v_lshlrev_b32 v8, 9, v9")
            a(f"v_lshl_add_u32 v8, v{VH}, 10, v8")
            a(f"s_lshl_b32 s{T0}, s{FW}, 11")
            a(f"v_add_u32 v8, s{T0}, v8")
            a("v_lshl_add_u32 v9, v5, 4, v8")
            for w in range(4): a(f"ds_read_b128 {vr(F+4*w,4)}, v9 offset:{RED+w*4096}")
            for w in range(4): a(f"ds_read_b128 {vr(F+16+4*w,4)}, v8 offset:{RED+w*4096+256}")
        def vv():
            a(f"s_lshl_b32 s{T0}, s{FW}, 10")
            a(f"v_add_u32 v9, s{T0}, v{VL16}")
            for w in range(4): a(f"ds_read_b128 {vr(F+4*w,4)}, v9 offset:{RED+w*4096}")
            a(f"v_lshlrev_b32 v8, 4, v{VN}")
            for w in range(4): a(f"ds_read_b32 v{F+16+4*w}, v8 offset:{RED+w*4096+2048}")
        k.ifelse(f"s_cmp_eq_u32 s{SEL}, 0", kk, vv)
        a(f"s_lshr_b32 s{T2}, s{RG}, 1")
        a(f"s_lshl_b32 s{T2}, s{T2}, 12")
        a(f"s_and_b32 s{T1}, s{RG}, 1")
        def kk2():
            a("v_and_b32 v8, 3, v5")
            a("v_bfe_u32 v9, v5, 2, 1")
            a("v_lshl_add_u32 v8, v9, 3, v8")
            a("v_bfe_u32 v9, v5, 3, 1")
            a("v_lshl_add_u32 v8, v9, 2, v8")
            a("v_bfe_u32 v9, v2, 4, 1")
            a("v_lshl_add_u32 v8, v9, 5, v8")
            a("v_lshlrev_b32 v8, 4, v8")
            a(f"v_lshl_add_u32 v8, v{VH}, 3, v8")
            a(f"s_lshl_b32 s{T0}, s{FW}, 10")
            a(f"s_add_u32 s{T2}, s{T2}, s{T0}")
            a(f"s_lshl_b32 s{T1}, s{T1}, 8")
            a(f"s_add_u32 s{T2}, s{T2}, s{T1}")
            a("v_lshlrev_b32 v6, 2, v5")
        def vv2():
            a(f"v_mov_b32 v8, v{VL16}")
            a(f"s_lshl_b32 s{T1}, s{T1}, 10")
            a(f"s_add_u32 s{T2}, s{T2}, s{T1}")
            a(f"s_lshl_b32 s{T1}, s{FW}, 3")
            a(f"s_add_u32 s{T2}, s{T2}, s{T1}")
            a(f"s_add_u32 s{T2}, s{T2}, 2048")
            a(f"s_lshl_b32 s{T0}, s{FW}, 5")
            a(f"v_lshlrev_b32 v6, 4, v{VH}")
            a(f"v_add_u32 v6, s{T0}, v6")
        k.ifelse(f"s_cmp_eq_u32 s{SEL}, 0", kk2, vv2)
        a(f"v_add_u32 v6, {TAB}, v6")
        a("s_waitcnt lgkmcnt(0)")
        for w in range(1, 4):
            for e in range(4):
                a(f"v_add_f32 v{F+e}, v{F+e}, v{F+4*w+e}")
                a(f"v_add_f32 v{F+16+e}, v{F+16+e}, v{F+16+4*w+e}")
    def dbg_load():
        a(f"global_load_dword v16, v17, s[{P_DBG}:{P_DBG+1}] sc1")
    def st_compute():
        M, RI, R, V = F + 2, F + 3, F + 1, F + 8
        for w in range(1, 4):
            a(f"v_add_f32 v{F}, v{F}, v{F+2*w}")
            a(f"v_add_f32 v{V}, v{V}, v{V+w}")
            a(f"v_add_f32 v{F+1}, v{F+1}, v{F+2*w+1}")
        a(f"v_mul_f32 v{F}, {f32(1/1024)}, v{F}")
        a(f"v_mul_f32 v{V}, {f32(1/1024)}, v{V}")
        a(f"v_fma_f32 v{V}, -v{F}, v{F}, v{V}")
        a(f"v_max_f32 v{V}, 0, v{V}")
        bf16r(a, M, F)
        bf16r(a, V, V)
        a(f"v_add_f32 v{V}, {f32(1e-5)}, v{V}")
        bf16r(a, V, V)
        a(f"v_sqrt_f32 v{V}, v{V}")
        a("v_lshlrev_b32 v8, 2, v5")
        bf16r(a, V, V)
        a(f"v_rcp_f32 v{RI}, v{V}")
        a(f"v_add_u32 v8, {TAB}, v8")
        a(f"ds_write_b32 v8, v{M}")
        a(f"ds_write_b32 v8, v{RI} offset:64")
        a("s_waitcnt lgkmcnt(0)")
    def st_store():
        M, RI, R = F + 2, F + 3, F + 1
        a(f"s_lshl_b32 s{T0}, s2, 8")
        a(f"s_add_u32 s{T0}, s{T0}, {WS_YACC:#x}")
        a("v_lshlrev_b32 v8, 2, v2")
        a(f"buffer_store_dword v17, v8, {sr(S_WS)}, s{T0} offen sc1")
        a(f"s_lshl_b32 s{T0}, s2, 7")
        a(f"s_add_u32 s{T0}, s{T0}, {WS_SY:#x}")
        a("v_and_b32 v8, 127, v8")
        a(f"buffer_store_dword v17, v8, {sr(S_WS)}, s{T0} offen sc1")
        def rk():
            for w in range(1, 4): a(f"v_add_f32 v{F+12}, v{F+12}, v{F+12+w}")
            a(f"v_fma_f32 v{R}, -v{M}, v{F+12}, v{R}")
            a(f"v_mul_f32 v{R}, v{R}, v{RI}")
            a(f"v_cvt_pk_bf16_f32 v{R}, v{R}, v{R}")
            a(f"v_ashrrev_i32 v8, 31, v{R}")
            a("v_or_b32 v8, 0x80000000, v8")
            a(f"v_xor_b32 v{R}, v{R}, v8")
            a(f"v_and_b32 v{R}, 0xffff0000, v{R}")
            a(f"s_lshl_b32 s{T0}, s{RG}, 4")
            a(f"v_add_u32 v8, s{T0}, v5")
            a("v_sub_u32 v8, 0xffff, v8")
            a(f"v_or_b32 v{R}, v{R}, v8")
            for sh in (8, 4, 2, 1):
                a(f"v_max_u32_dpp v{R}, v{R}, v{R} row_ror:{sh} row_mask:0xf bank_mask:0xf")
            a("v_lshlrev_b32 v8, 3, v5")
            a(f"s_lshl_b32 s{T0}, s{RG}, 7")
            a(f"s_add_u32 s{T0}, s{T0}, {WS_STAT:#x}")
            a(f"s_lshl_b32 s{T1}, s{RG}, 2")
            a(f"s_add_u32 s{T1}, s{T1}, {WS_RKEY:#x}")
            a("s_mov_b64 exec, 0xffff")
            a(f"buffer_store_dwordx2 v[{M}:{RI}], v8, {sr(S_WS)}, s{T0} offen sc1")
            a("s_mov_b64 exec, 1")
            a(f"buffer_store_dword v{R}, v8, {sr(S_WS)}, s{T1} offen sc1")
            a("s_mov_b64 exec, -1")
        k.only(f"s_cmp_eq_u32 s{SEL}, 0", rk)
    def da_store():
        def kk():
            a(f"ds_read_b32 v{F+4}, v6")
            a(f"ds_read_b32 v{F+8}, v6 offset:64")
            a("s_waitcnt lgkmcnt(0)")
            for e in range(4): a(f"v_fma_f32 v{F+e}, -v{F+4}, v{F+16+e}, v{F+e}")
            for e in range(4): a(f"v_mul_f32 v{F+e}, v{F+e}, v{F+8}")
        def vv():
            a(f"ds_read_b128 {vr(F+4,4)}, v6")
            a(f"ds_read_b128 {vr(F+8,4)}, v6 offset:64")
            a("s_waitcnt lgkmcnt(0)")
            for e in range(4): a(f"v_fma_f32 v{F+e}, -v{F+4+e}, v{F+16}, v{F+e}")
            for e in range(4): a(f"v_mul_f32 v{F+e}, v{F+e}, v{F+8+e}")
        k.ifelse(f"s_cmp_eq_u32 s{SEL}, 0", kk, vv)
        a(f"v_cvt_pk_bf16_f32 v{F+12}, v{F}, v{F+1}")
        a(f"v_cvt_pk_bf16_f32 v{F+13}, v{F+2}, v{F+3}")
        a(f"buffer_store_dwordx2 {vr(F+12,2)}, v8, {sr(S_WS)}, s{T2} offen sc1")
    def fin_arrive():
        a(f"s_waitcnt vmcnt({vm.since('fs')})")
        top, done = L(), L()
        a(f"s_mov_b32 s{CNT}, 0")
        a.label(top)
        a("v_cmp_eq_u32 vcc, 0, v16")
        a(f"s_add_u32 s{CNT}, s{CNT}, 1")
        a(f"s_cbranch_vccz {done}")
        a(f"global_load_dword v16, v1, s[{P_DBG}:{P_DBG+1}] sc1")
        a("s_waitcnt vmcnt(0)")
        a(f"s_cmp_lt_u32 s{CNT}, {SPIN_MAX}")
        a(f"s_cbranch_scc1 {top}")
        a.label(done)
        a("v_mov_b32 v8, 1")
        a(f"v_mov_b32 v9, {TAB + 128}")
        a("s_mov_b64 exec, 1")
        a("ds_add_rtn_u32 v9, v9, v8")
        a("s_waitcnt lgkmcnt(0)")
        a("v_cmp_eq_u32 vcc, 2, v9")
        a("s_mov_b64 exec, 0xff")
        nl = L()
        a(f"s_cbranch_vccz {nl}")
        a(f"s_lshr_b32 s{T0}, s2, 3")
        a(f"s_lshl_b32 s{T0}, s{T0}, 7")
        a(f"s_add_u32 s{T0}, s{T0}, {SY1:#x}")
        a("v_lshlrev_b32 v9, 12, v2")
        a(f"buffer_atomic_add v8, v9, {sr(S_WS)}, s{T0} offen sc1")
        a.label(nl)
        a("s_mov_b64 exec, -1")
    W0, W12, W012 = "s_cmp_eq_u32 s3, 0", f"s_cmp_lt_u32 s{FW}, 2", "s_cmp_lt_u32 s3, 3"
    def kv_dma(i, chunk):
        a(f"s_add_u32 m0, s{W4K}, {chunk*32768 + i*1024}")
        a(f"s_add_u32 s{XSO}, s{W4K}, {chunk*32768 + i*1024}")
        a(f"buffer_load_dwordx4 v{VL16}, {sr(S_KV)}, s{XSO} offen sc1 lds"); vm.add(("kv", chunk))
    RK, PV, ST2 = 120, 122, 124
    def rd(c):
        vm.wait(("w", c, 0), ("w", c, 1))
        for e in range(2):
            p = pg.page[("w", c, e)]
            for u in range(2):
                k.ds(f"ds_read_b64_tr_b16 {vr(WF+8*(c&1)+4*e+2*u,2)}, v{VW + (p >> 3)} offset:{(p & 7)*8192 + 4*u*64}", ("q", c, e))
            if c >= 8:
                for t in range(2): xread(c, 2*t+e, XF + 16*(c & 1) + 4*(2*t+e), ("q", c, e))
    def mm(c):
        xb = (XREG + 16*c) if c < 8 else (XF + 16*(c & 1))
        for e in range(2):
            lg.wait(("q", c, e))
            for t, acc in ((0, ACCO), (1, ACCX)):
                cc = "0" if (c == 0 and e == 0) else vr(acc, 16)
                a(f"v_mfma_f32_32x32x16_bf16 {vr(acc,16)}, {vr(WF+8*(c&1)+4*e,4)}, {vr(xb+4*(2*t+e),4)}, {cc}")
        a(f"v_smfmac_f32_16x16x64_bf16 {vr(CS,4)}, {vr(MA,4)}, {vr(WF+8*(c&1),8)}, v{IDXC}")
        for e in range(2): pg.free.append(pg.page[("w", c, e)])
    def dmas(n):
        for g_ in pg.take(n): pg.issue(g_)
    k.stamp("B0")
    lg.wait(("s", 7)); kv_mfma(7)
    a(f"v_add_u32 v8, s{W4K}, v{VL16}")
    for q in range(4): k.ds(f"ds_write_b128 v8, {vr(ACC+4*q,4)} offset:{RED + q*1024}", "red")
    lg.wait_all()
    a("s_barrier"); pg.release(8); pg.release(9)
    k.only(W0, st_reads); k.only(W12, da_reads)
    if "hold" in VAR:
        first = pg.take(7)
        def early_w():
            for t_, x in first: a(x)
        k.only("s_cmp_ge_u32 s3, 3", early_w)
        a("s_barrier"); pg.hold = set()
        k.only(W0, st_store); k.only(W12, da_store); vm.mark("fs")
        k.only(W012, early_w)
        for t_, x in first: vm.add(t_)
        rd(0); rd(1)
    else:
        dmas(2)
        rd(0); rd(1)
    k.stamp('R1')
    for c in range(16):
        mm(c)
        if 'fine' in VAR and c in (1, 2, 4, 6, 8, 10, 12, 13, 14): k.stamp(f'M{c}')
        if c == 0 and "hold" not in VAR:
            a("s_barrier"); pg.hold = set()
            k.only(W0, st_store); k.only(W12, da_store); vm.mark("fs")
        if c == PI:
            a(f"v_lshlrev_b32 v{PV}, 7, v{VN}")
            a(f"s_and_b32 s{T3}, s2, 7")
            a(f"s_lshl_b32 s{T3}, s{T3}, 12")
            a(f"s_add_u32 s{T3}, s{T3}, {SY1:#x}")
            k.only("s_cmp_eq_u32 s3, 7", lambda: a(f"buffer_load_dword v{PV+1}, v{PV}, {sr(S_WS)}, s{T3} offen sc1"))
            vm.mark("poll")
        if ALIGN and c >= 2 and c % ALIGN == 0 and c <= 10: a("s_barrier")
        dmas(3 if ALIGN < 2 else (6 if c % 2 == 0 or c < 2 else 0))
        if c + 2 < 16: rd(c + 2)
        if c == (0 if 'hold' in VAR else 2): k.only(W012, fin_arrive)
        if c in (5, 6, 7): k.ffn.early(c - 5)
        if c == CHK:
            def chk():
                a(f"s_waitcnt vmcnt({vm.since('poll')})")
                k.poll(PV, PV + 1, T3, 8)
            k.only("s_cmp_eq_u32 s3, 7", chk)
            a("s_barrier")
            assert pg.pos == len(pg.seq)
            a(f"s_lshl_b32 s{T0}, s{ROWT}, 8")
            a(f"s_add_u32 s{T0}, s{T0}, {WS_STAT:#x}")
            a(f"v_lshlrev_b32 v5, 3, v{VN}")
            a(f"buffer_load_dwordx2 {vr(STAT,2)}, v5, {sr(S_WS)}, s{T0} offen sc1"); vm.add("stat")
            a(f"s_xor_b32 s{T0}, s{T0}, 0x100")
            a(f"buffer_load_dword v{ST2}, v5, {sr(S_WS)}, s{T0} offen sc1"); vm.add("stat")
            kv_dma(0, 0); kv_dma(1, 0)
        if c == CHK + 1:
            kv_dma(2, 0); kv_dma(3, 0)
            a("v_lshlrev_b32 v5, 3, v2")
            a(f"s_mov_b32 s{T0}, {WS_RKEY:#x}")
            a(f"buffer_load_dwordx2 {vr(RK,2)}, v5, {sr(S_WS)}, s{T0} offen sc1"); vm.add("rk")
            def kvt():
                a(f"s_lshr_b32 s{T0}, s2, 3")
                a(f"s_lshl_b32 s{T0}, s{T0}, 13")
                a("v_lshlrev_b32 v5, 7, v2")
                a(f"buffer_load_dword v16, v5, {sr(S_KV)}, s{T0} offen sc1")
            k.only("s_cmp_eq_u32 s3, 6", kvt)
    for p in (8, 9, 10, 11): assert p in pg.free
    k.stamp("B_end")
    k.ACCX, k.ACCO, k.ST2 = ACCX, ACCO, ST2
    k.ACC, k.CS, k.RK = ACC, CS, RK

QF, NM, VA, SA, SB, OA, LS, KA, VK1 = 32, 40, 56, 64, 80, 96, 112, 116, 17

def attention(k):
    a, vm, lg, ffn = k.a, k.vm, k.lg, k.ffn
    ACCX, ACC, CS, ST2 = k.ACCX, k.ACCO, k.CS, k.ST2
    EX = 96
    a(f"v_cmp_eq_u32 vcc, 0, v{VH}")
    vm.wait("stat")
    a(f"v_cvt_pk_bf16_f32 v{EX}, -v{STAT}, -v{STAT}")
    a(f"v_cvt_pk_bf16_f32 v{EX+4}, -v{ST2}, -v{ST2}")
    a(f"v_cndmask_b32 v{EX}, 0, v{EX}, vcc")
    a(f"v_cndmask_b32 v{EX+4}, 0, v{EX+4}, vcc")
    a(f"v_mov_b32 v{EX+1}, v{EX}"); a(f"v_mov_b32 v{EX+5}, v{EX+4}")
    for i in (2, 3, 6, 7): a(f"v_mov_b32 v{EX+i}, 0")
    a("v_mov_b32 v10, 0"); a("v_mov_b32 v11, 0")
    a(f"v_add_f32 v6, v{CS}, v{CS+1}")
    a("v_cvt_pk_bf16_f32 v5, v6, v6")
    a("v_lshlrev_b32 v5, 16, v5")
    a("v_sub_f32 v5, v6, v5")
    a("v_cvt_pk_bf16_f32 v8, v6, v5")
    a("v_and_b32 v6, 0xffff0000, v8")
    a("v_sub_f32 v5, v5, v6")
    a("v_cvt_pk_bf16_f32 v9, v5, 0")
    a(f"v_add_u32 v12, s{W1K}, v{VL16}")
    a("v_add_u32 v12, 0x10000, v12")
    a(f"v_mfma_f32_32x32x16_bf16 {vr(ACCX,16)}, v[8:11], {vr(EX+4,4)}, {vr(ACCX,16)}")
    a(f"v_mfma_f32_32x32x16_bf16 {vr(ACC,16)}, v[8:11], {vr(EX,4)}, {vr(ACC,16)}")
    a(f"v_mul_f32 v6, {f32(QSCALE)}, v{STAT+1}")
    a("v_and_b32 v5, 1, v2")
    a("v_cmp_eq_u32 vcc, 0, v5")
    a("v_xor_b32 v13, 0x400, v12")
    for i in range(4): a(f"v_cndmask_b32 v{MA+i}, 0, v{MA+i}, vcc")
    vm.wait("rk", ("kv", 0))
    for q in range(4): a(f"ds_write_b128 v12, {vr(ACCX+4*q,4)} offset:{q*8192}")
    ffn.argmax1()
    a("s_waitcnt lgkmcnt(0)")
    a("s_barrier")
    for q in range(4): a(f"ds_read_b128 {vr(EX+4*q,4)}, v13 offset:{q*8192}")
    a(f"ds_read_b128 {vr(KA,4)}, v{VL16}")
    a(f"ds_read_b128 {vr(KA+4,4)}, v{VL16} offset:1024")
    a(f"s_add_u32 m0, s{W4K}, 32768")
    a(f"s_add_u32 s{XSO}, s{W4K}, 32768")
    a(f"buffer_load_dwordx4 v{VL16}, {sr(S_KV)}, s{XSO} offen sc1 lds"); vm.add(("kv", 1))
    for q in range(4):
        a(f"s_waitcnt lgkmcnt({5-q})")
        for i in (2*q, 2*q+1): a(f"v_pk_add_f32 {vr(ACC+2*i,2)}, {vr(ACC+2*i,2)}, {vr(EX+2*i,2)}")
        for i in (2*q, 2*q+1): a(f"v_pk_mul_f32 {vr(ACC+2*i,2)}, {vr(ACC+2*i,2)}, v[6:7] op_sel_hi:[1,0]")
        for i in (2*q, 2*q+1): a(f"v_cvt_pk_bf16_f32 v{QF+i}, v{ACC+2*i}, v{ACC+2*i+1}")
    a("s_waitcnt lgkmcnt(0)")
    a(f"v_mfma_f32_32x32x16_bf16 {vr(SA,16)}, {vr(KA,4)}, {vr(QF,4)}, 0")
    a(f"v_mfma_f32_32x32x16_bf16 {vr(SA,16)}, {vr(KA+4,4)}, {vr(QF+4,4)}, {vr(SA,16)}")
    def kvaddr(tile, off):
        p = ((tile >> 3) % 3) * 32768 + (tile & 7) * 4096 + off
        return (f"v{VL16} offset:{p}" if p < 65536 else f"v{VK1} offset:{p - 65536}")
    a(f"ds_read_b128 {vr(KA,4)}, {kvaddr(1, 0)}")
    a(f"ds_read_b128 {vr(KA+4,4)}, {kvaddr(1, 1024)}")
    a(f"ds_read_b128 {vr(VA,4)}, {kvaddr(0, 2048)}")
    a(f"v_add_u32 v{VK1}, 0x10000, v{VL16}")
    for i in range(16): a(f"v_mov_b32 v{OA+i}, 0")
    for i in range(4): a(f"v_mov_b32 v{LS+i}, 0")
    ffn.argmax2()
    a(f"v_max3_f32 v6, v{SA}, v{SA+1}, v{SA+2}")
    a(f"v_max3_f32 v5, v{SA+3}, v{SA+4}, v{SA+5}")
    a(f"v_max3_f32 v6, v6, v{SA+6}, v{SA+7}")
    a(f"v_max3_f32 v5, v5, v{SA+8}, v{SA+9}")
    a(f"v_max3_f32 v6, v6, v{SA+10}, v{SA+11}")
    a(f"v_max3_f32 v5, v5, v{SA+12}, v{SA+13}")
    a(f"v_max3_f32 v6, v6, v{SA+14}, v{SA+15}")
    a("v_max_f32 v6, v6, v5")
    a("v_mov_b32 v5, v6")
    a("v_permlane32_swap_b32 v6, v5")
    a("v_max_f32 v6, v6, v5")
    a(f"v_sub_f32 v{NM}, 0, v6")
    a(f"v_sub_f32 v{NM+1}, 0, v6")
    for i in range(8): a(f"v_pk_add_f32 {vr(SA+2*i,2)}, {vr(SA+2*i,2)}, {vr(NM,2)}")
    for i in range(1, 8): a(f"v_pk_mov_b32 {vr(NM+2*i,2)}, {vr(NM,2)}, {vr(NM,2)}")
    k.stamp("loop_start")
    for T in range(64):
        c, t = T >> 3, T & 7
        S, P = (SA, SB) if T % 2 == 0 else (SB, SA)
        e = lambda i: a(f"v_exp_f32 v{S+i}, v{S+i}")
        a(f"s_setprio {3 - ((T + 1) & 3)}")
        e(0); e(1)
        if T > 0:
            a("s_waitcnt lgkmcnt(3)")
            a(f"v_smfmac_f32_32x32x32_bf16 {vr(OA,16)}, {vr(VA+4,4)}, {vr(P+8,8)}, v{IDXD}")
        a(f"ds_read_b128 {vr(VA+4,4)}, {kvaddr(T, 3072)}")
        e(2); e(3); e(4)
        if T > 0: a(f"v_smfmac_f32_16x16x64_bf16 {vr(LS,4)}, {vr(MA,4)}, {vr(P+8,8)}, v{IDXD}")
        e(5)
        if T < 63:
            a("s_waitcnt lgkmcnt(2)")
            a(f"v_mfma_f32_32x32x16_bf16 {vr(P,16)}, {vr(KA,4)}, {vr(QF,4)}, {vr(NM,16)}")
        e(6); e(7); e(8)
        if T < 63:
            a(f"v_mfma_f32_32x32x16_bf16 {vr(P,16)}, {vr(KA+4,4)}, {vr(QF+4,4)}, {vr(P,16)}")
        if t == 6 and c < 7:
            vm.wait(("kv", c + 1))
            a("s_barrier")
        kc, kp = (c + 2, 0) if t == 7 else (c + 1, t + 1)
        if (t == 7 or t <= 2) and kc <= 7:
            a(f"s_add_u32 m0, s{W4K}, {(kc % 3) * 32768 + kp * 1024}")
            a(f"s_add_u32 s{XSO}, s{W4K}, {kc * 32768 + kp * 1024}")
            a(f"buffer_load_dwordx4 v{VL16}, {sr(S_KV)}, s{XSO} offen sc1 lds"); vm.add(("kv", kc))
        tk = min(T + 2, 63)
        a(f"ds_read_b128 {vr(KA,4)}, {kvaddr(tk, 0)}")
        a(f"ds_read_b128 {vr(KA+4,4)}, {kvaddr(tk, 1024)}")
        e(9); e(10); e(11)
        a("s_waitcnt lgkmcnt(3)")
        a(f"v_smfmac_f32_32x32x32_bf16 {vr(OA,16)}, {vr(VA,4)}, {vr(S,8)}, v{IDXD}")
        a(f"ds_read_b128 {vr(VA,4)}, {kvaddr(min(T + 1, 63), 2048)}")
        e(12); e(13); e(14)
        a(f"v_smfmac_f32_16x16x64_bf16 {vr(LS,4)}, {vr(MA,4)}, {vr(S,8)}, v{IDXD}")
        e(15)
        ffn.tile_end(T)
        k.D.tile_end(T)
    a("s_setprio 0")
    a("s_waitcnt lgkmcnt(0)")
    a(f"v_smfmac_f32_32x32x32_bf16 {vr(OA,16)}, {vr(VA+4,4)}, {vr(SB+8,8)}, v{IDXD}")
    a(f"v_smfmac_f32_16x16x64_bf16 {vr(LS,4)}, {vr(MA,4)}, {vr(SB+8,8)}, v{IDXD}")
    k.stamp("loop_end")

FBASE = 98304
class FFN:
    VGU, VTR, VOD, VTD, XSL, VL4, XST, TMP, XS, WB, DD = 160, 161, 162, 163, 164, 165, 166, 168, 176, 192, 224
    FB, GSO, DSO, YSO, ASO = 66, 67, 94, 95, 65
    def __init__(self, k): self.k, self.a, self.vm = k, k.a, k.vm
    def early(self, part):
        t = self.TMP
        lines = []
        a = lines.append
        a(f"s_add_u32 s{self.FB}, s{W8K}, {FBASE}")
        a(f"v_lshrrev_b32 v{t}, 3, v2")
        a(f"v_mul_u32_u24 v{t}, 7168, v{t}")
        a(f"v_and_b32 v{t+1}, 7, v2")
        a(f"v_lshl_add_u32 v{self.VGU}, v{t+1}, 4, v{t}")
        a(f"v_bfe_u32 v{t}, v2, 2, 2")
        a(f"v_lshrrev_b32 v{t+1}, 4, v2")
        a(f"v_lshl_add_u32 v{t+1}, v{t+1}, 3, v{t}")
        a(f"v_lshlrev_b32 v{t+1}, 7, v{t+1}")
        a(f"v_and_b32 v{t+2}, 3, v2")
        a(f"v_lshl_add_u32 v{t+1}, v{t+2}, 3, v{t+1}")
        a(f"v_add_u32 v{self.VTR}, s{self.FB}, v{t+1}")
        a(f"v_lshrrev_b32 v{t+1}, 4, v2")
        a(f"v_lshlrev_b32 v{t+3}, 2, v{t+1}")
        a(f"v_xor_b32 v{t+3}, v{t+3}, v2")
        a(f"v_and_b32 v{t+3}, 15, v{t+3}")
        a(f"v_lshlrev_b32 v{t+3}, 4, v{t+3}")
        a(f"v_lshl_add_u32 v{t+3}, v{t+1}, 11, v{t+3}")
        a(f"s_lshl_b32 s{T0}, s3, 8")
        a(f"v_add_u32 v{self.VOD}, s{T0}, v{t+3}")
        a(f"v_mul_u32_u24 v{t}, 320, v{t}")
        a(f"v_lshl_add_u32 v{t}, v{VH}, 11, v{t}")
        a(f"v_bfe_u32 v{t+1}, v2, 4, 1")
        a(f"v_lshl_add_u32 v{t}, v{t+1}, 5, v{t}")
        a(f"v_lshl_add_u32 v{t}, v{t+2}, 3, v{t}")
        a(f"v_add_u32 v{self.VTD}, s{self.FB}, v{t}")
        a(f"v_lshlrev_b32 v{self.VL4}, 2, v2")
        a(f"v_and_b32 v{t}, 60, v{self.VL4}")
        a(f"v_mov_b32 v{t+1}, 0")
        a(f"s_and_b32 s{T0}, s{FCG}, 3")
        a(f"s_lshl_b32 s{T0}, s{T0}, 3")
        a(f"s_add_u32 s{T0}, s{T0}, s3")
        a(f"s_lshl_b32 s{SP}, s{T0}, 6")
        a(f"s_mul_i32 s{self.GSO}, s{T0}, {32*7168}")
        a(f"s_lshr_b32 s{T1}, s{FCG}, 2")
        a(f"s_lshl_b32 s{T2}, s{T1}, 7")
        a(f"s_add_u32 s{self.GSO}, s{self.GSO}, s{T2}")
        a(f"s_lshl_b32 s{self.ASO}, s{T1}, 8")
        a(f"s_add_u32 s{self.ASO}, s{self.ASO}, {WS_GU:#x}")
        a(f"s_lshl_b32 s{self.DSO}, s{FCG}, 15")
        a(f"s_and_b32 s{self.YSO}, s2, 7")
        a(f"s_lshl_b32 s{self.YSO}, s{self.YSO}, 12")
        a(f"s_lshl_b32 s{T0}, s3, 9")
        a(f"s_add_u32 s{self.YSO}, s{self.YSO}, s{T0}")
        a(f"s_add_u32 s{self.YSO}, s{self.YSO}, {WS_YACC:#x}")
        a("s_cmp_lt_u32 s2, 224")
        for r in (self.GSO, self.DSO, self.YSO, self.ASO):
            a(f"s_cselect_b32 s{r}, s{r}, 0x40000000")
        srd(a, S_WD, P_WD, 3584 * 2048)
        srd(a, S_OUT, P_OUT, 2048 * 2048)
        cut = [0, 12, 29, len(lines)]
        for x in lines[cut[part]:cut[part+1]]: self.a(x)
    def argmax1(self):
        a, RK = self.a, self.k.RK
        a(f"v_max_u32 v5, v{RK}, v{RK+1}")
        for sh in (8, 4, 2, 1):
            a(f"v_max_u32_dpp v5, v5, v5 row_ror:{sh} row_mask:0xf bank_mask:0xf")
        srd(a, S_W, P_WO, 1024 * 2048)
        for i, s in enumerate((T0, T1, T2, T3)): a(f"v_readlane_b32 s{s}, v5, {16*i}")
    def argmax2(self):
        a, vm = self.a, self.vm
        a(f"s_max_u32 s{T0}, s{T0}, s{T1}")
        a(f"s_max_u32 s{T2}, s{T2}, s{T3}")
        a(f"s_max_u32 s{RKEY}, s{T0}, s{T2}")
        a(f"s_and_b32 s{IDX}, s{RKEY}, 0xffff")
        a(f"s_sub_u32 s{IDX}, 0xffff, s{IDX}")
        a(f"s_and_b32 s{IDX}, s{IDX}, 2047")
    def arrive(self, soff):
        a, t = self.a, self.TMP
        a(f"v_mov_b32 v{t+6}, 1")
        a("s_mov_b64 exec, 1")
        a(f"buffer_atomic_add v{t+6}, v{self.VL4}, {sr(S_WS)}, s{soff} offen sc1"); self.vm.add("arr")
        a("s_mov_b64 exec, -1")
    def tile_end(self, T):
        k, a, vm, t = self.k, self.a, self.vm, self.TMP
        GU_T = [2, 4, 6, 10, 12, 14, 18, 20]
        WD_T = [28, 30, 34, 36]
        if T == 0:
            a(f"s_lshl_b32 s{T0}, s{IDX}, 11")
            a(f"s_add_u32 s{T0}, s{T0}, s{SP}")
            a(f"buffer_load_dword v{self.XSL}, v{t}, {sr(S_X)}, s{T0} offen"); vm.add("xs")
        if T == 1:
            a(f"s_lshl_b32 s{T0}, s{IDX}, 3")
            a(f"s_add_u32 s{T0}, s{T0}, {WS_STAT:#x}")
            a(f"buffer_load_dwordx2 {vr(self.XST,2)}, v{t+1}, {sr(S_WS)}, s{T0} offen sc1"); vm.add("xs")
        if T in GU_T:
            i = GU_T.index(T); mat, j = i >> 2, i & 3
            a(f"s_add_u32 m0, s{self.FB}, {i*1024}")
            a(f"s_add_u32 s{T0}, s{self.GSO}, {j*8*7168}")
            a(f"buffer_load_dwordx4 v{self.VGU}, {sr(S_WU if mat else S_WG)}, s{T0} offen lds"); vm.add("gu")
        if T == 8:
            vm.wait("xs")
            a(f"v_lshlrev_b32 v{t}, 16, v{self.XSL}")
            a(f"v_and_b32 v{t+1}, 0xffff0000, v{self.XSL}")
            a(f"v_sub_f32 v{t}, v{t}, v{self.XST}")
            a(f"v_sub_f32 v{t+1}, v{t+1}, v{self.XST}")
            a(f"v_cvt_pk_bf16_f32 v{t+2}, v{t}, v{t+1}")
            a(f"v_lshlrev_b32 v{t}, 16, v{t+2}")
            a(f"v_and_b32 v{t+1}, 0xffff0000, v{t+2}")
            a(f"v_mul_f32 v{t}, v{t}, v{self.XST+1}")
            a(f"v_mul_f32 v{t+1}, v{t+1}, v{self.XST+1}")
            a(f"v_cvt_pk_bf16_f32 v{t+2}, v{t}, v{t+1}")
            a(f"v_and_b32 v{t+3}, 0x30, v2")
            for j in range(4):
                a(f"ds_bpermute_b32 v{self.XS+j}, v{t+3}, v{t+2} offset:{4*j}")
        if T in (25, 26):
            if T == 25: vm.wait("gu")
            m = T - 25
            for ct in range(4):
                for u in range(2):
                    a(f"ds_read_b64_tr_b16 {vr(self.WB+16*m+4*ct+2*u,2)}, v{self.VTR} offset:{m*4096 + u*512 + ct*32}")
        if T in (26, 27):
            m = T - 26
            for ct in range(4):
                a(f"v_mfma_f32_16x16x32_bf16 {vr(self.DD+16*m+4*ct,4)}, {vr(self.XS,4)}, {vr(self.WB+16*m+4*ct,4)}, 0")
        if T == 28:
            for ct in range(1, 4):
                for m in range(2):
                    D = self.DD + 16*m
                    a(f"v_mov_b32_dpp v{D}, v{D+4*ct} quad_perm:[0,1,2,3] row_mask:{1 << ct:#x} bank_mask:0xf")
            a(f"s_add_u32 s{T0}, s{self.ASO}, {3584*4}")
            a(f"buffer_atomic_add_f32 v{self.DD}, v{self.VL4}, {sr(S_WS)}, s{self.ASO} offen"); vm.add("at1")
            a(f"buffer_atomic_add_f32 v{self.DD+16}, v{self.VL4}, {sr(S_WS)}, s{T0} offen"); vm.add("at1")
        if T in WD_T:
            j = WD_T.index(T)
            a(f"s_add_u32 m0, s{self.FB}, {j*1024}")
            a(f"s_add_u32 s{T0}, s{self.DSO}, {j*8192}")
            a(f"buffer_load_dwordx4 v{self.VOD}, {sr(S_WD)}, s{T0} offen lds"); vm.add("wd")
        if T == 35:
            vm.wait("at1")
            a(f"s_lshr_b32 s{self.GSO}, s{FCG}, 2")
            a(f"s_lshl_b32 s{self.GSO}, s{self.GSO}, 7")
            a(f"s_add_u32 s{self.GSO}, s{self.GSO}, {SY4:#x}")
            a("s_cmp_lt_u32 s2, 224")
            a(f"s_cselect_b32 s{self.GSO}, s{self.GSO}, 0x40000000")
            self.arrive(self.GSO)
        G = self.DD
        W0F = f"s_cmp_lt_u32 s{CNT}, 224"
        if T == 40:
            a(f"s_lshl_b32 s{CNT}, s3, 8")
            a(f"s_add_u32 s{CNT}, s{CNT}, s2")
            a(f"v_mov_b32 v{t}, 0")
            k.only(W0F, lambda: a(f"buffer_load_dword v{t+1}, v{t}, {sr(S_WS)}, s{self.GSO} offen sc1"))
            vm.mark("p4")
        if T == 42:
            def p2():
                a(f"s_waitcnt vmcnt({vm.since('p4')})")
                k.poll(t, t + 1, self.GSO, 32, cnt=T3)
                a(f"v_and_b32 v{t}, 60, v{self.VL4}")
                a(f"v_bfe_u32 v{t+1}, v2, 4, 1")
                a(f"v_mul_u32_u24 v{t+1}, {3584*4}, v{t+1}")
                a(f"v_add_u32 v{t+1}, v{t+1}, v{t}")
                a(f"s_lshl_b32 s{T0}, s{FCG}, 6")
                a(f"s_add_u32 s{T0}, s{T0}, {WS_GU:#x}")
                a(f"buffer_load_dword v{G}, v{t+1}, {sr(S_WS)}, s{T0} offen sc1")
            k.only(W0F, p2)
            vm.mark("gl")
        if T == 45:
            def hh():
                a(f"s_waitcnt vmcnt({vm.since('gl')})")
                bf16r(a, G, G)
                a(f"v_mov_b32 v{G+1}, v{G}")
                a(f"v_permlane16_swap_b32 v{G}, v{G+1}")
                a(f"v_mul_f32 v{G+2}, {f32(-LOG2E)}, v{G}")
                a(f"v_exp_f32 v{G+2}, v{G+2}")
                a(f"v_add_f32 v{G+2}, 1.0, v{G+2}")
                a(f"v_rcp_f32 v{G+2}, v{G+2}")
                a(f"v_mul_f32 v{G}, v{G}, v{G+2}")
                bf16r(a, G, G)
                a(f"v_mul_f32 v{G}, v{G}, v{G+1}")
                a(f"v_cvt_pk_bf16_f32 v{G}, v{G}, v{G}")
                a(f"v_lshrrev_b32 v{t}, 1, v{t}")
                a(f"v_add_u32 v{t}, {FBASE + 4096}, v{t}")
                a(f"ds_write_b16 v{t}, v{G}")
                a("s_waitcnt lgkmcnt(0)")
            k.only(W0F, hh)
        HF, WD, DD = 168, 176, 192
        if T == 47:
            vm.wait("wd")
            a(f"v_lshlrev_b32 v{t+4}, 4, v{VH}")
            a(f"v_add_u32 v{t+4}, {FBASE + 4096}, v{t+4}")
            a(f"ds_read_b128 {vr(HF,4)}, v{t+4}")
            for j in range(4):
                if j: a(f"v_xor_b32 v{t+4+j}, {64*j}, v{self.VTD}")
                ad = (t + 4 + j) if j else self.VTD
                for u in range(2):
                    a(f"ds_read_b64_tr_b16 {vr(WD+4*j+2*u,2)}, v{ad} offset:{u*1024}")
        if T in (48, 49):
            for j in (2*(T-48), 2*(T-48)+1):
                a(f"v_mfma_f32_32x32x16_bf16 {vr(DD+16*j,16)}, {vr(HF,4)}, {vr(WD+4*j,4)}, 0")
        if T == 50:
            a(f"v_mov_b32_dpp v{DD}, v{DD+16} quad_perm:[0,1,2,3] row_mask:0xc bank_mask:0xf")
            a(f"v_mov_b32_dpp v{DD+32}, v{DD+48} quad_perm:[0,1,2,3] row_mask:0xc bank_mask:0xf")
            a(f"buffer_atomic_add_f32 v{DD}, v{self.VL4}, {sr(S_WS)}, s{self.YSO} offen"); vm.add("at")
            a(f"buffer_atomic_add_f32 v{DD+32}, v{self.VL4}, {sr(S_WS)}, s{self.YSO} offen offset:256"); vm.add("at")
        if T == 58:
            vm.wait("at")
            a(f"s_lshr_b32 s{T0}, s2, 3")
            a(f"s_lshl_b32 s{T0}, s{T0}, 7")
            a(f"s_add_u32 s{T0}, s{T0}, {SY3:#x}")
            self.arrive(T0)

class PhaseD:
    XR, ST, VXO = 8, 30, 16
    VOF, VWD = 24, (17, 18, 1)
    XFL, G, XF, ACCO, ACCX, WREG = 32, 48, 64, 96, 112, 128
    def __init__(self, k):
        self.k, self.a, self.vm = k, k.a, k.vm
        def rot(c, shift, extra, base):
            return f"""s_add_u32 s{TD}, s{ROT}, {c}
            s_and_b32 s{TD}, s{TD}, 15
            s_lshl_b32 s{TD}, s{TD}, {shift}
            s_add_u32 s{TD}, s{TD}, s{base}""" + (f"\ns_add_u32 s{TD}, s{TD}, {extra}" if extra else "")
        def ldw(n): return lambda p: f"s_add_u32 m0, s{W1K}, {p*8192}\n" + rot(n >> 1, 17, (n & 1) * 16 * 2048, SEL) + f"\nbuffer_load_dwordx4 v{VOW}, {sr(S_W)}, s{TD} offen lds"
        def ldo(c): return lambda p: f"s_add_u32 m0, s{W1K}, {p*8192}\n" + rot(c, 12, 0, OBASE) + f"\nbuffer_load_dwordx4 v{VL16}, {sr(S_WS)}, s{TD} offen sc1 lds"
        seq = [(("w", n), ldw(n), None, list(range(19, -1, -1))) for n in range(24)]
        seq += [(("o", c), ldo(c), None, list(range(16))) for c in range(16)]
        seq += [(("w", n), ldw(n), None, [16, 17, 18, 19]) for n in range(24, 32)]
        self.pg = Pager(k, range(8, 20), seq)
    def tile_end(self, T):
        k, a, vm = self.k, self.a, self.vm
        if T == 44:
            a(f"s_lshr_b32 s{T0}, s2, 3")
            a(f"s_lshl_b32 s{T0}, s{T0}, 16")
            a(f"v_lshlrev_b32 v{self.VXO}, 7, v0")
            a(f"buffer_load_dword v{self.XR}, v{self.VXO}, {sr(S_W)}, s{T0} offen"); vm.add("pf")
        if T == 51:
            a(f"v_lshlrev_b32 v{self.VXO}, 11, v{VN}")
            a(f"v_lshl_add_u32 v{self.VXO}, v{VH}, 5, v{self.VXO}")
            a(f"s_lshl_b32 s{T1}, s{RB2}, 1")
            a(f"s_add_u32 s{T1}, s{T1}, s{RT}")
            a(f"s_lshl_b32 s{XO2}, s{T1}, 16")
            a(f"s_lshl_b32 s{SEL}, s{CB2}, 8")
            a(f"s_add_u32 s{XO2}, s{XO2}, s{SEL}")
            a(f"s_lshl_b32 s{T0}, s{HD}, 6")
            a(f"s_add_u32 s{XO2}, s{XO2}, s{T0}")
            a(f"buffer_load_dwordx4 {vr(self.XR,4)}, v{self.VXO}, {sr(S_X)}, s{XO2} offen"); vm.add("x2")
            a(f"s_lshl_b32 s{ROT}, s{CB2}, 1")
            a(f"s_lshr_b32 s{T0}, s{IDX}, 5")
            a(f"s_cmp_eq_u32 s{T0}, s{T1}")
            a(f"s_cselect_b32 s{MODE}, 1, 0")
        if T == 52:
            a(f"s_lshl_b32 s{T1}, s{RB2}, 1")
            a(f"s_add_u32 s{T1}, s{T1}, s{RT}")
            a(f"s_lshl_b32 s{T0}, s{T1}, 8")
            a(f"s_add_u32 s{T0}, s{T0}, {WS_STAT:#x}")
            a(f"v_lshlrev_b32 v5, 3, v{VN}")
            a(f"buffer_load_dwordx2 {vr(self.ST,2)}, v5, {sr(S_WS)}, s{T0} offen sc1"); vm.add("x2")
        if T == 53:
            a(f"buffer_load_dwordx4 {vr(self.XR+4,4)}, v{self.VXO}, {sr(S_X)}, s{XO2} offen offset:16"); vm.add("x2")
            a(f"s_lshl_b32 s{T0}, s{ROWT}, 5")
            a(f"s_lshl_b32 s{T1}, s{HB}, 2")
            a(f"s_add_u32 s{T0}, s{T0}, s{T1}")
            a(f"s_add_u32 s{T0}, s{T0}, s{HD}")
            a(f"s_lshl_b32 s{T0}, s{T0}, 11")
            a(f"s_add_u32 s{OSO}, s{T0}, {WS_OF:#x}")
        if 54 <= T <= 61:
            for g in self.pg.take(2 if T < 58 else 1): self.pg.issue(g)
    def run(self):
        k, a, vm, lg, pg = self.k, self.a, self.vm, self.k.lg, self.pg
        XR, ST, VXO, VOF, VWD, XFL, G, XF, ACCO, ACCX, WREG = (self.XR, self.ST, self.VXO, self.VOF, self.VWD, self.XFL,
                                                              self.G, self.XF, self.ACCO, self.ACCX, self.WREG)
        a("v_bfe_u32 v5, v2, 2, 2")
        a(f"v_lshl_add_u32 v6, v{VH}, 2, v5")
        a("v_lshlrev_b32 v6, 6, v6")
        a("v_and_b32 v5, 1, v2")
        a("v_lshl_add_u32 v6, v5, 5, v6")
        a("v_bfe_u32 v5, v2, 4, 1")
        a("v_lshl_add_u32 v6, v5, 4, v6")
        a("v_bfe_u32 v5, v2, 1, 1")
        a("v_lshl_add_u32 v6, v5, 3, v6")
        a(f"v_add_u32 v{VWD[0]}, s{W1K}, v6")
        a(f"v_add_u32 v{VWD[1]}, 0x10000, v{VWD[0]}")
        a(f"v_add_u32 v{VWD[2]}, 0x20000, v{VWD[0]}")
        a(f"v_mov_b32 v6, {f32(2.0**64)}")
        for i in range(4): a(f"v_pk_add_f32 {vr(SA+2*i,2)}, {vr(OA+4*i,2)}, {vr(OA+4*i+2,2)}")
        a(f"v_pk_add_f32 {vr(SA,2)}, {vr(SA,2)}, {vr(SA+2,2)}")
        a(f"v_pk_add_f32 {vr(SA+4,2)}, {vr(SA+4,2)}, {vr(SA+6,2)}")
        a(f"v_pk_add_f32 {vr(SA,2)}, {vr(SA,2)}, {vr(SA+4,2)}")
        a(f"v_add_f32 v5, v{SA}, v{SA+1}")
        a(f"v_fma_f32 v5, v5, 0, v{LS}")
        a("v_cmp_nlt_f32 vcc, v5, v6")
        a("s_nop 1")
        if "forcefb" in VAR: a("s_branch L_fallback")
        a("s_cbranch_vccnz L_fallback")
        a.label("L_fin")
        a(f"v_rcp_f32 v6, v{LS}")
        for i in range(8): a(f"v_pk_mul_f32 {vr(OA+2*i,2)}, {vr(OA+2*i,2)}, v[6:7] op_sel_hi:[1,0]")
        for i in range(8): a(f"v_cvt_pk_bf16_f32 v{SA+i}, v{OA+2*i}, v{OA+2*i+1}")
        a(f"buffer_store_dwordx4 {vr(SA,4)}, v{VL16}, {sr(S_WS)}, s{OSO} offen sc1"); vm.add("ost")
        a(f"buffer_store_dwordx4 {vr(SA+4,4)}, v{VL16}, {sr(S_WS)}, s{OSO} offen offset:1024 sc1"); vm.add("ost")
        def wread(n):
            vm.wait(("w", n))
            p = pg.page[("w", n)]
            for u in range(2):
                k.ds(f"ds_read_b64_tr_b16 {vr(WREG+4*n+2*u,2)}, v{VWD[p >> 3]} offset:{(p & 7)*8192 + 8*u*64}", ("wr", n))
        def wfree(n):
            lg.wait(("wr", n)); pg.free.append(pg.page[("w", n)])
        def xn_ops(src, lo, hi, g0, g1, m, ri):
            return [f"v_lshlrev_b32 v{lo}, 16, v{src}", f"v_and_b32 v{hi}, 0xffff0000, v{src}",
                    f"v_sub_f32 v{g0}, v{lo}, v{m}", f"v_sub_f32 v{g1}, v{hi}, v{m}",
                    f"v_cvt_pk_bf16_f32 v6, v{g0}, v{g1}",
                    f"v_lshlrev_b32 v{g0}, 16, v6", f"v_and_b32 v{g1}, 0xffff0000, v6",
                    f"v_mul_f32 v{g0}, v{g0}, v{ri}", f"v_mul_f32 v{g1}, v{g1}, v{ri}",
                    f"v_cvt_pk_bf16_f32 v6, v{g0}, v{g1}",
                    f"v_lshlrev_b32 v{g0}, 16, v6", f"v_and_b32 v{g1}, 0xffff0000, v6"]
        def silu_ops(g0, g1):
            return [f"v_mul_f32 v6, {f32(-LOG2E)}, v{g0}", f"v_mul_f32 v7, {f32(-LOG2E)}, v{g1}",
                    "v_exp_f32 v6, v6", "v_exp_f32 v7, v7",
                    "v_add_f32 v6, 1.0, v6", "v_add_f32 v7, 1.0, v7",
                    "v_rcp_f32 v6, v6", "v_rcp_f32 v7, v7",
                    f"v_mul_f32 v{g0}, v{g0}, v6", f"v_mul_f32 v{g1}, v{g1}, v7",
                    f"v_cvt_pk_bf16_f32 v6, v{g0}, v{g1}",
                    f"v_lshlrev_b32 v{g0}, 16, v6", f"v_and_b32 v{g1}, 0xffff0000, v6"]
        gate = []
        for p in range(8): gate += xn_ops(XR+p, XFL+2*p, XFL+2*p+1, G+2*p, G+2*p+1, ST, ST+1)
        for p in range(8): gate += silu_ops(G+2*p, G+2*p+1)
        def gops(n):
            for _ in range(min(n, len(gate))): a(gate.pop(0))
        for n in range(12): wread(n)
        for n in range(4):
            wfree(n)
            for g in pg.take(1): pg.issue(g)
        vm.wait("ost")
        a("s_barrier")
        def arr():
            a(f"s_lshl_b32 s{T0}, s{RB}, 7")
            a(f"s_add_u32 s{T0}, s{T0}, {SY2:#x}")
            a("v_mov_b32 v5, 1")
            a("v_mov_b32 v6, 0")
            a("s_mov_b64 exec, 1")
            a(f"buffer_atomic_add v5, v6, {sr(S_WS)}, s{T0} offen sc1")
            a("s_mov_b64 exec, -1")
        k.only("s_cmp_eq_u32 s3, 0", arr)
        k.stamp("E1")
        for n in range(4, 12): wfree(n)
        PV = XF
        a(f"v_mov_b32 v{PV}, 0")
        a(f"s_lshl_b32 s{T3}, s{RB2}, 7")
        a(f"s_add_u32 s{T3}, s{T3}, {SY2:#x}")
        nxt = 12
        for i, g in enumerate(pg.take(16, stop=("o", 0))):
            pg.issue(g); gops(8)
            if i >= 2: wread(nxt); nxt += 1
            if i == D_POLL:
                k.only("s_cmp_eq_u32 s3, 7", lambda: a(f"buffer_load_dword v{PV+1}, v{PV}, {sr(S_WS)}, s{T3} offen sc1"))
        a(f"s_lshl_b32 s{OBASE}, s{RB2}, 1")
        a(f"s_lshr_b32 s{T0}, s3, 2")
        a(f"s_add_u32 s{OBASE}, s{OBASE}, s{T0}")
        a(f"s_lshl_b32 s{OBASE}, s{OBASE}, 16")
        a(f"s_and_b32 s{T0}, s3, 3")
        a(f"s_lshl_b32 s{T0}, s{T0}, 10")
        a(f"s_add_u32 s{OBASE}, s{OBASE}, s{T0}")
        a(f"s_add_u32 s{OBASE}, s{OBASE}, {WS_OF:#x}")
        a(f"s_mul_i32 s{T0}, s{RT}, {4096 + 2048}")
        a(f"v_add_u32 v{VOF}, s{T0}, v{VL16}")
        a(f"v_xor_b32 v{VOF+1}, 0x1000, v{VOF}")
        a(f"v_add_u32 v{VOF+2}, 0x10000, v{VOF}")
        a(f"v_add_u32 v{VOF+3}, 0x10000, v{VOF+1}")
        while nxt < 24:
            wread(nxt); nxt += 1; gops(6)
        lg.wait_all()
        k.only("s_cmp_eq_u32 s3, 7", lambda: k.poll(PV, PV + 1, T3, 8))
        a("s_barrier")
        k.stamp("E2")
        pg.free = list(range(20))
        OWN = f"s_cmp_eq_u32 s{MODE}, 1"
        YA, YD = 28, 29
        a(f"v_lshlrev_b32 v{YA}, 7, v{VN}")
        a(f"s_mov_b32 s{T3}, {SY3:#x}")
        od = pg.take(20)
        for g in od[:6]:
            pg.issue(g); gops(8)
        k.only(OWN, lambda: a(f"buffer_load_dword v{YD}, v{YA}, {sr(S_WS)}, s{T3} offen sc1"))
        od = od[6:]
        gops(1000)
        Y, X4, XN, YS, YB = WREG, WREG + 4, WREG + 8, WREG + 12, WREG + 16
        def y_load():
            k.poll(YA, YD, T3, 64)
            a(f"v_lshrrev_b32 v{YA}, 3, v2")
            a(f"v_lshlrev_b32 v{YA}, 12, v{YA}")
            a(f"v_and_b32 v{YD}, 7, v2")
            a(f"v_lshl_add_u32 v{YA}, v{YD}, 4, v{YA}")
            a(f"s_lshl_b32 s{T0}, s{CB2}, 9")
            a(f"s_lshl_b32 s{T1}, s{HD}, 7")
            a(f"s_add_u32 s{T0}, s{T0}, s{T1}")
            a(f"s_add_u32 s{T1}, s{T0}, {WS_YACC:#x}")
            a(f"buffer_load_dwordx4 {vr(Y,4)}, v{YA}, {sr(S_WS)}, s{T1} offen sc1")
            a(f"s_lshr_b32 s{T0}, s{T0}, 1")
            a(f"s_lshl_b32 s{T1}, s{IDX}, 11")
            a(f"s_add_u32 s{T0}, s{T0}, s{T1}")
            a(f"v_lshlrev_b32 v{YD}, 3, v{YD}")
            a(f"buffer_load_dwordx2 {vr(X4,2)}, v{YD}, {sr(S_X)}, s{T0} offen")
            a(f"s_lshl_b32 s{T0}, s{IDX}, 3")
            a(f"s_add_u32 s{T0}, s{T0}, {WS_STAT:#x}")
            a(f"v_mov_b32 v{YD}, 0")
            a(f"buffer_load_dwordx2 {vr(YS,2)}, v{YD}, {sr(S_WS)}, s{T0} offen sc1")
            a(f"s_and_b32 s{T1}, s{RKEY}, 0xffff0000")
            a(f"s_xor_b32 s{T2}, s{T1}, 0x80000000")
            a(f"s_xor_b32 s{T0}, s{T1}, 0xffff0000")
            a(f"s_bitcmp1_b32 s{T1}, 31")
            a(f"s_cselect_b32 s{T1}, s{T2}, s{T0}")
            a(f"v_mov_b32 v{YA}, s{T1}")
            a(f"v_mul_f32 v{YA}, {f32(-LOG2E)}, v{YA}")
            a(f"v_exp_f32 v{YA}, v{YA}")
            a(f"v_add_f32 v{YA}, 1.0, v{YA}")
            a(f"v_rcp_f32 v{YA}, v{YA}")
            bf16r(a, YA, YA)
        def y_sum():
            a("s_waitcnt vmcnt(0)")
            for e in range(4): a(f"v_add_f32_dpp v{Y+e}, v{Y+e}, v{Y+e} row_ror:8 row_mask:0xf bank_mask:0xf")
            for sw in ("v_permlane16_swap_b32", "v_permlane32_swap_b32"):
                for e in range(4): a(f"v_mov_b32 v{XN+e}, v{Y+e}")
                for e in range(4): a(f"{sw} v{Y+e}, v{XN+e}")
                for e in range(4): a(f"v_add_f32 v{Y+e}, v{Y+e}, v{XN+e}")
        def y_scale():
            for e in range(4):
                bf16r(a, Y+e, Y+e)
                a(f"v_mul_f32 v{Y+e}, v{Y+e}, v{YA}")
                bf16r(a, Y+e, Y+e)
        def y_xn():
            for p in range(2):
                for x in xn_ops(X4+p, YB, YB+1, XN+2*p, XN+2*p+1, YS, YS+1): a(x)
        def y_add():
            for e in range(4):
                a(f"v_add_f32 v{XN+e}, v{XN+e}, v{Y+e}")
                bf16r(a, XN+e, XN+e)
            for x in silu_ops(XN, XN+1): a(x)
        def y_perm():
            for x in silu_ops(XN+2, XN+3): a(x)
            a(f"v_lshlrev_b32 v{YD}, 4, v{VH}")
            for q in range(4):
                for e in range(4): a(f"ds_bpermute_b32 v{YB+4*q+e}, v{YD}, v{XN+e} offset:{4*q}")
        def y_put():
            a("s_waitcnt lgkmcnt(0)")
            a(f"s_and_b32 s{T1}, s{IDX}, 31")
            a(f"v_cmp_eq_u32 vcc, s{T1}, v{VN}")
            for i in range(16): a(f"v_cndmask_b32 v{G+i}, v{G+i}, v{YB+i}, vcc")
        ysteps = {5: y_load, 8: y_sum, 9: y_scale, 10: y_xn, 11: y_add, 12: y_perm}
        avail = {0: 2, 2: 4, 4: 8, 8: 12, 12: 16}
        def rd(c):
            if c in avail:
                vm.wait(*[("o", i) for i in range(avail[c])])
                a("s_barrier")
            p = pg.page[("o", c)]
            for e in range(2):
                for t in range(2):
                    k.ds(f"ds_read_b128 {vr(XF+16*(c&1)+4*(2*t+e),4)}, v{VOF + 2*(p >> 3) + t} offset:{(p & 7)*8192 + e*1024}", ("d", c, e))
        rd(0); k.stamp("D0"); rd(1)
        def mf(c, e, t):
            acc = ACCX if t else ACCO
            cc = "0" if (c == 0 and e == 0) else vr(acc, 16)
            a(f"v_mfma_f32_32x32x16_bf16 {vr(acc,16)}, {vr(WREG+4*(2*c+e),4)}, {vr(XF+16*(c&1)+4*(2*t+e),4)}, {cc}")
        for c in range(14):
            for e in range(2):
                lg.wait(("d", c, e), ("wr", 2*c+e))
                mf(c, e, 0); mf(c, e, 1)
                if od: pg.issue(od.pop(0))
            rd(c + 2)
            if c == 8:
                for n in range(24, 28): wread(n)
            if c == 9:
                for n in range(24, 28): wfree(n)
                od = pg.take(4)
            if c == 12:
                for n in range(28, 32): wread(n)
            if c in ysteps: k.only(OWN, ysteps[c])
        lg.wait_all()
        a(f"v_add_u32 v5, s{W1K}, v{VL16}")
        for c in (14, 15):
            for e in range(2): mf(c, e, 1)
        a("v_add_u32 v5, 0x20000, v5")
        k.only(OWN, y_put)
        a("v_xor_b32 v6, 0x400, v5")
        mf(14, 0, 0); mf(14, 1, 0); mf(15, 0, 0)
        a("s_nop 6")
        for q in range(4): a(f"ds_write_b128 v5, {vr(ACCX+4*q,4)} offset:{q*8192}")
        mf(15, 1, 0)
        k.stamp("D_end")
        a("s_waitcnt lgkmcnt(0)")
        a("s_barrier")
        for q in range(4): a(f"ds_read_b128 {vr(XF+4*q,4)}, v6 offset:{q*8192}")
        for q in range(4):
            a(f"s_waitcnt lgkmcnt({3-q})")
            for i in (2*q, 2*q+1): a(f"v_pk_add_f32 {vr(ACCO+2*i,2)}, {vr(ACCO+2*i,2)}, {vr(XF+2*i,2)}")
            for i in (2*q, 2*q+1): a(f"v_pk_fma_f32 {vr(ACCO+2*i,2)}, {vr(ACCO+2*i,2)}, {vr(G+2*i,2)}, {vr(XFL+2*i,2)}")
            for i in (2*q, 2*q+1): a(f"v_cvt_pk_bf16_f32 v{XR+i}, v{ACCO+2*i}, v{ACCO+2*i+1}")
            if q == 1: a(f"buffer_store_dwordx4 {vr(XR,4)}, v{VXO}, {sr(S_OUT)}, s{XO2} offen")
        a(f"buffer_store_dwordx4 {vr(XR+4,4)}, v{VXO}, {sr(S_OUT)}, s{XO2} offen offset:16")
        k.stamp("end")

def fallback(k):
    a = k.a
    a.label("L_fallback")
    a.flush()
    a("v_mov_b32 v6, 0xff800000")
    a(f"s_mov_b32 s{T0}, 0")
    a.label("L_fb1")
    a(f"buffer_load_dwordx4 {vr(KA,4)}, v{VL16}, {sr(S_KV)}, s{T0} offen sc1")
    a(f"buffer_load_dwordx4 {vr(KA+4,4)}, v{VL16}, {sr(S_KV)}, s{T0} offen offset:1024 sc1")
    a("s_waitcnt vmcnt(0)")
    a(f"v_mfma_f32_32x32x16_bf16 {vr(SA,16)}, {vr(KA,4)}, {vr(QF,4)}, 0")
    a(f"v_mfma_f32_32x32x16_bf16 {vr(SA,16)}, {vr(KA+4,4)}, {vr(QF+4,4)}, {vr(SA,16)}")
    for i in range(0, 16, 2): a(f"v_max3_f32 v6, v6, v{SA+i}, v{SA+i+1}")
    a(f"s_add_u32 s{T0}, s{T0}, 4096")
    a(f"s_cmp_lt_u32 s{T0}, 0x40000")
    a("s_cbranch_scc1 L_fb1")
    a("v_mov_b32 v5, v6")
    a("v_permlane32_swap_b32 v6, v5")
    a("v_max_f32 v6, v6, v5")
    for i in range(16): a(f"v_sub_f32 v{NM+i}, 0, v6")
    for i in range(16): a(f"v_mov_b32 v{OA+i}, 0")
    for i in range(4): a(f"v_mov_b32 v{LS+i}, 0")
    a(f"s_mov_b32 s{T0}, 0")
    a.label("L_fb2")
    a(f"buffer_load_dwordx4 {vr(KA,4)}, v{VL16}, {sr(S_KV)}, s{T0} offen sc1")
    a(f"buffer_load_dwordx4 {vr(KA+4,4)}, v{VL16}, {sr(S_KV)}, s{T0} offen offset:1024 sc1")
    a(f"buffer_load_dwordx4 {vr(VA,4)}, v{VL16}, {sr(S_KV)}, s{T0} offen offset:2048 sc1")
    a(f"buffer_load_dwordx4 {vr(VA+4,4)}, v{VL16}, {sr(S_KV)}, s{T0} offen offset:3072 sc1")
    a("s_waitcnt vmcnt(0)")
    a(f"v_mfma_f32_32x32x16_bf16 {vr(SA,16)}, {vr(KA,4)}, {vr(QF,4)}, {vr(NM,16)}")
    a(f"v_mfma_f32_32x32x16_bf16 {vr(SA,16)}, {vr(KA+4,4)}, {vr(QF+4,4)}, {vr(SA,16)}")
    for i in range(16): a(f"v_exp_f32 v{SA+i}, v{SA+i}")
    a(f"v_smfmac_f32_32x32x32_bf16 {vr(OA,16)}, {vr(VA,4)}, {vr(SA,8)}, v{IDXD}")
    a(f"v_smfmac_f32_16x16x64_bf16 {vr(LS,4)}, {vr(MA,4)}, {vr(SA,8)}, v{IDXD}")
    a(f"v_smfmac_f32_32x32x32_bf16 {vr(OA,16)}, {vr(VA+4,4)}, {vr(SA+8,8)}, v{IDXD}")
    a(f"v_smfmac_f32_16x16x64_bf16 {vr(LS,4)}, {vr(MA,4)}, {vr(SA+8,8)}, v{IDXD}")
    a(f"s_add_u32 s{T0}, s{T0}, 4096")
    a(f"s_cmp_lt_u32 s{T0}, 0x40000")
    a("s_nop 7")
    a("s_cbranch_scc1 L_fb2")
    a.flush()
    a("s_branch L_fin")
    a.label("L_code_end")

def build(path):
    k = K()
    k.ffn = FFN(k); k.D = PhaseD(k)
    prologue(k); phaseAB(k); attention(k); k.D.run()
    k.a.label("L_end"); k.a("s_endpgm")
    fallback(k)
    top = open("cdna_kernels/" + NAME + ".s.ref").read().split("; Override launch geometry")[0]
    if STAMPS: top += "; stamps: " + " ".join(STAMP_NAMES) + "\n"
    top += "; @launch grid=(256,1,1) block=(512,1,1) lds=163840\n"
    top += '.amdgcn_target "amdgcn-amd-amdhsa--gfx950"\n.text\n'
    top += f".set CODE_BYTES, L_code_end - {KN} - 64\n"
    kd = f""".section .rodata,"a"
.p2align 6
.amdhsa_kernel {KN}
  .amdhsa_next_free_vgpr 256
  .amdhsa_next_free_sgpr 102
  .amdhsa_accum_offset 256
  .amdhsa_group_segment_fixed_size 0
  .amdhsa_kernarg_size 104
  .amdhsa_user_sgpr_count 2
  .amdhsa_user_sgpr_kernarg_segment_ptr 1
  .amdhsa_system_sgpr_workgroup_id_x 1
.end_amdhsa_kernel
"""
    open(path, "w").write(top + k.a.text() + kd)
    return k

if __name__ == "__main__":
    out = sys.argv[1] if len(sys.argv) > 1 else "cdna_kernels/" + NAME + ".s"
    if len(sys.argv) > 2 and sys.argv[2] == "stamps": STAMPS = True
    VAR.update(sys.argv[3:])
    for v in VAR:
        if v.startswith('init'): N_INIT = int(v[4:])
        if v.startswith('wt'): WT_IT, WT_POS = [int(x) for x in v[2:].split('_')]
        if v.startswith('chk'): CHK, PI = [int(x) for x in v[3:].split('_')]
        if v.startswith('dp'): D_POLL = int(v[2:])
        if v.startswith('al'): ALIGN = int(v[2:])
    k = build(out)
    if "-v" in VAR:
        for l in k.a.log: print("nop", l)
        for l in k.pgAB.log: print("AB", l)
        for l in k.D.pg.log: print("D", l)
```

```python
import sys, struct
from asmlib import Asm

NAME = "recurrent_scan__grouped_kv_mqa__moe_arch_mod__prompt"
KN = NAME + "_kernel"
WS_KV, WS_STAT, WS_RKEY, WS_SY, WS_YACC, WS_GU, WS_STAMP, WS_OF = 0x0, 0x40000, 0x46000, 0x48000, 0x50000, 0x58000, 0x80000, 0x100000
WS_SIZE = 0x500000
SY1, SY2, SY3, SY4 = 0x60000, WS_SY + 32 * 128, WS_SY + 64 * 128, WS_SY + 128 * 128
ONES = 0x3F803F80
LOG2E = 1.4426950408889634
QSCALE = 0.17677669529663687 * LOG2E
def f32(x): return "0x%08x" % struct.unpack("<I", struct.pack("<f", x))[0]
STAMPS = False
VAR = set()
SPIN_MAX = 200000
N_INIT = 9
CHK, PI = 11, 9
VAR.add('hold')
D_POLL = 4
WT_IT, WT_POS = 3, 2
ALIGN = 0
OUTF = ''

S_X, S_W, S_KW, S_WS, S_KV, S_WR, S_WG, S_WU = 4, 8, 12, 16, 20, 24, 28, 32
S_OUT, S_WD = S_WR, S_KW
RB, HB, ROT, T0, T1, T2, T3 = 36, 37, 38, 39, 40, 41, 42
W1K, MODE, W4K, XSO, TD, SP, RT, HD, ROWT, RG = 43, 44, 45, 46, 47, 48, 49, 50, 51, 52
SEL, IDX, RKEY, FCG, RB2, CB2, OSO, XO2, CNT, OBASE = 53, 54, 55, 56, 57, 58, 59, 60, 61, 62
W8K, EXS, FW = 63, 64, 66
PT = 68
P_X, P_WQ, P_WK, P_WV, P_WO, P_BX, P_WR, P_WG, P_WU, P_WD, P_OUT, P_DBG, P_WS = [PT + 2 * i for i in range(13)]
STMP = 96
def sr(b): return f"s[{b}:{b+3}]"
def vr(b, n): return f"v[{b}:{b+n-1}]"

VN, VH, VOX, VOW, VL16, VST = 3, 4, 18, 19, 20, 21
MA, IDXC, IDXD, STAT = 24, 28, 29, 30

def srd(a, d, base, nbytes):
    a(f"s_mov_b32 s{d}, s{base}")
    a(f"s_and_b32 s{d+1}, s{base+1}, 0xffff")
    a(f"s_mov_b32 s{d+2}, {nbytes:#x}")
    a(f"s_mov_b32 s{d+3}, 0x20000")

def bf16r(a, dst, src):
    a(f"v_cvt_pk_bf16_f32 v{dst}, v{src}, v{src}")
    a(f"v_lshlrev_b32 v{dst}, 16, v{dst}")

_lbl = [0]
def L(p="L"):
    _lbl[0] += 1
    return f"{p}_{_lbl[0]}"

class Cnt:
    def __init__(self, a, name, mx): self.a, self.name, self.mx, self.tags, self.total, self.marks = a, name, mx, [], 0, {}
    def add(self, tag, n=1): self.tags += [tag] * n; self.total += n
    def mark(self, m): self.marks[m] = self.total
    def since(self, m): return min(self.total - self.marks[m], self.mx)
    def wait(self, *tags):
        idx = [i for i, t in enumerate(self.tags) if t in tags]
        if not idx: return
        n = min(len(self.tags) - 1 - max(idx), self.mx)
        self.a(f"s_waitcnt {self.name}({n})")
        self.tags = self.tags[len(self.tags) - n:] if n else []
    def wait_all(self):
        self.a(f"s_waitcnt {self.name}(0)"); self.tags = []

STAMP_NAMES = []
class K:
    def __init__(self):
        self.a = Asm()
        self.vm = Cnt(self.a, "vmcnt", 63)
        self.lg = Cnt(self.a, "lgkmcnt", 15)
    def stamp(self, name):
        if "dbgstamp" in VAR:
            a = self.a
            names = ["entry", "S0", "B0", "B_end", "loop_start", "loop_end", "E2", "end"]
            if name not in names: return
            slot = 8 + names.index(name)
            if name == "entry":
                a(f"s_memrealtime s[{STMP+2}:{STMP+3}]"); a("s_waitcnt lgkmcnt(0)")
                a("s_and_b32 s100, s2, 31"); a("s_lshl_b32 s101, s3, 8"); a("s_add_u32 s100, s100, s101"); return
            def st():
                a(f"s_memrealtime s[{STMP}:{STMP+1}]"); a("s_waitcnt lgkmcnt(0)")
                a(f"s_sub_u32 s{STMP}, s{STMP}, s{STMP+2}")
                a(f"v_mov_b32 v{VST+1}, s{STMP}")
                a(f"v_mov_b32 v{VST}, {slot*4}")
                a("s_mov_b64 exec, 1")
                a(f"global_atomic_umax v{VST}, v{VST+1}, s[{P_DBG}:{P_DBG+1}]")
                a("s_mov_b64 exec, -1")
            self.only("s_cmp_eq_u32 s100, 9", st)
            return
        if not STAMPS: return
        a = self.a
        slot = len(STAMP_NAMES); STAMP_NAMES.append(str(name)); assert slot < 32
        if name != "entry":
            a(f"s_memrealtime s[{STMP}:{STMP+1}]")
            a(f"s_memtime s[{STMP+2}:{STMP+3}]")
        a("s_waitcnt lgkmcnt(0)")
        a(f"s_lshl_b32 s{STMP+1}, s2, 11")
        a(f"s_lshl_b32 s{STMP+3}, s3, 8")
        a(f"s_add_u32 s{STMP+1}, s{STMP+1}, s{STMP+3}")
        a(f"s_add_u32 s{STMP+1}, s{STMP+1}, {WS_STAMP + slot * 8:#x}")
        a(f"v_mov_b32 v{VST+1}, s{STMP}")
        a(f"v_mov_b32 v{VST+2}, s{STMP+2}")
        a(f"v_mov_b32 v{VST}, s{STMP+1}")
        a(f"buffer_store_dwordx2 v[{VST+1}:{VST+2}], v{VST}, {sr(S_WS)}, 0 offen")
        self.vm.add("st")
    def only(self, cond, fn):
        a = self.a; skip = L()
        a(cond); a(f"s_cbranch_scc0 {skip}")
        snap = a.snapshot(); fn(); a.label(skip); a.join(snap)
    def ifelse(self, cond, f1, f2):
        a = self.a; lv, lj = L(), L()
        a(cond); a(f"s_cbranch_scc0 {lv}")
        snap = a.snapshot(); f1(); a(f"s_branch {lj}"); snap2 = a.snapshot()
        a.label(lv); a.hist = snap[0]; a.alts = [(h, 0) for h in snap[1:]]
        f2(); a.label(lj); a.join(snap2)
    def poll(self, vaddr, vdat, soff, expect, cnt=CNT):
        a = self.a; top, chk, done = L("poll"), L("pchk"), L("pdone")
        a(f"s_mov_b32 s{cnt}, 0")
        a(f"s_branch {chk}")
        a.label(top)
        a(f"buffer_load_dword v{vdat}, v{vaddr}, {sr(S_WS)}, s{soff} offen sc1")
        a("s_waitcnt vmcnt(0)")
        a.label(chk)
        a(f"v_cmp_ne_u32 vcc, {expect}, v{vdat}")
        a(f"s_add_u32 s{cnt}, s{cnt}, 1")
        a(f"s_cbranch_vccz {done}")
        a("s_sleep 2")
        a(f"s_cmp_lt_u32 s{cnt}, {SPIN_MAX}")
        a(f"s_cbranch_scc1 {top}")
        a.label(done)
    def ds(self, text, tag):
        self.a(text); self.lg.add(tag)

class Pager:
    def __init__(self, k, free, seq):
        self.k, self.free, self.seq, self.pos, self.page, self.rel = k, list(free), seq, 0, {}, {}
        self.hold, self.hold_until, self.log = set(), 0, []
    def release(self, it):
        for p in self.rel.pop(it, []): self.free.append(p)
    def take(self, n, stop=None):
        out = []
        while len(out) < n and self.pos < len(self.seq):
            tag, emit, last, pref = self.seq[self.pos]
            if stop is not None and tag == stop: break
            cand = [p for p in pref if p in self.free and not (p in self.hold and (last is None or last + 2 > self.hold_until))]
            if not cand: break
            p = cand[0]; self.free.remove(p); self.page[tag] = p
            if last is not None: self.rel.setdefault(last + 2, []).append(p)
            out.append((tag, emit(p))); self.pos += 1
        self.log.append([(t, self.page[t]) for t, _ in out])
        return out
    def issue(self, grp):
        tag, text = grp
        self.k.a(text); self.k.vm.add(tag)

def spread(groups, extra, first=True):
    n = len(groups)
    per = -(-len(extra) // max(n, 1)) if extra else 0
    for i, g in enumerate(groups):
        for e in extra[i * per:(i + 1) * per]: e()
        g()
    for e in extra[n * per:]: e()

def prologue(k):
    a, vm = k.a, k.vm
    a.raw(f".globl {KN}"); a.raw(".p2align 8"); a.raw(f".type {KN},@function"); a.raw(f"{KN}:")
    if STAMPS:
        a(f"s_memrealtime s[{STMP}:{STMP+1}]")
        a(f"s_memtime s[{STMP+2}:{STMP+3}]")
    a("s_cmp_ge_u32 s2, 256")
    a("s_cbranch_scc1 L_end")
    a(f"s_load_dwordx16 s[{PT}:{PT+15}], s[0:1], 0")
    a(f"s_load_dwordx8 s[{PT+16}:{PT+23}], s[0:1], 64")
    a(f"s_load_dwordx2 s[{PT+24}:{PT+25}], s[0:1], 96")
    a("s_getpc_b64 s[94:95]")
    a("v_lshrrev_b32 v1, 6, v0")
    a("v_and_b32 v2, 63, v0")
    a("v_readfirstlane_b32 s3, v1")
    a("s_and_b32 s4, s2, 0xf8")
    a("s_lshl_b32 s4, s4, 7")
    a("v_lshlrev_b32 v8, 7, v0")
    a("v_cmp_gt_u32 vcc, 8, v0")
    a("v_add_u32 v8, s4, v8")
    a("v_min_u32 v8, CODE_BYTES, v8")
    a(f"s_and_saveexec_b64 s[{EXS}:{EXS+1}], vcc")
    l2 = L(); a(f"s_cbranch_execz {l2}")
    if "nocpf" not in VAR: a("global_load_dword v47, v8, s[94:95]")
    a.label(l2)
    a(f"s_mov_b64 exec, s[{EXS}:{EXS+1}]")
    a(f"v_lshlrev_b32 v{VL16}, 4, v2")
    a(f"v_and_b32 v{VN}, 31, v2")
    a(f"v_lshrrev_b32 v{VH}, 5, v2")
    a(f"s_and_b32 s{T0}, s2, 7")
    a(f"s_lshr_b32 s{T1}, s2, 3")
    a(f"s_lshr_b32 s{RB}, s{T0}, 1")
    a(f"s_lshl_b32 s{RB}, s{RB}, 3")
    a(f"s_and_b32 s{SEL}, s{T0}, 1")
    a(f"s_lshl_b32 s{T2}, s{SEL}, 2")
    a(f"s_add_u32 s{RB2}, s{RB}, s{T2}")
    a(f"s_and_b32 s{T3}, s{T1}, 3")
    a(f"s_add_u32 s{RB2}, s{RB2}, s{T3}")
    a(f"s_lshr_b32 s{CB2}, s{T1}, 2")
    a(f"s_and_b32 s{ROT}, s{T1}, 7")
    a(f"s_add_u32 s{RB}, s{RB}, s{ROT}")
    a(f"s_lshr_b32 s{T3}, s{T1}, 3")
    a(f"s_add_u32 s{HB}, s{T2}, s{T3}")
    a(f"s_lshl_b32 s{RG}, s{RB}, 2")
    a(f"s_add_u32 s{RG}, s{RG}, s{T3}")
    a(f"s_mul_i32 s{FCG}, s{T0}, 28")
    a(f"s_add_u32 s{FCG}, s{FCG}, s{T1}")
    a(f"s_lshl_b32 s{W1K}, s3, 10")
    a(f"s_lshl_b32 s{W4K}, s3, 12")
    a(f"s_lshl_b32 s{W8K}, s3, 13")
    a(f"s_and_b32 s{RT}, s3, 1")
    a(f"s_lshr_b32 s{HD}, s3, 1")
    a(f"s_lshl_b32 s{ROWT}, s{RB}, 1")
    a(f"s_add_u32 s{ROWT}, s{ROWT}, s{RT}")
    a(f"s_lshl_b32 s{XO2}, s{RB}, 17")
    a(f"s_lshl_b32 s{OSO}, s{HB}, 8")
    a(f"s_sub_u32 s{FW}, s3, 1")
    a("s_cmp_lt_u32 s3, 4")
    a(f"s_cselect_b32 s{MODE}, s{SEL}, 2")
    a("v_lshrrev_b32 v5, 4, v2")
    a(f"s_lshl_b32 s{T0}, s3, 2")
    a(f"v_add_u32 v6, s{T0}, v5")
    a("v_xor_b32 v7, v6, v2")
    a("v_and_b32 v7, 7, v7")
    a("v_lshlrev_b32 v7, 4, v7")
    a("v_lshrrev_b32 v8, 3, v2")
    a("v_lshl_add_u32 v7, v8, 11, v7")
    a(f"s_lshl_b32 s{T0}, s3, 14")
    a(f"v_add_u32 v{VOX}, s{T0}, v7")
    a("v_lshrrev_b32 v7, 2, v2")
    a("v_lshlrev_b32 v7, 11, v7")
    a("v_and_b32 v8, 3, v2")
    a("v_lshl_add_u32 v7, v8, 4, v7")
    a(f"s_lshl_b32 s{T0}, s{RT}, 16")
    a(f"s_lshl_b32 s{T1}, s{HD}, 6")
    a(f"s_add_u32 s{T0}, s{T0}, s{T1}")
    a(f"v_add_u32 v{VOW}, s{T0}, v7")
    a("v_lshlrev_b32 v7, 2, v2")
    a("v_mov_b32 v9, 0")
    a("v_mov_b32 v17, 0")
    a("v_mov_b32 v16, 1")
    a(f"s_xor_b32 s{CNT}, s3, 7")
    a(f"s_lshl_b32 s{CNT}, s{CNT}, 8")
    a(f"s_add_u32 s{CNT}, s{CNT}, s2")
    a("v_and_b32 v1, 28, v7")
    a("s_waitcnt lgkmcnt(0)")
    srd(a, S_X, P_X, 2048 * 2048)
    a(f"s_cmp_eq_u32 s{SEL}, 0")
    a(f"s_cselect_b32 s{S_KW}, s{P_WK}, s{P_WV}")
    a(f"s_cselect_b32 s{S_KW+1}, s{P_WK+1}, s{P_WV+1}")
    a(f"s_and_b32 s{S_KW+1}, s{S_KW+1}, 0xffff")
    a(f"s_mov_b32 s{S_KW+2}, 0x10000")
    a(f"s_mov_b32 s{S_KW+3}, 0x20000")
    srd(a, S_WS, P_WS, WS_SIZE)
    srd(a, S_WR, P_WR, 2048)
    k.stamp("entry")
    def zero():
        a("v_mov_b32 v10, 0"); a("v_mov_b32 v11, 0"); a("v_mov_b32 v8, 0")
        a(f"s_lshl_b32 s{T2}, s2, 12")
        a(f"s_add_u32 s{T2}, s{T2}, {SY1:#x}")
        for i in range(4): a(f"buffer_store_dwordx4 v[8:11], v{VL16}, {sr(S_WS)}, s{T2} offen offset:{i*1024} sc1")
        a(f"s_lshl_b32 s{T2}, s2, 2")
        a("s_waitcnt vmcnt(0)")
        a(f"v_mov_b32 v10, s{T2}")
        a(f"global_store_dword v10, v16, s[{P_DBG}:{P_DBG+1}] sc1")
    k.only(f"s_cmp_lt_u32 s{CNT}, 8", zero)

AUX = 19 * 8192
TAB = AUX + 2304
RED = 4 * 8192

def phaseAB(k):
    a, vm, lg = k.a, k.vm, k.lg
    VXA, VW, ACC, WF, FT, XREG, CS = 32, 44, 48, 64, 96, 128, 12
    XF, ACCX, ACCO = XREG, 48, 80
    def rot(j, shift, extra, base):
        return f"""s_add_u32 s{TD}, s{ROT}, {j}
        s_and_b32 s{TD}, s{TD}, 7
        s_lshl_b32 s{TD}, s{TD}, {shift}
        s_add_u32 s{TD}, s{TD}, s{base}""" + (f"\ns_add_u32 s{TD}, s{TD}, {extra}" if extra else "")
    def ldx(c): return lambda p: f"s_add_u32 m0, s{W1K}, {p*8192}\n" + rot(c >> 1, 8, (c & 1) * 128, XO2) + f"\nbuffer_load_dwordx4 v{VOX}, {sr(S_X)}, s{TD} offen lds"
    def ldk(j): return lambda p: f"s_add_u32 m0, s{W1K}, {p*8192}\n" + rot(j, 13, 0, W1K) + f"\nbuffer_load_dwordx4 v{VL16}, {sr(S_KW)}, s{TD} offen lds"
    def ldw(c, h): return lambda p: f"s_add_u32 m0, s{W1K}, {p*8192}\n" + rot(c >> 1, 18, ((c & 1) * 64 + h * 16) * 2048, OSO) + f"\nbuffer_load_dwordx4 v{VOW}, {sr(S_W)}, s{TD} offen lds"
    seq = []
    hi = list(range(8, 19))
    for j in range(8):
        seq.append((("k", j), ldk(j), j, [4, 5, 6, 7] if 2 <= j <= 5 else hi[::-1]))
        for e in range(2):
            c = 2 * j + e
            seq.append((("x", c), ldx(c), j if c < 8 else None, [0, 1, 2, 3] if 8 <= c <= 11 else hi[::-1] if c < 8 else hi[:3:-1]))
    for c in range(16):
        for h in range(2):
            seq.append((("w", c, h), ldw(c, h), None, hi + [4, 5, 6, 7]))
    pg = Pager(k, range(19), seq)
    pg.hold, pg.hold_until = {4, 5, 6, 7}, 7
    k.pgAB = pg
    srd(a, S_W, P_WQ, 1024 * 2048)
    a(f"v_lshlrev_b32 v8, 7, v{VN}")
    a(f"s_lshl_b32 s{T0}, s{RG}, 15")
    a(f"s_add_u32 s{T0}, s{T0}, s{W4K}")
    a(f"buffer_load_dword v47, v8, {sr(S_X)}, s{T0} offen"); vm.add("xt")
    def wtouch():
        a(f"v_lshrrev_b32 v8, 1, v{VN}")
        a("v_lshlrev_b32 v8, 11, v8")
        a("v_and_b32 v10, 1, v2")
        a("v_lshl_add_u32 v8, v10, 7, v8")
        a(f"s_lshl_b32 s{T0}, s{ROT}, 3")
        a(f"s_add_u32 s{T0}, s{T0}, s3")
        a(f"s_lshl_b32 s{T0}, s{T0}, 15")
        a(f"s_add_u32 s{T0}, s{T0}, s{OSO}")
        a(f"buffer_load_dword v47, v8, {sr(S_W)}, s{T0} offen"); vm.add("wt")
    if WT_IT < 0: wtouch()
    a(f"s_lshl_b32 s{T1}, s3, 8")
    a(f"s_add_u32 m0, s{T1}, {AUX}")
    a(f"s_add_u32 s{TD}, s{ROT}, s3")
    a(f"s_and_b32 s{TD}, s{TD}, 7")
    a(f"s_lshl_b32 s{TD}, s{TD}, 8")
    a(f"buffer_load_dword v7, {sr(S_WR)}, s{TD} offen lds"); vm.add("wr")
    first = pg.take(N_INIT)
    for g_ in first[:3]: pg.issue(g_)
    k.stamp("issued")
    srd(a, S_KV, P_WS, 0x40000)
    srd(a, S_WG, P_WG, 1024 * 7168)
    srd(a, S_WU, P_WU, 1024 * 7168)
    a(f"v_mov_b32 v8, {ONES:#x}")
    a(f"v_add_u32 v9, {AUX + 2048}, v7")
    k.ds("ds_write_b32 v9, v8", "ones")
    k.ds("ds_write_b32 v9, v17 offset:384", "ones")
    a(f"v_bfe_u32 v5, v{VN}, 1, 3")
    a(f"v_xor_b32 v5, v5, v{VH}")
    a(f"s_lshl_b32 s{T0}, s{RT}, 12")
    a(f"s_lshl_b32 s{T1}, s{RT}, 2")
    a(f"v_lshlrev_b32 v6, 7, v{VN}")
    a(f"v_add_u32 v8, s{T0}, v6")
    a(f"v_xor_b32 v9, s{T1}, v5")
    a(f"v_lshl_add_u32 v{VXA}, v9, 4, v8")
    a(f"v_xor_b32 v{VXA+1}, 32, v{VXA}")
    a(f"v_xor_b32 v{VXA+2}, 0x1000, v{VXA}")
    a(f"v_xor_b32 v{VXA+3}, 0x1020, v{VXA}")
    for s in range(4):
        a(f"v_add_u32 v{VXA+4+s}, 0x10000, v{VXA+s}")
        a(f"v_add_u32 v{VXA+8+s}, 0x20000, v{VXA+s}")
    BX, MX, I17, AX, AW, BW = FT, FT + 2, FT + 3, FT + 4, FT + 6, FT + 7
    a(f"s_and_b32 s{T0}, s{HB}, 3")
    a(f"s_lshl_b32 s{T0}, s{T0}, 11")
    a(f"v_add_u32 v8, s{T0}, v6")
    a(f"s_lshl_b32 s{T1}, s{RT}, 2")
    a(f"v_xor_b32 v9, s{T1}, v5")
    a(f"v_lshl_add_u32 v{BX}, v9, 4, v8")
    a("v_xor_b32 v9, 2, v9")
    a(f"v_lshl_add_u32 v{BX+1}, v9, 4, v8")
    a(f"s_and_b32 s{T2}, s3, 3")
    a(f"s_lshl_b32 s{T3}, s{T2}, 6")
    a(f"s_add_u32 s{T3}, s{T3}, {AUX}")
    a(f"v_lshlrev_b32 v8, 4, v{VH}")
    a(f"v_add_u32 v8, s{T3}, v8")
    a(f"v_mov_b32 v9, {AUX + 2048}")
    a(f"v_cmp_eq_u32 vcc, 17, v{VN}")
    a("v_mov_b32 v10, 256")
    a("v_cndmask_b32 v8, v9, v8, vcc")
    a(f"v_cndmask_b32 v{I17}, 0, v10, vcc")
    a("v_add_u32 v9, 32, v8")
    a(f"v_cmp_gt_u32 vcc, 16, v{VN}")
    a(f"v_cndmask_b32 v{MX}, 0, 1, vcc")
    a(f"v_cndmask_b32 v{BX}, v8, v{BX}, vcc")
    a(f"v_cndmask_b32 v{BX+1}, v9, v{BX+1}, vcc")
    a("v_bfe_u32 v5, v2, 2, 2")
    a(f"v_lshl_add_u32 v6, v{VH}, 3, v5")
    a("v_bfe_u32 v8, v2, 4, 1")
    a("v_lshlrev_b32 v8, 5, v8")
    a("v_and_b32 v9, 3, v2")
    a("v_lshl_add_u32 v8, v9, 3, v8")
    a("v_lshl_add_u32 v9, v6, 6, v8")
    a(f"s_lshl_b32 s{T3}, s{T2}, 11")
    a(f"v_add_u32 v{BW}, s{T3}, v9")
    a(f"v_add_u32 v{VW}, s{W1K}, v9")
    a(f"v_add_u32 v{VW+1}, 0x10000, v{VW}")
    a(f"v_add_u32 v{VW+2}, 0x20000, v{VW}")
    a("v_bfe_u32 v5, v2, 2, 1")
    a("v_cmp_eq_u32 vcc, 0, v5")
    a(f"v_mov_b32 v6, {ONES:#x}")
    a(f"v_cndmask_b32 v{MA}, 0, v6, vcc")
    a(f"v_cndmask_b32 v{MA+1}, 0, v6, vcc")
    a(f"v_cndmask_b32 v{MA+2}, v6, 0, vcc")
    a(f"v_cndmask_b32 v{MA+3}, v6, 0, vcc")
    a("v_and_b32 v5, 2, v2")
    a("v_cmp_eq_u32 vcc, 0, v5")
    for i in range(4): a(f"v_cndmask_b32 v{MA+i}, 0, v{MA+i}, vcc")
    a("v_and_b32 v5, 1, v2")
    a("v_cmp_eq_u32 vcc, 0, v5")
    a("v_mov_b32 v6, 0x44444444")
    a("v_mov_b32 v8, 0xeeeeeeee")
    a(f"v_cndmask_b32 v{IDXC}, v8, v6, vcc")
    a(f"v_mov_b32 v{IDXD}, 0xdddddddd")
    for i in range(4): a(f"v_mov_b32 v{CS+i}, 0")
    for g_ in first[3:]: pg.issue(g_)
    lg.wait_all()

    def xread(c, s, dst, tag):
        p = pg.page[("x", c)]
        k.ds(f"ds_read_b128 {vr(dst, 4)}, v{VXA + 4*(p >> 3) + s} offset:{(p & 7) * 8192}", tag)
    def kv_mfma(j):
        b = WF + 16 * (j & 1)
        def mm(x, y):
            for e in range(2):
                c = "0" if (j == 0 and e == 0) else vr(ACC, 16)
                a(f"v_mfma_f32_32x32x16_bf16 {vr(ACC,16)}, {vr(b+x+4*e,4)}, {vr(b+y+4*e,4)}, {c}")
        k.ifelse(f"s_cmp_eq_u32 s{MODE}, 2", lambda: mm(0, 0),
                 lambda: k.ifelse(f"s_cmp_eq_u32 s{MODE}, 0", lambda: mm(8, 0), lambda: mm(0, 8)))
    for j in range(8):
        vm.wait(("x", 2*j), ("x", 2*j+1), ("k", j))
        a("s_barrier")
        if j == 0: k.stamp(f"S{j}")
        pg.release(j)
        d = [lambda g=g: pg.issue(g) for g in pg.take(6 if j < 2 else 4, stop=(('w', 0, 0) if 'hold' in VAR else None))]
        b = WF + 16 * (j & 1)
        def g0():
            a("s_bitcmp1_b32 s3, 1")
            a(f"s_mov_b32 s{SP}, {pg.page[('x', 2*j)]*8192}")
            a(f"s_cselect_b32 s{SP}, {pg.page[('x', 2*j+1)]*8192}, s{SP}")
            a(f"v_mul_u32_u24 v8, s{SP}, v{MX}")
            a(f"v_add_u32 v{AX}, v8, v{BX}")
            a(f"v_add_u32 v{AX+1}, v8, v{BX+1}")
            a(f"v_add_u32 v{AW}, {pg.page[('k', j)]*8192}, v{BW}")
            for e in range(2): k.ds(f"ds_read_b128 {vr(b+4*e,4)}, v{AX+e}", ("s", j))
            for e in range(2):
                for u in range(2):
                    k.ds(f"ds_read_b64_tr_b16 {vr(b+8+4*e+2*u,2)}, v{AW} offset:{(16*e+4*u)*64}", ("s", j))
            a(f"v_add_u32 v{BX}, v{I17}, v{BX}")
            a(f"v_add_u32 v{BX+1}, v{I17}, v{BX+1}")
        def g1():
            if j > 0:
                lg.wait(("s", j - 1), ("xr", j - 1))
                kv_mfma(j - 1)
        def g2(e):
            if j < 4:
                for s in range(4): xread(2*j+e, s, XREG + 16*(2*j+e) + 4*s, ("xr", j))
        if j == WT_IT: d.insert(WT_POS, wtouch)
        if j == 3: d.insert(2, lambda: k.only('s_cmp_eq_u32 s3, 0', lambda: a(f'global_load_dword v16, v1, s[{P_DBG}:{P_DBG+1}] sc1')))
        g2(0)
        spread([g0, g1, lambda: g2(1)], d)
    F = FT
    R2 = RED + 16384
    def st_reads():
        a("v_and_b32 v5, 15, v2")
        a("v_lshlrev_b32 v6, 4, v5")
        for w in range(4): a(f"ds_read_b64 {vr(F+2*w,2)}, v6 offset:{R2+w*4096+2*1024}")
        a("v_bfe_u32 v8, v5, 2, 1")
        a("v_lshl_add_u32 v8, v8, 9, v6")
        a("v_lshrrev_b32 v9, 3, v5")
        a("v_lshl_add_u32 v8, v9, 10, v8")
        a("v_and_b32 v9, 3, v5")
        a("v_lshl_add_u32 v8, v9, 2, v8")
        for w in range(4): a(f"ds_read_b32 v{F+8+w}, v8 offset:{R2+w*4096}")
        a(f"v_mov_b32 v9, {16*16 + 4}")
        for w in range(4): a(f"ds_read_b32 v{F+12+w}, v9 offset:{R2+w*4096+2*1024}")
        a("s_waitcnt lgkmcnt(0)")
        st_compute()
    def da_reads():
        a("v_and_b32 v5, 15, v2")
        def kk():
            a("v_bfe_u32 v9, v2, 4, 1")
            a("v_lshlrev_b32 v8, 9, v9")
            a(f"v_lshl_add_u32 v8, v{VH}, 10, v8")
            a(f"s_lshl_b32 s{T0}, s{FW}, 11")
            a(f"v_add_u32 v8, s{T0}, v8")
            a("v_lshl_add_u32 v9, v5, 4, v8")
            for w in range(4): a(f"ds_read_b128 {vr(F+4*w,4)}, v9 offset:{RED+w*4096}")
            for w in range(4): a(f"ds_read_b128 {vr(F+16+4*w,4)}, v8 offset:{RED+w*4096+256}")
        def vv():
            a(f"s_lshl_b32 s{T0}, s{FW}, 10")
            a(f"v_add_u32 v9, s{T0}, v{VL16}")
            for w in range(4): a(f"ds_read_b128 {vr(F+4*w,4)}, v9 offset:{RED+w*4096}")
            a(f"v_lshlrev_b32 v8, 4, v{VN}")
            for w in range(4): a(f"ds_read_b32 v{F+16+4*w}, v8 offset:{RED+w*4096+2048}")
        k.ifelse(f"s_cmp_eq_u32 s{SEL}, 0", kk, vv)
        a(f"s_lshr_b32 s{T2}, s{RG}, 1")
        a(f"s_lshl_b32 s{T2}, s{T2}, 12")
        a(f"s_and_b32 s{T1}, s{RG}, 1")
        def kk2():
            a("v_and_b32 v8, 3, v5")
            a("v_bfe_u32 v9, v5, 2, 1")
            a("v_lshl_add_u32 v8, v9, 3, v8")
            a("v_bfe_u32 v9, v5, 3, 1")
            a("v_lshl_add_u32 v8, v9, 2, v8")
            a("v_bfe_u32 v9, v2, 4, 1")
            a("v_lshl_add_u32 v8, v9, 5, v8")
            a("v_lshlrev_b32 v8, 4, v8")
            a(f"v_lshl_add_u32 v8, v{VH}, 3, v8")
            a(f"s_lshl_b32 s{T0}, s{FW}, 10")
            a(f"s_add_u32 s{T2}, s{T2}, s{T0}")
            a(f"s_lshl_b32 s{T1}, s{T1}, 8")
            a(f"s_add_u32 s{T2}, s{T2}, s{T1}")
            a("v_lshlrev_b32 v6, 2, v5")
        def vv2():
            a(f"v_mov_b32 v8, v{VL16}")
            a(f"s_lshl_b32 s{T1}, s{T1}, 10")
            a(f"s_add_u32 s{T2}, s{T2}, s{T1}")
            a(f"s_lshl_b32 s{T1}, s{FW}, 3")
            a(f"s_add_u32 s{T2}, s{T2}, s{T1}")
            a(f"s_add_u32 s{T2}, s{T2}, 2048")
            a(f"s_lshl_b32 s{T0}, s{FW}, 5")
            a(f"v_lshlrev_b32 v6, 4, v{VH}")
            a(f"v_add_u32 v6, s{T0}, v6")
        k.ifelse(f"s_cmp_eq_u32 s{SEL}, 0", kk2, vv2)
        a(f"v_add_u32 v6, {TAB}, v6")
        a("s_waitcnt lgkmcnt(0)")
        for w in range(1, 4):
            for e in range(4):
                a(f"v_add_f32 v{F+e}, v{F+e}, v{F+4*w+e}")
                a(f"v_add_f32 v{F+16+e}, v{F+16+e}, v{F+16+4*w+e}")
    def dbg_load():
        a(f"global_load_dword v16, v17, s[{P_DBG}:{P_DBG+1}] sc1")
    def st_compute():
        M, RI, R, V = F + 2, F + 3, F + 1, F + 8
        for w in range(1, 4):
            a(f"v_add_f32 v{F}, v{F}, v{F+2*w}")
            a(f"v_add_f32 v{V}, v{V}, v{V+w}")
            a(f"v_add_f32 v{F+1}, v{F+1}, v{F+2*w+1}")
        a(f"v_mul_f32 v{F}, {f32(1/1024)}, v{F}")
        a(f"v_mul_f32 v{V}, {f32(1/1024)}, v{V}")
        a(f"v_fma_f32 v{V}, -v{F}, v{F}, v{V}")
        a(f"v_max_f32 v{V}, 0, v{V}")
        bf16r(a, M, F)
        bf16r(a, V, V)
        a(f"v_add_f32 v{V}, {f32(1e-5)}, v{V}")
        bf16r(a, V, V)
        a(f"v_sqrt_f32 v{V}, v{V}")
        a("v_lshlrev_b32 v8, 2, v5")
        bf16r(a, V, V)
        a(f"v_rcp_f32 v{RI}, v{V}")
        a(f"v_add_u32 v8, {TAB}, v8")
        a(f"ds_write_b32 v8, v{M}")
        a(f"ds_write_b32 v8, v{RI} offset:64")
        a("s_waitcnt lgkmcnt(0)")
    def st_store():
        M, RI, R = F + 2, F + 3, F + 1
        a(f"s_lshl_b32 s{T0}, s2, 8")
        a(f"s_add_u32 s{T0}, s{T0}, {WS_YACC:#x}")
        a("v_lshlrev_b32 v8, 2, v2")
        a(f"buffer_store_dword v17, v8, {sr(S_WS)}, s{T0} offen sc1")
        a(f"s_lshl_b32 s{T0}, s2, 7")
        a(f"s_add_u32 s{T0}, s{T0}, {WS_SY:#x}")
        a("v_and_b32 v8, 127, v8")
        a(f"buffer_store_dword v17, v8, {sr(S_WS)}, s{T0} offen sc1")
        def rk():
            for w in range(1, 4): a(f"v_add_f32 v{F+12}, v{F+12}, v{F+12+w}")
            a(f"v_fma_f32 v{R}, -v{M}, v{F+12}, v{R}")
            a(f"v_mul_f32 v{R}, v{R}, v{RI}")
            a(f"v_cvt_pk_bf16_f32 v{R}, v{R}, v{R}")
            a(f"v_ashrrev_i32 v8, 31, v{R}")
            a("v_or_b32 v8, 0x80000000, v8")
            a(f"v_xor_b32 v{R}, v{R}, v8")
            a(f"v_and_b32 v{R}, 0xffff0000, v{R}")
            a(f"s_lshl_b32 s{T0}, s{RG}, 4")
            a(f"v_add_u32 v8, s{T0}, v5")
            a("v_sub_u32 v8, 0xffff, v8")
            a(f"v_or_b32 v{R}, v{R}, v8")
            for sh in (8, 4, 2, 1):
                a(f"v_max_u32_dpp v{R}, v{R}, v{R} row_ror:{sh} row_mask:0xf bank_mask:0xf")
            a("v_lshlrev_b32 v8, 3, v5")
            a(f"s_lshl_b32 s{T0}, s{RG}, 7")
            a(f"s_add_u32 s{T0}, s{T0}, {WS_STAT:#x}")
            a(f"s_lshl_b32 s{T1}, s{RG}, 2")
            a(f"s_add_u32 s{T1}, s{T1}, {WS_RKEY:#x}")
            a("s_mov_b64 exec, 0xffff")
            a(f"buffer_store_dwordx2 v[{M}:{RI}], v8, {sr(S_WS)}, s{T0} offen sc1")
            a("s_mov_b64 exec, 1")
            a(f"buffer_store_dword v{R}, v8, {sr(S_WS)}, s{T1} offen sc1")
            a("s_mov_b64 exec, -1")
        k.only(f"s_cmp_eq_u32 s{SEL}, 0", rk)
    def da_store():
        def kk():
            a(f"ds_read_b32 v{F+4}, v6")
            a(f"ds_read_b32 v{F+8}, v6 offset:64")
            a("s_waitcnt lgkmcnt(0)")
            for e in range(4): a(f"v_fma_f32 v{F+e}, -v{F+4}, v{F+16+e}, v{F+e}")
            for e in range(4): a(f"v_mul_f32 v{F+e}, v{F+e}, v{F+8}")
        def vv():
            a(f"ds_read_b128 {vr(F+4,4)}, v6")
            a(f"ds_read_b128 {vr(F+8,4)}, v6 offset:64")
            a("s_waitcnt lgkmcnt(0)")
            for e in range(4): a(f"v_fma_f32 v{F+e}, -v{F+4+e}, v{F+16}, v{F+e}")
            for e in range(4): a(f"v_mul_f32 v{F+e}, v{F+e}, v{F+8+e}")
        k.ifelse(f"s_cmp_eq_u32 s{SEL}, 0", kk, vv)
        a(f"v_cvt_pk_bf16_f32 v{F+12}, v{F}, v{F+1}")
        a(f"v_cvt_pk_bf16_f32 v{F+13}, v{F+2}, v{F+3}")
        a(f"buffer_store_dwordx2 {vr(F+12,2)}, v8, {sr(S_WS)}, s{T2} offen sc1")
    def fin_arrive():
        a(f"s_waitcnt vmcnt({vm.since('fs')})")
        top, done = L(), L()
        a(f"s_mov_b32 s{CNT}, 0")
        a.label(top)
        a("v_cmp_eq_u32 vcc, 0, v16")
        a(f"s_add_u32 s{CNT}, s{CNT}, 1")
        a(f"s_cbranch_vccz {done}")
        a(f"global_load_dword v16, v1, s[{P_DBG}:{P_DBG+1}] sc1")
        a("s_waitcnt vmcnt(0)")
        a(f"s_cmp_lt_u32 s{CNT}, {SPIN_MAX}")
        a(f"s_cbranch_scc1 {top}")
        a.label(done)
        a("v_mov_b32 v8, 1")
        a(f"v_mov_b32 v9, {TAB + 128}")
        a("s_mov_b64 exec, 1")
        a("ds_add_rtn_u32 v9, v9, v8")
        a("s_waitcnt lgkmcnt(0)")
        a("v_cmp_eq_u32 vcc, 2, v9")
        a("s_mov_b64 exec, 0xff")
        nl = L()
        a(f"s_cbranch_vccz {nl}")
        a(f"s_lshr_b32 s{T0}, s2, 3")
        a(f"s_lshl_b32 s{T0}, s{T0}, 7")
        a(f"s_add_u32 s{T0}, s{T0}, {SY1:#x}")
        a("v_lshlrev_b32 v9, 12, v2")
        a(f"buffer_atomic_add v8, v9, {sr(S_WS)}, s{T0} offen sc1")
        a.label(nl)
        a("s_mov_b64 exec, -1")
    W0, W12, W012 = "s_cmp_eq_u32 s3, 0", f"s_cmp_lt_u32 s{FW}, 2", "s_cmp_lt_u32 s3, 3"
    def kv_dma(i, chunk):
        a(f"s_add_u32 m0, s{W4K}, {chunk*32768 + i*1024}")
        a(f"s_add_u32 s{XSO}, s{W4K}, {chunk*32768 + i*1024}")
        a(f"buffer_load_dwordx4 v{VL16}, {sr(S_KV)}, s{XSO} offen sc1 lds"); vm.add(("kv", chunk))
    RK, PV, ST2 = 120, 122, 124
    def rd(c):
        vm.wait(("w", c, 0), ("w", c, 1))
        for e in range(2):
            p = pg.page[("w", c, e)]
            for u in range(2):
                k.ds(f"ds_read_b64_tr_b16 {vr(WF+8*(c&1)+4*e+2*u,2)}, v{VW + (p >> 3)} offset:{(p & 7)*8192 + 4*u*64}", ("q", c, e))
            if c >= 8:
                for t in range(2): xread(c, 2*t+e, XF + 16*(c & 1) + 4*(2*t+e), ("q", c, e))
    def mm(c):
        xb = (XREG + 16*c) if c < 8 else (XF + 16*(c & 1))
        for e in range(2):
            lg.wait(("q", c, e))
            for t, acc in ((0, ACCO), (1, ACCX)):
                cc = "0" if (c == 0 and e == 0) else vr(acc, 16)
                a(f"v_mfma_f32_32x32x16_bf16 {vr(acc,16)}, {vr(WF+8*(c&1)+4*e,4)}, {vr(xb+4*(2*t+e),4)}, {cc}")
        a(f"v_smfmac_f32_16x16x64_bf16 {vr(CS,4)}, {vr(MA,4)}, {vr(WF+8*(c&1),8)}, v{IDXC}")
        for e in range(2): pg.free.append(pg.page[("w", c, e)])
    def dmas(n):
        for g_ in pg.take(n): pg.issue(g_)
    k.stamp("B0")
    lg.wait(("s", 7)); kv_mfma(7)
    a(f"v_add_u32 v8, s{W4K}, v{VL16}")
    for q in range(4): k.ds(f"ds_write_b128 v8, {vr(ACC+4*q,4)} offset:{RED + q*1024}", "red")
    lg.wait_all()
    a("s_barrier"); pg.release(8); pg.release(9)
    k.only(W0, st_reads); k.only(W12, da_reads)
    if "hold" in VAR:
        first = pg.take(7)
        def early_w():
            for t_, x in first: a(x)
        k.only("s_cmp_ge_u32 s3, 3", early_w)
        a("s_barrier"); pg.hold = set()
        k.only(W0, st_store); k.only(W12, da_store); vm.mark("fs")
        k.only(W012, early_w)
        for t_, x in first: vm.add(t_)
        rd(0); rd(1)
    else:
        dmas(2)
        rd(0); rd(1)
    k.stamp('R1')
    for c in range(16):
        mm(c)
        if 'fine' in VAR and c in (1, 2, 4, 6, 8, 10, 12, 13, 14): k.stamp(f'M{c}')
        if c == 0 and "hold" not in VAR:
            a("s_barrier"); pg.hold = set()
            k.only(W0, st_store); k.only(W12, da_store); vm.mark("fs")
        if c == PI:
            a(f"v_lshlrev_b32 v{PV}, 7, v{VN}")
            a(f"s_and_b32 s{T3}, s2, 7")
            a(f"s_lshl_b32 s{T3}, s{T3}, 12")
            a(f"s_add_u32 s{T3}, s{T3}, {SY1:#x}")
            k.only("s_cmp_eq_u32 s3, 7", lambda: a(f"buffer_load_dword v{PV+1}, v{PV}, {sr(S_WS)}, s{T3} offen sc1"))
            vm.mark("poll")
        if ALIGN and c >= 2 and c % ALIGN == 0 and c <= 10: a("s_barrier")
        dmas(3 if ALIGN < 2 else (6 if c % 2 == 0 or c < 2 else 0))
        if c + 2 < 16: rd(c + 2)
        if c == (0 if 'hold' in VAR else 2): k.only(W012, fin_arrive)
        if c in (5, 6, 7): k.ffn.early(c - 5)
        if c == CHK:
            def chk():
                a(f"s_waitcnt vmcnt({vm.since('poll')})")
                k.poll(PV, PV + 1, T3, 8)
            k.only("s_cmp_eq_u32 s3, 7", chk)
            a("s_barrier")
            assert pg.pos == len(pg.seq)
            a(f"s_lshl_b32 s{T0}, s{ROWT}, 8")
            a(f"s_add_u32 s{T0}, s{T0}, {WS_STAT:#x}")
            a(f"v_lshlrev_b32 v5, 3, v{VN}")
            a(f"buffer_load_dwordx2 {vr(STAT,2)}, v5, {sr(S_WS)}, s{T0} offen sc1"); vm.add("stat")
            a(f"s_xor_b32 s{T0}, s{T0}, 0x100")
            a(f"buffer_load_dword v{ST2}, v5, {sr(S_WS)}, s{T0} offen sc1"); vm.add("stat")
            kv_dma(0, 0); kv_dma(1, 0)
        if c == CHK + 1:
            kv_dma(2, 0); kv_dma(3, 0)
            a("v_lshlrev_b32 v5, 3, v2")
            a(f"s_mov_b32 s{T0}, {WS_RKEY:#x}")
            a(f"buffer_load_dwordx2 {vr(RK,2)}, v5, {sr(S_WS)}, s{T0} offen sc1"); vm.add("rk")
            def kvt():
                a(f"s_lshr_b32 s{T0}, s2, 3")
                a(f"s_lshl_b32 s{T0}, s{T0}, 13")
                a("v_lshlrev_b32 v5, 7, v2")
                a(f"buffer_load_dword v16, v5, {sr(S_KV)}, s{T0} offen sc1")
            k.only("s_cmp_eq_u32 s3, 6", kvt)
    for p in (8, 9, 10, 11): assert p in pg.free
    k.stamp("B_end")
    k.ACCX, k.ACCO, k.ST2 = ACCX, ACCO, ST2
    k.ACC, k.CS, k.RK = ACC, CS, RK

QF, NM, VA, SA, SB, OA, LS, KA, VK1 = 32, 40, 56, 64, 80, 96, 112, 116, 17

def attention(k):
    a, vm, lg, ffn = k.a, k.vm, k.lg, k.ffn
    ACCX, ACC, CS, ST2 = k.ACCX, k.ACCO, k.CS, k.ST2
    EX = 96
    a(f"v_cmp_eq_u32 vcc, 0, v{VH}")
    vm.wait("stat")
    a(f"v_cvt_pk_bf16_f32 v{EX}, -v{STAT}, -v{STAT}")
    a(f"v_cvt_pk_bf16_f32 v{EX+4}, -v{ST2}, -v{ST2}")
    a(f"v_cndmask_b32 v{EX}, 0, v{EX}, vcc")
    a(f"v_cndmask_b32 v{EX+4}, 0, v{EX+4}, vcc")
    a(f"v_mov_b32 v{EX+1}, v{EX}"); a(f"v_mov_b32 v{EX+5}, v{EX+4}")
    for i in (2, 3, 6, 7): a(f"v_mov_b32 v{EX+i}, 0")
    a("v_mov_b32 v10, 0"); a("v_mov_b32 v11, 0")
    a(f"v_add_f32 v6, v{CS}, v{CS+1}")
    a("v_cvt_pk_bf16_f32 v5, v6, v6")
    a("v_lshlrev_b32 v5, 16, v5")
    a("v_sub_f32 v5, v6, v5")
    a("v_cvt_pk_bf16_f32 v8, v6, v5")
    a("v_and_b32 v6, 0xffff0000, v8")
    a("v_sub_f32 v5, v5, v6")
    a("v_cvt_pk_bf16_f32 v9, v5, 0")
    a(f"v_add_u32 v12, s{W1K}, v{VL16}")
    a("v_add_u32 v12, 0x10000, v12")
    a(f"v_mfma_f32_32x32x16_bf16 {vr(ACCX,16)}, v[8:11], {vr(EX+4,4)}, {vr(ACCX,16)}")
    a(f"v_mfma_f32_32x32x16_bf16 {vr(ACC,16)}, v[8:11], {vr(EX,4)}, {vr(ACC,16)}")
    a(f"v_mul_f32 v6, {f32(QSCALE)}, v{STAT+1}")
    a("v_and_b32 v5, 1, v2")
    a("v_cmp_eq_u32 vcc, 0, v5")
    a("v_xor_b32 v13, 0x400, v12")
    for i in range(4): a(f"v_cndmask_b32 v{MA+i}, 0, v{MA+i}, vcc")
    vm.wait("rk", ("kv", 0))
    for q in range(4): a(f"ds_write_b128 v12, {vr(ACCX+4*q,4)} offset:{q*8192}")
    ffn.argmax1()
    a("s_waitcnt lgkmcnt(0)")
    a("s_barrier")
    for q in range(4): a(f"ds_read_b128 {vr(EX+4*q,4)}, v13 offset:{q*8192}")
    a(f"ds_read_b128 {vr(KA,4)}, v{VL16}")
    a(f"ds_read_b128 {vr(KA+4,4)}, v{VL16} offset:1024")
    a(f"s_add_u32 m0, s{W4K}, 32768")
    a(f"s_add_u32 s{XSO}, s{W4K}, 32768")
    a(f"buffer_load_dwordx4 v{VL16}, {sr(S_KV)}, s{XSO} offen sc1 lds"); vm.add(("kv", 1))
    for q in range(4):
        a(f"s_waitcnt lgkmcnt({5-q})")
        for i in (2*q, 2*q+1): a(f"v_pk_add_f32 {vr(ACC+2*i,2)}, {vr(ACC+2*i,2)}, {vr(EX+2*i,2)}")
        for i in (2*q, 2*q+1): a(f"v_pk_mul_f32 {vr(ACC+2*i,2)}, {vr(ACC+2*i,2)}, v[6:7] op_sel_hi:[1,0]")
        for i in (2*q, 2*q+1): a(f"v_cvt_pk_bf16_f32 v{QF+i}, v{ACC+2*i}, v{ACC+2*i+1}")
    a("s_waitcnt lgkmcnt(0)")
    a(f"v_mfma_f32_32x32x16_bf16 {vr(SA,16)}, {vr(KA,4)}, {vr(QF,4)}, 0")
    a(f"v_mfma_f32_32x32x16_bf16 {vr(SA,16)}, {vr(KA+4,4)}, {vr(QF+4,4)}, {vr(SA,16)}")
    def kvaddr(tile, off):
        p = ((tile >> 3) % 3) * 32768 + (tile & 7) * 4096 + off
        return (f"v{VL16} offset:{p}" if p < 65536 else f"v{VK1} offset:{p - 65536}")
    a(f"ds_read_b128 {vr(KA,4)}, {kvaddr(1, 0)}")
    a(f"ds_read_b128 {vr(KA+4,4)}, {kvaddr(1, 1024)}")
    a(f"ds_read_b128 {vr(VA,4)}, {kvaddr(0, 2048)}")
    a(f"v_add_u32 v{VK1}, 0x10000, v{VL16}")
    for i in range(16): a(f"v_mov_b32 v{OA+i}, 0")
    for i in range(4): a(f"v_mov_b32 v{LS+i}, 0")
    ffn.argmax2()
    a(f"v_max3_f32 v6, v{SA}, v{SA+1}, v{SA+2}")
    a(f"v_max3_f32 v5, v{SA+3}, v{SA+4}, v{SA+5}")
    a(f"v_max3_f32 v6, v6, v{SA+6}, v{SA+7}")
    a(f"v_max3_f32 v5, v5, v{SA+8}, v{SA+9}")
    a(f"v_max3_f32 v6, v6, v{SA+10}, v{SA+11}")
    a(f"v_max3_f32 v5, v5, v{SA+12}, v{SA+13}")
    a(f"v_max3_f32 v6, v6, v{SA+14}, v{SA+15}")
    a("v_max_f32 v6, v6, v5")
    a("v_mov_b32 v5, v6")
    a("v_permlane32_swap_b32 v6, v5")
    a("v_max_f32 v6, v6, v5")
    a(f"v_sub_f32 v{NM}, 0, v6")
    a(f"v_sub_f32 v{NM+1}, 0, v6")
    for i in range(8): a(f"v_pk_add_f32 {vr(SA+2*i,2)}, {vr(SA+2*i,2)}, {vr(NM,2)}")
    for i in range(1, 8): a(f"v_pk_mov_b32 {vr(NM+2*i,2)}, {vr(NM,2)}, {vr(NM,2)}")
    k.stamp("loop_start")
    for T in range(64):
        c, t = T >> 3, T & 7
        S, P = (SA, SB) if T % 2 == 0 else (SB, SA)
        e = lambda i: a(f"v_exp_f32 v{S+i}, v{S+i}")
        a(f"s_setprio {3 - ((T + 1) & 3)}")
        e(0); e(1)
        if T > 0:
            a("s_waitcnt lgkmcnt(3)")
            a(f"v_smfmac_f32_32x32x32_bf16 {vr(OA,16)}, {vr(VA+4,4)}, {vr(P+8,8)}, v{IDXD}")
        a(f"ds_read_b128 {vr(VA+4,4)}, {kvaddr(T, 3072)}")
        e(2); e(3); e(4)
        if T > 0: a(f"v_smfmac_f32_16x16x64_bf16 {vr(LS,4)}, {vr(MA,4)}, {vr(P+8,8)}, v{IDXD}")
        e(5)
        if T < 63:
            a("s_waitcnt lgkmcnt(2)")
            a(f"v_mfma_f32_32x32x16_bf16 {vr(P,16)}, {vr(KA,4)}, {vr(QF,4)}, {vr(NM,16)}")
        e(6); e(7); e(8)
        if T < 63:
            a(f"v_mfma_f32_32x32x16_bf16 {vr(P,16)}, {vr(KA+4,4)}, {vr(QF+4,4)}, {vr(P,16)}")
        if t == 6 and c < 7:
            vm.wait(("kv", c + 1))
            a("s_barrier")
        kc, kp = (c + 2, 0) if t == 7 else (c + 1, t + 1)
        if (t == 7 or t <= 2) and kc <= 7:
            a(f"s_add_u32 m0, s{W4K}, {(kc % 3) * 32768 + kp * 1024}")
            a(f"s_add_u32 s{XSO}, s{W4K}, {kc * 32768 + kp * 1024}")
            a(f"buffer_load_dwordx4 v{VL16}, {sr(S_KV)}, s{XSO} offen sc1 lds"); vm.add(("kv", kc))
        tk = min(T + 2, 63)
        a(f"ds_read_b128 {vr(KA,4)}, {kvaddr(tk, 0)}")
        a(f"ds_read_b128 {vr(KA+4,4)}, {kvaddr(tk, 1024)}")
        e(9); e(10); e(11)
        a("s_waitcnt lgkmcnt(3)")
        a(f"v_smfmac_f32_32x32x32_bf16 {vr(OA,16)}, {vr(VA,4)}, {vr(S,8)}, v{IDXD}")
        a(f"ds_read_b128 {vr(VA,4)}, {kvaddr(min(T + 1, 63), 2048)}")
        e(12); e(13); e(14)
        a(f"v_smfmac_f32_16x16x64_bf16 {vr(LS,4)}, {vr(MA,4)}, {vr(S,8)}, v{IDXD}")
        e(15)
        ffn.tile_end(T)
        k.D.tile_end(T)
    a("s_setprio 0")
    a("s_waitcnt lgkmcnt(0)")
    a(f"v_smfmac_f32_32x32x32_bf16 {vr(OA,16)}, {vr(VA+4,4)}, {vr(SB+8,8)}, v{IDXD}")
    a(f"v_smfmac_f32_16x16x64_bf16 {vr(LS,4)}, {vr(MA,4)}, {vr(SB+8,8)}, v{IDXD}")
    k.stamp("loop_end")

FBASE = 98304
class FFN:
    VGU, VTR, VOD, VTD, XSL, VL4, XST, TMP, XS, WB, DD = 160, 161, 162, 163, 164, 165, 166, 168, 176, 192, 224
    FB, GSO, DSO, YSO, ASO = 66, 67, 94, 95, 65
    def __init__(self, k): self.k, self.a, self.vm = k, k.a, k.vm
    def early(self, part):
        t = self.TMP
        lines = []
        a = lines.append
        a(f"s_add_u32 s{self.FB}, s{W8K}, {FBASE}")
        a(f"v_lshrrev_b32 v{t}, 3, v2")
        a(f"v_mul_u32_u24 v{t}, 7168, v{t}")
        a(f"v_and_b32 v{t+1}, 7, v2")
        a(f"v_lshl_add_u32 v{self.VGU}, v{t+1}, 4, v{t}")
        a(f"v_bfe_u32 v{t}, v2, 2, 2")
        a(f"v_lshrrev_b32 v{t+1}, 4, v2")
        a(f"v_lshl_add_u32 v{t+1}, v{t+1}, 3, v{t}")
        a(f"v_lshlrev_b32 v{t+1}, 7, v{t+1}")
        a(f"v_and_b32 v{t+2}, 3, v2")
        a(f"v_lshl_add_u32 v{t+1}, v{t+2}, 3, v{t+1}")
        a(f"v_add_u32 v{self.VTR}, s{self.FB}, v{t+1}")
        a(f"v_lshrrev_b32 v{t+1}, 4, v2")
        a(f"v_lshlrev_b32 v{t+3}, 2, v{t+1}")
        a(f"v_xor_b32 v{t+3}, v{t+3}, v2")
        a(f"v_and_b32 v{t+3}, 15, v{t+3}")
        a(f"v_lshlrev_b32 v{t+3}, 4, v{t+3}")
        a(f"v_lshl_add_u32 v{t+3}, v{t+1}, 11, v{t+3}")
        a(f"s_lshl_b32 s{T0}, s3, 8")
        a(f"v_add_u32 v{self.VOD}, s{T0}, v{t+3}")
        a(f"v_mul_u32_u24 v{t}, 320, v{t}")
        a(f"v_lshl_add_u32 v{t}, v{VH}, 11, v{t}")
        a(f"v_bfe_u32 v{t+1}, v2, 4, 1")
        a(f"v_lshl_add_u32 v{t}, v{t+1}, 5, v{t}")
        a(f"v_lshl_add_u32 v{t}, v{t+2}, 3, v{t}")
        a(f"v_add_u32 v{self.VTD}, s{self.FB}, v{t}")
        a(f"v_lshlrev_b32 v{self.VL4}, 2, v2")
        a(f"v_and_b32 v{t}, 60, v{self.VL4}")
        a(f"v_mov_b32 v{t+1}, 0")
        a(f"s_and_b32 s{T0}, s{FCG}, 3")
        a(f"s_lshl_b32 s{T0}, s{T0}, 3")
        a(f"s_add_u32 s{T0}, s{T0}, s3")
        a(f"s_lshl_b32 s{SP}, s{T0}, 6")
        a(f"s_mul_i32 s{self.GSO}, s{T0}, {32*7168}")
        a(f"s_lshr_b32 s{T1}, s{FCG}, 2")
        a(f"s_lshl_b32 s{T2}, s{T1}, 7")
        a(f"s_add_u32 s{self.GSO}, s{self.GSO}, s{T2}")
        a(f"s_lshl_b32 s{self.ASO}, s{T1}, 8")
        a(f"s_add_u32 s{self.ASO}, s{self.ASO}, {WS_GU:#x}")
        a(f"s_lshl_b32 s{self.DSO}, s{FCG}, 15")
        a(f"s_and_b32 s{self.YSO}, s2, 7")
        a(f"s_lshl_b32 s{self.YSO}, s{self.YSO}, 12")
        a(f"s_lshl_b32 s{T0}, s3, 9")
        a(f"s_add_u32 s{self.YSO}, s{self.YSO}, s{T0}")
        a(f"s_add_u32 s{self.YSO}, s{self.YSO}, {WS_YACC:#x}")
        a("s_cmp_lt_u32 s2, 224")
        for r in (self.GSO, self.DSO, self.YSO, self.ASO):
            a(f"s_cselect_b32 s{r}, s{r}, 0x40000000")
        srd(a, S_WD, P_WD, 3584 * 2048)
        srd(a, S_OUT, P_OUT, 2048 * 2048)
        cut = [0, 12, 29, len(lines)]
        for x in lines[cut[part]:cut[part+1]]: self.a(x)
    def argmax1(self):
        a, RK = self.a, self.k.RK
        a(f"v_max_u32 v5, v{RK}, v{RK+1}")
        for sh in (8, 4, 2, 1):
            a(f"v_max_u32_dpp v5, v5, v5 row_ror:{sh} row_mask:0xf bank_mask:0xf")
        srd(a, S_W, P_WO, 1024 * 2048)
        for i, s in enumerate((T0, T1, T2, T3)): a(f"v_readlane_b32 s{s}, v5, {16*i}")
    def argmax2(self):
        a, vm = self.a, self.vm
        a(f"s_max_u32 s{T0}, s{T0}, s{T1}")
        a(f"s_max_u32 s{T2}, s{T2}, s{T3}")
        a(f"s_max_u32 s{RKEY}, s{T0}, s{T2}")
        a(f"s_and_b32 s{IDX}, s{RKEY}, 0xffff")
        a(f"s_sub_u32 s{IDX}, 0xffff, s{IDX}")
        a(f"s_and_b32 s{IDX}, s{IDX}, 2047")
    def arrive(self, soff):
        a, t = self.a, self.TMP
        a(f"v_mov_b32 v{t+6}, 1")
        a("s_mov_b64 exec, 1")
        a(f"buffer_atomic_add v{t+6}, v{self.VL4}, {sr(S_WS)}, s{soff} offen sc1"); self.vm.add("arr")
        a("s_mov_b64 exec, -1")
    def tile_end(self, T):
        k, a, vm, t = self.k, self.a, self.vm, self.TMP
        GU_T = [2, 4, 6, 10, 12, 14, 18, 20]
        WD_T = [28, 30, 34, 36]
        if T == 0:
            a(f"s_lshl_b32 s{T0}, s{IDX}, 11")
            a(f"s_add_u32 s{T0}, s{T0}, s{SP}")
            a(f"buffer_load_dword v{self.XSL}, v{t}, {sr(S_X)}, s{T0} offen"); vm.add("xs")
        if T == 1:
            a(f"s_lshl_b32 s{T0}, s{IDX}, 3")
            a(f"s_add_u32 s{T0}, s{T0}, {WS_STAT:#x}")
            a(f"buffer_load_dwordx2 {vr(self.XST,2)}, v{t+1}, {sr(S_WS)}, s{T0} offen sc1"); vm.add("xs")
        if T in GU_T:
            i = GU_T.index(T); mat, j = i >> 2, i & 3
            a(f"s_add_u32 m0, s{self.FB}, {i*1024}")
            a(f"s_add_u32 s{T0}, s{self.GSO}, {j*8*7168}")
            a(f"buffer_load_dwordx4 v{self.VGU}, {sr(S_WU if mat else S_WG)}, s{T0} offen lds"); vm.add("gu")
        if T == 8:
            vm.wait("xs")
            a(f"v_lshlrev_b32 v{t}, 16, v{self.XSL}")
            a(f"v_and_b32 v{t+1}, 0xffff0000, v{self.XSL}")
            a(f"v_sub_f32 v{t}, v{t}, v{self.XST}")
            a(f"v_sub_f32 v{t+1}, v{t+1}, v{self.XST}")
            a(f"v_cvt_pk_bf16_f32 v{t+2}, v{t}, v{t+1}")
            a(f"v_lshlrev_b32 v{t}, 16, v{t+2}")
            a(f"v_and_b32 v{t+1}, 0xffff0000, v{t+2}")
            a(f"v_mul_f32 v{t}, v{t}, v{self.XST+1}")
            a(f"v_mul_f32 v{t+1}, v{t+1}, v{self.XST+1}")
            a(f"v_cvt_pk_bf16_f32 v{t+2}, v{t}, v{t+1}")
            a(f"v_and_b32 v{t+3}, 0x30, v2")
            for j in range(4):
                a(f"ds_bpermute_b32 v{self.XS+j}, v{t+3}, v{t+2} offset:{4*j}")
        if T in (25, 26):
            if T == 25: vm.wait("gu")
            m = T - 25
            for ct in range(4):
                for u in range(2):
                    a(f"ds_read_b64_tr_b16 {vr(self.WB+16*m+4*ct+2*u,2)}, v{self.VTR} offset:{m*4096 + u*512 + ct*32}")
        if T in (26, 27):
            m = T - 26
            for ct in range(4):
                a(f"v_mfma_f32_16x16x32_bf16 {vr(self.DD+16*m+4*ct,4)}, {vr(self.XS,4)}, {vr(self.WB+16*m+4*ct,4)}, 0")
        if T == 28:
            for ct in range(1, 4):
                for m in range(2):
                    D = self.DD + 16*m
                    a(f"v_mov_b32_dpp v{D}, v{D+4*ct} quad_perm:[0,1,2,3] row_mask:{1 << ct:#x} bank_mask:0xf")
            a(f"s_add_u32 s{T0}, s{self.ASO}, {3584*4}")
            a(f"buffer_atomic_add_f32 v{self.DD}, v{self.VL4}, {sr(S_WS)}, s{self.ASO} offen"); vm.add("at1")
            a(f"buffer_atomic_add_f32 v{self.DD+16}, v{self.VL4}, {sr(S_WS)}, s{T0} offen"); vm.add("at1")
        if T in WD_T:
            j = WD_T.index(T)
            a(f"s_add_u32 m0, s{self.FB}, {j*1024}")
            a(f"s_add_u32 s{T0}, s{self.DSO}, {j*8192}")
            a(f"buffer_load_dwordx4 v{self.VOD}, {sr(S_WD)}, s{T0} offen lds"); vm.add("wd")
        if T == 35:
            vm.wait("at1")
            a(f"s_lshr_b32 s{self.GSO}, s{FCG}, 2")
            a(f"s_lshl_b32 s{self.GSO}, s{self.GSO}, 7")
            a(f"s_add_u32 s{self.GSO}, s{self.GSO}, {SY4:#x}")
            a("s_cmp_lt_u32 s2, 224")
            a(f"s_cselect_b32 s{self.GSO}, s{self.GSO}, 0x40000000")
            self.arrive(self.GSO)
        G = self.DD
        W0F = f"s_cmp_lt_u32 s{CNT}, 224"
        if T == 40:
            a(f"s_lshl_b32 s{CNT}, s3, 8")
            a(f"s_add_u32 s{CNT}, s{CNT}, s2")
            a(f"v_mov_b32 v{t}, 0")
            k.only(W0F, lambda: a(f"buffer_load_dword v{t+1}, v{t}, {sr(S_WS)}, s{self.GSO} offen sc1"))
            vm.mark("p4")
        if T == 42:
            def p2():
                a(f"s_waitcnt vmcnt({vm.since('p4')})")
                k.poll(t, t + 1, self.GSO, 32, cnt=T3)
                a(f"v_and_b32 v{t}, 60, v{self.VL4}")
                a(f"v_bfe_u32 v{t+1}, v2, 4, 1")
                a(f"v_mul_u32_u24 v{t+1}, {3584*4}, v{t+1}")
                a(f"v_add_u32 v{t+1}, v{t+1}, v{t}")
                a(f"s_lshl_b32 s{T0}, s{FCG}, 6")
                a(f"s_add_u32 s{T0}, s{T0}, {WS_GU:#x}")
                a(f"buffer_load_dword v{G}, v{t+1}, {sr(S_WS)}, s{T0} offen sc1")
            k.only(W0F, p2)
            vm.mark("gl")
        if T == 45:
            def hh():
                a(f"s_waitcnt vmcnt({vm.since('gl')})")
                bf16r(a, G, G)
                a(f"v_mov_b32 v{G+1}, v{G}")
                a(f"v_permlane16_swap_b32 v{G}, v{G+1}")
                a(f"v_mul_f32 v{G+2}, {f32(-LOG2E)}, v{G}")
                a(f"v_exp_f32 v{G+2}, v{G+2}")
                a(f"v_add_f32 v{G+2}, 1.0, v{G+2}")
                a(f"v_rcp_f32 v{G+2}, v{G+2}")
                a(f"v_mul_f32 v{G}, v{G}, v{G+2}")
                bf16r(a, G, G)
                a(f"v_mul_f32 v{G}, v{G}, v{G+1}")
                a(f"v_cvt_pk_bf16_f32 v{G}, v{G}, v{G}")
                a(f"v_lshrrev_b32 v{t}, 1, v{t}")
                a(f"v_add_u32 v{t}, {FBASE + 4096}, v{t}")
                a(f"ds_write_b16 v{t}, v{G}")
                a("s_waitcnt lgkmcnt(0)")
            k.only(W0F, hh)
        HF, WD, DD = 168, 176, 192
        if T == 47:
            vm.wait("wd")
            a(f"v_lshlrev_b32 v{t+4}, 4, v{VH}")
            a(f"v_add_u32 v{t+4}, {FBASE + 4096}, v{t+4}")
            a(f"ds_read_b128 {vr(HF,4)}, v{t+4}")
            for j in range(4):
                if j: a(f"v_xor_b32 v{t+4+j}, {64*j}, v{self.VTD}")
                ad = (t + 4 + j) if j else self.VTD
                for u in range(2):
                    a(f"ds_read_b64_tr_b16 {vr(WD+4*j+2*u,2)}, v{ad} offset:{u*1024}")
        if T in (48, 49):
            for j in (2*(T-48), 2*(T-48)+1):
                a(f"v_mfma_f32_32x32x16_bf16 {vr(DD+16*j,16)}, {vr(HF,4)}, {vr(WD+4*j,4)}, 0")
        if T == 50:
            a(f"v_mov_b32_dpp v{DD}, v{DD+16} quad_perm:[0,1,2,3] row_mask:0xc bank_mask:0xf")
            a(f"v_mov_b32_dpp v{DD+32}, v{DD+48} quad_perm:[0,1,2,3] row_mask:0xc bank_mask:0xf")
            a(f"buffer_atomic_add_f32 v{DD}, v{self.VL4}, {sr(S_WS)}, s{self.YSO} offen"); vm.add("at")
            a(f"buffer_atomic_add_f32 v{DD+32}, v{self.VL4}, {sr(S_WS)}, s{self.YSO} offen offset:256"); vm.add("at")
        if T == 58:
            vm.wait("at")
            a(f"s_lshr_b32 s{T0}, s2, 3")
            a(f"s_lshl_b32 s{T0}, s{T0}, 7")
            a(f"s_add_u32 s{T0}, s{T0}, {SY3:#x}")
            self.arrive(T0)

class PhaseD:
    XR, ST, VXO = 8, 30, 16
    VOF, VWD = 24, (17, 18, 1)
    XFL, G, XF, ACCO, ACCX, WREG = 32, 48, 64, 96, 112, 128
    def __init__(self, k):
        self.k, self.a, self.vm = k, k.a, k.vm
        def rot(c, shift, extra, base):
            return f"""s_add_u32 s{TD}, s{ROT}, {c}
            s_and_b32 s{TD}, s{TD}, 15
            s_lshl_b32 s{TD}, s{TD}, {shift}
            s_add_u32 s{TD}, s{TD}, s{base}""" + (f"\ns_add_u32 s{TD}, s{TD}, {extra}" if extra else "")
        def ldw(n): return lambda p: f"s_add_u32 m0, s{W1K}, {p*8192}\n" + rot(n >> 1, 17, (n & 1) * 16 * 2048, SEL) + f"\nbuffer_load_dwordx4 v{VOW}, {sr(S_W)}, s{TD} offen lds"
        def ldo(c): return lambda p: f"s_add_u32 m0, s{W1K}, {p*8192}\n" + rot(c, 12, 0, OBASE) + f"\nbuffer_load_dwordx4 v{VL16}, {sr(S_WS)}, s{TD} offen sc1 lds"
        seq = [(("w", n), ldw(n), None, list(range(19, -1, -1))) for n in range(24)]
        seq += [(("o", c), ldo(c), None, list(range(16))) for c in range(16)]
        seq += [(("w", n), ldw(n), None, [16, 17, 18, 19]) for n in range(24, 32)]
        self.pg = Pager(k, range(8, 20), seq)
    def tile_end(self, T):
        k, a, vm = self.k, self.a, self.vm
        if T == 44:
            a(f"s_lshr_b32 s{T0}, s2, 3")
            a(f"s_lshl_b32 s{T0}, s{T0}, 16")
            a(f"v_lshlrev_b32 v{self.VXO}, 7, v0")
            a(f"buffer_load_dword v{self.XR}, v{self.VXO}, {sr(S_W)}, s{T0} offen"); vm.add("pf")
        if T == 51:
            a(f"v_lshlrev_b32 v{self.VXO}, 11, v{VN}")
            a(f"v_lshl_add_u32 v{self.VXO}, v{VH}, 5, v{self.VXO}")
            a(f"s_lshl_b32 s{T1}, s{RB2}, 1")
            a(f"s_add_u32 s{T1}, s{T1}, s{RT}")
            a(f"s_lshl_b32 s{XO2}, s{T1}, 16")
            a(f"s_lshl_b32 s{SEL}, s{CB2}, 8")
            a(f"s_add_u32 s{XO2}, s{XO2}, s{SEL}")
            a(f"s_lshl_b32 s{T0}, s{HD}, 6")
            a(f"s_add_u32 s{XO2}, s{XO2}, s{T0}")
            a(f"buffer_load_dwordx4 {vr(self.XR,4)}, v{self.VXO}, {sr(S_X)}, s{XO2} offen"); vm.add("x2")
            a(f"s_lshl_b32 s{ROT}, s{CB2}, 1")
            a(f"s_lshr_b32 s{T0}, s{IDX}, 5")
            a(f"s_cmp_eq_u32 s{T0}, s{T1}")
            a(f"s_cselect_b32 s{MODE}, 1, 0")
        if T == 52:
            a(f"s_lshl_b32 s{T1}, s{RB2}, 1")
            a(f"s_add_u32 s{T1}, s{T1}, s{RT}")
            a(f"s_lshl_b32 s{T0}, s{T1}, 8")
            a(f"s_add_u32 s{T0}, s{T0}, {WS_STAT:#x}")
            a(f"v_lshlrev_b32 v5, 3, v{VN}")
            a(f"buffer_load_dwordx2 {vr(self.ST,2)}, v5, {sr(S_WS)}, s{T0} offen sc1"); vm.add("x2")
        if T == 53:
            a(f"buffer_load_dwordx4 {vr(self.XR+4,4)}, v{self.VXO}, {sr(S_X)}, s{XO2} offen offset:16"); vm.add("x2")
            a(f"s_lshl_b32 s{T0}, s{ROWT}, 5")
            a(f"s_lshl_b32 s{T1}, s{HB}, 2")
            a(f"s_add_u32 s{T0}, s{T0}, s{T1}")
            a(f"s_add_u32 s{T0}, s{T0}, s{HD}")
            a(f"s_lshl_b32 s{T0}, s{T0}, 11")
            a(f"s_add_u32 s{OSO}, s{T0}, {WS_OF:#x}")
        if 54 <= T <= 61:
            for g in self.pg.take(2 if T < 58 else 1): self.pg.issue(g)
    def run(self):
        k, a, vm, lg, pg = self.k, self.a, self.vm, self.k.lg, self.pg
        XR, ST, VXO, VOF, VWD, XFL, G, XF, ACCO, ACCX, WREG = (self.XR, self.ST, self.VXO, self.VOF, self.VWD, self.XFL,
                                                              self.G, self.XF, self.ACCO, self.ACCX, self.WREG)
        a("v_bfe_u32 v5, v2, 2, 2")
        a(f"v_lshl_add_u32 v6, v{VH}, 2, v5")
        a("v_lshlrev_b32 v6, 6, v6")
        a("v_and_b32 v5, 1, v2")
        a("v_lshl_add_u32 v6, v5, 5, v6")
        a("v_bfe_u32 v5, v2, 4, 1")
        a("v_lshl_add_u32 v6, v5, 4, v6")
        a("v_bfe_u32 v5, v2, 1, 1")
        a("v_lshl_add_u32 v6, v5, 3, v6")
        a(f"v_add_u32 v{VWD[0]}, s{W1K}, v6")
        a(f"v_add_u32 v{VWD[1]}, 0x10000, v{VWD[0]}")
        a(f"v_add_u32 v{VWD[2]}, 0x20000, v{VWD[0]}")
        a(f"v_mov_b32 v6, {f32(2.0**64)}")
        for i in range(4): a(f"v_pk_add_f32 {vr(SA+2*i,2)}, {vr(OA+4*i,2)}, {vr(OA+4*i+2,2)}")
        a(f"v_pk_add_f32 {vr(SA,2)}, {vr(SA,2)}, {vr(SA+2,2)}")
        a(f"v_pk_add_f32 {vr(SA+4,2)}, {vr(SA+4,2)}, {vr(SA+6,2)}")
        a(f"v_pk_add_f32 {vr(SA,2)}, {vr(SA,2)}, {vr(SA+4,2)}")
        a(f"v_add_f32 v5, v{SA}, v{SA+1}")
        a(f"v_fma_f32 v5, v5, 0, v{LS}")
        a("v_cmp_nlt_f32 vcc, v5, v6")
        a("s_nop 1")
        if "forcefb" in VAR: a("s_branch L_fallback")
        a("s_cbranch_vccnz L_fallback")
        a.label("L_fin")
        a(f"v_rcp_f32 v6, v{LS}")
        for i in range(8): a(f"v_pk_mul_f32 {vr(OA+2*i,2)}, {vr(OA+2*i,2)}, v[6:7] op_sel_hi:[1,0]")
        for i in range(8): a(f"v_cvt_pk_bf16_f32 v{SA+i}, v{OA+2*i}, v{OA+2*i+1}")
        a(f"buffer_store_dwordx4 {vr(SA,4)}, v{VL16}, {sr(S_WS)}, s{OSO} offen sc1"); vm.add("ost")
        a(f"buffer_store_dwordx4 {vr(SA+4,4)}, v{VL16}, {sr(S_WS)}, s{OSO} offen offset:1024 sc1"); vm.add("ost")
        def wread(n):
            vm.wait(("w", n))
            p = pg.page[("w", n)]
            for u in range(2):
                k.ds(f"ds_read_b64_tr_b16 {vr(WREG+4*n+2*u,2)}, v{VWD[p >> 3]} offset:{(p & 7)*8192 + 8*u*64}", ("wr", n))
        def wfree(n):
            lg.wait(("wr", n)); pg.free.append(pg.page[("w", n)])
        def xn_ops(src, lo, hi, g0, g1, m, ri):
            return [f"v_lshlrev_b32 v{lo}, 16, v{src}", f"v_and_b32 v{hi}, 0xffff0000, v{src}",
                    f"v_sub_f32 v{g0}, v{lo}, v{m}", f"v_sub_f32 v{g1}, v{hi}, v{m}",
                    f"v_cvt_pk_bf16_f32 v6, v{g0}, v{g1}",
                    f"v_lshlrev_b32 v{g0}, 16, v6", f"v_and_b32 v{g1}, 0xffff0000, v6",
                    f"v_mul_f32 v{g0}, v{g0}, v{ri}", f"v_mul_f32 v{g1}, v{g1}, v{ri}",
                    f"v_cvt_pk_bf16_f32 v6, v{g0}, v{g1}",
                    f"v_lshlrev_b32 v{g0}, 16, v6", f"v_and_b32 v{g1}, 0xffff0000, v6"]
        def silu_ops(g0, g1):
            return [f"v_mul_f32 v6, {f32(-LOG2E)}, v{g0}", f"v_mul_f32 v7, {f32(-LOG2E)}, v{g1}",
                    "v_exp_f32 v6, v6", "v_exp_f32 v7, v7",
                    "v_add_f32 v6, 1.0, v6", "v_add_f32 v7, 1.0, v7",
                    "v_rcp_f32 v6, v6", "v_rcp_f32 v7, v7",
                    f"v_mul_f32 v{g0}, v{g0}, v6", f"v_mul_f32 v{g1}, v{g1}, v7",
                    f"v_cvt_pk_bf16_f32 v6, v{g0}, v{g1}",
                    f"v_lshlrev_b32 v{g0}, 16, v6", f"v_and_b32 v{g1}, 0xffff0000, v6"]
        gate = []
        for p in range(8): gate += xn_ops(XR+p, XFL+2*p, XFL+2*p+1, G+2*p, G+2*p+1, ST, ST+1)
        for p in range(8): gate += silu_ops(G+2*p, G+2*p+1)
        def gops(n):
            for _ in range(min(n, len(gate))): a(gate.pop(0))
        for n in range(12): wread(n)
        for n in range(4):
            wfree(n)
            for g in pg.take(1): pg.issue(g)
        vm.wait("ost")
        a("s_barrier")
        def arr():
            a(f"s_lshl_b32 s{T0}, s{RB}, 7")
            a(f"s_add_u32 s{T0}, s{T0}, {SY2:#x}")
            a("v_mov_b32 v5, 1")
            a("v_mov_b32 v6, 0")
            a("s_mov_b64 exec, 1")
            a(f"buffer_atomic_add v5, v6, {sr(S_WS)}, s{T0} offen sc1")
            a("s_mov_b64 exec, -1")
        k.only("s_cmp_eq_u32 s3, 0", arr)
        k.stamp("E1")
        for n in range(4, 12): wfree(n)
        PV = XF
        a(f"v_mov_b32 v{PV}, 0")
        a(f"s_lshl_b32 s{T3}, s{RB2}, 7")
        a(f"s_add_u32 s{T3}, s{T3}, {SY2:#x}")
        nxt = 12
        for i, g in enumerate(pg.take(16, stop=("o", 0))):
            pg.issue(g); gops(8)
            if i >= 2: wread(nxt); nxt += 1
            if i == D_POLL:
                k.only("s_cmp_eq_u32 s3, 7", lambda: a(f"buffer_load_dword v{PV+1}, v{PV}, {sr(S_WS)}, s{T3} offen sc1"))
        a(f"s_lshl_b32 s{OBASE}, s{RB2}, 1")
        a(f"s_lshr_b32 s{T0}, s3, 2")
        a(f"s_add_u32 s{OBASE}, s{OBASE}, s{T0}")
        a(f"s_lshl_b32 s{OBASE}, s{OBASE}, 16")
        a(f"s_and_b32 s{T0}, s3, 3")
        a(f"s_lshl_b32 s{T0}, s{T0}, 10")
        a(f"s_add_u32 s{OBASE}, s{OBASE}, s{T0}")
        a(f"s_add_u32 s{OBASE}, s{OBASE}, {WS_OF:#x}")
        a(f"s_mul_i32 s{T0}, s{RT}, {4096 + 2048}")
        a(f"v_add_u32 v{VOF}, s{T0}, v{VL16}")
        a(f"v_xor_b32 v{VOF+1}, 0x1000, v{VOF}")
        a(f"v_add_u32 v{VOF+2}, 0x10000, v{VOF}")
        a(f"v_add_u32 v{VOF+3}, 0x10000, v{VOF+1}")
        while nxt < 24:
            wread(nxt); nxt += 1; gops(6)
        lg.wait_all()
        k.only("s_cmp_eq_u32 s3, 7", lambda: k.poll(PV, PV + 1, T3, 8))
        a("s_barrier")
        k.stamp("E2")
        pg.free = list(range(20))
        OWN = f"s_cmp_eq_u32 s{MODE}, 1"
        YA, YD = 28, 29
        a(f"v_lshlrev_b32 v{YA}, 7, v{VN}")
        a(f"s_mov_b32 s{T3}, {SY3:#x}")
        od = pg.take(20)
        for g in od[:6]:
            pg.issue(g); gops(8)
        k.only(OWN, lambda: a(f"buffer_load_dword v{YD}, v{YA}, {sr(S_WS)}, s{T3} offen sc1"))
        od = od[6:]
        gops(1000)
        Y, X4, XN, YS, YB = WREG, WREG + 4, WREG + 8, WREG + 12, WREG + 16
        def y_load():
            k.poll(YA, YD, T3, 64)
            a(f"v_lshrrev_b32 v{YA}, 3, v2")
            a(f"v_lshlrev_b32 v{YA}, 12, v{YA}")
            a(f"v_and_b32 v{YD}, 7, v2")
            a(f"v_lshl_add_u32 v{YA}, v{YD}, 4, v{YA}")
            a(f"s_lshl_b32 s{T0}, s{CB2}, 9")
            a(f"s_lshl_b32 s{T1}, s{HD}, 7")
            a(f"s_add_u32 s{T0}, s{T0}, s{T1}")
            a(f"s_add_u32 s{T1}, s{T0}, {WS_YACC:#x}")
            a(f"buffer_load_dwordx4 {vr(Y,4)}, v{YA}, {sr(S_WS)}, s{T1} offen sc1")
            a(f"s_lshr_b32 s{T0}, s{T0}, 1")
            a(f"s_lshl_b32 s{T1}, s{IDX}, 11")
            a(f"s_add_u32 s{T0}, s{T0}, s{T1}")
            a(f"v_lshlrev_b32 v{YD}, 3, v{YD}")
            a(f"buffer_load_dwordx2 {vr(X4,2)}, v{YD}, {sr(S_X)}, s{T0} offen")
            a(f"s_lshl_b32 s{T0}, s{IDX}, 3")
            a(f"s_add_u32 s{T0}, s{T0}, {WS_STAT:#x}")
            a(f"v_mov_b32 v{YD}, 0")
            a(f"buffer_load_dwordx2 {vr(YS,2)}, v{YD}, {sr(S_WS)}, s{T0} offen sc1")
            a(f"s_and_b32 s{T1}, s{RKEY}, 0xffff0000")
            a(f"s_xor_b32 s{T2}, s{T1}, 0x80000000")
            a(f"s_xor_b32 s{T0}, s{T1}, 0xffff0000")
            a(f"s_bitcmp1_b32 s{T1}, 31")
            a(f"s_cselect_b32 s{T1}, s{T2}, s{T0}")
            a(f"v_mov_b32 v{YA}, s{T1}")
            a(f"v_mul_f32 v{YA}, {f32(-LOG2E)}, v{YA}")
            a(f"v_exp_f32 v{YA}, v{YA}")
            a(f"v_add_f32 v{YA}, 1.0, v{YA}")
            a(f"v_rcp_f32 v{YA}, v{YA}")
            bf16r(a, YA, YA)
        def y_sum():
            a("s_waitcnt vmcnt(0)")
            for e in range(4): a(f"v_add_f32_dpp v{Y+e}, v{Y+e}, v{Y+e} row_ror:8 row_mask:0xf bank_mask:0xf")
            for sw in ("v_permlane16_swap_b32", "v_permlane32_swap_b32"):
                for e in range(4): a(f"v_mov_b32 v{XN+e}, v{Y+e}")
                for e in range(4): a(f"{sw} v{Y+e}, v{XN+e}")
                for e in range(4): a(f"v_add_f32 v{Y+e}, v{Y+e}, v{XN+e}")
        def y_scale():
            for e in range(4):
                bf16r(a, Y+e, Y+e)
                a(f"v_mul_f32 v{Y+e}, v{Y+e}, v{YA}")
                bf16r(a, Y+e, Y+e)
        def y_xn():
            for p in range(2):
                for x in xn_ops(X4+p, YB, YB+1, XN+2*p, XN+2*p+1, YS, YS+1): a(x)
        def y_add():
            for e in range(4):
                a(f"v_add_f32 v{XN+e}, v{XN+e}, v{Y+e}")
                bf16r(a, XN+e, XN+e)
            for x in silu_ops(XN, XN+1): a(x)
        def y_perm():
            for x in silu_ops(XN+2, XN+3): a(x)
            a(f"v_lshlrev_b32 v{YD}, 4, v{VH}")
            for q in range(4):
                for e in range(4): a(f"ds_bpermute_b32 v{YB+4*q+e}, v{YD}, v{XN+e} offset:{4*q}")
        def y_put():
            a("s_waitcnt lgkmcnt(0)")
            a(f"s_and_b32 s{T1}, s{IDX}, 31")
            a(f"v_cmp_eq_u32 vcc, s{T1}, v{VN}")
            for i in range(16): a(f"v_cndmask_b32 v{G+i}, v{G+i}, v{YB+i}, vcc")
        ysteps = {5: y_load, 8: y_sum, 9: y_scale, 10: y_xn, 11: y_add, 12: y_perm}
        avail = {0: 2, 2: 4, 4: 8, 8: 12, 12: 16}
        def rd(c):
            if c in avail:
                vm.wait(*[("o", i) for i in range(avail[c])])
                a("s_barrier")
            p = pg.page[("o", c)]
            for e in range(2):
                for t in range(2):
                    k.ds(f"ds_read_b128 {vr(XF+16*(c&1)+4*(2*t+e),4)}, v{VOF + 2*(p >> 3) + t} offset:{(p & 7)*8192 + e*1024}", ("d", c, e))
        rd(0); k.stamp("D0"); rd(1)
        def mf(c, e, t):
            acc = ACCX if t else ACCO
            cc = "0" if (c == 0 and e == 0) else vr(acc, 16)
            a(f"v_mfma_f32_32x32x16_bf16 {vr(acc,16)}, {vr(WREG+4*(2*c+e),4)}, {vr(XF+16*(c&1)+4*(2*t+e),4)}, {cc}")
        for c in range(14):
            for e in range(2):
                lg.wait(("d", c, e), ("wr", 2*c+e))
                mf(c, e, 0); mf(c, e, 1)
                if od: pg.issue(od.pop(0))
            rd(c + 2)
            if c == 8:
                for n in range(24, 28): wread(n)
            if c == 9:
                for n in range(24, 28): wfree(n)
                od = pg.take(4)
            if c == 12:
                for n in range(28, 32): wread(n)
            if c in ysteps: k.only(OWN, ysteps[c])
        lg.wait_all()
        a(f"v_add_u32 v5, s{W1K}, v{VL16}")
        for c in (14, 15):
            for e in range(2): mf(c, e, 1)
        a("v_add_u32 v5, 0x20000, v5")
        k.only(OWN, y_put)
        a("v_xor_b32 v6, 0x400, v5")
        mf(14, 0, 0); mf(14, 1, 0); mf(15, 0, 0)
        a("s_nop 6")
        for q in range(4): a(f"ds_write_b128 v5, {vr(ACCX+4*q,4)} offset:{q*8192}")
        mf(15, 1, 0)
        k.stamp("D_end")
        a("s_waitcnt lgkmcnt(0)")
        a("s_barrier")
        for q in range(4): a(f"ds_read_b128 {vr(XF+4*q,4)}, v6 offset:{q*8192}")
        for q in range(4):
            a(f"s_waitcnt lgkmcnt({3-q})")
            for i in (2*q, 2*q+1): a(f"v_pk_add_f32 {vr(ACCO+2*i,2)}, {vr(ACCO+2*i,2)}, {vr(XF+2*i,2)}")
            for i in (2*q, 2*q+1): a(f"v_pk_fma_f32 {vr(ACCO+2*i,2)}, {vr(ACCO+2*i,2)}, {vr(G+2*i,2)}, {vr(XFL+2*i,2)}")
            for i in (2*q, 2*q+1): a(f"v_cvt_pk_bf16_f32 v{XR+i}, v{ACCO+2*i}, v{ACCO+2*i+1}")
            if q == 1: a(f"buffer_store_dwordx4 {vr(XR,4)}, v{VXO}, {sr(S_OUT)}, s{XO2} offen" + OUTF)
        a(f"buffer_store_dwordx4 {vr(XR+4,4)}, v{VXO}, {sr(S_OUT)}, s{XO2} offen offset:16" + OUTF)
        k.stamp("end")

def fallback(k):
    a = k.a
    a.label("L_fallback")
    a.flush()
    a("v_mov_b32 v6, 0xff800000")
    a(f"s_mov_b32 s{T0}, 0")
    a.label("L_fb1")
    a(f"buffer_load_dwordx4 {vr(KA,4)}, v{VL16}, {sr(S_KV)}, s{T0} offen sc1")
    a(f"buffer_load_dwordx4 {vr(KA+4,4)}, v{VL16}, {sr(S_KV)}, s{T0} offen offset:1024 sc1")
    a("s_waitcnt vmcnt(0)")
    a(f"v_mfma_f32_32x32x16_bf16 {vr(SA,16)}, {vr(KA,4)}, {vr(QF,4)}, 0")
    a(f"v_mfma_f32_32x32x16_bf16 {vr(SA,16)}, {vr(KA+4,4)}, {vr(QF+4,4)}, {vr(SA,16)}")
    for i in range(0, 16, 2): a(f"v_max3_f32 v6, v6, v{SA+i}, v{SA+i+1}")
    a(f"s_add_u32 s{T0}, s{T0}, 4096")
    a(f"s_cmp_lt_u32 s{T0}, 0x40000")
    a("s_cbranch_scc1 L_fb1")
    a("v_mov_b32 v5, v6")
    a("v_permlane32_swap_b32 v6, v5")
    a("v_max_f32 v6, v6, v5")
    for i in range(16): a(f"v_sub_f32 v{NM+i}, 0, v6")
    for i in range(16): a(f"v_mov_b32 v{OA+i}, 0")
    for i in range(4): a(f"v_mov_b32 v{LS+i}, 0")
    a(f"s_mov_b32 s{T0}, 0")
    a.label("L_fb2")
    a(f"buffer_load_dwordx4 {vr(KA,4)}, v{VL16}, {sr(S_KV)}, s{T0} offen sc1")
    a(f"buffer_load_dwordx4 {vr(KA+4,4)}, v{VL16}, {sr(S_KV)}, s{T0} offen offset:1024 sc1")
    a(f"buffer_load_dwordx4 {vr(VA,4)}, v{VL16}, {sr(S_KV)}, s{T0} offen offset:2048 sc1")
    a(f"buffer_load_dwordx4 {vr(VA+4,4)}, v{VL16}, {sr(S_KV)}, s{T0} offen offset:3072 sc1")
    a("s_waitcnt vmcnt(0)")
    a(f"v_mfma_f32_32x32x16_bf16 {vr(SA,16)}, {vr(KA,4)}, {vr(QF,4)}, {vr(NM,16)}")
    a(f"v_mfma_f32_32x32x16_bf16 {vr(SA,16)}, {vr(KA+4,4)}, {vr(QF+4,4)}, {vr(SA,16)}")
    for i in range(16): a(f"v_exp_f32 v{SA+i}, v{SA+i}")
    a(f"v_smfmac_f32_32x32x32_bf16 {vr(OA,16)}, {vr(VA,4)}, {vr(SA,8)}, v{IDXD}")
    a(f"v_smfmac_f32_16x16x64_bf16 {vr(LS,4)}, {vr(MA,4)}, {vr(SA,8)}, v{IDXD}")
    a(f"v_smfmac_f32_32x32x32_bf16 {vr(OA,16)}, {vr(VA+4,4)}, {vr(SA+8,8)}, v{IDXD}")
    a(f"v_smfmac_f32_16x16x64_bf16 {vr(LS,4)}, {vr(MA,4)}, {vr(SA+8,8)}, v{IDXD}")
    a(f"s_add_u32 s{T0}, s{T0}, 4096")
    a(f"s_cmp_lt_u32 s{T0}, 0x40000")
    a("s_nop 7")
    a("s_cbranch_scc1 L_fb2")
    a.flush()
    a("s_branch L_fin")
    a.label("L_code_end")

def build(path):
    k = K()
    k.ffn = FFN(k); k.D = PhaseD(k)
    prologue(k); phaseAB(k); attention(k); k.D.run()
    k.a.label("L_end"); k.a("s_endpgm")
    fallback(k)
    top = open("cdna_kernels/" + NAME + ".s.ref").read().split("; Override launch geometry")[0]
    if STAMPS: top += "; stamps: " + " ".join(STAMP_NAMES) + "\n"
    top += "; @launch grid=(256,1,1) block=(512,1,1) lds=163840\n"
    top += '.amdgcn_target "amdgcn-amd-amdhsa--gfx950"\n.text\n'
    top += f".set CODE_BYTES, L_code_end - {KN} - 64\n"
    kd = f""".section .rodata,"a"
.p2align 6
.amdhsa_kernel {KN}
  .amdhsa_next_free_vgpr 256
  .amdhsa_next_free_sgpr 102
  .amdhsa_accum_offset 256
  .amdhsa_group_segment_fixed_size 0
  .amdhsa_kernarg_size 104
  .amdhsa_user_sgpr_count 2
  .amdhsa_user_sgpr_kernarg_segment_ptr 1
  .amdhsa_system_sgpr_workgroup_id_x 1
.end_amdhsa_kernel
"""
    open(path, "w").write(top + k.a.text() + kd)
    return k

if __name__ == "__main__":
    out = sys.argv[1] if len(sys.argv) > 1 else "cdna_kernels/" + NAME + ".s"
    if len(sys.argv) > 2 and sys.argv[2] == "stamps": STAMPS = True
    VAR.update(sys.argv[3:])
    for v in VAR:
        if v.startswith('init'): N_INIT = int(v[4:])
        if v.startswith('wt'): WT_IT, WT_POS = [int(x) for x in v[2:].split('_')]
        if v.startswith('chk'): CHK, PI = [int(x) for x in v[3:].split('_')]
        if v.startswith('dp'): D_POLL = int(v[2:])
        if v.startswith('al'): ALIGN = int(v[2:])
        if v.startswith('out'): OUTF = ' ' + v[3:].replace('_', ' ')
    k = build(out)
    if "-v" in VAR:
        for l in k.a.log: print("nop", l)
        for l in k.pgAB.log: print("AB", l)
        for l in k.D.pg.log: print("D", l)
```

```python
import sys, struct
from asmlib import Asm

NAME = "recurrent_scan__grouped_kv_mqa__moe_arch_mod__prompt"
KN = NAME + "_kernel"
WS_KV, WS_STAT, WS_RKEY, WS_SY, WS_YACC, WS_GU, WS_STAMP, WS_OF = 0x0, 0x40000, 0x46000, 0x48000, 0x50000, 0x58000, 0x80000, 0x100000
WS_SIZE = 0x500000
SY1, SY2, SY3, SY4 = 0x60000, WS_SY + 32 * 128, WS_SY + 64 * 128, WS_SY + 128 * 128
ONES = 0x3F803F80
LOG2E = 1.4426950408889634
QSCALE = 0.17677669529663687 * LOG2E
def f32(x): return "0x%08x" % struct.unpack("<I", struct.pack("<f", x))[0]
STAMPS = False
VAR = set()
SPIN_MAX = 200000
N_INIT = 9
CHK, PI = 11, 9
D_POLL = 4
WT_IT, WT_POS = 3, 2
ALIGN = 0
PADTO, PADAT = 0, 'end'
NW1, R2C, NW0 = 4, 0, 0
OUTF = ''

S_X, S_W, S_KW, S_WS, S_KV, S_WR, S_WG, S_WU = 4, 8, 12, 16, 20, 24, 28, 32
S_OUT, S_WD = S_WR, S_KW
RB, HB, ROT, T0, T1, T2, T3 = 36, 37, 38, 39, 40, 41, 42
W1K, MODE, W4K, XSO, TD, SP, RT, HD, ROWT, RG = 43, 44, 45, 46, 47, 48, 49, 50, 51, 52
SEL, IDX, RKEY, FCG, RB2, CB2, OSO, XO2, CNT, OBASE = 53, 54, 55, 56, 57, 58, 59, 60, 61, 62
W8K, EXS, FW = 63, 64, 66
PT = 68
P_X, P_WQ, P_WK, P_WV, P_WO, P_BX, P_WR, P_WG, P_WU, P_WD, P_OUT, P_DBG, P_WS = [PT + 2 * i for i in range(13)]
STMP = 96
def sr(b): return f"s[{b}:{b+3}]"
def vr(b, n): return f"v[{b}:{b+n-1}]"

VN, VH, VOX, VOW, VL16, VST = 3, 4, 18, 19, 20, 21
MA, IDXC, IDXD, STAT = 24, 28, 29, 30

def srd(a, d, base, nbytes):
    a(f"s_mov_b32 s{d}, s{base}")
    a(f"s_and_b32 s{d+1}, s{base+1}, 0xffff")
    a(f"s_mov_b32 s{d+2}, {nbytes:#x}")
    a(f"s_mov_b32 s{d+3}, 0x20000")

def bf16r(a, dst, src):
    a(f"v_cvt_pk_bf16_f32 v{dst}, v{src}, v{src}")
    a(f"v_lshlrev_b32 v{dst}, 16, v{dst}")

_lbl = [0]
def L(p="L"):
    _lbl[0] += 1
    return f"{p}_{_lbl[0]}"

class Cnt:
    def __init__(self, a, name, mx): self.a, self.name, self.mx, self.tags, self.total, self.marks = a, name, mx, [], 0, {}
    def add(self, tag, n=1): self.tags += [tag] * n; self.total += n
    def mark(self, m): self.marks[m] = self.total
    def since(self, m): return min(self.total - self.marks[m], self.mx)
    def wait(self, *tags):
        idx = [i for i, t in enumerate(self.tags) if t in tags]
        if not idx: return
        n = min(len(self.tags) - 1 - max(idx), self.mx)
        self.a(f"s_waitcnt {self.name}({n})")
        self.tags = self.tags[len(self.tags) - n:] if n else []
    def wait_all(self):
        self.a(f"s_waitcnt {self.name}(0)"); self.tags = []

STAMP_NAMES = []
class K:
    def __init__(self):
        self.a = Asm()
        self.vm = Cnt(self.a, "vmcnt", 63)
        self.lg = Cnt(self.a, "lgkmcnt", 15)
    def stamp(self, name):
        if PADTO and name == PADAT:
            a = self.a; lp = L()
            a.label(lp)
            a(f"s_memrealtime s[{STMP+2}:{STMP+3}]"); a("s_waitcnt lgkmcnt(0)")
            a(f"s_sub_u32 s{STMP+2}, s{STMP+2}, s{STMP}")
            a(f"s_cmp_lt_u32 s{STMP+2}, {PADTO}")
            a(f"s_cbranch_scc1 {lp}")
            return
        if "dbgstamp" in VAR:
            a = self.a
            names = ["entry", "S0", "B0", "B_end", "loop_start", "loop_end", "E2", "end"]
            if name not in names: return
            slot = 8 + names.index(name)
            if name == "entry":
                a(f"s_memrealtime s[{STMP+2}:{STMP+3}]"); a("s_waitcnt lgkmcnt(0)")
                a("s_and_b32 s100, s2, 31"); a("s_lshl_b32 s101, s3, 8"); a("s_add_u32 s100, s100, s101"); return
            def st():
                a(f"s_memrealtime s[{STMP}:{STMP+1}]"); a("s_waitcnt lgkmcnt(0)")
                a(f"s_sub_u32 s{STMP}, s{STMP}, s{STMP+2}")
                a(f"v_mov_b32 v{VST+1}, s{STMP}")
                a(f"v_mov_b32 v{VST}, {slot*4}")
                a("s_mov_b64 exec, 1")
                a(f"global_atomic_umax v{VST}, v{VST+1}, s[{P_DBG}:{P_DBG+1}]")
                a("s_mov_b64 exec, -1")
            self.only("s_cmp_eq_u32 s100, 9", st)
            return
        if not STAMPS: return
        a = self.a
        slot = len(STAMP_NAMES); STAMP_NAMES.append(str(name)); assert slot < 32
        if name != "entry":
            a(f"s_memrealtime s[{STMP}:{STMP+1}]")
            a(f"s_memtime s[{STMP+2}:{STMP+3}]")
        a("s_waitcnt lgkmcnt(0)")
        a(f"s_lshl_b32 s{STMP+1}, s2, 11")
        a(f"s_lshl_b32 s{STMP+3}, s3, 8")
        a(f"s_add_u32 s{STMP+1}, s{STMP+1}, s{STMP+3}")
        a(f"s_add_u32 s{STMP+1}, s{STMP+1}, {WS_STAMP + slot * 8:#x}")
        a(f"v_mov_b32 v{VST+1}, s{STMP}")
        a(f"v_mov_b32 v{VST+2}, s{STMP+2}")
        a(f"v_mov_b32 v{VST}, s{STMP+1}")
        a(f"buffer_store_dwordx2 v[{VST+1}:{VST+2}], v{VST}, {sr(S_WS)}, 0 offen")
        self.vm.add("st")
    def only(self, cond, fn):
        a = self.a; skip = L()
        a(cond); a(f"s_cbranch_scc0 {skip}")
        snap = a.snapshot(); fn(); a.label(skip); a.join(snap)
    def ifelse(self, cond, f1, f2):
        a = self.a; lv, lj = L(), L()
        a(cond); a(f"s_cbranch_scc0 {lv}")
        snap = a.snapshot(); f1(); a(f"s_branch {lj}"); snap2 = a.snapshot()
        a.label(lv); a.hist = snap[0]; a.alts = [(h, 0) for h in snap[1:]]
        f2(); a.label(lj); a.join(snap2)
    def poll(self, vaddr, vdat, soff, expect, cnt=CNT):
        a = self.a; top, chk, done = L("poll"), L("pchk"), L("pdone")
        a(f"s_mov_b32 s{cnt}, 0")
        a(f"s_branch {chk}")
        a.label(top)
        a(f"buffer_load_dword v{vdat}, v{vaddr}, {sr(S_WS)}, s{soff} offen sc1")
        a("s_waitcnt vmcnt(0)")
        a.label(chk)
        a(f"v_cmp_ne_u32 vcc, {expect}, v{vdat}")
        a(f"s_add_u32 s{cnt}, s{cnt}, 1")
        a(f"s_cbranch_vccz {done}")
        a("s_sleep 2")
        a(f"s_cmp_lt_u32 s{cnt}, {SPIN_MAX}")
        a(f"s_cbranch_scc1 {top}")
        a.label(done)
    def ds(self, text, tag):
        self.a(text); self.lg.add(tag)

class Pager:
    def __init__(self, k, free, seq):
        self.k, self.free, self.seq, self.pos, self.page, self.rel = k, list(free), seq, 0, {}, {}
        self.hold, self.hold_until, self.log = set(), 0, []
    def release(self, it):
        for p in self.rel.pop(it, []): self.free.append(p)
    def take(self, n, stop=None):
        out = []
        while len(out) < n and self.pos < len(self.seq):
            tag, emit, last, pref = self.seq[self.pos]
            if stop is not None and tag == stop: break
            cand = [p for p in pref if p in self.free and not (p in self.hold and (last is None or last + 2 > self.hold_until))]
            if not cand: break
            p = cand[0]; self.free.remove(p); self.page[tag] = p
            if last is not None: self.rel.setdefault(last + 2, []).append(p)
            out.append((tag, emit(p))); self.pos += 1
        self.log.append([(t, self.page[t]) for t, _ in out])
        return out
    def issue(self, grp):
        tag, text = grp
        self.k.a(text); self.k.vm.add(tag)

def spread(groups, extra, first=True):
    n = len(groups)
    per = -(-len(extra) // max(n, 1)) if extra else 0
    for i, g in enumerate(groups):
        for e in extra[i * per:(i + 1) * per]: e()
        g()
    for e in extra[n * per:]: e()

def interleave(ms, os):
    n = len(ms)
    for i, m in enumerate(ms):
        m()
        for o in os[i * len(os) // n:(i + 1) * len(os) // n]: o()

def prologue(k):
    a, vm = k.a, k.vm
    a.raw(f".globl {KN}"); a.raw(".p2align 8"); a.raw(f".type {KN},@function"); a.raw(f"{KN}:")
    if STAMPS or PADTO:
        a(f"s_memrealtime s[{STMP}:{STMP+1}]")
        a(f"s_memtime s[{STMP+2}:{STMP+3}]")
    a("s_cmp_ge_u32 s2, 256")
    a("s_cbranch_scc1 L_end")
    a(f"s_load_dwordx16 s[{PT}:{PT+15}], s[0:1], 0")
    a(f"s_load_dwordx8 s[{PT+16}:{PT+23}], s[0:1], 64")
    a(f"s_load_dwordx2 s[{PT+24}:{PT+25}], s[0:1], 96")
    a("s_getpc_b64 s[94:95]")
    a("v_lshrrev_b32 v1, 6, v0")
    a("v_and_b32 v2, 63, v0")
    a("v_readfirstlane_b32 s3, v1")
    a("s_and_b32 s4, s2, 0xf8")
    a("s_lshl_b32 s4, s4, 7")
    a("v_lshlrev_b32 v8, 7, v0")
    a("v_cmp_gt_u32 vcc, 8, v0")
    a("v_add_u32 v8, s4, v8")
    a("v_min_u32 v8, CODE_BYTES, v8")
    a(f"s_and_saveexec_b64 s[{EXS}:{EXS+1}], vcc")
    l2 = L(); a(f"s_cbranch_execz {l2}")
    if "nocpf" not in VAR: a("global_load_dword v47, v8, s[94:95]")
    a.label(l2)
    a(f"s_mov_b64 exec, s[{EXS}:{EXS+1}]")
    a(f"v_lshlrev_b32 v{VL16}, 4, v2")
    a(f"v_and_b32 v{VN}, 31, v2")
    a(f"v_lshrrev_b32 v{VH}, 5, v2")
    a(f"s_and_b32 s{T0}, s2, 7")
    a(f"s_lshr_b32 s{T1}, s2, 3")
    a(f"s_lshr_b32 s{RB}, s{T0}, 1")
    a(f"s_lshl_b32 s{RB}, s{RB}, 3")
    a(f"s_and_b32 s{SEL}, s{T0}, 1")
    a(f"s_lshl_b32 s{T2}, s{SEL}, 2")
    a(f"s_add_u32 s{RB2}, s{RB}, s{T2}")
    a(f"s_and_b32 s{T3}, s{T1}, 3")
    a(f"s_add_u32 s{RB2}, s{RB2}, s{T3}")
    a(f"s_lshr_b32 s{CB2}, s{T1}, 2")
    a(f"s_and_b32 s{ROT}, s{T1}, 7")
    a(f"s_add_u32 s{RB}, s{RB}, s{ROT}")
    a(f"s_lshr_b32 s{T3}, s{T1}, 3")
    a(f"s_add_u32 s{HB}, s{T2}, s{T3}")
    a(f"s_lshl_b32 s{RG}, s{RB}, 2")
    a(f"s_add_u32 s{RG}, s{RG}, s{T3}")
    a(f"s_mul_i32 s{FCG}, s{T0}, 28")
    a(f"s_add_u32 s{FCG}, s{FCG}, s{T1}")
    a(f"s_lshl_b32 s{W1K}, s3, 10")
    a(f"s_lshl_b32 s{W4K}, s3, 12")
    a(f"s_lshl_b32 s{W8K}, s3, 13")
    a(f"s_and_b32 s{RT}, s3, 1")
    a(f"s_lshr_b32 s{HD}, s3, 1")
    a(f"s_lshl_b32 s{ROWT}, s{RB}, 1")
    a(f"s_add_u32 s{ROWT}, s{ROWT}, s{RT}")
    a(f"s_lshl_b32 s{XO2}, s{RB}, 17")
    a(f"s_lshl_b32 s{OSO}, s{HB}, 8")
    a(f"s_sub_u32 s{FW}, s3, 1")
    a("s_cmp_lt_u32 s3, 4")
    a(f"s_cselect_b32 s{MODE}, s{SEL}, 2")
    a("v_lshrrev_b32 v5, 4, v2")
    a(f"s_lshl_b32 s{T0}, s3, 2")
    a(f"v_add_u32 v6, s{T0}, v5")
    a("v_xor_b32 v7, v6, v2")
    a("v_and_b32 v7, 7, v7")
    a("v_lshlrev_b32 v7, 4, v7")
    a("v_lshrrev_b32 v8, 3, v2")
    a("v_lshl_add_u32 v7, v8, 11, v7")
    a(f"s_lshl_b32 s{T0}, s3, 14")
    a(f"v_add_u32 v{VOX}, s{T0}, v7")
    a("v_lshrrev_b32 v7, 2, v2")
    a("v_lshlrev_b32 v7, 11, v7")
    a("v_and_b32 v8, 3, v2")
    a("v_lshl_add_u32 v7, v8, 4, v7")
    a(f"s_lshl_b32 s{T0}, s{RT}, 16")
    a(f"s_lshl_b32 s{T1}, s{HD}, 6")
    a(f"s_add_u32 s{T0}, s{T0}, s{T1}")
    a(f"v_add_u32 v{VOW}, s{T0}, v7")
    if "fake128" in VAR:
        a("v_lshrrev_b32 v7, 3, v2")
        a("v_lshlrev_b32 v7, 11, v7")
        a("v_and_b32 v8, 7, v2")
        a("v_lshl_add_u32 v7, v8, 4, v7")
        a(f"s_lshl_b32 s{T0}, s{RT}, 16")
        a(f"s_and_b32 s{T1}, s{HD}, 1")
        a(f"s_lshl_b32 s{T1}, s{T1}, 14")
        a(f"s_add_u32 s{T0}, s{T0}, s{T1}")
        a(f"s_lshr_b32 s{T1}, s{HD}, 1")
        a(f"s_lshl_b32 s{T1}, s{T1}, 7")
        a(f"s_add_u32 s{T0}, s{T0}, s{T1}")
        a(f"v_add_u32 v{VOW}, s{T0}, v7")
    a("v_lshlrev_b32 v7, 2, v2")
    a("v_mov_b32 v9, 0")
    a("v_mov_b32 v17, 0")
    a("v_mov_b32 v16, 1")
    a(f"s_xor_b32 s{CNT}, s3, 7")
    a(f"s_lshl_b32 s{CNT}, s{CNT}, 8")
    a(f"s_add_u32 s{CNT}, s{CNT}, s2")
    a("v_and_b32 v1, 28, v7")
    a("s_waitcnt lgkmcnt(0)")
    srd(a, S_X, P_X, 2048 * 2048)
    a(f"s_cmp_eq_u32 s{SEL}, 0")
    a(f"s_cselect_b32 s{S_KW}, s{P_WK}, s{P_WV}")
    a(f"s_cselect_b32 s{S_KW+1}, s{P_WK+1}, s{P_WV+1}")
    a(f"s_and_b32 s{S_KW+1}, s{S_KW+1}, 0xffff")
    a(f"s_mov_b32 s{S_KW+2}, 0x10000")
    a(f"s_mov_b32 s{S_KW+3}, 0x20000")
    srd(a, S_WS, P_WS, WS_SIZE)
    srd(a, S_WR, P_WR, 2048)
    k.stamp("entry")
    def zero():
        a("v_mov_b32 v10, 0"); a("v_mov_b32 v11, 0"); a("v_mov_b32 v8, 0")
        a(f"s_lshl_b32 s{T2}, s2, 12")
        a(f"s_add_u32 s{T2}, s{T2}, {SY1:#x}")
        for i in range(4): a(f"buffer_store_dwordx4 v[8:11], v{VL16}, {sr(S_WS)}, s{T2} offen offset:{i*1024} sc1")
        a(f"s_lshl_b32 s{T2}, s2, 2")
        a("s_waitcnt vmcnt(0)")
        a(f"v_mov_b32 v10, s{T2}")
        a(f"global_store_dword v10, v16, s[{P_DBG}:{P_DBG+1}] sc1")
    k.only(f"s_cmp_lt_u32 s{CNT}, 8", zero)

AUX = 19 * 8192
TAB = AUX + 2304
RED = 4 * 8192

def phaseAB(k):
    a, vm, lg = k.a, k.vm, k.lg
    VXA, VW, ACC, WF, FT, XREG, CS = 32, 44, 48, 64, 96, 128, 12
    XF, ACCX, ACCO = XREG, 48, 80
    def rot(j, shift, extra, base):
        return f"""s_add_u32 s{TD}, s{ROT}, {j}
        s_and_b32 s{TD}, s{TD}, 7
        s_lshl_b32 s{TD}, s{TD}, {shift}
        s_add_u32 s{TD}, s{TD}, s{base}""" + (f"\ns_add_u32 s{TD}, s{TD}, {extra}" if extra else "")
    def ldx(c): return lambda p: f"s_add_u32 m0, s{W1K}, {p*8192}\n" + rot(c >> 1, 8, (c & 1) * 128, XO2) + f"\nbuffer_load_dwordx4 v{VOX}, {sr(S_X)}, s{TD} offen lds"
    def ldk(j): return lambda p: f"s_add_u32 m0, s{W1K}, {p*8192}\n" + rot(j, 13, 0, W1K) + f"\nbuffer_load_dwordx4 v{VL16}, {sr(S_KW)}, s{TD} offen lds"
    def ldw(c, h): return lambda p: f"s_add_u32 m0, s{W1K}, {p*8192}\n" + rot(c >> 1, 18, ((c & 1) * 64 + h * 16) * 2048, OSO) + f"\nbuffer_load_dwordx4 v{VOW}, {sr(S_W)}, s{TD} offen lds"
    seq = []
    hi = list(range(8, 19))
    for j in range(8):
        seq.append((("k", j), ldk(j), j, [4, 5, 6, 7] if 2 <= j <= 5 else hi[::-1]))
        for e in range(2):
            c = 2 * j + e
            seq.append((("x", c), ldx(c), j if c < 8 else None, [0, 1, 2, 3] if 8 <= c <= 11 else hi[::-1] if c < 8 else hi[:3:-1]))
    for c in range(16):
        for h in range(2):
            seq.append((("w", c, h), ldw(c, h), None, hi + [4, 5, 6, 7]))
    pg = Pager(k, range(19), seq)
    pg.hold, pg.hold_until = {4, 5, 6, 7}, 7
    k.pgAB = pg
    srd(a, S_W, P_WQ, 1024 * 2048)
    a(f"v_lshlrev_b32 v8, 7, v{VN}")
    a(f"s_lshl_b32 s{T0}, s{RG}, 15")
    a(f"s_add_u32 s{T0}, s{T0}, s{W4K}")
    a(f"buffer_load_dword v47, v8, {sr(S_X)}, s{T0} offen"); vm.add("xt")
    def wtouch():
        if "wt256" in VAR:
            a(f"v_lshrrev_b32 v8, 1, v{VN}")
            a("v_lshlrev_b32 v8, 11, v8")
            a("v_and_b32 v10, 1, v2")
            a("v_lshl_add_u32 v8, v10, 7, v8")
            a(f"s_lshl_b32 s{T0}, s{ROT}, 3")
            a(f"s_add_u32 s{T0}, s{T0}, s3")
            a(f"s_lshl_b32 s{T0}, s{T0}, 15")
            a(f"s_add_u32 s{T0}, s{T0}, s{OSO}")
        else:
            a(f"v_lshrrev_b32 v8, 3, v{VN}")
            a("v_lshlrev_b32 v8, 11, v8")
            a("v_and_b32 v10, 7, v2")
            a("v_lshl_add_u32 v8, v10, 7, v8")
            a(f"s_lshr_b32 s{T0}, s2, 3")
            a(f"s_lshl_b32 s{T0}, s{T0}, 16")
            a(f"s_add_u32 s{T0}, s{T0}, s{W8K}")
            a(f"s_lshl_b32 s{T1}, s{SEL}, 10")
            a(f"s_add_u32 s{T0}, s{T0}, s{T1}")
        a(f"buffer_load_dword v47, v8, {sr(S_W)}, s{T0} offen"); vm.add("wt")
    if WT_IT < 0: wtouch()
    a(f"s_lshl_b32 s{T1}, s3, 8")
    a(f"s_add_u32 m0, s{T1}, {AUX}")
    a(f"s_add_u32 s{TD}, s{ROT}, s3")
    a(f"s_and_b32 s{TD}, s{TD}, 7")
    a(f"s_lshl_b32 s{TD}, s{TD}, 8")
    a(f"buffer_load_dword v7, {sr(S_WR)}, s{TD} offen lds"); vm.add("wr")
    first = pg.take(N_INIT)
    for g_ in first[:3]: pg.issue(g_)
    k.stamp("issued")
    srd(a, S_KV, P_WS, 0x40000)
    srd(a, S_WG, P_WG, 1024 * 7168)
    srd(a, S_WU, P_WU, 1024 * 7168)
    a(f"v_mov_b32 v8, {ONES:#x}")
    a(f"v_add_u32 v9, {AUX + 2048}, v7")
    k.ds("ds_write_b32 v9, v8", "ones")
    k.ds("ds_write_b32 v9, v17 offset:384", "ones")
    a(f"v_bfe_u32 v5, v{VN}, 1, 3")
    a(f"v_xor_b32 v5, v5, v{VH}")
    a(f"s_lshl_b32 s{T0}, s{RT}, 12")
    a(f"s_lshl_b32 s{T1}, s{RT}, 2")
    a(f"v_lshlrev_b32 v6, 7, v{VN}")
    a(f"v_add_u32 v8, s{T0}, v6")
    a(f"v_xor_b32 v9, s{T1}, v5")
    a(f"v_lshl_add_u32 v{VXA}, v9, 4, v8")
    a(f"v_xor_b32 v{VXA+1}, 32, v{VXA}")
    a(f"v_xor_b32 v{VXA+2}, 0x1000, v{VXA}")
    a(f"v_xor_b32 v{VXA+3}, 0x1020, v{VXA}")
    for s in range(4):
        a(f"v_add_u32 v{VXA+4+s}, 0x10000, v{VXA+s}")
        a(f"v_add_u32 v{VXA+8+s}, 0x20000, v{VXA+s}")
    BX, MX, I17, AX, AW, BW = FT, FT + 2, FT + 3, FT + 4, FT + 6, FT + 7
    a(f"s_and_b32 s{T0}, s{HB}, 3")
    a(f"s_lshl_b32 s{T0}, s{T0}, 11")
    a(f"v_add_u32 v8, s{T0}, v6")
    a(f"s_lshl_b32 s{T1}, s{RT}, 2")
    a(f"v_xor_b32 v9, s{T1}, v5")
    a(f"v_lshl_add_u32 v{BX}, v9, 4, v8")
    a("v_xor_b32 v9, 2, v9")
    a(f"v_lshl_add_u32 v{BX+1}, v9, 4, v8")
    a(f"s_and_b32 s{T2}, s3, 3")
    a(f"s_lshl_b32 s{T3}, s{T2}, 6")
    a(f"s_add_u32 s{T3}, s{T3}, {AUX}")
    a(f"v_lshlrev_b32 v8, 4, v{VH}")
    a(f"v_add_u32 v8, s{T3}, v8")
    a(f"v_mov_b32 v9, {AUX + 2048}")
    a(f"v_cmp_eq_u32 vcc, 17, v{VN}")
    a("v_mov_b32 v10, 256")
    a("v_cndmask_b32 v8, v9, v8, vcc")
    a(f"v_cndmask_b32 v{I17}, 0, v10, vcc")
    a("v_add_u32 v9, 32, v8")
    a(f"v_cmp_gt_u32 vcc, 16, v{VN}")
    a(f"v_cndmask_b32 v{MX}, 0, 1, vcc")
    a(f"v_cndmask_b32 v{BX}, v8, v{BX}, vcc")
    a(f"v_cndmask_b32 v{BX+1}, v9, v{BX+1}, vcc")
    a("v_bfe_u32 v5, v2, 2, 2")
    a(f"v_lshl_add_u32 v6, v{VH}, 3, v5")
    a("v_bfe_u32 v8, v2, 4, 1")
    a("v_lshlrev_b32 v8, 5, v8")
    a("v_and_b32 v9, 3, v2")
    a("v_lshl_add_u32 v8, v9, 3, v8")
    a("v_lshl_add_u32 v9, v6, 6, v8")
    a(f"s_lshl_b32 s{T3}, s{T2}, 11")
    a(f"v_add_u32 v{BW}, s{T3}, v9")
    a(f"v_add_u32 v{VW}, s{W1K}, v9")
    a(f"v_add_u32 v{VW+1}, 0x10000, v{VW}")
    a(f"v_add_u32 v{VW+2}, 0x20000, v{VW}")
    a("v_bfe_u32 v5, v2, 2, 1")
    a("v_cmp_eq_u32 vcc, 0, v5")
    a(f"v_mov_b32 v6, {ONES:#x}")
    a(f"v_cndmask_b32 v{MA}, 0, v6, vcc")
    a(f"v_cndmask_b32 v{MA+1}, 0, v6, vcc")
    a(f"v_cndmask_b32 v{MA+2}, v6, 0, vcc")
    a(f"v_cndmask_b32 v{MA+3}, v6, 0, vcc")
    a("v_and_b32 v5, 2, v2")
    a("v_cmp_eq_u32 vcc, 0, v5")
    for i in range(4): a(f"v_cndmask_b32 v{MA+i}, 0, v{MA+i}, vcc")
    a("v_and_b32 v5, 1, v2")
    a("v_cmp_eq_u32 vcc, 0, v5")
    a("v_mov_b32 v6, 0x44444444")
    a("v_mov_b32 v8, 0xeeeeeeee")
    a(f"v_cndmask_b32 v{IDXC}, v8, v6, vcc")
    a(f"v_mov_b32 v{IDXD}, 0xdddddddd")
    for i in range(4): a(f"v_mov_b32 v{CS+i}, 0")
    for g_ in first[3:]: pg.issue(g_)
    lg.wait_all()

    def xread(c, s, dst, tag):
        p = pg.page[("x", c)]
        k.ds(f"ds_read_b128 {vr(dst, 4)}, v{VXA + 4*(p >> 3) + s} offset:{(p & 7) * 8192}", tag)
    def kv_mfma(j):
        b = WF + 16 * (j & 1)
        def mm(x, y):
            for e in range(2):
                c = "0" if (j == 0 and e == 0) else vr(ACC, 16)
                a(f"v_mfma_f32_32x32x16_bf16 {vr(ACC,16)}, {vr(b+x+4*e,4)}, {vr(b+y+4*e,4)}, {c}")
        k.ifelse(f"s_cmp_eq_u32 s{MODE}, 2", lambda: mm(0, 0),
                 lambda: k.ifelse(f"s_cmp_eq_u32 s{MODE}, 0", lambda: mm(8, 0), lambda: mm(0, 8)))
    for j in range(8):
        vm.wait(("x", 2*j), ("x", 2*j+1), ("k", j))
        a("s_barrier")
        if j == 0: k.stamp(f"S{j}")
        pg.release(j)
        d = [lambda g=g: pg.issue(g) for g in pg.take(6 if j < 2 else 4, stop=(('w', 0, 0) if 'nohold' not in VAR else None))]
        b = WF + 16 * (j & 1)
        def g0():
            a("s_bitcmp1_b32 s3, 1")
            a(f"s_mov_b32 s{SP}, {pg.page[('x', 2*j)]*8192}")
            a(f"s_cselect_b32 s{SP}, {pg.page[('x', 2*j+1)]*8192}, s{SP}")
            a(f"v_mul_u32_u24 v8, s{SP}, v{MX}")
            a(f"v_add_u32 v{AX}, v8, v{BX}")
            a(f"v_add_u32 v{AX+1}, v8, v{BX+1}")
            a(f"v_add_u32 v{AW}, {pg.page[('k', j)]*8192}, v{BW}")
            for e in range(2): k.ds(f"ds_read_b128 {vr(b+4*e,4)}, v{AX+e}", ("s", j))
            for e in range(2):
                for u in range(2):
                    k.ds(f"ds_read_b64_tr_b16 {vr(b+8+4*e+2*u,2)}, v{AW} offset:{(16*e+4*u)*64}", ("s", j))
            a(f"v_add_u32 v{BX}, v{I17}, v{BX}")
            a(f"v_add_u32 v{BX+1}, v{I17}, v{BX+1}")
        def g1():
            if j > 0:
                lg.wait(("s", j - 1), ("xr", j - 1))
                kv_mfma(j - 1)
        def g2(e):
            if j < 4:
                for s in range(4): xread(2*j+e, s, XREG + 16*(2*j+e) + 4*s, ("xr", j))
        if j == WT_IT: d.insert(WT_POS, wtouch)
        if j == 3: d.insert(2, lambda: k.only('s_cmp_eq_u32 s3, 0', lambda: a(f'global_load_dword v16, v1, s[{P_DBG}:{P_DBG+1}] sc1')))
        g2(0)
        spread([g0, g1, lambda: g2(1)], d)
    F = FT
    R2 = RED + 16384
    def st_reads():
        a("v_and_b32 v5, 15, v2")
        a("v_lshlrev_b32 v6, 4, v5")
        for w in range(4): a(f"ds_read_b64 {vr(F+2*w,2)}, v6 offset:{R2+w*4096+2*1024}")
        a("v_bfe_u32 v8, v5, 2, 1")
        a("v_lshl_add_u32 v8, v8, 9, v6")
        a("v_lshrrev_b32 v9, 3, v5")
        a("v_lshl_add_u32 v8, v9, 10, v8")
        a("v_and_b32 v9, 3, v5")
        a("v_lshl_add_u32 v8, v9, 2, v8")
        for w in range(4): a(f"ds_read_b32 v{F+8+w}, v8 offset:{R2+w*4096}")
        a(f"v_mov_b32 v9, {16*16 + 4}")
        for w in range(4): a(f"ds_read_b32 v{F+12+w}, v9 offset:{R2+w*4096+2*1024}")
        a("s_waitcnt lgkmcnt(0)")
        st_compute()
    def da_reads():
        a("v_and_b32 v5, 15, v2")
        def kk():
            a("v_bfe_u32 v9, v2, 4, 1")
            a("v_lshlrev_b32 v8, 9, v9")
            a(f"v_lshl_add_u32 v8, v{VH}, 10, v8")
            a(f"s_lshl_b32 s{T0}, s{FW}, 11")
            a(f"v_add_u32 v8, s{T0}, v8")
            a("v_lshl_add_u32 v9, v5, 4, v8")
            for w in range(4): a(f"ds_read_b128 {vr(F+4*w,4)}, v9 offset:{RED+w*4096}")
            for w in range(4): a(f"ds_read_b128 {vr(F+16+4*w,4)}, v8 offset:{RED+w*4096+256}")
        def vv():
            a(f"s_lshl_b32 s{T0}, s{FW}, 10")
            a(f"v_add_u32 v9, s{T0}, v{VL16}")
            for w in range(4): a(f"ds_read_b128 {vr(F+4*w,4)}, v9 offset:{RED+w*4096}")
            a(f"v_lshlrev_b32 v8, 4, v{VN}")
            for w in range(4): a(f"ds_read_b32 v{F+16+4*w}, v8 offset:{RED+w*4096+2048}")
        k.ifelse(f"s_cmp_eq_u32 s{SEL}, 0", kk, vv)
        a(f"s_lshr_b32 s{T2}, s{RG}, 1")
        a(f"s_lshl_b32 s{T2}, s{T2}, 12")
        a(f"s_and_b32 s{T1}, s{RG}, 1")
        def kk2():
            a("v_and_b32 v8, 3, v5")
            a("v_bfe_u32 v9, v5, 2, 1")
            a("v_lshl_add_u32 v8, v9, 3, v8")
            a("v_bfe_u32 v9, v5, 3, 1")
            a("v_lshl_add_u32 v8, v9, 2, v8")
            a("v_bfe_u32 v9, v2, 4, 1")
            a("v_lshl_add_u32 v8, v9, 5, v8")
            a("v_lshlrev_b32 v8, 4, v8")
            a(f"v_lshl_add_u32 v8, v{VH}, 3, v8")
            a(f"s_lshl_b32 s{T0}, s{FW}, 10")
            a(f"s_add_u32 s{T2}, s{T2}, s{T0}")
            a(f"s_lshl_b32 s{T1}, s{T1}, 8")
            a(f"s_add_u32 s{T2}, s{T2}, s{T1}")
            a("v_lshlrev_b32 v6, 2, v5")
        def vv2():
            a(f"v_mov_b32 v8, v{VL16}")
            a(f"s_lshl_b32 s{T1}, s{T1}, 10")
            a(f"s_add_u32 s{T2}, s{T2}, s{T1}")
            a(f"s_lshl_b32 s{T1}, s{FW}, 3")
            a(f"s_add_u32 s{T2}, s{T2}, s{T1}")
            a(f"s_add_u32 s{T2}, s{T2}, 2048")
            a(f"s_lshl_b32 s{T0}, s{FW}, 5")
            a(f"v_lshlrev_b32 v6, 4, v{VH}")
            a(f"v_add_u32 v6, s{T0}, v6")
        k.ifelse(f"s_cmp_eq_u32 s{SEL}, 0", kk2, vv2)
        a(f"v_add_u32 v6, {TAB}, v6")
        a("s_waitcnt lgkmcnt(0)")
        for w in range(1, 4):
            for e in range(4):
                a(f"v_add_f32 v{F+e}, v{F+e}, v{F+4*w+e}")
                a(f"v_add_f32 v{F+16+e}, v{F+16+e}, v{F+16+4*w+e}")
    def dbg_load():
        a(f"global_load_dword v16, v17, s[{P_DBG}:{P_DBG+1}] sc1")
    def st_compute():
        M, RI, R, V = F + 2, F + 3, F + 1, F + 8
        for w in range(1, 4):
            a(f"v_add_f32 v{F}, v{F}, v{F+2*w}")
            a(f"v_add_f32 v{V}, v{V}, v{V+w}")
            a(f"v_add_f32 v{F+1}, v{F+1}, v{F+2*w+1}")
        a(f"v_mul_f32 v{F}, {f32(1/1024)}, v{F}")
        a(f"v_mul_f32 v{V}, {f32(1/1024)}, v{V}")
        a(f"v_fma_f32 v{V}, -v{F}, v{F}, v{V}")
        a(f"v_max_f32 v{V}, 0, v{V}")
        bf16r(a, M, F)
        bf16r(a, V, V)
        a(f"v_add_f32 v{V}, {f32(1e-5)}, v{V}")
        bf16r(a, V, V)
        a(f"v_sqrt_f32 v{V}, v{V}")
        a("v_lshlrev_b32 v8, 2, v5")
        bf16r(a, V, V)
        a(f"v_rcp_f32 v{RI}, v{V}")
        a(f"v_add_u32 v8, {TAB}, v8")
        a(f"ds_write_b32 v8, v{M}")
        a(f"ds_write_b32 v8, v{RI} offset:64")
        a("s_waitcnt lgkmcnt(0)")
    def st_store():
        M, RI, R = F + 2, F + 3, F + 1
        a(f"s_lshl_b32 s{T0}, s2, 8")
        a(f"s_add_u32 s{T0}, s{T0}, {WS_YACC:#x}")
        a("v_lshlrev_b32 v8, 2, v2")
        a(f"buffer_store_dword v17, v8, {sr(S_WS)}, s{T0} offen sc1")
        a(f"s_lshl_b32 s{T0}, s2, 7")
        a(f"s_add_u32 s{T0}, s{T0}, {WS_SY:#x}")
        a("v_and_b32 v8, 127, v8")
        a(f"buffer_store_dword v17, v8, {sr(S_WS)}, s{T0} offen sc1")
        def rk():
            for w in range(1, 4): a(f"v_add_f32 v{F+12}, v{F+12}, v{F+12+w}")
            a(f"v_fma_f32 v{R}, -v{M}, v{F+12}, v{R}")
            a(f"v_mul_f32 v{R}, v{R}, v{RI}")
            a(f"v_cvt_pk_bf16_f32 v{R}, v{R}, v{R}")
            a(f"v_ashrrev_i32 v8, 31, v{R}")
            a("v_or_b32 v8, 0x80000000, v8")
            a(f"v_xor_b32 v{R}, v{R}, v8")
            a(f"v_and_b32 v{R}, 0xffff0000, v{R}")
            a(f"s_lshl_b32 s{T0}, s{RG}, 4")
            a(f"v_add_u32 v8, s{T0}, v5")
            a("v_sub_u32 v8, 0xffff, v8")
            a(f"v_or_b32 v{R}, v{R}, v8")
            for sh in (8, 4, 2, 1):
                a(f"v_max_u32_dpp v{R}, v{R}, v{R} row_ror:{sh} row_mask:0xf bank_mask:0xf")
            a("v_lshlrev_b32 v8, 3, v5")
            a(f"s_lshl_b32 s{T0}, s{RG}, 7")
            a(f"s_add_u32 s{T0}, s{T0}, {WS_STAT:#x}")
            a(f"s_lshl_b32 s{T1}, s{RG}, 2")
            a(f"s_add_u32 s{T1}, s{T1}, {WS_RKEY:#x}")
            a("s_mov_b64 exec, 0xffff")
            a(f"buffer_store_dwordx2 v[{M}:{RI}], v8, {sr(S_WS)}, s{T0} offen sc1")
            a("s_mov_b64 exec, 1")
            a(f"buffer_store_dword v{R}, v8, {sr(S_WS)}, s{T1} offen sc1")
            a("s_mov_b64 exec, -1")
        k.only(f"s_cmp_eq_u32 s{SEL}, 0", rk)
    def da_store():
        def kk():
            a(f"ds_read_b32 v{F+4}, v6")
            a(f"ds_read_b32 v{F+8}, v6 offset:64")
            a("s_waitcnt lgkmcnt(0)")
            for e in range(4): a(f"v_fma_f32 v{F+e}, -v{F+4}, v{F+16+e}, v{F+e}")
            for e in range(4): a(f"v_mul_f32 v{F+e}, v{F+e}, v{F+8}")
        def vv():
            a(f"ds_read_b128 {vr(F+4,4)}, v6")
            a(f"ds_read_b128 {vr(F+8,4)}, v6 offset:64")
            a("s_waitcnt lgkmcnt(0)")
            for e in range(4): a(f"v_fma_f32 v{F+e}, -v{F+4+e}, v{F+16}, v{F+e}")
            for e in range(4): a(f"v_mul_f32 v{F+e}, v{F+e}, v{F+8+e}")
        k.ifelse(f"s_cmp_eq_u32 s{SEL}, 0", kk, vv)
        a(f"v_cvt_pk_bf16_f32 v{F+12}, v{F}, v{F+1}")
        a(f"v_cvt_pk_bf16_f32 v{F+13}, v{F+2}, v{F+3}")
        a(f"buffer_store_dwordx2 {vr(F+12,2)}, v8, {sr(S_WS)}, s{T2} offen sc1")
    def fin_arrive():
        a(f"s_waitcnt vmcnt({vm.since('fs')})")
        top, done = L(), L()
        a(f"s_mov_b32 s{CNT}, 0")
        a.label(top)
        a("v_cmp_eq_u32 vcc, 0, v16")
        a(f"s_add_u32 s{CNT}, s{CNT}, 1")
        a(f"s_cbranch_vccz {done}")
        a(f"global_load_dword v16, v1, s[{P_DBG}:{P_DBG+1}] sc1")
        a("s_waitcnt vmcnt(0)")
        a(f"s_cmp_lt_u32 s{CNT}, {SPIN_MAX}")
        a(f"s_cbranch_scc1 {top}")
        a.label(done)
        a("v_mov_b32 v8, 1")
        a(f"v_mov_b32 v9, {TAB + 128}")
        a("s_mov_b64 exec, 1")
        a("ds_add_rtn_u32 v9, v9, v8")
        a("s_waitcnt lgkmcnt(0)")
        a("v_cmp_eq_u32 vcc, 2, v9")
        a("s_mov_b64 exec, 0xff")
        nl = L()
        a(f"s_cbranch_vccz {nl}")
        a(f"s_lshr_b32 s{T0}, s2, 3")
        a(f"s_lshl_b32 s{T0}, s{T0}, 7")
        a(f"s_add_u32 s{T0}, s{T0}, {SY1:#x}")
        a("v_lshlrev_b32 v9, 12, v2")
        a(f"buffer_atomic_add v8, v9, {sr(S_WS)}, s{T0} offen sc1")
        a.label(nl)
        a("s_mov_b64 exec, -1")
    W0, W12, W012 = "s_cmp_eq_u32 s3, 0", f"s_cmp_lt_u32 s{FW}, 2", "s_cmp_lt_u32 s3, 3"
    def kv_dma(i, chunk):
        a(f"s_add_u32 m0, s{W4K}, {chunk*32768 + i*1024}")
        a(f"s_add_u32 s{XSO}, s{W4K}, {chunk*32768 + i*1024}")
        a(f"buffer_load_dwordx4 v{VL16}, {sr(S_KV)}, s{XSO} offen sc1 lds"); vm.add(("kv", chunk))
    RK, PV, ST2 = 120, 122, 124
    pool = [WF, WF + 8]
    wreg, xreg = {}, {c: (XREG + 16*c, XREG + 16*c + 8) for c in range(8)}
    def rd_ops(c):
        need = 1 if c < 8 else 3
        if len(pool) < need: return None
        wreg[c] = pool.pop(0)
        if c >= 8: xreg[c] = (pool.pop(0), pool.pop(0))
        ops = []
        for e in range(2):
            def w(e=e):
                vm.wait(("w", c, e))
                p = pg.page[("w", c, e)]
                for u in range(2):
                    k.ds(f"ds_read_b64_tr_b16 {vr(wreg[c]+4*e+2*u,2)}, v{VW + (p >> 3)} offset:{(p & 7)*8192 + 4*u*64}", ("q", c, e))
            def x(e=e):
                for t in range(2): xread(c, 2*t+e, xreg[c][t] + 4*e, ("q", c, e))
            if c >= 8: ops.append(x)
            ops.append(w)
        return ops
    def rd(c):
        for o in rd_ops(c): o()
    def mm_ops(c):
        def m(e, t):
            if t == 0:
                lg.wait(("q", c, e)); pg.free.append(pg.page[("w", c, e)])
            acc = ACCX if t else ACCO
            cc = "0" if (c == 0 and e == 0) else vr(acc, 16)
            if 'nomm' not in VAR: a(f"v_mfma_f32_32x32x16_bf16 {vr(acc,16)}, {vr(wreg[c]+4*e,4)}, {vr(xreg[c][t]+4*e,4)}, {cc}")
        def s():
            a(f"v_smfmac_f32_16x16x64_bf16 {vr(CS,4)}, {vr(MA,4)}, {vr(wreg[c],8)}, v{IDXC}")
            pool.append(wreg[c])
            if c != 2: pool.extend(xreg[c])
        return [lambda: m(0, 0), lambda: m(0, 1), lambda: m(1, 0), lambda: m(1, 1), s]
    def dmas(n):
        for g_ in pg.take(n): pg.issue(g_)
    def ld_stat():
        a(f"s_lshl_b32 s{T0}, s{ROWT}, 8")
        a(f"s_add_u32 s{T0}, s{T0}, {WS_STAT:#x}")
        a(f"v_lshlrev_b32 v5, 3, v{VN}")
        a(f"buffer_load_dwordx2 {vr(STAT,2)}, v5, {sr(S_WS)}, s{T0} offen sc1"); vm.add("stat")
    def ld_stat2():
        a(f"s_xor_b32 s{T0}, s{T0}, 0x100")
        a(f"buffer_load_dword v{ST2}, v5, {sr(S_WS)}, s{T0} offen sc1"); vm.add("stat")
    def ld_rk():
        a("v_lshlrev_b32 v5, 3, v2")
        a(f"s_mov_b32 s{T0}, {WS_RKEY:#x}")
        a(f"buffer_load_dwordx2 {vr(RK,2)}, v5, {sr(S_WS)}, s{T0} offen sc1"); vm.add("rk")
    def kvt():
        a(f"s_lshr_b32 s{T0}, s2, 3")
        a(f"s_lshl_b32 s{T0}, s{T0}, 13")
        a("v_lshlrev_b32 v5, 7, v2")
        a(f"buffer_load_dword v16, v5, {sr(S_KV)}, s{T0} offen sc1")
    post = {CHK + 1: [ld_stat, ld_stat2, lambda: kv_dma(0, 0), lambda: kv_dma(1, 0)],
            CHK + 2: [lambda: kv_dma(2, 0), lambda: kv_dma(3, 0), ld_rk, lambda: k.only("s_cmp_eq_u32 s3, 6", kvt)],
            5: [lambda: k.ffn.early(0)], 6: [lambda: k.ffn.early(1)], 7: [lambda: k.ffn.early(2)]}
    k.stamp("B0")
    lg.wait(("s", 7)); kv_mfma(7)
    dmas(NW0)
    a(f"v_add_u32 v8, s{W4K}, v{VL16}")
    for q in range(4): k.ds(f"ds_write_b128 v8, {vr(ACC+4*q,4)} offset:{RED + q*1024}", "red")
    lg.wait_all()
    a("s_barrier"); pg.release(8); pg.release(9)
    if "v1" in VAR:
        k.only(W0, st_reads); k.only(W12, da_reads)
        first = pg.take(7)
        def early_w():
            for t_, x in first: a(x)
        k.only("s_cmp_ge_u32 s3, 3", early_w)
        a("s_barrier"); pg.hold = set()
        if 'nopub' not in VAR: k.only(W0, st_store); k.only(W12, da_store)
        vm.mark("fs")
        k.only(W012, early_w)
        for t_, x in first: vm.add(t_)
        rd(0); rd(1)
    else:
        dmas(NW1)
        k.only(W0, st_reads); k.only(W12, da_reads)
        dmas(7)
        rd(0); rd(1)
    k.stamp('R1')
    for c in range(16):
        if c == PI:
            a(f"v_lshlrev_b32 v{PV}, 7, v{VN}")
            a(f"s_and_b32 s{T3}, s2, 7")
            a(f"s_lshl_b32 s{T3}, s{T3}, 12")
            a(f"s_add_u32 s{T3}, s{T3}, {SY1:#x}")
            k.only("s_cmp_eq_u32 s3, 7", lambda: a(f"buffer_load_dword v{PV+1}, v{PV}, {sr(S_WS)}, s{T3} offen sc1"))
            vm.mark("poll")
        ro = rd_ops(c + 2) if c + 2 < 16 else []
        d1 = lambda: dmas(1)
        extra = post.pop(c, [])
        if 'nopost' in VAR: extra = []
        if ro is None: interleave(mm_ops(c), [d1, d1, d1]); rd(c + 2)
        else:
            h = len(ro) // 2
            interleave(mm_ops(c), [d1] + ro[:h] + [d1] + ro[h:] + [d1] + extra)
        if 'fine' in VAR and c in (1, 2, 4, 6, 8, 10, 12, 13, 14): k.stamp(f'M{c}')
        if c == R2C and "v1" not in VAR:
            a("s_barrier"); pg.hold = set()
            k.only(W0, st_store); k.only(W12, da_store); vm.mark("fs")
        if c == (0 if "v1" in VAR else R2C + 2) and 'nopub' not in VAR: k.only(W012, fin_arrive)
        if c == CHK:
            def chk():
                a(f"s_waitcnt vmcnt({vm.since('poll')})")
                k.poll(PV, PV + 1, T3, 8)
            if 'nopub' not in VAR: k.only("s_cmp_eq_u32 s3, 7", chk)
            if 'nor3' not in VAR: a("s_barrier")
            assert pg.pos == len(pg.seq)
    for p in (8, 9, 10, 11): assert p in pg.free
    k.stamp("B_end")
    if "stopB" in VAR: a("s_endpgm")
    k.ACCX, k.ACCO, k.ST2 = ACCX, ACCO, ST2
    k.ACC, k.CS, k.RK = ACC, CS, RK

QF, NM, VA, SA, SB, OA, LS, KA, VK1 = 32, 40, 56, 64, 80, 96, 112, 116, 17

def attention(k):
    a, vm, lg, ffn = k.a, k.vm, k.lg, k.ffn
    ACCX, ACC, CS, ST2 = k.ACCX, k.ACCO, k.CS, k.ST2
    EX = 96
    a(f"v_cmp_eq_u32 vcc, 0, v{VH}")
    vm.wait("stat")
    a(f"v_cvt_pk_bf16_f32 v{EX}, -v{STAT}, -v{STAT}")
    a(f"v_cvt_pk_bf16_f32 v{EX+4}, -v{ST2}, -v{ST2}")
    a(f"v_cndmask_b32 v{EX}, 0, v{EX}, vcc")
    a(f"v_cndmask_b32 v{EX+4}, 0, v{EX+4}, vcc")
    a(f"v_mov_b32 v{EX+1}, v{EX}"); a(f"v_mov_b32 v{EX+5}, v{EX+4}")
    for i in (2, 3, 6, 7): a(f"v_mov_b32 v{EX+i}, 0")
    a("v_mov_b32 v10, 0"); a("v_mov_b32 v11, 0")
    a(f"v_add_f32 v6, v{CS}, v{CS+1}")
    a("v_cvt_pk_bf16_f32 v5, v6, v6")
    a("v_lshlrev_b32 v5, 16, v5")
    a("v_sub_f32 v5, v6, v5")
    a("v_cvt_pk_bf16_f32 v8, v6, v5")
    a("v_and_b32 v6, 0xffff0000, v8")
    a("v_sub_f32 v5, v5, v6")
    a("v_cvt_pk_bf16_f32 v9, v5, 0")
    a(f"v_add_u32 v12, s{W1K}, v{VL16}")
    a("v_add_u32 v12, 0x10000, v12")
    a(f"v_mfma_f32_32x32x16_bf16 {vr(ACCX,16)}, v[8:11], {vr(EX+4,4)}, {vr(ACCX,16)}")
    a(f"v_mfma_f32_32x32x16_bf16 {vr(ACC,16)}, v[8:11], {vr(EX,4)}, {vr(ACC,16)}")
    a(f"v_mul_f32 v6, {f32(QSCALE)}, v{STAT+1}")
    a("v_and_b32 v5, 1, v2")
    a("v_cmp_eq_u32 vcc, 0, v5")
    a("v_xor_b32 v13, 0x400, v12")
    for i in range(4): a(f"v_cndmask_b32 v{MA+i}, 0, v{MA+i}, vcc")
    vm.wait("rk", ("kv", 0))
    for q in range(4): a(f"ds_write_b128 v12, {vr(ACCX+4*q,4)} offset:{q*8192}")
    ffn.argmax1()
    a("s_waitcnt lgkmcnt(0)")
    a("s_barrier")
    for q in range(4): a(f"ds_read_b128 {vr(EX+4*q,4)}, v13 offset:{q*8192}")
    a(f"ds_read_b128 {vr(KA,4)}, v{VL16}")
    a(f"ds_read_b128 {vr(KA+4,4)}, v{VL16} offset:1024")
    a(f"s_add_u32 m0, s{W4K}, 32768")
    a(f"s_add_u32 s{XSO}, s{W4K}, 32768")
    a(f"buffer_load_dwordx4 v{VL16}, {sr(S_KV)}, s{XSO} offen sc1 lds"); vm.add(("kv", 1))
    for q in range(4):
        a(f"s_waitcnt lgkmcnt({5-q})")
        for i in (2*q, 2*q+1): a(f"v_pk_add_f32 {vr(ACC+2*i,2)}, {vr(ACC+2*i,2)}, {vr(EX+2*i,2)}")
        for i in (2*q, 2*q+1): a(f"v_pk_mul_f32 {vr(ACC+2*i,2)}, {vr(ACC+2*i,2)}, v[6:7] op_sel_hi:[1,0]")
        for i in (2*q, 2*q+1): a(f"v_cvt_pk_bf16_f32 v{QF+i}, v{ACC+2*i}, v{ACC+2*i+1}")
    a("s_waitcnt lgkmcnt(0)")
    a(f"v_mfma_f32_32x32x16_bf16 {vr(SA,16)}, {vr(KA,4)}, {vr(QF,4)}, 0")
    a(f"v_mfma_f32_32x32x16_bf16 {vr(SA,16)}, {vr(KA+4,4)}, {vr(QF+4,4)}, {vr(SA,16)}")
    def kvaddr(tile, off):
        p = ((tile >> 3) % 3) * 32768 + (tile & 7) * 4096 + off
        return (f"v{VL16} offset:{p}" if p < 65536 else f"v{VK1} offset:{p - 65536}")
    lg.tags = []
    k.ds(f"ds_read_b128 {vr(KA,4)}, {kvaddr(1, 0)}", ("K", 1))
    k.ds(f"ds_read_b128 {vr(KA+4,4)}, {kvaddr(1, 1024)}", ("K", 1))
    k.ds(f"ds_read_b128 {vr(VA,4)}, {kvaddr(0, 2048)}", ("V0", 0))
    a(f"v_add_u32 v{VK1}, 0x10000, v{VL16}")
    for i in range(16): a(f"v_mov_b32 v{OA+i}, 0")
    for i in range(4): a(f"v_mov_b32 v{LS+i}, 0")
    ffn.argmax2()
    a(f"v_max3_f32 v6, v{SA}, v{SA+1}, v{SA+2}")
    a(f"v_max3_f32 v5, v{SA+3}, v{SA+4}, v{SA+5}")
    a(f"v_max3_f32 v6, v6, v{SA+6}, v{SA+7}")
    a(f"v_max3_f32 v5, v5, v{SA+8}, v{SA+9}")
    a(f"v_max3_f32 v6, v6, v{SA+10}, v{SA+11}")
    a(f"v_max3_f32 v5, v5, v{SA+12}, v{SA+13}")
    a(f"v_max3_f32 v6, v6, v{SA+14}, v{SA+15}")
    a("v_max_f32 v6, v6, v5")
    a("v_mov_b32 v5, v6")
    a("v_permlane32_swap_b32 v6, v5")
    a("v_max_f32 v6, v6, v5")
    a(f"v_sub_f32 v{NM}, 0, v6")
    a(f"v_sub_f32 v{NM+1}, 0, v6")
    for i in range(8): a(f"v_pk_add_f32 {vr(SA+2*i,2)}, {vr(SA+2*i,2)}, {vr(NM,2)}")
    for i in range(1, 8): a(f"v_pk_mov_b32 {vr(NM+2*i,2)}, {vr(NM,2)}, {vr(NM,2)}")
    k.stamp("loop_start")
    for T in range(64):
        c, t = T >> 3, T & 7
        S, P = (SA, SB) if T % 2 == 0 else (SB, SA)
        e = lambda i: a(f"v_exp_f32 v{S+i}, v{S+i}")
        a(f"s_setprio {3 - ((T + 1) & 3)}")
        e(0); e(1)
        if T > 0:
            lg.wait(("V1", T - 1))
            a(f"v_smfmac_f32_32x32x32_bf16 {vr(OA,16)}, {vr(VA+4,4)}, {vr(P+8,8)}, v{IDXD}")
        k.ds(f"ds_read_b128 {vr(VA+4,4)}, {kvaddr(T, 3072)}", ("V1", T))
        e(2); e(3); e(4)
        if T > 0: a(f"v_smfmac_f32_16x16x64_bf16 {vr(LS,4)}, {vr(MA,4)}, {vr(P+8,8)}, v{IDXD}")
        e(5)
        if T < 63:
            lg.wait(("K", T + 1))
            a(f"v_mfma_f32_32x32x16_bf16 {vr(P,16)}, {vr(KA,4)}, {vr(QF,4)}, {vr(NM,16)}")
        e(6); e(7); e(8)
        if T < 63:
            a(f"v_mfma_f32_32x32x16_bf16 {vr(P,16)}, {vr(KA+4,4)}, {vr(QF+4,4)}, {vr(P,16)}")
        if t == 6 and c < 7:
            vm.wait(("kv", c + 1))
            a("s_barrier")
        if T + 2 <= 63:
            k.ds(f"ds_read_b128 {vr(KA,4)}, {kvaddr(T + 2, 0)}", ("K", T + 2))
            k.ds(f"ds_read_b128 {vr(KA+4,4)}, {kvaddr(T + 2, 1024)}", ("K", T + 2))
        kc, kp = (c + 2, 0) if t == 7 else (c + 1, t + 1)
        if (t == 7 or t <= 2) and kc <= 7:
            a(f"s_add_u32 m0, s{W4K}, {(kc % 3) * 32768 + kp * 1024}")
            a(f"s_add_u32 s{XSO}, s{W4K}, {kc * 32768 + kp * 1024}")
            a(f"buffer_load_dwordx4 v{VL16}, {sr(S_KV)}, s{XSO} offen sc1 lds"); vm.add(("kv", kc))
        e(9); e(10); e(11)
        lg.wait(("V0", T))
        a(f"v_smfmac_f32_32x32x32_bf16 {vr(OA,16)}, {vr(VA,4)}, {vr(S,8)}, v{IDXD}")
        if T < 63: k.ds(f"ds_read_b128 {vr(VA,4)}, {kvaddr(T + 1, 2048)}", ("V0", T + 1))
        e(12); e(13); e(14)
        a(f"v_smfmac_f32_16x16x64_bf16 {vr(LS,4)}, {vr(MA,4)}, {vr(S,8)}, v{IDXD}")
        e(15)
        if "noffn" not in VAR: ffn.tile_end(T)
        k.D.tile_end(T)
    a("s_setprio 0")
    lg.wait_all()
    a(f"v_smfmac_f32_32x32x32_bf16 {vr(OA,16)}, {vr(VA+4,4)}, {vr(SB+8,8)}, v{IDXD}")
    a(f"v_smfmac_f32_16x16x64_bf16 {vr(LS,4)}, {vr(MA,4)}, {vr(SB+8,8)}, v{IDXD}")
    k.stamp("loop_end")

FBASE = 98304
class FFN:
    VGU, VTR, VOD, VTD, XSL, VL4, XST, TMP, XS, WB, DD = 160, 161, 162, 163, 164, 165, 166, 168, 176, 192, 224
    FB, GSO, DSO, YSO, ASO = 66, 67, 94, 95, 65
    def __init__(self, k): self.k, self.a, self.vm = k, k.a, k.vm
    def early(self, part):
        t = self.TMP
        lines = []
        a = lines.append
        a(f"s_add_u32 s{self.FB}, s{W8K}, {FBASE}")
        a(f"v_lshrrev_b32 v{t}, 3, v2")
        a(f"v_mul_u32_u24 v{t}, 7168, v{t}")
        a(f"v_and_b32 v{t+1}, 7, v2")
        a(f"v_lshl_add_u32 v{self.VGU}, v{t+1}, 4, v{t}")
        a(f"v_bfe_u32 v{t}, v2, 2, 2")
        a(f"v_lshrrev_b32 v{t+1}, 4, v2")
        a(f"v_lshl_add_u32 v{t+1}, v{t+1}, 3, v{t}")
        a(f"v_lshlrev_b32 v{t+1}, 7, v{t+1}")
        a(f"v_and_b32 v{t+2}, 3, v2")
        a(f"v_lshl_add_u32 v{t+1}, v{t+2}, 3, v{t+1}")
        a(f"v_add_u32 v{self.VTR}, s{self.FB}, v{t+1}")
        a(f"v_lshrrev_b32 v{t+1}, 4, v2")
        a(f"v_lshlrev_b32 v{t+3}, 2, v{t+1}")
        a(f"v_xor_b32 v{t+3}, v{t+3}, v2")
        a(f"v_and_b32 v{t+3}, 15, v{t+3}")
        a(f"v_lshlrev_b32 v{t+3}, 4, v{t+3}")
        a(f"v_lshl_add_u32 v{t+3}, v{t+1}, 11, v{t+3}")
        a(f"s_lshl_b32 s{T0}, s3, 8")
        a(f"v_add_u32 v{self.VOD}, s{T0}, v{t+3}")
        a(f"v_mul_u32_u24 v{t}, 320, v{t}")
        a(f"v_lshl_add_u32 v{t}, v{VH}, 11, v{t}")
        a(f"v_bfe_u32 v{t+1}, v2, 4, 1")
        a(f"v_lshl_add_u32 v{t}, v{t+1}, 5, v{t}")
        a(f"v_lshl_add_u32 v{t}, v{t+2}, 3, v{t}")
        a(f"v_add_u32 v{self.VTD}, s{self.FB}, v{t}")
        a(f"v_lshlrev_b32 v{self.VL4}, 2, v2")
        a(f"v_and_b32 v{t}, 60, v{self.VL4}")
        a(f"v_mov_b32 v{t+1}, 0")
        a(f"s_and_b32 s{T0}, s{FCG}, 3")
        a(f"s_lshl_b32 s{T0}, s{T0}, 3")
        a(f"s_add_u32 s{T0}, s{T0}, s3")
        a(f"s_lshl_b32 s{SP}, s{T0}, 6")
        a(f"s_mul_i32 s{self.GSO}, s{T0}, {32*7168}")
        a(f"s_lshr_b32 s{T1}, s{FCG}, 2")
        a(f"s_lshl_b32 s{T2}, s{T1}, 7")
        a(f"s_add_u32 s{self.GSO}, s{self.GSO}, s{T2}")
        a(f"s_lshl_b32 s{self.ASO}, s{T1}, 8")
        a(f"s_add_u32 s{self.ASO}, s{self.ASO}, {WS_GU:#x}")
        a(f"s_lshl_b32 s{self.DSO}, s{FCG}, 15")
        a(f"s_and_b32 s{self.YSO}, s2, 7")
        a(f"s_lshl_b32 s{self.YSO}, s{self.YSO}, 12")
        a(f"s_lshl_b32 s{T0}, s3, 9")
        a(f"s_add_u32 s{self.YSO}, s{self.YSO}, s{T0}")
        a(f"s_add_u32 s{self.YSO}, s{self.YSO}, {WS_YACC:#x}")
        a("s_cmp_lt_u32 s2, 224")
        for r in (self.GSO, self.DSO, self.YSO, self.ASO):
            a(f"s_cselect_b32 s{r}, s{r}, 0x40000000")
        srd(a, S_WD, P_WD, 3584 * 2048)
        srd(a, S_OUT, P_OUT, 2048 * 2048)
        cut = [0, 12, 29, len(lines)]
        for x in lines[cut[part]:cut[part+1]]: self.a(x)
    def argmax1(self):
        a, RK = self.a, self.k.RK
        a(f"v_max_u32 v5, v{RK}, v{RK+1}")
        for sh in (8, 4, 2, 1):
            a(f"v_max_u32_dpp v5, v5, v5 row_ror:{sh} row_mask:0xf bank_mask:0xf")
        srd(a, S_W, P_WO, 1024 * 2048)
        for i, s in enumerate((T0, T1, T2, T3)): a(f"v_readlane_b32 s{s}, v5, {16*i}")
    def argmax2(self):
        a, vm = self.a, self.vm
        a(f"s_max_u32 s{T0}, s{T0}, s{T1}")
        a(f"s_max_u32 s{T2}, s{T2}, s{T3}")
        a(f"s_max_u32 s{RKEY}, s{T0}, s{T2}")
        a(f"s_and_b32 s{IDX}, s{RKEY}, 0xffff")
        a(f"s_sub_u32 s{IDX}, 0xffff, s{IDX}")
        a(f"s_and_b32 s{IDX}, s{IDX}, 2047")
    def arrive(self, soff):
        a, t = self.a, self.TMP
        a(f"v_mov_b32 v{t+6}, 1")
        a("s_mov_b64 exec, 1")
        a(f"buffer_atomic_add v{t+6}, v{self.VL4}, {sr(S_WS)}, s{soff} offen sc1"); self.vm.add("arr")
        a("s_mov_b64 exec, -1")
    def tile_end(self, T):
        k, a, vm, t = self.k, self.a, self.vm, self.TMP
        GU_T = [2, 4, 6, 10, 12, 14, 18, 20]
        WD_T = [28, 30, 34, 36]
        if T == 0:
            a(f"s_lshl_b32 s{T0}, s{IDX}, 11")
            a(f"s_add_u32 s{T0}, s{T0}, s{SP}")
            a(f"buffer_load_dword v{self.XSL}, v{t}, {sr(S_X)}, s{T0} offen"); vm.add("xs")
        if T == 1:
            a(f"s_lshl_b32 s{T0}, s{IDX}, 3")
            a(f"s_add_u32 s{T0}, s{T0}, {WS_STAT:#x}")
            a(f"buffer_load_dwordx2 {vr(self.XST,2)}, v{t+1}, {sr(S_WS)}, s{T0} offen sc1"); vm.add("xs")
        if T in GU_T:
            i = GU_T.index(T); mat, j = i >> 2, i & 3
            a(f"s_add_u32 m0, s{self.FB}, {i*1024}")
            a(f"s_add_u32 s{T0}, s{self.GSO}, {j*8*7168}")
            a(f"buffer_load_dwordx4 v{self.VGU}, {sr(S_WU if mat else S_WG)}, s{T0} offen lds"); vm.add("u" if mat else "g")
        if T == 8:
            vm.wait("xs")
            a(f"v_lshlrev_b32 v{t}, 16, v{self.XSL}")
            a(f"v_and_b32 v{t+1}, 0xffff0000, v{self.XSL}")
            a(f"v_sub_f32 v{t}, v{t}, v{self.XST}")
            a(f"v_sub_f32 v{t+1}, v{t+1}, v{self.XST}")
            a(f"v_cvt_pk_bf16_f32 v{t+2}, v{t}, v{t+1}")
            a(f"v_lshlrev_b32 v{t}, 16, v{t+2}")
            a(f"v_and_b32 v{t+1}, 0xffff0000, v{t+2}")
            a(f"v_mul_f32 v{t}, v{t}, v{self.XST+1}")
            a(f"v_mul_f32 v{t+1}, v{t+1}, v{self.XST+1}")
            a(f"v_cvt_pk_bf16_f32 v{t+2}, v{t}, v{t+1}")
            a(f"v_and_b32 v{t+3}, 0x30, v2")
            for j in range(4):
                k.ds(f"ds_bpermute_b32 v{self.XS+j}, v{t+3}, v{t+2} offset:{4*j}", "xsf")
        if 22 <= T <= 25:
            if T == 22: vm.wait("g")
            if T == 24: vm.wait("u")
            m, hf = (T - 22) >> 1, (T - 22) & 1
            for ct in (2*hf, 2*hf+1):
                for u in range(2):
                    k.ds(f"ds_read_b64_tr_b16 {vr(self.WB+16*m+4*ct+2*u,2)}, v{self.VTR} offset:{m*4096 + u*512 + ct*32}", ("gw", T))
        if 24 <= T <= 27:
            m, hf = (T - 24) >> 1, (T - 24) & 1
            k.lg.wait(("gw", T - 2), "xsf")
            for ct in (2*hf, 2*hf+1):
                a(f"v_mfma_f32_16x16x32_bf16 {vr(self.DD+16*m+4*ct,4)}, {vr(self.XS,4)}, {vr(self.WB+16*m+4*ct,4)}, 0")
        if T == 28:
            for ct in range(1, 4):
                for m in range(2):
                    D = self.DD + 16*m
                    a(f"v_mov_b32_dpp v{D}, v{D+4*ct} quad_perm:[0,1,2,3] row_mask:{1 << ct:#x} bank_mask:0xf")
            a(f"s_add_u32 s{T0}, s{self.ASO}, {3584*4}")
            a(f"buffer_atomic_add_f32 v{self.DD}, v{self.VL4}, {sr(S_WS)}, s{self.ASO} offen"); vm.add("at1")
            a(f"buffer_atomic_add_f32 v{self.DD+16}, v{self.VL4}, {sr(S_WS)}, s{T0} offen"); vm.add("at1")
        if T in WD_T:
            j = WD_T.index(T)
            a(f"s_add_u32 m0, s{self.FB}, {j*1024}")
            a(f"s_add_u32 s{T0}, s{self.DSO}, {j*8192}")
            a(f"buffer_load_dwordx4 v{self.VOD}, {sr(S_WD)}, s{T0} offen lds"); vm.add("wd")
        if T == 35:
            vm.wait("at1")
            a(f"s_lshr_b32 s{self.GSO}, s{FCG}, 2")
            a(f"s_lshl_b32 s{self.GSO}, s{self.GSO}, 7")
            a(f"s_add_u32 s{self.GSO}, s{self.GSO}, {SY4:#x}")
            a("s_cmp_lt_u32 s2, 224")
            a(f"s_cselect_b32 s{self.GSO}, s{self.GSO}, 0x40000000")
            self.arrive(self.GSO)
        G = self.DD
        W0F = f"s_cmp_lt_u32 s{CNT}, 224"
        if T == 40:
            a(f"s_lshl_b32 s{CNT}, s3, 8")
            a(f"s_add_u32 s{CNT}, s{CNT}, s2")
            a(f"v_mov_b32 v{t}, 0")
            k.only(W0F, lambda: a(f"buffer_load_dword v{t+1}, v{t}, {sr(S_WS)}, s{self.GSO} offen sc1"))
            vm.mark("p4")
        if T == 42:
            def p2():
                a(f"s_waitcnt vmcnt({vm.since('p4')})")
                k.poll(t, t + 1, self.GSO, 32, cnt=T3)
                a(f"v_and_b32 v{t}, 60, v{self.VL4}")
                a(f"v_bfe_u32 v{t+1}, v2, 4, 1")
                a(f"v_mul_u32_u24 v{t+1}, {3584*4}, v{t+1}")
                a(f"v_add_u32 v{t+1}, v{t+1}, v{t}")
                a(f"s_lshl_b32 s{T0}, s{FCG}, 6")
                a(f"s_add_u32 s{T0}, s{T0}, {WS_GU:#x}")
                a(f"buffer_load_dword v{G}, v{t+1}, {sr(S_WS)}, s{T0} offen sc1")
            k.only(W0F, p2)
            vm.mark("gl")
        if T == 45:
            def hh():
                a(f"s_waitcnt vmcnt({vm.since('gl')})")
                bf16r(a, G, G)
                a(f"v_mov_b32 v{G+1}, v{G}")
                a(f"v_permlane16_swap_b32 v{G}, v{G+1}")
                a(f"v_mul_f32 v{G+2}, {f32(-LOG2E)}, v{G}")
                a(f"v_exp_f32 v{G+2}, v{G+2}")
                a(f"v_add_f32 v{G+2}, 1.0, v{G+2}")
                a(f"v_rcp_f32 v{G+2}, v{G+2}")
                a(f"v_mul_f32 v{G}, v{G}, v{G+2}")
                bf16r(a, G, G)
                a(f"v_mul_f32 v{G}, v{G}, v{G+1}")
                a(f"v_cvt_pk_bf16_f32 v{G}, v{G}, v{G}")
                a(f"v_lshrrev_b32 v{t}, 1, v{t}")
                a(f"v_add_u32 v{t}, {FBASE + 4096}, v{t}")
                a(f"ds_write_b16 v{t}, v{G}")
                a("s_waitcnt lgkmcnt(0)")
            k.only(W0F, hh)
        HF, WD, DD = 168, 176, 192
        if T in (43, 44):
            if T == 43: vm.wait("wd")
            for j in (2*(T-43), 2*(T-43)+1):
                if j: a(f"v_xor_b32 v{t+4+j}, {64*j}, v{self.VTD}")
                ad = (t + 4 + j) if j else self.VTD
                for u in range(2):
                    k.ds(f"ds_read_b64_tr_b16 {vr(WD+4*j+2*u,2)}, v{ad} offset:{u*1024}", "wdf")
        if T == 46:
            a(f"v_lshlrev_b32 v{t+4}, 4, v{VH}")
            a(f"v_add_u32 v{t+4}, {FBASE + 4096}, v{t+4}")
            k.ds(f"ds_read_b128 {vr(HF,4)}, v{t+4}", "hf")
        if 47 <= T <= 50:
            j = T - 47
            k.lg.wait("hf", "wdf")
            a(f"v_mfma_f32_32x32x16_bf16 {vr(DD+16*j,16)}, {vr(HF,4)}, {vr(WD+4*j,4)}, 0")
        if T == 51:
            a(f"v_mov_b32_dpp v{DD}, v{DD+16} quad_perm:[0,1,2,3] row_mask:0xc bank_mask:0xf")
            a(f"v_mov_b32_dpp v{DD+32}, v{DD+48} quad_perm:[0,1,2,3] row_mask:0xc bank_mask:0xf")
            a(f"buffer_atomic_add_f32 v{DD}, v{self.VL4}, {sr(S_WS)}, s{self.YSO} offen"); vm.add("at")
            a(f"buffer_atomic_add_f32 v{DD+32}, v{self.VL4}, {sr(S_WS)}, s{self.YSO} offen offset:256"); vm.add("at")
        if T == 59:
            vm.wait("at")
            a(f"s_lshr_b32 s{T0}, s2, 3")
            a(f"s_lshl_b32 s{T0}, s{T0}, 7")
            a(f"s_add_u32 s{T0}, s{T0}, {SY3:#x}")
            self.arrive(T0)

class PhaseD:
    XR, ST, VXO = 8, 30, 16
    VOF, VWD = 24, (17, 18, 1)
    XFL, G, XF, ACCO, ACCX, WREG = 32, 48, 64, 96, 112, 128
    def __init__(self, k):
        self.k, self.a, self.vm = k, k.a, k.vm
        def rot(c, shift, extra, base):
            return f"""s_add_u32 s{TD}, s{ROT}, {c}
            s_and_b32 s{TD}, s{TD}, 15
            s_lshl_b32 s{TD}, s{TD}, {shift}
            s_add_u32 s{TD}, s{TD}, s{base}""" + (f"\ns_add_u32 s{TD}, s{TD}, {extra}" if extra else "")
        def ldw(n): return lambda p: f"s_add_u32 m0, s{W1K}, {p*8192}\n" + rot(n >> 1, 17, (n & 1) * 16 * 2048, SEL) + f"\nbuffer_load_dwordx4 v{VOW}, {sr(S_W)}, s{TD} offen lds"
        def ldo(c): return lambda p: f"s_add_u32 m0, s{W1K}, {p*8192}\n" + rot(c, 12, 0, OBASE) + f"\nbuffer_load_dwordx4 v{VL16}, {sr(S_WS)}, s{TD} offen sc1 lds"
        seq = [(("w", n), ldw(n), None, list(range(19, -1, -1))) for n in range(24)]
        seq += [(("o", c), ldo(c), None, list(range(16))) for c in range(16)]
        seq += [(("w", n), ldw(n), None, [16, 17, 18, 19]) for n in range(24, 32)]
        self.pg = Pager(k, range(8, 20), seq)
    def tile_end(self, T):
        k, a, vm = self.k, self.a, self.vm
        if T == 44:
            a(f"s_lshr_b32 s{T0}, s2, 3")
            a(f"s_lshl_b32 s{T0}, s{T0}, 16")
            a(f"v_lshlrev_b32 v{self.VXO}, 7, v0")
            a(f"buffer_load_dword v{self.XR}, v{self.VXO}, {sr(S_W)}, s{T0} offen"); vm.add("pf")
        if T == 51:
            a(f"v_lshlrev_b32 v{self.VXO}, 11, v{VN}")
            a(f"v_lshl_add_u32 v{self.VXO}, v{VH}, 5, v{self.VXO}")
            a(f"s_lshl_b32 s{T1}, s{RB2}, 1")
            a(f"s_add_u32 s{T1}, s{T1}, s{RT}")
            a(f"s_lshl_b32 s{XO2}, s{T1}, 16")
            a(f"s_lshl_b32 s{SEL}, s{CB2}, 8")
            a(f"s_add_u32 s{XO2}, s{XO2}, s{SEL}")
            a(f"s_lshl_b32 s{T0}, s{HD}, 6")
            a(f"s_add_u32 s{XO2}, s{XO2}, s{T0}")
            a(f"buffer_load_dwordx4 {vr(self.XR,4)}, v{self.VXO}, {sr(S_X)}, s{XO2} offen"); vm.add("x2")
            a(f"s_lshl_b32 s{ROT}, s{CB2}, 1")
            a(f"s_lshr_b32 s{T0}, s{IDX}, 5")
            a(f"s_cmp_eq_u32 s{T0}, s{T1}")
            a(f"s_cselect_b32 s{MODE}, 1, 0")
        if T == 52:
            a(f"s_lshl_b32 s{T1}, s{RB2}, 1")
            a(f"s_add_u32 s{T1}, s{T1}, s{RT}")
            a(f"s_lshl_b32 s{T0}, s{T1}, 8")
            a(f"s_add_u32 s{T0}, s{T0}, {WS_STAT:#x}")
            a(f"v_lshlrev_b32 v5, 3, v{VN}")
            a(f"buffer_load_dwordx2 {vr(self.ST,2)}, v5, {sr(S_WS)}, s{T0} offen sc1"); vm.add("x2")
        if T == 53:
            a(f"buffer_load_dwordx4 {vr(self.XR+4,4)}, v{self.VXO}, {sr(S_X)}, s{XO2} offen offset:16"); vm.add("x2")
            a(f"s_lshl_b32 s{T0}, s{ROWT}, 5")
            a(f"s_lshl_b32 s{T1}, s{HB}, 2")
            a(f"s_add_u32 s{T0}, s{T0}, s{T1}")
            a(f"s_add_u32 s{T0}, s{T0}, s{HD}")
            a(f"s_lshl_b32 s{T0}, s{T0}, 11")
            a(f"s_add_u32 s{OSO}, s{T0}, {WS_OF:#x}")
        if 54 <= T <= 61:
            for g in self.pg.take(2 if T < 58 else 1): self.pg.issue(g)
    def run(self):
        k, a, vm, lg, pg = self.k, self.a, self.vm, self.k.lg, self.pg
        XR, ST, VXO, VOF, VWD, XFL, G, XF, ACCO, ACCX, WREG = (self.XR, self.ST, self.VXO, self.VOF, self.VWD, self.XFL,
                                                              self.G, self.XF, self.ACCO, self.ACCX, self.WREG)
        a("v_bfe_u32 v5, v2, 2, 2")
        a(f"v_lshl_add_u32 v6, v{VH}, 2, v5")
        a("v_lshlrev_b32 v6, 6, v6")
        a("v_and_b32 v5, 1, v2")
        a("v_lshl_add_u32 v6, v5, 5, v6")
        a("v_bfe_u32 v5, v2, 4, 1")
        a("v_lshl_add_u32 v6, v5, 4, v6")
        a("v_bfe_u32 v5, v2, 1, 1")
        a("v_lshl_add_u32 v6, v5, 3, v6")
        a(f"v_add_u32 v{VWD[0]}, s{W1K}, v6")
        a(f"v_add_u32 v{VWD[1]}, 0x10000, v{VWD[0]}")
        a(f"v_add_u32 v{VWD[2]}, 0x20000, v{VWD[0]}")
        a(f"v_mov_b32 v6, {f32(2.0**64)}")
        for i in range(4): a(f"v_pk_add_f32 {vr(SA+2*i,2)}, {vr(OA+4*i,2)}, {vr(OA+4*i+2,2)}")
        a(f"v_pk_add_f32 {vr(SA,2)}, {vr(SA,2)}, {vr(SA+2,2)}")
        a(f"v_pk_add_f32 {vr(SA+4,2)}, {vr(SA+4,2)}, {vr(SA+6,2)}")
        a(f"v_pk_add_f32 {vr(SA,2)}, {vr(SA,2)}, {vr(SA+4,2)}")
        a(f"v_add_f32 v5, v{SA}, v{SA+1}")
        a(f"v_fma_f32 v5, v5, 0, v{LS}")
        a("v_cmp_nlt_f32 vcc, v5, v6")
        a("s_nop 1")
        if "forcefb" in VAR: a("s_branch L_fallback")
        a("s_cbranch_vccnz L_fallback")
        a.label("L_fin")
        a(f"v_rcp_f32 v6, v{LS}")
        for i in range(8): a(f"v_pk_mul_f32 {vr(OA+2*i,2)}, {vr(OA+2*i,2)}, v[6:7] op_sel_hi:[1,0]")
        for i in range(8): a(f"v_cvt_pk_bf16_f32 v{SA+i}, v{OA+2*i}, v{OA+2*i+1}")
        a(f"buffer_store_dwordx4 {vr(SA,4)}, v{VL16}, {sr(S_WS)}, s{OSO} offen sc1"); vm.add("ost")
        a(f"buffer_store_dwordx4 {vr(SA+4,4)}, v{VL16}, {sr(S_WS)}, s{OSO} offen offset:1024 sc1"); vm.add("ost")
        def wread(n):
            vm.wait(("w", n))
            p = pg.page[("w", n)]
            for u in range(2):
                k.ds(f"ds_read_b64_tr_b16 {vr(WREG+4*n+2*u,2)}, v{VWD[p >> 3]} offset:{(p & 7)*8192 + 8*u*64}", ("wr", n))
        def wfree(n):
            lg.wait(("wr", n)); pg.free.append(pg.page[("w", n)])
        def xn_ops(src, lo, hi, g0, g1, m, ri):
            return [f"v_lshlrev_b32 v{lo}, 16, v{src}", f"v_and_b32 v{hi}, 0xffff0000, v{src}",
                    f"v_sub_f32 v{g0}, v{lo}, v{m}", f"v_sub_f32 v{g1}, v{hi}, v{m}",
                    f"v_cvt_pk_bf16_f32 v6, v{g0}, v{g1}",
                    f"v_lshlrev_b32 v{g0}, 16, v6", f"v_and_b32 v{g1}, 0xffff0000, v6",
                    f"v_mul_f32 v{g0}, v{g0}, v{ri}", f"v_mul_f32 v{g1}, v{g1}, v{ri}",
                    f"v_cvt_pk_bf16_f32 v6, v{g0}, v{g1}",
                    f"v_lshlrev_b32 v{g0}, 16, v6", f"v_and_b32 v{g1}, 0xffff0000, v6"]
        def silu_ops(g0, g1):
            return [f"v_mul_f32 v6, {f32(-LOG2E)}, v{g0}", f"v_mul_f32 v7, {f32(-LOG2E)}, v{g1}",
                    "v_exp_f32 v6, v6", "v_exp_f32 v7, v7",
                    "v_add_f32 v6, 1.0, v6", "v_add_f32 v7, 1.0, v7",
                    "v_rcp_f32 v6, v6", "v_rcp_f32 v7, v7",
                    f"v_mul_f32 v{g0}, v{g0}, v6", f"v_mul_f32 v{g1}, v{g1}, v7",
                    f"v_cvt_pk_bf16_f32 v6, v{g0}, v{g1}",
                    f"v_lshlrev_b32 v{g0}, 16, v6", f"v_and_b32 v{g1}, 0xffff0000, v6"]
        gate = []
        for p in range(8): gate += xn_ops(XR+p, XFL+2*p, XFL+2*p+1, G+2*p, G+2*p+1, ST, ST+1)
        for p in range(8): gate += silu_ops(G+2*p, G+2*p+1)
        def gops(n):
            for _ in range(min(n, len(gate))): a(gate.pop(0))
        for n in range(12): wread(n)
        for n in range(4):
            wfree(n)
            for g in pg.take(1): pg.issue(g)
        vm.wait("ost")
        a("s_barrier")
        def arr():
            a(f"s_lshl_b32 s{T0}, s{RB}, 7")
            a(f"s_add_u32 s{T0}, s{T0}, {SY2:#x}")
            a("v_mov_b32 v5, 1")
            a("v_mov_b32 v6, 0")
            a("s_mov_b64 exec, 1")
            a(f"buffer_atomic_add v5, v6, {sr(S_WS)}, s{T0} offen sc1")
            a("s_mov_b64 exec, -1")
        k.only("s_cmp_eq_u32 s3, 0", arr)
        k.stamp("E1")
        for n in range(4, 12): wfree(n)
        PV = XF
        a(f"v_mov_b32 v{PV}, 0")
        a(f"s_lshl_b32 s{T3}, s{RB2}, 7")
        a(f"s_add_u32 s{T3}, s{T3}, {SY2:#x}")
        nxt = 12
        for i, g in enumerate(pg.take(16, stop=("o", 0))):
            pg.issue(g); gops(8)
            if i >= 2: wread(nxt); nxt += 1
            if i == D_POLL:
                k.only("s_cmp_eq_u32 s3, 7", lambda: a(f"buffer_load_dword v{PV+1}, v{PV}, {sr(S_WS)}, s{T3} offen sc1"))
        a(f"s_lshl_b32 s{OBASE}, s{RB2}, 1")
        a(f"s_lshr_b32 s{T0}, s3, 2")
        a(f"s_add_u32 s{OBASE}, s{OBASE}, s{T0}")
        a(f"s_lshl_b32 s{OBASE}, s{OBASE}, 16")
        a(f"s_and_b32 s{T0}, s3, 3")
        a(f"s_lshl_b32 s{T0}, s{T0}, 10")
        a(f"s_add_u32 s{OBASE}, s{OBASE}, s{T0}")
        a(f"s_add_u32 s{OBASE}, s{OBASE}, {WS_OF:#x}")
        a(f"s_mul_i32 s{T0}, s{RT}, {4096 + 2048}")
        a(f"v_add_u32 v{VOF}, s{T0}, v{VL16}")
        a(f"v_xor_b32 v{VOF+1}, 0x1000, v{VOF}")
        a(f"v_add_u32 v{VOF+2}, 0x10000, v{VOF}")
        a(f"v_add_u32 v{VOF+3}, 0x10000, v{VOF+1}")
        while nxt < 24:
            wread(nxt); nxt += 1; gops(6)
        lg.wait_all()
        k.only("s_cmp_eq_u32 s3, 7", lambda: k.poll(PV, PV + 1, T3, 8))
        a("s_barrier")
        k.stamp("E2")
        pg.free = list(range(20))
        OWN = f"s_cmp_eq_u32 s{MODE}, 1"
        YA, YD = 28, 29
        a(f"v_lshlrev_b32 v{YA}, 7, v{VN}")
        a(f"s_mov_b32 s{T3}, {SY3:#x}")
        od = pg.take(20)
        for g in od[:6]:
            pg.issue(g); gops(8)
        k.only(OWN, lambda: a(f"buffer_load_dword v{YD}, v{YA}, {sr(S_WS)}, s{T3} offen sc1"))
        od = od[6:]
        gops(1000)
        Y, X4, XN, YS, YB = WREG + 16, WREG + 20, WREG + 24, WREG + 28, WREG + 32
        def y_load():
            k.poll(YA, YD, T3, 64)
            a(f"v_lshrrev_b32 v{YA}, 3, v2")
            a(f"v_lshlrev_b32 v{YA}, 12, v{YA}")
            a(f"v_and_b32 v{YD}, 7, v2")
            a(f"v_lshl_add_u32 v{YA}, v{YD}, 4, v{YA}")
            a(f"s_lshl_b32 s{T0}, s{CB2}, 9")
            a(f"s_lshl_b32 s{T1}, s{HD}, 7")
            a(f"s_add_u32 s{T0}, s{T0}, s{T1}")
            a(f"s_add_u32 s{T1}, s{T0}, {WS_YACC:#x}")
            a(f"buffer_load_dwordx4 {vr(Y,4)}, v{YA}, {sr(S_WS)}, s{T1} offen sc1")
            a(f"s_lshr_b32 s{T0}, s{T0}, 1")
            a(f"s_lshl_b32 s{T1}, s{IDX}, 11")
            a(f"s_add_u32 s{T0}, s{T0}, s{T1}")
            a(f"v_lshlrev_b32 v{YD}, 3, v{YD}")
            a(f"buffer_load_dwordx2 {vr(X4,2)}, v{YD}, {sr(S_X)}, s{T0} offen")
            a(f"s_lshl_b32 s{T0}, s{IDX}, 3")
            a(f"s_add_u32 s{T0}, s{T0}, {WS_STAT:#x}")
            a(f"v_mov_b32 v{YD}, 0")
            a(f"buffer_load_dwordx2 {vr(YS,2)}, v{YD}, {sr(S_WS)}, s{T0} offen sc1")
            a(f"s_and_b32 s{T1}, s{RKEY}, 0xffff0000")
            a(f"s_xor_b32 s{T2}, s{T1}, 0x80000000")
            a(f"s_xor_b32 s{T0}, s{T1}, 0xffff0000")
            a(f"s_bitcmp1_b32 s{T1}, 31")
            a(f"s_cselect_b32 s{T1}, s{T2}, s{T0}")
            a(f"v_mov_b32 v{YA}, s{T1}")
            a(f"v_mul_f32 v{YA}, {f32(-LOG2E)}, v{YA}")
            a(f"v_exp_f32 v{YA}, v{YA}")
            a(f"v_add_f32 v{YA}, 1.0, v{YA}")
            a(f"v_rcp_f32 v{YA}, v{YA}")
            bf16r(a, YA, YA)
        def y_sum():
            a("s_waitcnt vmcnt(0)")
            for e in range(4): a(f"v_add_f32_dpp v{Y+e}, v{Y+e}, v{Y+e} row_ror:8 row_mask:0xf bank_mask:0xf")
            for sw in ("v_permlane16_swap_b32", "v_permlane32_swap_b32"):
                for e in range(4): a(f"v_mov_b32 v{XN+e}, v{Y+e}")
                for e in range(4): a(f"{sw} v{Y+e}, v{XN+e}")
                for e in range(4): a(f"v_add_f32 v{Y+e}, v{Y+e}, v{XN+e}")
        def y_scale():
            for e in range(4):
                bf16r(a, Y+e, Y+e)
                a(f"v_mul_f32 v{Y+e}, v{Y+e}, v{YA}")
                bf16r(a, Y+e, Y+e)
        def y_xn():
            for p in range(2):
                for x in xn_ops(X4+p, YB, YB+1, XN+2*p, XN+2*p+1, YS, YS+1): a(x)
        def y_add():
            for e in range(4):
                a(f"v_add_f32 v{XN+e}, v{XN+e}, v{Y+e}")
                bf16r(a, XN+e, XN+e)
            for x in silu_ops(XN, XN+1): a(x)
        def y_perm():
            for x in silu_ops(XN+2, XN+3): a(x)
            a(f"v_lshlrev_b32 v{YD}, 4, v{VH}")
            for q in range(4):
                for e in range(4): a(f"ds_bpermute_b32 v{YB+4*q+e}, v{YD}, v{XN+e} offset:{4*q}")
        def y_put():
            a("s_waitcnt lgkmcnt(0)")
            a(f"s_and_b32 s{T1}, s{IDX}, 31")
            a(f"v_cmp_eq_u32 vcc, s{T1}, v{VN}")
            for i in range(16): a(f"v_cndmask_b32 v{G+i}, v{G+i}, v{YB+i}, vcc")
        ysteps = {5: y_load, 8: y_sum, 9: y_scale, 10: y_xn, 11: y_add, 12: y_perm}
        avail = {0: 2, 2: 4, 4: 8, 8: 12, 12: 16}
        pool = [XF, XF + 16]
        xb = {}
        def rd_ops(c):
            if not pool: return None
            xb[c] = pool.pop(0)
            def bar():
                vm.wait(*[("o", i) for i in range(avail[c])])
                a("s_barrier")
            def r(e):
                p = pg.page[("o", c)]
                for t in range(2):
                    k.ds(f"ds_read_b128 {vr(xb[c]+4*(2*t+e),4)}, v{VOF + 2*(p >> 3) + t} offset:{(p & 7)*8192 + e*1024}", ("d", c, e))
            return ([bar] if c in avail else []) + [lambda: r(0), lambda: r(1)]
        def rd(c):
            for o in rd_ops(c): o()
        rd(0); k.stamp("D0"); rd(1)
        def mf(c, e, t):
            acc = ACCX if t else ACCO
            cc = "0" if (c == 0 and e == 0) else vr(acc, 16)
            a(f"v_mfma_f32_32x32x16_bf16 {vr(acc,16)}, {vr(WREG+4*(2*c+e),4)}, {vr(xb[c]+4*(2*t+e),4)}, {cc}")
        def d1():
            if od: pg.issue(od.pop(0))
        for c in range(14):
            def m0(e):
                lg.wait(("d", c, e), ("wr", 2*c+e)); mf(c, e, 0)
            ms = [lambda: m0(0), lambda: mf(c, 0, 1), lambda: m0(1), lambda: mf(c, 1, 1)]
            extra = []
            if c == 8: extra = [lambda n=n: wread(n) for n in range(24, 28)]
            if c == 12: extra = [lambda n=n: wread(n) for n in range(28, 32)]
            if c == 9:
                for n in range(24, 28): wfree(n)
                od += pg.take(4)
            ro = rd_ops(c + 2)
            interleave(ms, [d1, d1] + (ro or []) + extra)
            pool.append(xb[c])
            if c == 1: pool.append(WREG)
            if ro is None: rd(c + 2)
            if c in ysteps: k.only(OWN, ysteps[c])
        lg.wait_all()
        a(f"v_add_u32 v5, s{W1K}, v{VL16}")
        for c in (14, 15):
            for e in range(2): mf(c, e, 1)
        a("v_add_u32 v5, 0x20000, v5")
        k.only(OWN, y_put)
        a("v_xor_b32 v6, 0x400, v5")
        mf(14, 0, 0); mf(14, 1, 0); mf(15, 0, 0)
        a("s_nop 6")
        for q in range(4): a(f"ds_write_b128 v5, {vr(ACCX+4*q,4)} offset:{q*8192}")
        mf(15, 1, 0)
        k.stamp("D_end")
        a("s_waitcnt lgkmcnt(0)")
        a("s_barrier")
        for q in range(4): a(f"ds_read_b128 {vr(WREG+16+4*q,4)}, v6 offset:{q*8192}")
        for q in range(4):
            a(f"s_waitcnt lgkmcnt({3-q})")
            for i in (2*q, 2*q+1): a(f"v_pk_add_f32 {vr(ACCO+2*i,2)}, {vr(ACCO+2*i,2)}, {vr(WREG+16+2*i,2)}")
            for i in (2*q, 2*q+1): a(f"v_pk_fma_f32 {vr(ACCO+2*i,2)}, {vr(ACCO+2*i,2)}, {vr(G+2*i,2)}, {vr(XFL+2*i,2)}")
            for i in (2*q, 2*q+1): a(f"v_cvt_pk_bf16_f32 v{XR+i}, v{ACCO+2*i}, v{ACCO+2*i+1}")
            if q == 1: a(f"buffer_store_dwordx4 {vr(XR,4)}, v{VXO}, {sr(S_OUT)}, s{XO2} offen" + OUTF)
        a(f"buffer_store_dwordx4 {vr(XR+4,4)}, v{VXO}, {sr(S_OUT)}, s{XO2} offen offset:16" + OUTF)
        k.stamp("end")

def fallback(k):
    a = k.a
    a.label("L_fallback")
    a.flush()
    a("v_mov_b32 v6, 0xff800000")
    a(f"s_mov_b32 s{T0}, 0")
    a.label("L_fb1")
    a(f"buffer_load_dwordx4 {vr(KA,4)}, v{VL16}, {sr(S_KV)}, s{T0} offen sc1")
    a(f"buffer_load_dwordx4 {vr(KA+4,4)}, v{VL16}, {sr(S_KV)}, s{T0} offen offset:1024 sc1")
    a("s_waitcnt vmcnt(0)")
    a(f"v_mfma_f32_32x32x16_bf16 {vr(SA,16)}, {vr(KA,4)}, {vr(QF,4)}, 0")
    a(f"v_mfma_f32_32x32x16_bf16 {vr(SA,16)}, {vr(KA+4,4)}, {vr(QF+4,4)}, {vr(SA,16)}")
    for i in range(0, 16, 2): a(f"v_max3_f32 v6, v6, v{SA+i}, v{SA+i+1}")
    a(f"s_add_u32 s{T0}, s{T0}, 4096")
    a(f"s_cmp_lt_u32 s{T0}, 0x40000")
    a("s_cbranch_scc1 L_fb1")
    a("v_mov_b32 v5, v6")
    a("v_permlane32_swap_b32 v6, v5")
    a("v_max_f32 v6, v6, v5")
    for i in range(16): a(f"v_sub_f32 v{NM+i}, 0, v6")
    for i in range(16): a(f"v_mov_b32 v{OA+i}, 0")
    for i in range(4): a(f"v_mov_b32 v{LS+i}, 0")
    a(f"s_mov_b32 s{T0}, 0")
    a.label("L_fb2")
    a(f"buffer_load_dwordx4 {vr(KA,4)}, v{VL16}, {sr(S_KV)}, s{T0} offen sc1")
    a(f"buffer_load_dwordx4 {vr(KA+4,4)}, v{VL16}, {sr(S_KV)}, s{T0} offen offset:1024 sc1")
    a(f"buffer_load_dwordx4 {vr(VA,4)}, v{VL16}, {sr(S_KV)}, s{T0} offen offset:2048 sc1")
    a(f"buffer_load_dwordx4 {vr(VA+4,4)}, v{VL16}, {sr(S_KV)}, s{T0} offen offset:3072 sc1")
    a("s_waitcnt vmcnt(0)")
    a(f"v_mfma_f32_32x32x16_bf16 {vr(SA,16)}, {vr(KA,4)}, {vr(QF,4)}, {vr(NM,16)}")
    a(f"v_mfma_f32_32x32x16_bf16 {vr(SA,16)}, {vr(KA+4,4)}, {vr(QF+4,4)}, {vr(SA,16)}")
    for i in range(16): a(f"v_exp_f32 v{SA+i}, v{SA+i}")
    a(f"v_smfmac_f32_32x32x32_bf16 {vr(OA,16)}, {vr(VA,4)}, {vr(SA,8)}, v{IDXD}")
    a(f"v_smfmac_f32_16x16x64_bf16 {vr(LS,4)}, {vr(MA,4)}, {vr(SA,8)}, v{IDXD}")
    a(f"v_smfmac_f32_32x32x32_bf16 {vr(OA,16)}, {vr(VA+4,4)}, {vr(SA+8,8)}, v{IDXD}")
    a(f"v_smfmac_f32_16x16x64_bf16 {vr(LS,4)}, {vr(MA,4)}, {vr(SA+8,8)}, v{IDXD}")
    a(f"s_add_u32 s{T0}, s{T0}, 4096")
    a(f"s_cmp_lt_u32 s{T0}, 0x40000")
    a("s_nop 7")
    a("s_cbranch_scc1 L_fb2")
    a.flush()
    a("s_branch L_fin")
    a.label("L_code_end")

def build(path):
    k = K()
    k.ffn = FFN(k); k.D = PhaseD(k)
    prologue(k); phaseAB(k); attention(k); k.D.run()
    k.a.label("L_end"); k.a("s_endpgm")
    fallback(k)
    top = open("cdna_kernels/" + NAME + ".s.ref").read().split("; Override launch geometry")[0]
    if STAMPS: top += "; stamps: " + " ".join(STAMP_NAMES) + "\n"
    top += "; @launch grid=(256,1,1) block=(512,1,1) lds=163840\n"
    top += '.amdgcn_target "amdgcn-amd-amdhsa--gfx950"\n.text\n'
    top += f".set CODE_BYTES, L_code_end - {KN} - 64\n"
    kd = f""".section .rodata,"a"
.p2align 6
.amdhsa_kernel {KN}
  .amdhsa_next_free_vgpr 256
  .amdhsa_next_free_sgpr 102
  .amdhsa_accum_offset 256
  .amdhsa_group_segment_fixed_size 0
  .amdhsa_kernarg_size 104
  .amdhsa_user_sgpr_count 2
  .amdhsa_user_sgpr_kernarg_segment_ptr 1
  .amdhsa_system_sgpr_workgroup_id_x 1
.end_amdhsa_kernel
"""
    open(path, "w").write(top + k.a.text() + kd)
    return k

if __name__ == "__main__":
    out = sys.argv[1] if len(sys.argv) > 1 else "cdna_kernels/" + NAME + ".s"
    if len(sys.argv) > 2 and sys.argv[2] == "stamps": STAMPS = True
    VAR.update(sys.argv[3:])
    for v in VAR:
        if v.startswith('init'): N_INIT = int(v[4:])
        if v.startswith('wt') and '_' in v: WT_IT, WT_POS = [int(x) for x in v[2:].split('_')]
        if v.startswith('chk'): CHK, PI = [int(x) for x in v[3:].split('_')]
        if v.startswith('dp'): D_POLL = int(v[2:])
        if v.startswith('al'): ALIGN = int(v[2:])
        if v.startswith('pad'): PADAT, PADTO = v[3:].split('@')[0], int(v[3:].split('@')[1])
        if v.startswith('nw'): NW0, NW1, R2C = [int(x) for x in v[2:].split('_')]
        if v.startswith('out'): OUTF = ' ' + v[3:].replace('_', ' ')
    k = build(out)
    if "-v" in VAR:
        for l in k.a.log: print("nop", l)
        for l in k.pgAB.log: print("AB", l)
        for l in k.D.pg.log: print("D", l)
```

```python
import sys, struct
from asmlib import Asm

NAME = "recurrent_scan__grouped_kv_mqa__moe_arch_mod__prompt"
KN = NAME + "_kernel"
WS_KV, WS_STAT, WS_RKEY, WS_SY, WS_YACC, WS_GU, WS_STAMP, WS_OF = 0x0, 0x40000, 0x46000, 0x48000, 0x50000, 0x58000, 0x80000, 0x100000
WS_SIZE = 0x500000
SYB = 0x68000
SY1, SY2, SY3, SY4 = 0x60000, SYB + 0x8000, SYB, SYB + 64 * 128
ONES = 0x3F803F80
LOG2E = 1.4426950408889634
QSCALE = 0.17677669529663687 * LOG2E
def f32(x): return "0x%08x" % struct.unpack("<I", struct.pack("<f", x))[0]
STAMPS = False
VAR = set()
SPIN_MAX = 200000
N_INIT = 9
CHK, PI = 11, 9
D_POLL = 7
VAR.add('wgarr')
WT_IT, WT_POS = 4, 0
ALIGN = 0
DBG_IT = 2
KVF = 'sc1'
NEARLY = 12
S1_SKIP = (5, 7)
PADTO, PADAT = 0, 'end'
ARR, R2C, NW0 = -1, 2, 0
OUTF = ''

S_X, S_W, S_KW, S_WS, S_KV, S_WR, S_WG, S_WU = 4, 8, 12, 16, 20, 24, 28, 32
S_OUT, S_WD = S_WR, S_KW
RB, HB, ROT, T0, T1, T2, T3 = 36, 37, 38, 39, 40, 41, 42
W1K, MODE, W4K, XSO, TD, SP, RT, HD, ROWT, RG = 43, 44, 45, 46, 47, 48, 49, 50, 51, 52
SEL, IDX, RKEY, FCG, RB2, CB2, OSO, XO2, CNT, OBASE = 53, 54, 55, 56, 57, 58, 59, 60, 61, 62
W8K, EXS, FW = 63, 64, 66
PT = 68
P_X, P_WQ, P_WK, P_WV, P_WO, P_BX, P_WR, P_WG, P_WU, P_WD, P_OUT, P_DBG, P_WS = [PT + 2 * i for i in range(13)]
STMP = 96
def sr(b): return f"s[{b}:{b+3}]"
def vr(b, n): return f"v[{b}:{b+n-1}]"

VN, VH, VOX, VOW, VL16, VST = 3, 4, 18, 19, 20, 21
MA, IDXC, IDXD, STAT = 24, 28, 29, 30
QF, NM, VA, SA, SB, OA, LS, KA, VK1 = 32, 40, 56, 64, 80, 96, 112, 116, 17

def srd(a, d, base, nbytes):
    a(f"s_mov_b32 s{d}, s{base}")
    a(f"s_and_b32 s{d+1}, s{base+1}, 0xffff")
    a(f"s_mov_b32 s{d+2}, {nbytes:#x}")
    a(f"s_mov_b32 s{d+3}, 0x20000")

def bf16r(a, dst, src):
    a(f"v_cvt_pk_bf16_f32 v{dst}, v{src}, v{src}")
    a(f"v_lshlrev_b32 v{dst}, 16, v{dst}")

_lbl = [0]
def L(p="L"):
    _lbl[0] += 1
    return f"{p}_{_lbl[0]}"

class Cnt:
    def __init__(self, a, name, mx): self.a, self.name, self.mx, self.tags, self.total, self.marks = a, name, mx, [], 0, {}
    def add(self, tag, n=1): self.tags += [tag] * n; self.total += n
    def mark(self, m): self.marks[m] = self.total
    def since(self, m): return min(self.total - self.marks[m], self.mx)
    def wait(self, *tags):
        idx = [i for i, t in enumerate(self.tags) if t in tags]
        if not idx: return
        n = min(len(self.tags) - 1 - max(idx), self.mx)
        self.a(f"s_waitcnt {self.name}({n})")
        self.tags = self.tags[len(self.tags) - n:] if n else []
    def wait_all(self):
        self.a(f"s_waitcnt {self.name}(0)"); self.tags = []

STAMP_NAMES = []
class K:
    def __init__(self):
        self.a = Asm()
        self.vm = Cnt(self.a, "vmcnt", 63)
        self.lg = Cnt(self.a, "lgkmcnt", 15)
    def stamp(self, name):
        if PADTO and name == PADAT:
            a = self.a; lp = L()
            a.label(lp)
            a(f"s_memrealtime s[{STMP+2}:{STMP+3}]"); a("s_waitcnt lgkmcnt(0)")
            a(f"s_sub_u32 s{STMP+2}, s{STMP+2}, s{STMP}")
            a(f"s_cmp_lt_u32 s{STMP+2}, {PADTO}")
            a(f"s_cbranch_scc1 {lp}")
            return
        if "dbgstamp" in VAR:
            a = self.a
            names = ["entry", "S0", "B0", "B_end", "loop_start", "loop_end", "E2", "end"]
            if name not in names: return
            slot = 8 + names.index(name)
            if name == "entry":
                a(f"s_memrealtime s[{STMP+2}:{STMP+3}]"); a("s_waitcnt lgkmcnt(0)")
                a("s_and_b32 s100, s2, 31"); a("s_lshl_b32 s101, s3, 8"); a("s_add_u32 s100, s100, s101"); return
            def st():
                a(f"s_memrealtime s[{STMP}:{STMP+1}]"); a("s_waitcnt lgkmcnt(0)")
                a(f"s_sub_u32 s{STMP}, s{STMP}, s{STMP+2}")
                a(f"v_mov_b32 v{VST+1}, s{STMP}")
                a(f"v_mov_b32 v{VST}, {slot*4}")
                a("s_mov_b64 exec, 1")
                a(f"global_atomic_umax v{VST}, v{VST+1}, s[{P_DBG}:{P_DBG+1}]")
                a("s_mov_b64 exec, -1")
            self.only("s_cmp_eq_u32 s100, 9", st)
            return
        if not STAMPS: return
        a = self.a
        slot = len(STAMP_NAMES); STAMP_NAMES.append(str(name)); assert slot < 32
        if name != "entry":
            a(f"s_memrealtime s[{STMP}:{STMP+1}]")
            a(f"s_memtime s[{STMP+2}:{STMP+3}]")
        a("s_waitcnt lgkmcnt(0)")
        a(f"s_lshl_b32 s{STMP+1}, s2, 11")
        a(f"s_lshl_b32 s{STMP+3}, s3, 8")
        a(f"s_add_u32 s{STMP+1}, s{STMP+1}, s{STMP+3}")
        a(f"s_add_u32 s{STMP+1}, s{STMP+1}, {WS_STAMP + slot * 8:#x}")
        a(f"v_mov_b32 v{VST+1}, s{STMP}")
        a(f"v_mov_b32 v{VST+2}, s{STMP+2}")
        a(f"v_mov_b32 v{VST}, s{STMP+1}")
        a(f"buffer_store_dwordx2 v[{VST+1}:{VST+2}], v{VST}, {sr(S_WS)}, 0 offen")
        self.vm.add("st")
    def delay(self, wg):
        if "delay" not in VAR: return
        def d():
            for _ in range(6): self.a("s_sleep 127")
        self.only(f"s_cmp_eq_u32 s2, {wg}", d)
    def only(self, cond, fn):
        a = self.a; skip = L()
        a(cond); a(f"s_cbranch_scc0 {skip}")
        snap = a.snapshot(); fn(); a.label(skip); a.join(snap)
    def ifelse(self, cond, f1, f2):
        a = self.a; lv, lj = L(), L()
        a(cond); a(f"s_cbranch_scc0 {lv}")
        snap = a.snapshot(); f1(); a(f"s_branch {lj}"); snap2 = a.snapshot()
        a.label(lv); a.hist = snap[0]; a.alts = [(h, 0) for h in snap[1:]]
        f2(); a.label(lj); a.join(snap2)
    def poll(self, vaddr, vdat, soff, expect, cnt=CNT):
        a = self.a; top, chk, done = L("poll"), L("pchk"), L("pdone")
        a(f"s_mov_b32 s{cnt}, 0")
        a(f"s_branch {chk}")
        a.label(top)
        a(f"buffer_load_dword v{vdat}, v{vaddr}, {sr(S_WS)}, s{soff} offen sc1")
        a("s_waitcnt vmcnt(0)")
        a.label(chk)
        a(f"v_cmp_ne_u32 vcc, {expect}, v{vdat}")
        a(f"s_add_u32 s{cnt}, s{cnt}, 1")
        a(f"s_cbranch_vccz {done}")
        a("s_sleep 2")
        a(f"s_cmp_lt_u32 s{cnt}, {SPIN_MAX}")
        a(f"s_cbranch_scc1 {top}")
        a.label(done)
    def ds(self, text, tag):
        self.a(text); self.lg.add(tag)

class Pager:
    def __init__(self, k, free, seq):
        self.k, self.free, self.seq, self.pos, self.page, self.rel = k, list(free), seq, 0, {}, {}
        self.hold, self.hold_until, self.log = set(), 0, []
    def release(self, it):
        for p in self.rel.pop(it, []): self.free.append(p)
    def take(self, n, stop=None):
        out = []
        while len(out) < n and self.pos < len(self.seq):
            tag, emit, last, pref = self.seq[self.pos]
            if stop is not None and tag == stop: break
            cand = [p for p in pref if p in self.free and not (p in self.hold and (last is None or last + 2 > self.hold_until))]
            if not cand: break
            p = cand[0]; self.free.remove(p); self.page[tag] = p
            if last is not None: self.rel.setdefault(last + 2, []).append(p)
            out.append((tag, emit(p))); self.pos += 1
        self.log.append([(t, self.page[t]) for t, _ in out])
        return out
    def issue(self, grp):
        tag, text = grp
        self.k.a(text); self.k.vm.add(tag)

def spread(groups, extra, first=True):
    n = len(groups)
    per = -(-len(extra) // max(n, 1)) if extra else 0
    for i, g in enumerate(groups):
        for e in extra[i * per:(i + 1) * per]: e()
        g()
    for e in extra[n * per:]: e()

def interleave(ms, os):
    n = len(ms)
    for i, m in enumerate(ms):
        m()
        for o in os[i * len(os) // n:(i + 1) * len(os) // n]: o()

def prologue(k):
    a, vm = k.a, k.vm
    a.raw(f".globl {KN}"); a.raw(".p2align 8"); a.raw(f".type {KN},@function"); a.raw(f"{KN}:")
    if STAMPS or PADTO:
        a(f"s_memrealtime s[{STMP}:{STMP+1}]")
        a(f"s_memtime s[{STMP+2}:{STMP+3}]")
    a("s_cmp_ge_u32 s2, 256")
    a("s_cbranch_scc1 L_end")
    a(f"s_load_dwordx16 s[{PT}:{PT+15}], s[0:1], 0")
    a(f"s_load_dwordx8 s[{PT+16}:{PT+23}], s[0:1], 64")
    a(f"s_load_dwordx2 s[{PT+24}:{PT+25}], s[0:1], 96")
    a("s_getpc_b64 s[94:95]")
    a("v_lshrrev_b32 v1, 6, v0")
    a("v_and_b32 v2, 63, v0")
    a("v_readfirstlane_b32 s3, v1")
    a("s_and_b32 s4, s2, 0xf8")
    a("s_lshl_b32 s4, s4, 7")
    a("v_lshlrev_b32 v8, 7, v0")
    a("v_cmp_gt_u32 vcc, 8, v0")
    a("v_add_u32 v8, s4, v8")
    a("v_min_u32 v8, CODE_BYTES, v8")
    a(f"s_and_saveexec_b64 s[{EXS}:{EXS+1}], vcc")
    l2 = L(); a(f"s_cbranch_execz {l2}")
    if "nocpf" not in VAR: a("global_load_dword v47, v8, s[94:95]")
    a.label(l2)
    a(f"s_mov_b64 exec, s[{EXS}:{EXS+1}]")
    a(f"v_lshlrev_b32 v{VL16}, 4, v2")
    a(f"v_and_b32 v{VN}, 31, v2")
    a(f"v_lshrrev_b32 v{VH}, 5, v2")
    a(f"s_and_b32 s{T0}, s2, 7")
    a(f"s_lshr_b32 s{T1}, s2, 3")
    a(f"s_lshr_b32 s{RB}, s{T0}, 1")
    a(f"s_lshl_b32 s{RB}, s{RB}, 3")
    a(f"s_and_b32 s{SEL}, s{T0}, 1")
    a(f"s_lshl_b32 s{T2}, s{SEL}, 2")
    a(f"s_add_u32 s{RB2}, s{RB}, s{T2}")
    a(f"s_and_b32 s{T3}, s{T1}, 3")
    a(f"s_add_u32 s{RB2}, s{RB2}, s{T3}")
    a(f"s_lshr_b32 s{CB2}, s{T1}, 2")
    a(f"s_and_b32 s{ROT}, s{T1}, 7")
    a(f"s_add_u32 s{RB}, s{RB}, s{ROT}")
    a(f"s_lshr_b32 s{T3}, s{T1}, 3")
    a(f"s_add_u32 s{HB}, s{T2}, s{T3}")
    a(f"s_lshl_b32 s{RG}, s{RB}, 2")
    a(f"s_add_u32 s{RG}, s{RG}, s{T3}")
    a(f"s_mul_i32 s{FCG}, s{T0}, 28")
    a(f"s_add_u32 s{FCG}, s{FCG}, s{T1}")
    a(f"s_lshl_b32 s{W1K}, s3, 10")
    a(f"s_lshl_b32 s{W4K}, s3, 12")
    a(f"s_lshl_b32 s{W8K}, s3, 13")
    a(f"s_and_b32 s{RT}, s3, 1")
    a(f"s_lshr_b32 s{HD}, s3, 1")
    a(f"s_lshl_b32 s{ROWT}, s{RB}, 1")
    a(f"s_add_u32 s{ROWT}, s{ROWT}, s{RT}")
    a(f"s_lshl_b32 s{XO2}, s{RB}, 17")
    a(f"s_lshl_b32 s{OSO}, s{HB}, 8")
    a(f"s_sub_u32 s{FW}, s3, 1")
    a("s_cmp_lt_u32 s3, 4")
    a(f"s_cselect_b32 s{MODE}, s{SEL}, 2")
    a("v_lshrrev_b32 v5, 4, v2")
    a(f"s_lshl_b32 s{T0}, s3, 2")
    a(f"v_add_u32 v6, s{T0}, v5")
    a("v_xor_b32 v7, v6, v2")
    a("v_and_b32 v7, 7, v7")
    a("v_lshlrev_b32 v7, 4, v7")
    a("v_lshrrev_b32 v8, 3, v2")
    a("v_lshl_add_u32 v7, v8, 11, v7")
    a(f"s_lshl_b32 s{T0}, s3, 14")
    a(f"v_add_u32 v{VOX}, s{T0}, v7")
    a("v_lshrrev_b32 v7, 2, v2")
    a("v_lshlrev_b32 v7, 11, v7")
    a("v_and_b32 v8, 3, v2")
    a("v_lshl_add_u32 v7, v8, 4, v7")
    a(f"s_lshl_b32 s{T0}, s{RT}, 16")
    a(f"s_lshl_b32 s{T1}, s{HD}, 6")
    a(f"s_add_u32 s{T0}, s{T0}, s{T1}")
    a(f"v_add_u32 v{VOW}, s{T0}, v7")
    if "fake128" in VAR:
        a("v_lshrrev_b32 v7, 3, v2")
        a("v_lshlrev_b32 v7, 11, v7")
        a("v_and_b32 v8, 7, v2")
        a("v_lshl_add_u32 v7, v8, 4, v7")
        a(f"s_lshl_b32 s{T0}, s{RT}, 16")
        a(f"s_and_b32 s{T1}, s{HD}, 1")
        a(f"s_lshl_b32 s{T1}, s{T1}, 14")
        a(f"s_add_u32 s{T0}, s{T0}, s{T1}")
        a(f"s_lshr_b32 s{T1}, s{HD}, 1")
        a(f"s_lshl_b32 s{T1}, s{T1}, 7")
        a(f"s_add_u32 s{T0}, s{T0}, s{T1}")
        a(f"v_add_u32 v{VOW}, s{T0}, v7")
    a("v_lshlrev_b32 v7, 2, v2")
    a("v_mov_b32 v9, 0")
    a("v_mov_b32 v17, 0")
    a("v_mov_b32 v16, 1")
    a(f"s_xor_b32 s{CNT}, s3, 7")
    a(f"s_lshl_b32 s{CNT}, s{CNT}, 8")
    a(f"s_add_u32 s{CNT}, s{CNT}, s2")
    a("v_and_b32 v1, 28, v7")
    a("s_waitcnt lgkmcnt(0)")
    srd(a, S_X, P_X, 2048 * 2048)
    a(f"s_cmp_eq_u32 s{SEL}, 0")
    a(f"s_cselect_b32 s{S_KW}, s{P_WK}, s{P_WV}")
    a(f"s_cselect_b32 s{S_KW+1}, s{P_WK+1}, s{P_WV+1}")
    a(f"s_and_b32 s{S_KW+1}, s{S_KW+1}, 0xffff")
    a(f"s_mov_b32 s{S_KW+2}, 0x10000")
    a(f"s_mov_b32 s{S_KW+3}, 0x20000")
    srd(a, S_WS, P_WS, WS_SIZE)
    srd(a, S_WR, P_WR, 2048)
    k.stamp("entry")
    k.delay(3)
    def zero():
        a("v_mov_b32 v10, 0"); a("v_mov_b32 v11, 0"); a("v_mov_b32 v8, 0")
        a(f"s_lshl_b32 s{T2}, s2, 12")
        a(f"s_add_u32 s{T2}, s{T2}, {SY1:#x}")
        for i in range(4): a(f"buffer_store_dwordx4 v[8:11], v{VL16}, {sr(S_WS)}, s{T2} offen offset:{i*1024} sc1")
        a(f"s_lshl_b32 s{T2}, s2, 2")
        a("s_waitcnt vmcnt(0)")
        a(f"v_mov_b32 v10, s{T2}")
        a(f"global_store_dword v10, v16, s[{P_DBG}:{P_DBG+1}] sc1")
    k.only(f"s_cmp_lt_u32 s{CNT}, 8", zero)

AUX = 19 * 8192
TAB = AUX + 2304
RED = 4 * 8192

def phaseAB(k):
    a, vm, lg = k.a, k.vm, k.lg
    VXA, VW, ACC, WF, FT, XREG, CS = 32, 44, 48, 64, 96, 128, 12
    XF, ACCX, ACCO = XREG, 48, 80
    def rot(j, shift, extra, base):
        return f"""s_add_u32 s{TD}, s{ROT}, {j}
        s_and_b32 s{TD}, s{TD}, 7
        s_lshl_b32 s{TD}, s{TD}, {shift}
        s_add_u32 s{TD}, s{TD}, s{base}""" + (f"\ns_add_u32 s{TD}, s{TD}, {extra}" if extra else "")
    def ldx(c): return lambda p: f"s_add_u32 m0, s{W1K}, {p*8192}\n" + rot(c >> 1, 8, (c & 1) * 128, XO2) + f"\nbuffer_load_dwordx4 v{VOX}, {sr(S_X)}, s{TD} offen lds"
    def ldk(j): return lambda p: f"s_add_u32 m0, s{W1K}, {p*8192}\n" + rot(j, 13, 0, W1K) + f"\nbuffer_load_dwordx4 v{VL16}, {sr(S_KW)}, s{TD} offen lds"
    def ldw(c, h): return lambda p: f"s_add_u32 m0, s{W1K}, {p*8192}\n" + rot(c >> 1, 18, ((c & 1) * 64 + h * 16) * 2048, OSO) + f"\nbuffer_load_dwordx4 v{VOW}, {sr(S_W)}, s{TD} offen lds"
    seq = []
    hi = list(range(8, 19))
    for j in range(8):
        seq.append((("k", j), ldk(j), j, [4, 5, 6, 7] if 1 <= j <= 4 else hi[::-1]))
        for e in range(2):
            c = 2 * j + e
            seq.append((("x", c), ldx(c), j if c < 8 else None, [0, 1, 2, 3] if 8 <= c <= 11 else hi[::-1] if c < 8 else hi[:3:-1]))
    for c in range(16):
        for h in range(2):
            seq.append((("w", c, h), ldw(c, h), None, hi + [4, 5, 6, 7]))
    pg = Pager(k, range(19), seq)
    pg.hold, pg.hold_until = {4, 5, 6, 7}, 6
    k.pgAB = pg
    srd(a, S_W, P_WQ, 1024 * 2048)
    a(f"v_lshlrev_b32 v8, 7, v{VN}")
    a(f"s_lshl_b32 s{T0}, s{RG}, 15")
    a(f"s_add_u32 s{T0}, s{T0}, s{W4K}")
    a(f"buffer_load_dword v47, v8, {sr(S_X)}, s{T0} offen"); vm.add("xt")
    def wtouch():
        if "wt256" in VAR:
            a(f"v_lshrrev_b32 v8, 1, v{VN}")
            a("v_lshlrev_b32 v8, 11, v8")
            a("v_and_b32 v10, 1, v2")
            a("v_lshl_add_u32 v8, v10, 7, v8")
            a(f"s_lshl_b32 s{T0}, s{ROT}, 3")
            a(f"s_add_u32 s{T0}, s{T0}, s3")
            a(f"s_lshl_b32 s{T0}, s{T0}, 15")
            a(f"s_add_u32 s{T0}, s{T0}, s{OSO}")
        else:
            a(f"v_lshrrev_b32 v8, 3, v{VN}")
            a("v_lshlrev_b32 v8, 11, v8")
            a("v_and_b32 v10, 7, v2")
            a("v_lshl_add_u32 v8, v10, 7, v8")
            a(f"s_lshr_b32 s{T0}, s2, 3")
            a(f"s_lshl_b32 s{T0}, s{T0}, 16")
            a(f"s_add_u32 s{T0}, s{T0}, s{W8K}")
            a(f"s_lshl_b32 s{T1}, s{SEL}, 10")
            a(f"s_add_u32 s{T0}, s{T0}, s{T1}")
        a(f"buffer_load_dword v47, v8, {sr(S_W)}, s{T0} offen"); vm.add("wt")
    if WT_IT < 0: wtouch()
    a(f"s_lshl_b32 s{T1}, s3, 8")
    a(f"s_add_u32 m0, s{T1}, {AUX}")
    a(f"s_add_u32 s{TD}, s{ROT}, s3")
    a(f"s_and_b32 s{TD}, s{TD}, 7")
    a(f"s_lshl_b32 s{TD}, s{TD}, 8")
    a(f"buffer_load_dword v7, {sr(S_WR)}, s{TD} offen lds"); vm.add("wr")
    first = pg.take(N_INIT)
    for g_ in first[:3]: pg.issue(g_)
    k.stamp("issued")
    srd(a, S_KV, P_WS, 0x40000)
    srd(a, S_WG, P_WG, 1024 * 7168)
    srd(a, S_WU, P_WU, 1024 * 7168)
    a(f"v_mov_b32 v8, {ONES:#x}")
    a(f"v_add_u32 v9, {AUX + 2048}, v7")
    k.ds("ds_write_b32 v9, v8", "ones")
    k.ds("ds_write_b32 v9, v17 offset:384", "ones")
    a(f"v_bfe_u32 v5, v{VN}, 1, 3")
    a(f"v_xor_b32 v5, v5, v{VH}")
    a(f"s_lshl_b32 s{T0}, s{RT}, 12")
    a(f"s_lshl_b32 s{T1}, s{RT}, 2")
    a(f"v_lshlrev_b32 v6, 7, v{VN}")
    a(f"v_add_u32 v8, s{T0}, v6")
    a(f"v_xor_b32 v9, s{T1}, v5")
    a(f"v_lshl_add_u32 v{VXA}, v9, 4, v8")
    a(f"v_xor_b32 v{VXA+1}, 32, v{VXA}")
    a(f"v_xor_b32 v{VXA+2}, 0x1000, v{VXA}")
    a(f"v_xor_b32 v{VXA+3}, 0x1020, v{VXA}")
    for s in range(4):
        a(f"v_add_u32 v{VXA+4+s}, 0x10000, v{VXA+s}")
        a(f"v_add_u32 v{VXA+8+s}, 0x20000, v{VXA+s}")
    BX, MX, I17, AX, AW, BW = FT, FT + 2, FT + 3, FT + 4, FT + 6, FT + 7
    a(f"s_and_b32 s{T0}, s{HB}, 3")
    a(f"s_lshl_b32 s{T0}, s{T0}, 11")
    a(f"v_add_u32 v8, s{T0}, v6")
    a(f"s_lshl_b32 s{T1}, s{RT}, 2")
    a(f"v_xor_b32 v9, s{T1}, v5")
    a(f"v_lshl_add_u32 v{BX}, v9, 4, v8")
    a("v_xor_b32 v9, 2, v9")
    a(f"v_lshl_add_u32 v{BX+1}, v9, 4, v8")
    a(f"s_and_b32 s{T2}, s3, 3")
    a(f"s_lshl_b32 s{T3}, s{T2}, 6")
    a(f"s_add_u32 s{T3}, s{T3}, {AUX}")
    a(f"v_lshlrev_b32 v8, 4, v{VH}")
    a(f"v_add_u32 v8, s{T3}, v8")
    a(f"v_mov_b32 v9, {AUX + 2048}")
    a(f"v_cmp_eq_u32 vcc, 17, v{VN}")
    a("v_mov_b32 v10, 256")
    a("v_cndmask_b32 v8, v9, v8, vcc")
    a(f"v_cndmask_b32 v{I17}, 0, v10, vcc")
    a("v_add_u32 v9, 32, v8")
    a(f"v_cmp_gt_u32 vcc, 16, v{VN}")
    a(f"v_cndmask_b32 v{MX}, 0, 1, vcc")
    a(f"v_cndmask_b32 v{BX}, v8, v{BX}, vcc")
    a(f"v_cndmask_b32 v{BX+1}, v9, v{BX+1}, vcc")
    a("v_bfe_u32 v5, v2, 2, 2")
    a(f"v_lshl_add_u32 v6, v{VH}, 3, v5")
    a("v_bfe_u32 v8, v2, 4, 1")
    a("v_lshlrev_b32 v8, 5, v8")
    a("v_and_b32 v9, 3, v2")
    a("v_lshl_add_u32 v8, v9, 3, v8")
    a("v_lshl_add_u32 v9, v6, 6, v8")
    a(f"s_lshl_b32 s{T3}, s{T2}, 11")
    a(f"v_add_u32 v{BW}, s{T3}, v9")
    a(f"v_add_u32 v{VW}, s{W1K}, v9")
    a(f"v_add_u32 v{VW+1}, 0x10000, v{VW}")
    a(f"v_add_u32 v{VW+2}, 0x20000, v{VW}")
    a("v_bfe_u32 v5, v2, 2, 1")
    a("v_cmp_eq_u32 vcc, 0, v5")
    a(f"v_mov_b32 v6, {ONES:#x}")
    a(f"v_cndmask_b32 v{MA}, 0, v6, vcc")
    a(f"v_cndmask_b32 v{MA+1}, 0, v6, vcc")
    a(f"v_cndmask_b32 v{MA+2}, v6, 0, vcc")
    a(f"v_cndmask_b32 v{MA+3}, v6, 0, vcc")
    a("v_and_b32 v5, 2, v2")
    a("v_cmp_eq_u32 vcc, 0, v5")
    for i in range(4): a(f"v_cndmask_b32 v{MA+i}, 0, v{MA+i}, vcc")
    a("v_and_b32 v5, 1, v2")
    a("v_cmp_eq_u32 vcc, 0, v5")
    a("v_mov_b32 v6, 0x44444444")
    a("v_mov_b32 v8, 0xeeeeeeee")
    a(f"v_cndmask_b32 v{IDXC}, v8, v6, vcc")
    a(f"v_mov_b32 v{IDXD}, 0xdddddddd")
    for i in range(4): a(f"v_mov_b32 v{CS+i}, 0")
    for g_ in first[3:]: pg.issue(g_)
    lg.wait_all()

    def xread(c, s, dst, tag):
        p = pg.page[("x", c)]
        k.ds(f"ds_read_b128 {vr(dst, 4)}, v{VXA + 4*(p >> 3) + s} offset:{(p & 7) * 8192}", tag)
    def kv_mfma(j):
        b = WF + 16 * (j & 1)
        def mm(x, y):
            for e in range(2):
                c = "0" if (j == 0 and e == 0) else vr(ACC, 16)
                a(f"v_mfma_f32_32x32x16_bf16 {vr(ACC,16)}, {vr(b+x+4*e,4)}, {vr(b+y+4*e,4)}, {c}")
        k.ifelse(f"s_cmp_eq_u32 s{MODE}, 2", lambda: mm(0, 0),
                 lambda: k.ifelse(f"s_cmp_eq_u32 s{MODE}, 0", lambda: mm(8, 0), lambda: mm(0, 8)))
    for j in range(8):
        if j not in S1_SKIP:
            jj = j + 1 if (j + 1) in S1_SKIP else j
            vm.wait(*[t_ for q in range(j, jj + 1) for t_ in (("x", 2*q), ("x", 2*q+1), ("k", q))])
            a("s_barrier")
            if j == 0: k.stamp(f"S{j}")
            for q in range(j + 1): pg.release(q)
        d = [lambda g=g: pg.issue(g) for g in pg.take(6 if j < 2 else 4, stop=(('w', 0, 0) if 'nohold' not in VAR else None))]
        b = WF + 16 * (j & 1)
        def g0():
            a("s_bitcmp1_b32 s3, 1")
            a(f"s_mov_b32 s{SP}, {pg.page[('x', 2*j)]*8192}")
            a(f"s_cselect_b32 s{SP}, {pg.page[('x', 2*j+1)]*8192}, s{SP}")
            a(f"v_mul_u32_u24 v8, s{SP}, v{MX}")
            a(f"v_add_u32 v{AX}, v8, v{BX}")
            a(f"v_add_u32 v{AX+1}, v8, v{BX+1}")
            a(f"v_add_u32 v{AW}, {pg.page[('k', j)]*8192}, v{BW}")
            for e in range(2): k.ds(f"ds_read_b128 {vr(b+4*e,4)}, v{AX+e}", ("s", j))
            for e in range(2):
                for u in range(2):
                    k.ds(f"ds_read_b64_tr_b16 {vr(b+8+4*e+2*u,2)}, v{AW} offset:{(16*e+4*u)*64}", ("s", j))
            a(f"v_add_u32 v{BX}, v{I17}, v{BX}")
            a(f"v_add_u32 v{BX+1}, v{I17}, v{BX+1}")
        def g1():
            if j > 0:
                lg.wait(("s", j - 1), ("xr", j - 1))
                kv_mfma(j - 1)
        def g2(e):
            if j < 4:
                for s in range(4): xread(2*j+e, s, XREG + 16*(2*j+e) + 4*s, ("xr", j))
        if j == WT_IT: d.insert(WT_POS, wtouch)
        if j == DBG_IT: d.insert(2 if j == 3 else 0, lambda: k.only('s_cmp_eq_u32 s3, 0', lambda: a(f'global_load_dword v16, v1, s[{P_DBG}:{P_DBG+1}] sc1')))
        g2(0)
        spread([g0, g1, lambda: g2(1)], d)
    F = FT
    R2 = RED + 16384
    SF = WF + 16
    M, RI, R, V = SF + 2, SF + 3, SF + 1, SF + 8
    def st_reads():
        a("v_and_b32 v5, 15, v2")
        a("v_lshlrev_b32 v6, 4, v5")
        for w in range(4): a(f"ds_read_b64 {vr(SF+2*w,2)}, v6 offset:{R2+w*4096+2*1024}")
        a("v_bfe_u32 v8, v5, 2, 1")
        a("v_lshl_add_u32 v8, v8, 9, v6")
        a("v_lshrrev_b32 v9, 3, v5")
        a("v_lshl_add_u32 v8, v9, 10, v8")
        a("v_and_b32 v9, 3, v5")
        a("v_lshl_add_u32 v8, v9, 2, v8")
        for w in range(4): a(f"ds_read_b32 v{SF+8+w}, v8 offset:{R2+w*4096}")
    def st_compute(extra=()):
        extra = list(extra)
        def fill(n):
            for _ in range(min(n, len(extra))): a(extra.pop(0))
        for w in range(1, 4):
            a(f"v_add_f32 v{SF}, v{SF}, v{SF+2*w}")
            a(f"v_add_f32 v{V}, v{V}, v{V+w}")
            a(f"v_add_f32 v{SF+1}, v{SF+1}, v{SF+2*w+1}")
        chain = [f"v_mul_f32 v{SF}, {f32(1/1024)}, v{SF}", f"v_mul_f32 v{V}, {f32(1/1024)}, v{V}",
                 f"v_fma_f32 v{V}, -v{SF}, v{SF}, v{V}", f"v_max_f32 v{V}, 0, v{V}",
                 f"v_cvt_pk_bf16_f32 v{M}, v{SF}, v{SF}", f"v_cvt_pk_bf16_f32 v{V}, v{V}, v{V}",
                 f"v_lshlrev_b32 v{M}, 16, v{M}", f"v_lshlrev_b32 v{V}, 16, v{V}",
                 f"v_add_f32 v{V}, {f32(1e-5)}, v{V}", f"v_cvt_pk_bf16_f32 v{V}, v{V}, v{V}", f"v_lshlrev_b32 v{V}, 16, v{V}",
                 f"v_sqrt_f32 v{V}, v{V}", f"v_cvt_pk_bf16_f32 v{V}, v{V}, v{V}", f"v_lshlrev_b32 v{V}, 16, v{V}",
                 f"v_rcp_f32 v{RI}, v{V}"]
        for x in chain: a(x); fill(2)
        fill(100)
    def fin0():
        st_reads()
        a(f"v_mov_b32 v9, {16*16 + 4}")
        for w in range(4): a(f"ds_read_b32 v{SF+12+w}, v9 offset:{R2+w*4096+2*1024}")
        a(f"s_lshl_b32 s{T0}, s2, 8")
        a(f"s_add_u32 s{T0}, s{T0}, {WS_YACC:#x}")
        a("v_lshlrev_b32 v8, 2, v2")
        a(f"buffer_store_dword v17, v8, {sr(S_WS)}, s{T0} offen sc1")
        a(f"s_add_u32 s{T0}, s{T0}, {SYB - WS_YACC:#x}")
        a(f"buffer_store_dword v17, v8, {sr(S_WS)}, s{T0} offen sc1")
        a("s_waitcnt lgkmcnt(0)")
        def rk():
            st_compute([f"v_add_f32 v{SF+12}, v{SF+12}, v{SF+12+w}" for w in range(1, 4)] +
                       [f"s_lshl_b32 s{T0}, s{RG}, 4", f"v_add_u32 v9, s{T0}, v5", "v_sub_u32 v9, 0xffff, v9", "v_lshlrev_b32 v6, 3, v5",
                        f"s_lshl_b32 s{T0}, s{RG}, 7", f"s_add_u32 s{T0}, s{T0}, {WS_STAT:#x}",
                        f"s_lshl_b32 s{T1}, s{RG}, 2", f"s_add_u32 s{T1}, s{T1}, {WS_RKEY:#x}"])
            a(f"v_fma_f32 v{R}, -v{M}, v{SF+12}, v{R}")
            a("s_mov_b64 exec, 0xffff")
            a(f"buffer_store_dwordx2 v[{M}:{RI}], v6, {sr(S_WS)}, s{T0} offen sc1")
            a(f"v_mul_f32 v{R}, v{R}, v{RI}")
            a(f"v_cvt_pk_bf16_f32 v{R}, v{R}, v{R}")
            a(f"v_ashrrev_i32 v8, 31, v{R}")
            a("v_or_b32 v8, 0x80000000, v8")
            a(f"v_xor_b32 v{R}, v{R}, v8")
            a(f"v_and_b32 v{R}, 0xffff0000, v{R}")
            a(f"v_or_b32 v{R}, v{R}, v9")
            for sh in (8, 4, 2, 1):
                a(f"v_max_u32_dpp v{R}, v{R}, v{R} row_ror:{sh} row_mask:0xf bank_mask:0xf")
            a("s_mov_b64 exec, 1")
            a(f"buffer_store_dword v{R}, v6, {sr(S_WS)}, s{T1} offen sc1")
            a("s_mov_b64 exec, -1")
        k.only(f"s_cmp_eq_u32 s{SEL}, 0", rk)
    def fin12():
        st_reads()
        adds = [f"v_add_f32 v{F+e}, v{F+e}, v{F+4*w+e}" for w in range(1, 4) for e in range(4)]
        a(f"s_lshr_b32 s{T2}, s{RG}, 1")
        a(f"s_lshl_b32 s{T2}, s{T2}, 12")
        a(f"s_and_b32 s{T1}, s{RG}, 1")
        def kk():
            a("v_bfe_u32 v9, v2, 4, 1")
            a("v_lshlrev_b32 v8, 9, v9")
            a(f"v_lshl_add_u32 v8, v{VH}, 10, v8")
            a(f"s_lshl_b32 s{T0}, s{FW}, 11")
            a(f"v_add_u32 v8, s{T0}, v8")
            a("v_add_u32 v9, v6, v8")
            for w in range(4): a(f"ds_read_b128 {vr(F+4*w,4)}, v9 offset:{RED+w*4096}")
            for w in range(4): a(f"ds_read_b128 {vr(F+16+4*w,4)}, v8 offset:{RED+w*4096+256}")
            a("v_and_b32 v8, 3, v5")
            a("v_bfe_u32 v9, v5, 2, 1")
            a("v_lshl_add_u32 v8, v9, 3, v8")
            a("v_bfe_u32 v9, v5, 3, 1")
            a("v_lshl_add_u32 v8, v9, 2, v8")
            a("v_bfe_u32 v9, v2, 4, 1")
            a("v_lshl_add_u32 v8, v9, 5, v8")
            a("v_lshlrev_b32 v8, 4, v8")
            a(f"v_lshl_add_u32 v8, v{VH}, 3, v8")
            a(f"s_lshl_b32 s{T0}, s{FW}, 10")
            a(f"s_add_u32 s{T2}, s{T2}, s{T0}")
            a(f"s_lshl_b32 s{T1}, s{T1}, 8")
            a(f"s_add_u32 s{T2}, s{T2}, s{T1}")
            a("s_waitcnt lgkmcnt(0)")
            st_compute(adds + [f"v_add_f32 v{F+16+e}, v{F+16+e}, v{F+16+4*w+e}" for w in range(1, 4) for e in range(4)])
            for e in range(4): a(f"v_fma_f32 v{F+e}, -v{M}, v{F+16+e}, v{F+e}")
            for e in range(4): a(f"v_mul_f32 v{F+e}, v{F+e}, v{RI}")
        def vv():
            a(f"s_lshl_b32 s{T0}, s{FW}, 10")
            a(f"v_add_u32 v9, s{T0}, v{VL16}")
            for w in range(4): a(f"ds_read_b128 {vr(F+4*w,4)}, v9 offset:{RED+w*4096}")
            a(f"v_lshlrev_b32 v8, 4, v{VN}")
            for w in range(4): a(f"ds_read_b32 v{F+16+w}, v8 offset:{RED+w*4096+2048}")
            a(f"v_mov_b32 v8, v{VL16}")
            a(f"s_lshl_b32 s{T1}, s{T1}, 10")
            a(f"s_add_u32 s{T2}, s{T2}, s{T1}")
            a(f"s_lshl_b32 s{T1}, s{FW}, 3")
            a(f"s_add_u32 s{T2}, s{T2}, s{T1}")
            a(f"s_add_u32 s{T2}, s{T2}, 2048")
            a(f"s_lshl_b32 s{T0}, s{FW}, 5")
            a(f"v_lshlrev_b32 v6, 4, v{VH}")
            a(f"v_add_u32 v6, s{T0}, v6")
            a("s_waitcnt lgkmcnt(0)")
            st_compute(adds + [f"v_add_f32 v{F+16}, v{F+16}, v{F+16+w}" for w in range(1, 4)])
            for e in range(4): a(f"ds_bpermute_b32 v{F+20+e}, v6, v{M} offset:{4*e}")
            for e in range(4): a(f"ds_bpermute_b32 v{F+24+e}, v6, v{RI} offset:{4*e}")
            a("s_waitcnt lgkmcnt(4)")
            for e in range(4): a(f"v_fma_f32 v{F+e}, -v{F+20+e}, v{F+16}, v{F+e}")
            a("s_waitcnt lgkmcnt(0)")
            for e in range(4): a(f"v_mul_f32 v{F+e}, v{F+e}, v{F+24+e}")
        k.ifelse(f"s_cmp_eq_u32 s{SEL}, 0", kk, vv)
        a(f"v_cvt_pk_bf16_f32 v{F+12}, v{F}, v{F+1}")
        a(f"v_cvt_pk_bf16_f32 v{F+13}, v{F+2}, v{F+3}")
        a(f"buffer_store_dwordx2 {vr(F+12,2)}, v8, {sr(S_WS)}, s{T2} offen sc1")
    def fin_arrive():
        a(f"s_waitcnt vmcnt({vm.since('fs')})")
        top, done = L(), L()
        a(f"s_mov_b32 s{CNT}, 0")
        a.label(top)
        a("v_cmp_eq_u32 vcc, 0, v16")
        a(f"s_add_u32 s{CNT}, s{CNT}, 1")
        a(f"s_cbranch_vccz {done}")
        a(f"global_load_dword v16, v1, s[{P_DBG}:{P_DBG+1}] sc1")
        a("s_waitcnt vmcnt(0)")
        a(f"s_cmp_lt_u32 s{CNT}, {SPIN_MAX}")
        a(f"s_cbranch_scc1 {top}")
        a.label(done)
        a("v_mov_b32 v8, 1")
        a(f"v_mov_b32 v9, {TAB + 128}")
        a("s_mov_b64 exec, 1")
        a("ds_add_rtn_u32 v9, v9, v8")
        a("s_waitcnt lgkmcnt(0)")
        a("v_cmp_eq_u32 vcc, 2, v9")
        a("s_mov_b64 exec, 0xff")
        nl = L()
        a(f"s_cbranch_vccz {nl}")
        a(f"s_lshr_b32 s{T0}, s2, 3")
        a(f"s_lshl_b32 s{T0}, s{T0}, 7")
        a(f"s_add_u32 s{T0}, s{T0}, {SY1:#x}")
        a("v_lshlrev_b32 v9, 12, v2")
        a(f"buffer_atomic_add v8, v9, {sr(S_WS)}, s{T0} offen sc1")
        a.label(nl)
        a("s_mov_b64 exec, -1")
    W0, W12, W012 = "s_cmp_eq_u32 s3, 0", f"s_cmp_lt_u32 s{FW}, 2", "s_cmp_lt_u32 s3, 3"
    def kv_dma(i, chunk):
        a(f"s_add_u32 m0, s{W4K}, {chunk*32768 + i*1024}")
        a(f"s_add_u32 s{XSO}, s{W4K}, {chunk*32768 + i*1024}")
        a(f"buffer_load_dwordx4 v{VL16}, {sr(S_KV)}, s{XSO} offen sc1 lds"); vm.add(("kv", chunk))
    RK, PV, ST2 = 126, 122, 124
    pool = [WF, WF + 8]
    wreg, xreg = {}, {c: (XREG + 16*c, XREG + 16*c + 8) for c in range(8)}
    def rd_ops(c):
        need = 1 if c < 8 else 3
        if len(pool) < need: return None
        wreg[c] = pool.pop(0)
        if c >= 8: xreg[c] = (pool.pop(0), pool.pop(0))
        ops = []
        for e in range(2):
            def w(e=e):
                vm.wait(("w", c, e))
                p = pg.page[("w", c, e)]
                for u in range(2):
                    k.ds(f"ds_read_b64_tr_b16 {vr(wreg[c]+4*e+2*u,2)}, v{VW + (p >> 3)} offset:{(p & 7)*8192 + 4*u*64}", ("q", c, e))
            def x(e=e):
                for t in range(2): xread(c, 2*t+e, xreg[c][t] + 4*e, ("q", c, e))
            if c >= 8: ops.append(x)
            ops.append(w)
        return ops
    def rd(c):
        for o in rd_ops(c): o()
    def mm_ops(c):
        def m(e, t):
            if t == 0:
                lg.wait(("q", c, e)); pg.free.append(pg.page[("w", c, e)])
            acc = ACCX if t else ACCO
            cc = "0" if (c == 0 and e == 0) else vr(acc, 16)
            if 'nomm' not in VAR: a(f"v_mfma_f32_32x32x16_bf16 {vr(acc,16)}, {vr(wreg[c]+4*e,4)}, {vr(xreg[c][t]+4*e,4)}, {cc}")
        def s():
            a(f"v_smfmac_f32_16x16x64_bf16 {vr(CS,4)}, {vr(MA,4)}, {vr(wreg[c],8)}, v{IDXC}")
            pool.append(wreg[c])
            if c not in (2, 5, 6): pool.extend(xreg[c])
        return [lambda: m(0, 0), lambda: m(0, 1), lambda: m(1, 0), lambda: m(1, 1), s]
    def dmas(n):
        for g_ in pg.take(n): pg.issue(g_)
    def ld_stat():
        a(f"s_lshl_b32 s{T0}, s{ROWT}, 8")
        a(f"s_add_u32 s{T0}, s{T0}, {WS_STAT:#x}")
        a(f"v_lshlrev_b32 v5, 3, v{VN}")
        a(f"buffer_load_dwordx2 {vr(STAT,2)}, v5, {sr(S_WS)}, s{T0} offen sc1"); vm.add("stat")
    def ld_stat2():
        a(f"s_xor_b32 s{T0}, s{T0}, 0x100")
        a(f"buffer_load_dword v{ST2}, v5, {sr(S_WS)}, s{T0} offen sc1"); vm.add("stat")
    def ld_rk():
        a("v_lshlrev_b32 v5, 3, v2")
        a(f"s_mov_b32 s{T0}, {WS_RKEY:#x}")
        a(f"buffer_load_dwordx2 {vr(RK,2)}, v5, {sr(S_WS)}, s{T0} offen sc1"); vm.add("rk")
    def kvt():
        a(f"s_lshr_b32 s{T0}, s2, 3")
        a(f"s_lshl_b32 s{T0}, s{T0}, 13")
        a("v_lshlrev_b32 v5, 7, v2")
        a(f"buffer_load_dword v16, v5, {sr(S_KV)}, s{T0} offen sc1")
    pl = [ld_stat, ld_stat2] + [lambda i=i: kv_dma(i, 0) for i in range(4)] + [ld_rk, lambda: k.only("s_cmp_eq_u32 s3, 6", kvt)]
    post = {CHK + 1: pl[:4], CHK + 2: pl[4:]} if CHK <= 11 else {13: pl}
    post.update({
            5: [lambda: k.ffn.early(0)], 6: [lambda: k.ffn.early(1)], 7: [lambda: k.ffn.early(2)]})
    k.stamp("B0")
    k.delay(77)
    lg.wait(("s", 7)); kv_mfma(7)
    dmas(NW0)
    a(f"v_add_u32 v8, s{W4K}, v{VL16}")
    for q in range(4): k.ds(f"ds_write_b128 v8, {vr(ACC+4*q,4)} offset:{RED + q*1024}", "red")
    lg.wait_all()
    a("s_barrier"); pg.release(7); pg.release(8); pg.release(9)
    k.only(W0, fin0); k.only(W12, fin12); vm.mark("fs")
    dmas(7)
    if ARR < 0: k.only(W012, fin_arrive)
    rd(0); rd(1)
    k.stamp('R1')
    for c in range(14):
        if c == PI:
            a(f"v_lshlrev_b32 v{PV}, 7, v{VN}")
            a(f"s_and_b32 s{T3}, s2, 7")
            a(f"s_lshl_b32 s{T3}, s{T3}, 12")
            a(f"s_add_u32 s{T3}, s{T3}, {SY1:#x}")
            k.only("s_cmp_eq_u32 s3, 7", lambda: a(f"buffer_load_dword v{PV+1}, v{PV}, {sr(S_WS)}, s{T3} offen sc1"))
            vm.mark("poll")
        ro = rd_ops(c + 2) if c + 2 < 16 else []
        d1 = lambda: dmas(1)
        extra = post.pop(c, [])
        if 'nopost' in VAR: extra = []
        if ro is None: interleave(mm_ops(c), [d1, d1, d1]); rd(c + 2)
        else:
            h = len(ro) // 2
            interleave(mm_ops(c), [d1] + ro[:h] + [d1] + ro[h:] + [d1] + extra)
        if 'fine' in VAR and c in (1, 2, 4, 6, 8, 10, 12, 13, 14): k.stamp(f'M{c}')
        if c == ARR: k.only(W012, fin_arrive)
        if c == R2C:
            a("s_barrier"); pg.hold = set()
        if c == CHK:
            def chk():
                a(f"s_waitcnt vmcnt({vm.since('poll')})")
                k.poll(PV, PV + 1, T3, 8)
            if 'nopub' not in VAR: k.only("s_cmp_eq_u32 s3, 7", chk)
            if 'nor3' not in VAR: a("s_barrier")
    EX, MB = 208, 224
    assert all(b not in list(wreg[c_] for c_ in (14, 15)) + list(xreg[14]) + list(xreg[15]) for b in (208, 216, 224)), (wreg, xreg)
    m14, m15 = mm_ops(14), mm_ops(15)
    lg.wait(("q", 14, 0), ("q", 14, 1)); m14[4]()
    m14[1]()
    a(f"v_cmp_eq_u32 vcc, 0, v{VH}")
    vm.wait("stat")
    a(f"v_cvt_pk_bf16_f32 v{MB}, -v{STAT}, -v{STAT}")
    a(f"v_cvt_pk_bf16_f32 v{MB+4}, -v{ST2}, -v{ST2}")
    lg.wait(("q", 15, 0), ("q", 15, 1)); m15[4]()
    m14[3]()
    a(f"v_cndmask_b32 v{MB}, 0, v{MB}, vcc")
    a(f"v_cndmask_b32 v{MB+4}, 0, v{MB+4}, vcc")
    a(f"v_mov_b32 v{MB+1}, v{MB}"); a(f"v_mov_b32 v{MB+5}, v{MB+4}")
    for i in (2, 3, 6, 7): a(f"v_mov_b32 v{MB+i}, 0")
    m15[1]()
    a("v_mov_b32 v10, 0"); a("v_mov_b32 v11, 0")
    a(f"v_add_f32 v6, v{CS}, v{CS+1}")
    a("v_cvt_pk_bf16_f32 v5, v6, v6")
    a("v_lshlrev_b32 v5, 16, v5")
    a("v_sub_f32 v5, v6, v5")
    m15[3]()
    a("v_cvt_pk_bf16_f32 v8, v6, v5")
    a("v_and_b32 v6, 0xffff0000, v8")
    a("v_sub_f32 v5, v5, v6")
    a("v_cvt_pk_bf16_f32 v9, v5, 0")
    a(f"v_add_u32 v12, s{W1K}, v{VL16}")
    a("v_add_u32 v12, 0x10000, v12")
    a(f"v_mfma_f32_32x32x16_bf16 {vr(ACCX,16)}, v[8:11], {vr(MB+4,4)}, {vr(ACCX,16)}")
    a("v_and_b32 v5, 1, v2")
    a("v_cmp_eq_u32 vcc, 0, v5")
    m14[0]()
    a(f"v_mul_f32 v6, {f32(QSCALE)}, v{STAT+1}")
    a("v_xor_b32 v13, 0x400, v12")
    for i in range(4): a(f"v_cndmask_b32 v{MA+i}, 0, v{MA+i}, vcc")
    m14[2]()
    for i in range(4): a(f"v_pk_mov_b32 {vr(OA+2*i,2)}, 0, 0")
    for q in range(2): a(f"ds_write_b128 v12, {vr(ACCX+4*q,4)} offset:{q*8192}")
    m15[0]()
    for q in range(2, 4): a(f"ds_write_b128 v12, {vr(ACCX+4*q,4)} offset:{q*8192}")
    for i in range(4, 8): a(f"v_pk_mov_b32 {vr(OA+2*i,2)}, 0, 0")
    m15[2]()
    for i in range(2): a(f"v_pk_mov_b32 {vr(LS+2*i,2)}, 0, 0")
    a(f"v_add_u32 v{VK1}, 0x10000, v{VL16}")
    a(f"v_mfma_f32_32x32x16_bf16 {vr(ACCO,16)}, v[8:11], {vr(MB,4)}, {vr(ACCO,16)}")
    k.EX = EX
    for p in (8, 9, 10, 11): assert p in pg.free
    k.stamp("B_end")
    if "stopB" in VAR: a("s_endpgm")
    k.ACCX, k.ACCO, k.ST2 = ACCX, ACCO, ST2
    k.ACC, k.CS, k.RK = ACC, CS, RK


def attention(k):
    a, vm, lg, ffn = k.a, k.vm, k.lg, k.ffn
    ACCX, ACC, CS, ST2 = k.ACCX, k.ACCO, k.CS, k.ST2
    EX = k.EX
    srd(a, S_W, P_WO, 1024 * 2048)
    vm.wait(("kv", 0))
    a("s_waitcnt lgkmcnt(0)")
    a("s_barrier")
    for q in range(4): a(f"ds_read_b128 {vr(EX+4*q,4)}, v13 offset:{q*8192}")
    a(f"ds_read_b128 {vr(KA,4)}, v{VL16}")
    a(f"ds_read_b128 {vr(KA+4,4)}, v{VL16} offset:1024")
    a(f"s_add_u32 m0, s{W4K}, 32768")
    a(f"s_add_u32 s{XSO}, s{W4K}, 32768")
    a(f"buffer_load_dwordx4 v{VL16}, {sr(S_KV)}, s{XSO} offen sc1 lds"); vm.add(("kv", 1))
    for q in range(4):
        a(f"s_waitcnt lgkmcnt({5-q})")
        for i in (2*q, 2*q+1): a(f"v_pk_add_f32 {vr(ACC+2*i,2)}, {vr(ACC+2*i,2)}, {vr(EX+2*i,2)}")
        for i in (2*q, 2*q+1): a(f"v_pk_mul_f32 {vr(ACC+2*i,2)}, {vr(ACC+2*i,2)}, v[6:7] op_sel_hi:[1,0]")
        for i in (2*q, 2*q+1): a(f"v_cvt_pk_bf16_f32 v{QF+i}, v{ACC+2*i}, v{ACC+2*i+1}")
    a("s_waitcnt lgkmcnt(0)")
    a(f"v_mfma_f32_32x32x16_bf16 {vr(SA,16)}, {vr(KA,4)}, {vr(QF,4)}, 0")
    a(f"v_mfma_f32_32x32x16_bf16 {vr(SA,16)}, {vr(KA+4,4)}, {vr(QF+4,4)}, {vr(SA,16)}")
    def kvaddr(tile, off):
        p = ((tile >> 3) % 3) * 32768 + (tile & 7) * 4096 + off
        return (f"v{VL16} offset:{p}" if p < 65536 else f"v{VK1} offset:{p - 65536}")
    lg.tags = []
    k.ds(f"ds_read_b128 {vr(KA,4)}, {kvaddr(1, 0)}", ("K", 1))
    k.ds(f"ds_read_b128 {vr(KA+4,4)}, {kvaddr(1, 1024)}", ("K", 1))
    k.ds(f"ds_read_b128 {vr(VA,4)}, {kvaddr(0, 2048)}", ("V0", 0))
    a(f"v_max3_f32 v6, v{SA}, v{SA+1}, v{SA+2}")
    a(f"v_max3_f32 v5, v{SA+3}, v{SA+4}, v{SA+5}")
    a(f"v_max3_f32 v6, v6, v{SA+6}, v{SA+7}")
    a(f"v_max3_f32 v5, v5, v{SA+8}, v{SA+9}")
    a(f"v_max3_f32 v6, v6, v{SA+10}, v{SA+11}")
    a(f"v_max3_f32 v5, v5, v{SA+12}, v{SA+13}")
    a(f"v_max3_f32 v6, v6, v{SA+14}, v{SA+15}")
    a("v_max_f32 v6, v6, v5")
    a("v_mov_b32 v5, v6")
    a("v_permlane32_swap_b32 v6, v5")
    a("v_max_f32 v6, v6, v5")
    a(f"v_sub_f32 v{NM}, 0, v6")
    a(f"v_sub_f32 v{NM+1}, 0, v6")
    for i in range(8): a(f"v_pk_add_f32 {vr(SA+2*i,2)}, {vr(SA+2*i,2)}, {vr(NM,2)}")
    for i in range(1, 8): a(f"v_pk_mov_b32 {vr(NM+2*i,2)}, {vr(NM,2)}, {vr(NM,2)}")
    k.stamp("loop_start")
    for T in range(64):
        c, t = T >> 3, T & 7
        S, P = (SA, SB) if T % 2 == 0 else (SB, SA)
        e = lambda i: a(f"v_exp_f32 v{S+i}, v{S+i}")
        if "pr2" in VAR: a(f"s_setprio {1 - (T & 1)}")
        elif "prh" in VAR: a(f"s_setprio {3 - ((2*T) & 3)}")
        elif "noprio" not in VAR: a(f"s_setprio {3 - ((T + 1) & 3)}")
        if "dense" in VAR:
            PK = 140
            cv = lambda i, B: a(f"v_cvt_pk_bf16_f32 v{PK+i}, v{B+2*i}, v{B+2*i+1}")
            e(0)
            if T > 0: cv(7, P)
            e(1); e(2)
            if T > 0:
                lg.wait(("V1", T - 1))
                a(f"v_mfma_f32_32x32x16_bf16 {vr(OA,16)}, {vr(VA+4,4)}, {vr(PK+4,4)}, {vr(OA,16)}")
            k.ds(f"ds_read_b128 {vr(VA+4,4)}, {kvaddr(T, 3072)}", ("V1", T))
            e(3); e(4); e(5)
            if T > 0: a(f"v_smfmac_f32_16x16x64_bf16 {vr(LS,4)}, {vr(MA,4)}, {vr(PK,8)}, v{IDXC}")
            cv(0, S)
            if T < 63:
                lg.wait(("K", T + 1))
                a(f"v_mfma_f32_32x32x16_bf16 {vr(P,16)}, {vr(KA,4)}, {vr(QF,4)}, {vr(NM,16)}")
            e(6); cv(1, S); e(7); cv(2, S)
            if T < 63:
                a(f"v_mfma_f32_32x32x16_bf16 {vr(P,16)}, {vr(KA+4,4)}, {vr(QF+4,4)}, {vr(P,16)}")
            if t == 6 and c < 7:
                vm.wait(("kv", c + 1))
                a("s_barrier")
            if T + 2 <= 63:
                k.ds(f"ds_read_b128 {vr(KA,4)}, {kvaddr(T + 2, 0)}", ("K", T + 2))
                k.ds(f"ds_read_b128 {vr(KA+4,4)}, {kvaddr(T + 2, 1024)}", ("K", T + 2))
            kc, kp = (c + 2, 0) if t == 7 else (c + 1, t + 1)
            if (t == 7 or t <= 2) and kc <= 7:
                a(f"s_add_u32 m0, s{W4K}, {(kc % 3) * 32768 + kp * 1024}")
                a(f"s_add_u32 s{XSO}, s{W4K}, {kc * 32768 + kp * 1024}")
                a(f"buffer_load_dwordx4 v{VL16}, {sr(S_KV)}, s{XSO} offen {KVF} lds"); vm.add(("kv", kc))
            cv(3, S); e(8); e(9); e(10)
            lg.wait(("V0", T))
            a(f"v_mfma_f32_32x32x16_bf16 {vr(OA,16)}, {vr(VA,4)}, {vr(PK,4)}, {vr(OA,16)}")
            if T < 63: k.ds(f"ds_read_b128 {vr(VA,4)}, {kvaddr(T + 1, 2048)}", ("V0", T + 1))
            cv(4, S); e(11); e(12); cv(5, S); e(13); e(14); cv(6, S); e(15)
        else:
            e(0); e(1)
            if T > 0:
                lg.wait(("V1", T - 1))
                a(f"v_smfmac_f32_32x32x32_bf16 {vr(OA,16)}, {vr(VA+4,4)}, {vr(P+8,8)}, v{IDXD}")
            k.ds(f"ds_read_b128 {vr(VA+4,4)}, {kvaddr(T, 3072)}", ("V1", T))
            e(2); e(3); e(4)
            if T > 0: a(f"v_smfmac_f32_16x16x64_bf16 {vr(LS,4)}, {vr(MA,4)}, {vr(P+8,8)}, v{IDXD}")
            e(5)
            if T < 63:
                lg.wait(("K", T + 1))
                a(f"v_mfma_f32_32x32x16_bf16 {vr(P,16)}, {vr(KA,4)}, {vr(QF,4)}, {vr(NM,16)}")
            e(6); e(7); e(8)
            if T < 63:
                a(f"v_mfma_f32_32x32x16_bf16 {vr(P,16)}, {vr(KA+4,4)}, {vr(QF+4,4)}, {vr(P,16)}")
            if t == 6 and c < 7:
                vm.wait(("kv", c + 1))
                if "racy" not in VAR: a("s_barrier")
            if T + 2 <= 63:
                k.ds(f"ds_read_b128 {vr(KA,4)}, {kvaddr(T + 2, 0)}", ("K", T + 2))
                k.ds(f"ds_read_b128 {vr(KA+4,4)}, {kvaddr(T + 2, 1024)}", ("K", T + 2))
            kc, kp = (c + 2, 0) if t == 7 else (c + 1, t + 1)
            if (t == 7 or t <= 2) and kc <= 7 and 'nokv' not in VAR:
                a(f"s_add_u32 m0, s{W4K}, {(kc % 3) * 32768 + kp * 1024}")
                a(f"s_add_u32 s{XSO}, s{W4K}, {kc * 32768 + kp * 1024}")
                a(f"buffer_load_dwordx4 v{VL16}, {sr(S_KV)}, s{XSO} offen {KVF} lds"); vm.add(("kv", kc))
            if "prh" in VAR: a(f"s_setprio {3 - ((2*T+1) & 3)}")
            e(9); e(10); e(11)
            lg.wait(("V0", T))
            a(f"v_smfmac_f32_32x32x32_bf16 {vr(OA,16)}, {vr(VA,4)}, {vr(S,8)}, v{IDXD}")
            if T < 63: k.ds(f"ds_read_b128 {vr(VA,4)}, {kvaddr(T + 1, 2048)}", ("V0", T + 1))
            e(12); e(13); e(14)
            a(f"v_smfmac_f32_16x16x64_bf16 {vr(LS,4)}, {vr(MA,4)}, {vr(S,8)}, v{IDXD}")
            e(15)
        if "noffn" not in VAR: ffn.tile_end(T)
        if 'nod' not in VAR: k.D.tile_end(T)
    a("s_setprio 0")
    lg.wait_all()
    a(f"v_smfmac_f32_32x32x32_bf16 {vr(OA,16)}, {vr(VA+4,4)}, {vr(SB+8,8)}, v{IDXD}")
    a(f"v_smfmac_f32_16x16x64_bf16 {vr(LS,4)}, {vr(MA,4)}, {vr(SB+8,8)}, v{IDXD}")
    k.stamp("loop_end")
    k.delay(200)
    if "stopC" in VAR: a("s_endpgm")

FBASE = 98304
class FFN:
    VGU, VTR, VOD, VTD, XSL, VL4, XST, TMP, XS, WB, DD = 160, 161, 162, 163, 164, 165, 166, 168, 176, 192, 224
    FB, GSO, DSO, YSO, ASO = 66, 67, 94, 95, 65
    def __init__(self, k): self.k, self.a, self.vm = k, k.a, k.vm
    def early(self, part):
        t = self.TMP
        lines = []
        a = lines.append
        a(f"s_add_u32 s{self.FB}, s{W8K}, {FBASE}")
        a(f"v_lshrrev_b32 v{t}, 3, v2")
        a(f"v_mul_u32_u24 v{t}, 7168, v{t}")
        a(f"v_and_b32 v{t+1}, 7, v2")
        a(f"v_lshl_add_u32 v{self.VGU}, v{t+1}, 4, v{t}")
        a(f"v_bfe_u32 v{t}, v2, 2, 2")
        a(f"v_lshrrev_b32 v{t+1}, 4, v2")
        a(f"v_lshl_add_u32 v{t+1}, v{t+1}, 3, v{t}")
        a(f"v_lshlrev_b32 v{t+1}, 7, v{t+1}")
        a(f"v_and_b32 v{t+2}, 3, v2")
        a(f"v_lshl_add_u32 v{t+1}, v{t+2}, 3, v{t+1}")
        a(f"v_add_u32 v{self.VTR}, s{self.FB}, v{t+1}")
        a(f"v_lshrrev_b32 v{t+1}, 4, v2")
        a(f"v_lshlrev_b32 v{t+3}, 2, v{t+1}")
        a(f"v_xor_b32 v{t+3}, v{t+3}, v2")
        a(f"v_and_b32 v{t+3}, 15, v{t+3}")
        a(f"v_lshlrev_b32 v{t+3}, 4, v{t+3}")
        a(f"v_lshl_add_u32 v{t+3}, v{t+1}, 11, v{t+3}")
        a(f"s_lshl_b32 s{T0}, s3, 8")
        a(f"v_add_u32 v{self.VOD}, s{T0}, v{t+3}")
        a(f"v_mul_u32_u24 v{t}, 320, v{t}")
        a(f"v_lshl_add_u32 v{t}, v{VH}, 11, v{t}")
        a(f"v_bfe_u32 v{t+1}, v2, 4, 1")
        a(f"v_lshl_add_u32 v{t}, v{t+1}, 5, v{t}")
        a(f"v_lshl_add_u32 v{t}, v{t+2}, 3, v{t}")
        a(f"v_add_u32 v{self.VTD}, s{self.FB}, v{t}")
        a(f"v_lshlrev_b32 v{self.VL4}, 2, v2")
        a(f"v_and_b32 v{t}, 60, v{self.VL4}")
        a(f"v_mov_b32 v{t+1}, 0")
        a(f"s_and_b32 s{T0}, s{FCG}, 3")
        a(f"s_lshl_b32 s{T0}, s{T0}, 3")
        a(f"s_add_u32 s{T0}, s{T0}, s3")
        a(f"s_lshl_b32 s{SP}, s{T0}, 6")
        a(f"s_mul_i32 s{self.GSO}, s{T0}, {32*7168}")
        a(f"s_lshr_b32 s{T1}, s{FCG}, 2")
        a(f"s_lshl_b32 s{T2}, s{T1}, 7")
        a(f"s_add_u32 s{self.GSO}, s{self.GSO}, s{T2}")
        a(f"s_lshl_b32 s{self.ASO}, s{T1}, 8")
        a(f"s_add_u32 s{self.ASO}, s{self.ASO}, {WS_GU:#x}")
        a(f"s_lshl_b32 s{self.DSO}, s{FCG}, 15")
        a(f"s_and_b32 s{self.YSO}, s2, 7")
        a(f"s_lshl_b32 s{self.YSO}, s{self.YSO}, 12")
        a(f"s_lshl_b32 s{T0}, s3, 9")
        a(f"s_add_u32 s{self.YSO}, s{self.YSO}, s{T0}")
        a(f"s_add_u32 s{self.YSO}, s{self.YSO}, {WS_YACC:#x}")
        a("s_cmp_lt_u32 s2, 224")
        for r in (self.GSO, self.DSO, self.YSO, self.ASO):
            a(f"s_cselect_b32 s{r}, s{r}, 0x40000000")
        srd(a, S_WD, P_WD, 3584 * 2048)
        srd(a, S_OUT, P_OUT, 2048 * 2048)
        cut = [0, 12, 29, len(lines)]
        for x in lines[cut[part]:cut[part+1]]: self.a(x)
    def argmax1(self):
        a, RK = self.a, self.k.RK
        self.vm.wait('rk')
        a(f"v_max_u32 v5, v{RK}, v{RK+1}")
        for sh in (8, 4, 2, 1):
            a(f"v_max_u32_dpp v5, v5, v5 row_ror:{sh} row_mask:0xf bank_mask:0xf")
        for i, s in enumerate((T0, T1, T2, T3)): a(f"v_readlane_b32 s{s}, v5, {16*i}")
    def argmax2(self):
        a, vm = self.a, self.vm
        a(f"s_max_u32 s{T0}, s{T0}, s{T1}")
        a(f"s_max_u32 s{T2}, s{T2}, s{T3}")
        a(f"s_max_u32 s{RKEY}, s{T0}, s{T2}")
        a(f"s_and_b32 s{IDX}, s{RKEY}, 0xffff")
        a(f"s_sub_u32 s{IDX}, 0xffff, s{IDX}")
        a(f"s_and_b32 s{IDX}, s{IDX}, 2047")
    def arrive(self, soff):
        a, t = self.a, self.TMP
        a(f"v_mov_b32 v{t+6}, 1")
        a("s_mov_b64 exec, 1")
        a(f"buffer_atomic_add v{t+6}, v{self.VL4}, {sr(S_WS)}, s{soff} offen sc1"); self.vm.add("arr")
        a("s_mov_b64 exec, -1")
    def tile_end(self, T):
        k, a, vm, t = self.k, self.a, self.vm, self.TMP
        GU_T = [2, 4, 6, 10, 12, 14, 18, 20]
        WD_T = [28, 30, 34, 36]
        if T == 1: self.argmax1(); self.argmax2()
        if T == 3:
            a(f"s_lshl_b32 s{T0}, s{IDX}, 11")
            a(f"s_add_u32 s{T0}, s{T0}, s{SP}")
            a(f"buffer_load_dword v{self.XSL}, v{t}, {sr(S_X)}, s{T0} offen"); vm.add("xs")
        if T == 5:
            a(f"s_lshl_b32 s{T0}, s{IDX}, 3")
            a(f"s_add_u32 s{T0}, s{T0}, {WS_STAT:#x}")
            a(f"buffer_load_dwordx2 {vr(self.XST,2)}, v{t+1}, {sr(S_WS)}, s{T0} offen sc1"); vm.add("xs")
        if T in GU_T:
            i = GU_T.index(T); mat, j = i >> 2, i & 3
            a(f"s_add_u32 m0, s{self.FB}, {i*1024}")
            a(f"s_add_u32 s{T0}, s{self.GSO}, {j*8*7168}")
            a(f"buffer_load_dwordx4 v{self.VGU}, {sr(S_WU if mat else S_WG)}, s{T0} offen lds"); vm.add("u" if mat else "g")
        if T == 16:
            vm.wait("xs")
            a(f"v_lshlrev_b32 v{t}, 16, v{self.XSL}")
            a(f"v_and_b32 v{t+1}, 0xffff0000, v{self.XSL}")
            a(f"v_sub_f32 v{t}, v{t}, v{self.XST}")
            a(f"v_sub_f32 v{t+1}, v{t+1}, v{self.XST}")
            a(f"v_cvt_pk_bf16_f32 v{t+2}, v{t}, v{t+1}")
            a(f"v_lshlrev_b32 v{t}, 16, v{t+2}")
            a(f"v_and_b32 v{t+1}, 0xffff0000, v{t+2}")
            a(f"v_mul_f32 v{t}, v{t}, v{self.XST+1}")
            a(f"v_mul_f32 v{t+1}, v{t+1}, v{self.XST+1}")
            a(f"v_cvt_pk_bf16_f32 v{t+2}, v{t}, v{t+1}")
            a(f"v_and_b32 v{t+3}, 0x30, v2")
            for j in range(4):
                k.ds(f"ds_bpermute_b32 v{self.XS+j}, v{t+3}, v{t+2} offset:{4*j}", "xsf")
        if 22 <= T <= 25:
            if T == 22: vm.wait("g")
            if T == 24: vm.wait("u")
            m, hf = (T - 22) >> 1, (T - 22) & 1
            for ct in (2*hf, 2*hf+1):
                for u in range(2):
                    k.ds(f"ds_read_b64_tr_b16 {vr(self.WB+16*m+4*ct+2*u,2)}, v{self.VTR} offset:{m*4096 + u*512 + ct*32}", ("gw", T))
        if 24 <= T <= 27:
            m, hf = (T - 24) >> 1, (T - 24) & 1
            k.lg.wait(("gw", T - 2), "xsf")
            for ct in (2*hf, 2*hf+1):
                a(f"v_mfma_f32_16x16x32_bf16 {vr(self.DD+16*m+4*ct,4)}, {vr(self.XS,4)}, {vr(self.WB+16*m+4*ct,4)}, 0")
        if T == 28: k.delay(41)
        if T == 51: k.delay(130)
        if T == 28:
            for ct in range(1, 4):
                for m in range(2):
                    D = self.DD + 16*m
                    a(f"v_mov_b32_dpp v{D}, v{D+4*ct} quad_perm:[0,1,2,3] row_mask:{1 << ct:#x} bank_mask:0xf")
            a(f"s_add_u32 s{T0}, s{self.ASO}, {3584*4}")
            a(f"buffer_atomic_add_f32 v{self.DD}, v{self.VL4}, {sr(S_WS)}, s{self.ASO} offen"); vm.add("at1")
            a(f"buffer_atomic_add_f32 v{self.DD+16}, v{self.VL4}, {sr(S_WS)}, s{T0} offen"); vm.add("at1")
        if T in WD_T:
            j = WD_T.index(T)
            a(f"s_add_u32 m0, s{self.FB}, {j*1024}")
            a(f"s_add_u32 s{T0}, s{self.DSO}, {j*8192}")
            a(f"buffer_load_dwordx4 v{self.VOD}, {sr(S_WD)}, s{T0} offen lds"); vm.add("wd")
        if T == 35:
            vm.wait("at1")
            a(f"s_lshr_b32 s{self.GSO}, s{FCG}, 2")
            a(f"s_lshl_b32 s{self.GSO}, s{self.GSO}, 7")
            a(f"s_add_u32 s{self.GSO}, s{self.GSO}, {SY4:#x}")
            a("s_cmp_lt_u32 s2, 224")
            a(f"s_cselect_b32 s{self.GSO}, s{self.GSO}, 0x40000000")
            self.arrive(self.GSO)
        G = self.DD
        W0F = f"s_cmp_lt_u32 s{CNT}, 224"
        if T == 40:
            a(f"s_lshl_b32 s{CNT}, s3, 8")
            a(f"s_add_u32 s{CNT}, s{CNT}, s2")
            a(f"v_mov_b32 v{t}, 0")
            k.only(W0F, lambda: a(f"buffer_load_dword v{t+1}, v{t}, {sr(S_WS)}, s{self.GSO} offen sc1"))
            vm.mark("p4")
        if T == 42:
            def p2():
                a(f"s_waitcnt vmcnt({vm.since('p4')})")
                k.poll(t, t + 1, self.GSO, 32, cnt=T3)
                a(f"v_and_b32 v{t}, 60, v{self.VL4}")
                a(f"v_bfe_u32 v{t+1}, v2, 4, 1")
                a(f"v_mul_u32_u24 v{t+1}, {3584*4}, v{t+1}")
                a(f"v_add_u32 v{t+1}, v{t+1}, v{t}")
                a(f"s_lshl_b32 s{T0}, s{FCG}, 6")
                a(f"s_add_u32 s{T0}, s{T0}, {WS_GU:#x}")
                a(f"buffer_load_dword v{G}, v{t+1}, {sr(S_WS)}, s{T0} offen sc1")
            k.only(W0F, p2)
            vm.mark("gl")
        if T == 45:
            def hh():
                a(f"s_waitcnt vmcnt({vm.since('gl')})")
                bf16r(a, G, G)
                a(f"v_mov_b32 v{G+1}, v{G}")
                a(f"v_permlane16_swap_b32 v{G}, v{G+1}")
                a(f"v_mul_f32 v{G+2}, {f32(-LOG2E)}, v{G}")
                a(f"v_exp_f32 v{G+2}, v{G+2}")
                a(f"v_add_f32 v{G+2}, 1.0, v{G+2}")
                a(f"v_rcp_f32 v{G+2}, v{G+2}")
                a(f"v_mul_f32 v{G}, v{G}, v{G+2}")
                bf16r(a, G, G)
                a(f"v_mul_f32 v{G}, v{G}, v{G+1}")
                a(f"v_cvt_pk_bf16_f32 v{G}, v{G}, v{G}")
                a(f"v_lshrrev_b32 v{t}, 1, v{t}")
                a(f"v_add_u32 v{t}, {FBASE + 4096}, v{t}")
                a(f"ds_write_b16 v{t}, v{G}")
                a("s_waitcnt lgkmcnt(0)")
            k.only(W0F, hh)
        HF, WD, DD = 168, 176, 192
        if T in (43, 44):
            if T == 43: vm.wait("wd")
            for j in (2*(T-43), 2*(T-43)+1):
                if j: a(f"v_xor_b32 v{t+4+j}, {64*j}, v{self.VTD}")
                ad = (t + 4 + j) if j else self.VTD
                for u in range(2):
                    k.ds(f"ds_read_b64_tr_b16 {vr(WD+4*j+2*u,2)}, v{ad} offset:{u*1024}", "wdf")
        if T == 46:
            a(f"v_lshlrev_b32 v{t+4}, 4, v{VH}")
            a(f"v_add_u32 v{t+4}, {FBASE + 4096}, v{t+4}")
            k.ds(f"ds_read_b128 {vr(HF,4)}, v{t+4}", "hf")
        if 47 <= T <= 50:
            j = T - 47
            k.lg.wait("hf", "wdf")
            a(f"v_mfma_f32_32x32x16_bf16 {vr(DD+16*j,16)}, {vr(HF,4)}, {vr(WD+4*j,4)}, 0")
        if T == 51:
            a(f"v_mov_b32_dpp v{DD}, v{DD+16} quad_perm:[0,1,2,3] row_mask:0xc bank_mask:0xf")
            a(f"v_mov_b32_dpp v{DD+32}, v{DD+48} quad_perm:[0,1,2,3] row_mask:0xc bank_mask:0xf")
            a(f"buffer_atomic_add_f32 v{DD}, v{self.VL4}, {sr(S_WS)}, s{self.YSO} offen"); vm.add("at")
            a(f"buffer_atomic_add_f32 v{DD+32}, v{self.VL4}, {sr(S_WS)}, s{self.YSO} offen offset:256"); vm.add("at")
        if T == 59:
            vm.wait("at")
            a(f"s_lshr_b32 s{T0}, s2, 3")
            a(f"s_lshl_b32 s{T0}, s{T0}, 7")
            a(f"s_add_u32 s{T0}, s{T0}, {SY3:#x}")
            self.arrive(T0)

class PhaseD:
    XR, ST, VXO = 8, 30, 16
    VOF, VWD = 24, (17, 18, 1)
    XFL, G, XF, ACCO, ACCX, WREG = 32, 48, 64, 96, 112, 128
    def __init__(self, k):
        self.k, self.a, self.vm = k, k.a, k.vm
        def rot(c, shift, extra, base):
            return f"""s_add_u32 s{TD}, s{ROT}, {c}
            s_and_b32 s{TD}, s{TD}, 15
            s_lshl_b32 s{TD}, s{TD}, {shift}
            s_add_u32 s{TD}, s{TD}, s{base}""" + (f"\ns_add_u32 s{TD}, s{TD}, {extra}" if extra else "")
        def ldw(n): return lambda p: f"s_add_u32 m0, s{W1K}, {p*8192}\n" + rot(n >> 1, 17, (n & 1) * 16 * 2048, SEL) + f"\nbuffer_load_dwordx4 v{VOW}, {sr(S_W)}, s{TD} offen lds"
        def ldo(c): return lambda p: f"s_add_u32 m0, s{W1K}, {p*8192}\n" + rot(c, 12, 0, OBASE) + f"\nbuffer_load_dwordx4 v{VL16}, {sr(S_WS)}, s{TD} offen sc1 lds"
        seq = [(("w", n), ldw(n), None, list(range(19, -1, -1))) for n in range(24)]
        seq += [(("o", c), ldo(c), None, list(range(16))) for c in range(16)]
        seq += [(("w", n), ldw(n), None, [16, 17, 18, 19]) for n in range(24, 32)]
        self.pg = Pager(k, range(8, 20), seq)
    def tile_end(self, T):
        k, a, vm = self.k, self.a, self.vm
        if T == 44:
            a(f"s_lshr_b32 s{T0}, s2, 3")
            a(f"s_lshl_b32 s{T0}, s{T0}, 16")
            a(f"v_lshlrev_b32 v{self.VXO}, 7, v0")
            a(f"buffer_load_dword v{self.XR}, v{self.VXO}, {sr(S_W)}, s{T0} offen"); vm.add("pf")
        if T == 51:
            a(f"v_lshlrev_b32 v{self.VXO}, 11, v{VN}")
            a(f"v_lshl_add_u32 v{self.VXO}, v{VH}, 5, v{self.VXO}")
            a(f"s_lshl_b32 s{T1}, s{RB2}, 1")
            a(f"s_add_u32 s{T1}, s{T1}, s{RT}")
            a(f"s_lshl_b32 s{XO2}, s{T1}, 16")
            a(f"s_lshl_b32 s{SEL}, s{CB2}, 8")
            a(f"s_add_u32 s{XO2}, s{XO2}, s{SEL}")
            a(f"s_lshl_b32 s{T0}, s{HD}, 6")
            a(f"s_add_u32 s{XO2}, s{XO2}, s{T0}")
            a(f"buffer_load_dwordx4 {vr(self.XR,4)}, v{self.VXO}, {sr(S_X)}, s{XO2} offen"); vm.add("x2")
            a(f"s_lshl_b32 s{ROT}, s{CB2}, 1")
            a(f"s_lshr_b32 s{T0}, s{IDX}, 5")
            a(f"s_cmp_eq_u32 s{T0}, s{T1}")
            a(f"s_cselect_b32 s{MODE}, 1, 0")
        if T == 52:
            a(f"s_lshl_b32 s{T1}, s{RB2}, 1")
            a(f"s_add_u32 s{T1}, s{T1}, s{RT}")
            a(f"s_lshl_b32 s{T0}, s{T1}, 8")
            a(f"s_add_u32 s{T0}, s{T0}, {WS_STAT:#x}")
            a(f"v_lshlrev_b32 v5, 3, v{VN}")
            a(f"buffer_load_dwordx2 {vr(self.ST,2)}, v5, {sr(S_WS)}, s{T0} offen sc1"); vm.add("x2")
        if T == 53:
            a(f"buffer_load_dwordx4 {vr(self.XR+4,4)}, v{self.VXO}, {sr(S_X)}, s{XO2} offen offset:16"); vm.add("x2")
            a(f"s_lshl_b32 s{T0}, s{ROWT}, 5")
            a(f"s_lshl_b32 s{T1}, s{HB}, 2")
            a(f"s_add_u32 s{T0}, s{T0}, s{T1}")
            a(f"s_add_u32 s{T0}, s{T0}, s{HD}")
            a(f"s_lshl_b32 s{T0}, s{T0}, 11")
            a(f"s_add_u32 s{OSO}, s{T0}, {WS_OF:#x}")
        if 54 <= T <= 61:
            for g in self.pg.take(2 if T < 58 else 1): self.pg.issue(g)
    def run(self):
        k, a, vm, lg, pg = self.k, self.a, self.vm, self.k.lg, self.pg
        XR, ST, VXO, VOF, VWD, XFL, G, XF, ACCO, ACCX, WREG = (self.XR, self.ST, self.VXO, self.VOF, self.VWD, self.XFL,
                                                              self.G, self.XF, self.ACCO, self.ACCX, self.WREG)
        a("v_bfe_u32 v5, v2, 2, 2")
        a(f"v_lshl_add_u32 v6, v{VH}, 2, v5")
        a("v_lshlrev_b32 v6, 6, v6")
        a("v_and_b32 v5, 1, v2")
        a("v_lshl_add_u32 v6, v5, 5, v6")
        a("v_bfe_u32 v5, v2, 4, 1")
        a("v_lshl_add_u32 v6, v5, 4, v6")
        a("v_bfe_u32 v5, v2, 1, 1")
        a("v_lshl_add_u32 v6, v5, 3, v6")
        a(f"v_add_u32 v{VWD[0]}, s{W1K}, v6")
        a(f"v_add_u32 v{VWD[1]}, 0x10000, v{VWD[0]}")
        a(f"v_add_u32 v{VWD[2]}, 0x20000, v{VWD[0]}")
        a(f"v_mov_b32 v6, {f32(2.0**64)}")
        for i in range(4): a(f"v_pk_add_f32 {vr(SA+2*i,2)}, {vr(OA+4*i,2)}, {vr(OA+4*i+2,2)}")
        a(f"v_pk_add_f32 {vr(SA,2)}, {vr(SA,2)}, {vr(SA+2,2)}")
        a(f"v_pk_add_f32 {vr(SA+4,2)}, {vr(SA+4,2)}, {vr(SA+6,2)}")
        a(f"v_pk_add_f32 {vr(SA,2)}, {vr(SA,2)}, {vr(SA+4,2)}")
        a(f"v_add_f32 v5, v{SA}, v{SA+1}")
        a(f"v_fma_f32 v5, v5, 0, v{LS}")
        a("v_cmp_nlt_f32 vcc, v5, v6")
        a("s_nop 1")
        if "forcefb" in VAR: a("s_branch L_fallback")
        a("s_cbranch_vccnz L_fallback")
        a.label("L_fin")
        a(f"v_rcp_f32 v6, v{LS}")
        for i in range(8): a(f"v_pk_mul_f32 {vr(OA+2*i,2)}, {vr(OA+2*i,2)}, v[6:7] op_sel_hi:[1,0]")
        for i in range(8): a(f"v_cvt_pk_bf16_f32 v{SA+i}, v{OA+2*i}, v{OA+2*i+1}")
        a(f"buffer_store_dwordx4 {vr(SA,4)}, v{VL16}, {sr(S_WS)}, s{OSO} offen sc1"); vm.add("ost")
        a(f"buffer_store_dwordx4 {vr(SA+4,4)}, v{VL16}, {sr(S_WS)}, s{OSO} offen offset:1024 sc1"); vm.add("ost")
        def wread(n):
            vm.wait(("w", n))
            p = pg.page[("w", n)]
            for u in range(2):
                k.ds(f"ds_read_b64_tr_b16 {vr(WREG+4*n+2*u,2)}, v{VWD[p >> 3]} offset:{(p & 7)*8192 + 8*u*64}", ("wr", n))
        def wfree(n):
            lg.wait(("wr", n)); pg.free.append(pg.page[("w", n)])
        def xn_ops(src, lo, hi, g0, g1, m, ri):
            return [f"v_lshlrev_b32 v{lo}, 16, v{src}", f"v_and_b32 v{hi}, 0xffff0000, v{src}",
                    f"v_sub_f32 v{g0}, v{lo}, v{m}", f"v_sub_f32 v{g1}, v{hi}, v{m}",
                    f"v_cvt_pk_bf16_f32 v6, v{g0}, v{g1}",
                    f"v_lshlrev_b32 v{g0}, 16, v6", f"v_and_b32 v{g1}, 0xffff0000, v6",
                    f"v_mul_f32 v{g0}, v{g0}, v{ri}", f"v_mul_f32 v{g1}, v{g1}, v{ri}",
                    f"v_cvt_pk_bf16_f32 v6, v{g0}, v{g1}",
                    f"v_lshlrev_b32 v{g0}, 16, v6", f"v_and_b32 v{g1}, 0xffff0000, v6"]
        def silu_ops(g0, g1):
            return [f"v_mul_f32 v6, {f32(-LOG2E)}, v{g0}", f"v_mul_f32 v7, {f32(-LOG2E)}, v{g1}",
                    "v_exp_f32 v6, v6", "v_exp_f32 v7, v7",
                    "v_add_f32 v6, 1.0, v6", "v_add_f32 v7, 1.0, v7",
                    "v_rcp_f32 v6, v6", "v_rcp_f32 v7, v7",
                    f"v_mul_f32 v{g0}, v{g0}, v6", f"v_mul_f32 v{g1}, v{g1}, v7",
                    f"v_cvt_pk_bf16_f32 v6, v{g0}, v{g1}",
                    f"v_lshlrev_b32 v{g0}, 16, v6", f"v_and_b32 v{g1}, 0xffff0000, v6"]
        gate = []
        for p in range(8): gate += xn_ops(XR+p, XFL+2*p, XFL+2*p+1, G+2*p, G+2*p+1, ST, ST+1)
        for p in range(8): gate += silu_ops(G+2*p, G+2*p+1)
        def gops(n):
            for _ in range(min(n, len(gate))): a(gate.pop(0))
        for n in range(12): wread(n)
        for n in range(4):
            wfree(n)
            for g in pg.take(1): pg.issue(g)
        a(f"s_lshl_b32 s{T0}, s{RB}, 3")
        a(f"s_add_u32 s{T0}, s{T0}, s{HB}")
        a(f"s_lshl_b32 s{T0}, s{T0}, 7")
        a(f"s_add_u32 s{T0}, s{T0}, {SY2:#x}")
        a("v_mov_b32 v5, 1")
        a("v_mov_b32 v6, 0")
        vm.wait("ost")
        def arr():
            a("s_mov_b64 exec, 1")
            a(f"buffer_store_dword v5, v6, {sr(S_WS)}, s{T0} offen sc1" if "stflag" in VAR else f"buffer_atomic_add v5, v6, {sr(S_WS)}, s{T0} offen sc1")
            a("s_mov_b64 exec, -1")
        if "wgarr" in VAR:
            a("s_barrier")
            k.only("s_cmp_eq_u32 s3, 0", arr)
        else:
            arr(); vm.add("arr")
        k.stamp("E1")
        for n in range(4, 12): wfree(n)
        PV = XF
        a(f"v_and_b32 v{PV}, 7, v2")
        a(f"v_lshlrev_b32 v{PV}, 7, v{PV}")
        a(f"s_lshl_b32 s{T3}, s{RB2}, 10")
        a(f"s_add_u32 s{T3}, s{T3}, {SY2:#x}")
        nxt = 12
        for i, g in enumerate(pg.take(16, stop=("o", 0))):
            pg.issue(g); gops(8)
            if i >= 2: wread(nxt); nxt += 1
            if i == D_POLL:
                k.only("s_cmp_eq_u32 s3, 7", lambda: a(f"buffer_load_dword v{PV+1}, v{PV}, {sr(S_WS)}, s{T3} offen sc1"))
        a(f"s_lshl_b32 s{OBASE}, s{RB2}, 1")
        a(f"s_lshr_b32 s{T0}, s3, 2")
        a(f"s_add_u32 s{OBASE}, s{OBASE}, s{T0}")
        a(f"s_lshl_b32 s{OBASE}, s{OBASE}, 16")
        a(f"s_and_b32 s{T0}, s3, 3")
        a(f"s_lshl_b32 s{T0}, s{T0}, 10")
        a(f"s_add_u32 s{OBASE}, s{OBASE}, s{T0}")
        a(f"s_add_u32 s{OBASE}, s{OBASE}, {WS_OF:#x}")
        a(f"s_mul_i32 s{T0}, s{RT}, {4096 + 2048}")
        a(f"v_add_u32 v{VOF}, s{T0}, v{VL16}")
        a(f"v_xor_b32 v{VOF+1}, 0x1000, v{VOF}")
        a(f"v_add_u32 v{VOF+2}, 0x10000, v{VOF}")
        a(f"v_add_u32 v{VOF+3}, 0x10000, v{VOF+1}")
        while nxt < 24:
            wread(nxt); nxt += 1; gops(6)
        lg.wait_all()
        k.only("s_cmp_eq_u32 s3, 7", lambda: k.poll(PV, PV + 1, T3, 1 if 'wgarr' in VAR else 8))
        a("s_barrier")
        k.stamp("E2")
        pg.free = list(range(20))
        OWN = f"s_cmp_eq_u32 s{MODE}, 1"
        YA, YD = 28, 29
        a(f"v_lshlrev_b32 v{YA}, 7, v{VN}")
        a(f"s_mov_b32 s{T3}, {SY3:#x}")
        od = pg.take(20)
        for g in od[:6]:
            pg.issue(g); gops(8)
        k.only(OWN, lambda: a(f"buffer_load_dword v{YD}, v{YA}, {sr(S_WS)}, s{T3} offen sc1"))
        od = od[6:]
        gops(1000)
        Y, X4, XN, YS, YB = WREG + 16, WREG + 20, WREG + 24, WREG + 28, WREG + 32
        def y_load():
            k.poll(YA, YD, T3, 64)
            a(f"v_lshrrev_b32 v{YA}, 3, v2")
            a(f"v_lshlrev_b32 v{YA}, 12, v{YA}")
            a(f"v_and_b32 v{YD}, 7, v2")
            a(f"v_lshl_add_u32 v{YA}, v{YD}, 4, v{YA}")
            a(f"s_lshl_b32 s{T0}, s{CB2}, 9")
            a(f"s_lshl_b32 s{T1}, s{HD}, 7")
            a(f"s_add_u32 s{T0}, s{T0}, s{T1}")
            a(f"s_add_u32 s{T1}, s{T0}, {WS_YACC:#x}")
            a(f"buffer_load_dwordx4 {vr(Y,4)}, v{YA}, {sr(S_WS)}, s{T1} offen sc1")
            a(f"s_lshr_b32 s{T0}, s{T0}, 1")
            a(f"s_lshl_b32 s{T1}, s{IDX}, 11")
            a(f"s_add_u32 s{T0}, s{T0}, s{T1}")
            a(f"v_lshlrev_b32 v{YD}, 3, v{YD}")
            a(f"buffer_load_dwordx2 {vr(X4,2)}, v{YD}, {sr(S_X)}, s{T0} offen")
            a(f"s_lshl_b32 s{T0}, s{IDX}, 3")
            a(f"s_add_u32 s{T0}, s{T0}, {WS_STAT:#x}")
            a(f"v_mov_b32 v{YD}, 0")
            a(f"buffer_load_dwordx2 {vr(YS,2)}, v{YD}, {sr(S_WS)}, s{T0} offen sc1")
            a(f"s_and_b32 s{T1}, s{RKEY}, 0xffff0000")
            a(f"s_xor_b32 s{T2}, s{T1}, 0x80000000")
            a(f"s_xor_b32 s{T0}, s{T1}, 0xffff0000")
            a(f"s_bitcmp1_b32 s{T1}, 31")
            a(f"s_cselect_b32 s{T1}, s{T2}, s{T0}")
            a(f"v_mov_b32 v{YA}, s{T1}")
            a(f"v_mul_f32 v{YA}, {f32(-LOG2E)}, v{YA}")
            a(f"v_exp_f32 v{YA}, v{YA}")
            a(f"v_add_f32 v{YA}, 1.0, v{YA}")
            a(f"v_rcp_f32 v{YA}, v{YA}")
            bf16r(a, YA, YA)
        def y_sum():
            a("s_waitcnt vmcnt(0)")
            for e in range(4): a(f"v_add_f32_dpp v{Y+e}, v{Y+e}, v{Y+e} row_ror:8 row_mask:0xf bank_mask:0xf")
            for sw in ("v_permlane16_swap_b32", "v_permlane32_swap_b32"):
                for e in range(4): a(f"v_mov_b32 v{XN+e}, v{Y+e}")
                for e in range(4): a(f"{sw} v{Y+e}, v{XN+e}")
                for e in range(4): a(f"v_add_f32 v{Y+e}, v{Y+e}, v{XN+e}")
        def y_scale():
            for e in range(4):
                bf16r(a, Y+e, Y+e)
                a(f"v_mul_f32 v{Y+e}, v{Y+e}, v{YA}")
                bf16r(a, Y+e, Y+e)
        def y_xn():
            for p in range(2):
                for x in xn_ops(X4+p, YB, YB+1, XN+2*p, XN+2*p+1, YS, YS+1): a(x)
        def y_add():
            for e in range(4):
                a(f"v_add_f32 v{XN+e}, v{XN+e}, v{Y+e}")
                bf16r(a, XN+e, XN+e)
            for x in silu_ops(XN, XN+1): a(x)
        def y_perm():
            for x in silu_ops(XN+2, XN+3): a(x)
            a(f"v_lshlrev_b32 v{YD}, 4, v{VH}")
            for q in range(4):
                for e in range(4): a(f"ds_bpermute_b32 v{YB+4*q+e}, v{YD}, v{XN+e} offset:{4*q}")
        def y_put():
            a("s_waitcnt lgkmcnt(0)")
            a(f"s_and_b32 s{T1}, s{IDX}, 31")
            a(f"v_cmp_eq_u32 vcc, s{T1}, v{VN}")
            for i in range(16): a(f"v_cndmask_b32 v{G+i}, v{G+i}, v{YB+i}, vcc")
        ysteps = {5: y_load, 8: y_sum, 9: y_scale, 10: y_xn, 11: y_add, 12: y_perm}
        avail = {0: 2, 2: 4, 4: 8, 8: 12, 12: 16}
        pool = [XF, XF + 16]
        xb = {}
        def rd_ops(c):
            if not pool: return None
            xb[c] = pool.pop(0)
            def bar():
                vm.wait(*[("o", i) for i in range(avail[c])])
                a("s_barrier")
            def r(e):
                p = pg.page[("o", c)]
                for t in range(2):
                    k.ds(f"ds_read_b128 {vr(xb[c]+4*(2*t+e),4)}, v{VOF + 2*(p >> 3) + t} offset:{(p & 7)*8192 + e*1024}", ("d", c, e))
            return ([bar] if c in avail else []) + [lambda: r(0), lambda: r(1)]
        def rd(c):
            for o in rd_ops(c): o()
        rd(0); k.stamp("D0"); rd(1)
        def mf(c, e, t):
            acc = ACCX if t else ACCO
            cc = "0" if (c == 0 and e == 0) else vr(acc, 16)
            a(f"v_mfma_f32_32x32x16_bf16 {vr(acc,16)}, {vr(WREG+4*(2*c+e),4)}, {vr(xb[c]+4*(2*t+e),4)}, {cc}")
        def d1():
            if od: pg.issue(od.pop(0))
        for c in range(14):
            def m0(e):
                lg.wait(("d", c, e), ("wr", 2*c+e)); mf(c, e, 0)
            ms = [lambda: m0(0), lambda: mf(c, 0, 1), lambda: m0(1), lambda: mf(c, 1, 1)]
            extra = []
            if c == 8: extra = [lambda n=n: wread(n) for n in range(24, 28)]
            if c == 12: extra = [lambda n=n: wread(n) for n in range(28, 32)]
            if c == 9:
                for n in range(24, 28): wfree(n)
                od += pg.take(4)
            ro = rd_ops(c + 2)
            interleave(ms, [d1, d1] + (ro or []) + extra)
            pool.append(xb[c])
            if c == 1: pool.append(WREG)
            if ro is None: rd(c + 2)
            if c in ysteps: k.only(OWN, ysteps[c])
        lg.wait_all()
        a(f"v_add_u32 v5, s{W1K}, v{VL16}")
        for c in (14, 15):
            for e in range(2): mf(c, e, 1)
        a("v_add_u32 v5, 0x20000, v5")
        k.only(OWN, y_put)
        a("v_xor_b32 v6, 0x400, v5")
        mf(14, 0, 0); mf(14, 1, 0); mf(15, 0, 0)
        a("s_nop 6")
        for q in range(4): a(f"ds_write_b128 v5, {vr(ACCX+4*q,4)} offset:{q*8192}")
        mf(15, 1, 0)
        k.stamp("D_end")
        a("s_waitcnt lgkmcnt(0)")
        a("s_barrier")
        for q in range(4): a(f"ds_read_b128 {vr(WREG+16+4*q,4)}, v6 offset:{q*8192}")
        for q in range(4):
            a(f"s_waitcnt lgkmcnt({3-q})")
            for i in (2*q, 2*q+1): a(f"v_pk_add_f32 {vr(ACCO+2*i,2)}, {vr(ACCO+2*i,2)}, {vr(WREG+16+2*i,2)}")
            for i in (2*q, 2*q+1): a(f"v_pk_fma_f32 {vr(ACCO+2*i,2)}, {vr(ACCO+2*i,2)}, {vr(G+2*i,2)}, {vr(XFL+2*i,2)}")
            for i in (2*q, 2*q+1): a(f"v_cvt_pk_bf16_f32 v{XR+i}, v{ACCO+2*i}, v{ACCO+2*i+1}")
            if q == 1: a(f"buffer_store_dwordx4 {vr(XR,4)}, v{VXO}, {sr(S_OUT)}, s{XO2} offen" + OUTF)
        a(f"buffer_store_dwordx4 {vr(XR+4,4)}, v{VXO}, {sr(S_OUT)}, s{XO2} offen offset:16" + OUTF)
        k.stamp("end")

def fallback(k):
    a = k.a
    a.label("L_fallback")
    a.flush()
    a("v_mov_b32 v6, 0xff800000")
    a(f"s_mov_b32 s{T0}, 0")
    a.label("L_fb1")
    a(f"buffer_load_dwordx4 {vr(KA,4)}, v{VL16}, {sr(S_KV)}, s{T0} offen sc1")
    a(f"buffer_load_dwordx4 {vr(KA+4,4)}, v{VL16}, {sr(S_KV)}, s{T0} offen offset:1024 sc1")
    a("s_waitcnt vmcnt(0)")
    a(f"v_mfma_f32_32x32x16_bf16 {vr(SA,16)}, {vr(KA,4)}, {vr(QF,4)}, 0")
    a(f"v_mfma_f32_32x32x16_bf16 {vr(SA,16)}, {vr(KA+4,4)}, {vr(QF+4,4)}, {vr(SA,16)}")
    for i in range(0, 16, 2): a(f"v_max3_f32 v6, v6, v{SA+i}, v{SA+i+1}")
    a(f"s_add_u32 s{T0}, s{T0}, 4096")
    a(f"s_cmp_lt_u32 s{T0}, 0x40000")
    a("s_cbranch_scc1 L_fb1")
    a("v_mov_b32 v5, v6")
    a("v_permlane32_swap_b32 v6, v5")
    a("v_max_f32 v6, v6, v5")
    for i in range(16): a(f"v_sub_f32 v{NM+i}, 0, v6")
    for i in range(16): a(f"v_mov_b32 v{OA+i}, 0")
    for i in range(4): a(f"v_mov_b32 v{LS+i}, 0")
    a(f"s_mov_b32 s{T0}, 0")
    a.label("L_fb2")
    a(f"buffer_load_dwordx4 {vr(KA,4)}, v{VL16}, {sr(S_KV)}, s{T0} offen sc1")
    a(f"buffer_load_dwordx4 {vr(KA+4,4)}, v{VL16}, {sr(S_KV)}, s{T0} offen offset:1024 sc1")
    a(f"buffer_load_dwordx4 {vr(VA,4)}, v{VL16}, {sr(S_KV)}, s{T0} offen offset:2048 sc1")
    a(f"buffer_load_dwordx4 {vr(VA+4,4)}, v{VL16}, {sr(S_KV)}, s{T0} offen offset:3072 sc1")
    a("s_waitcnt vmcnt(0)")
    a(f"v_mfma_f32_32x32x16_bf16 {vr(SA,16)}, {vr(KA,4)}, {vr(QF,4)}, {vr(NM,16)}")
    a(f"v_mfma_f32_32x32x16_bf16 {vr(SA,16)}, {vr(KA+4,4)}, {vr(QF+4,4)}, {vr(SA,16)}")
    for i in range(16): a(f"v_exp_f32 v{SA+i}, v{SA+i}")
    a(f"v_smfmac_f32_32x32x32_bf16 {vr(OA,16)}, {vr(VA,4)}, {vr(SA,8)}, v{IDXD}")
    a(f"v_smfmac_f32_16x16x64_bf16 {vr(LS,4)}, {vr(MA,4)}, {vr(SA,8)}, v{IDXD}")
    a(f"v_smfmac_f32_32x32x32_bf16 {vr(OA,16)}, {vr(VA+4,4)}, {vr(SA+8,8)}, v{IDXD}")
    a(f"v_smfmac_f32_16x16x64_bf16 {vr(LS,4)}, {vr(MA,4)}, {vr(SA+8,8)}, v{IDXD}")
    a(f"s_add_u32 s{T0}, s{T0}, 4096")
    a(f"s_cmp_lt_u32 s{T0}, 0x40000")
    a("s_nop 7")
    a("s_cbranch_scc1 L_fb2")
    a.flush()
    a("s_branch L_fin")
    a.label("L_code_end")

def build(path):
    k = K()
    k.ffn = FFN(k); k.D = PhaseD(k)
    prologue(k); phaseAB(k); attention(k)
    if 'nod' not in VAR: k.D.run()
    else: k.a.label('L_fin')
    k.a.label("L_end"); k.a("s_endpgm")
    fallback(k)
    top = open("cdna_kernels/" + NAME + ".s.ref").read().split("; Override launch geometry")[0]
    if STAMPS: top += "; stamps: " + " ".join(STAMP_NAMES) + "\n"
    top += "; @launch grid=(256,1,1) block=(512,1,1) lds=163840\n"
    top += '.amdgcn_target "amdgcn-amd-amdhsa--gfx950"\n.text\n'
    top += f".set CODE_BYTES, L_code_end - {KN} - 64\n"
    kd = f""".section .rodata,"a"
.p2align 6
.amdhsa_kernel {KN}
  .amdhsa_next_free_vgpr 256
  .amdhsa_next_free_sgpr 102
  .amdhsa_accum_offset 256
  .amdhsa_group_segment_fixed_size 0
  .amdhsa_kernarg_size 104
  .amdhsa_user_sgpr_count 2
  .amdhsa_user_sgpr_kernarg_segment_ptr 1
  .amdhsa_system_sgpr_workgroup_id_x 1
.end_amdhsa_kernel
"""
    open(path, "w").write(top + k.a.text() + kd)
    return k

if __name__ == "__main__":
    out = sys.argv[1] if len(sys.argv) > 1 else "cdna_kernels/" + NAME + ".s"
    if len(sys.argv) > 2 and sys.argv[2] == "stamps": STAMPS = True
    VAR.update(sys.argv[3:])
    for v in VAR:
        if v.startswith('init'): N_INIT = int(v[4:])
        if v.startswith('wt') and '_' in v: WT_IT, WT_POS = [int(x) for x in v[2:].split('_')]
        if v.startswith('chk'): CHK, PI = [int(x) for x in v[3:].split('_')]
        if v.startswith('dp'): D_POLL = int(v[2:])
        if v.startswith('al'): ALIGN = int(v[2:])
        if v == 'noskip': S1_SKIP = ()
        if v.startswith('kvf'): KVF = v[3:].replace('_', ' ')
        if v.startswith('pad'): PADAT, PADTO = v[3:].split('@')[0], int(v[3:].split('@')[1])
        if v.startswith('nw'): NW0, ARR, R2C = [int(x) for x in v[2:].split('_')]
        if v.startswith('out'): OUTF = ' ' + v[3:].replace('_', ' ')
    k = build(out)
    if "-v" in VAR:
        for l in k.a.log: print("nop", l)
        for l in k.pgAB.log: print("AB", l)
        for l in k.D.pg.log: print("D", l)
```

```python
import sys, struct
from asmlib import Asm

NAME = "recurrent_scan__grouped_kv_mqa__moe_arch_mod__prompt"
KN = NAME + "_kernel"
WS_KV, WS_STAT, WS_RKEY, WS_SY, WS_YACC, WS_GU, WS_STAMP, WS_OF = 0x0, 0x40000, 0x46000, 0x48000, 0x50000, 0x58000, 0x80000, 0x100000
WS_SIZE = 0x500000
SYB = 0x68000
SY1, SY2, SY3, SY4 = 0x60000, SYB + 0x8000, SYB, SYB + 64 * 128
ONES = 0x3F803F80
LOG2E = 1.4426950408889634
QSCALE = 0.17677669529663687 * LOG2E
def f32(x): return "0x%08x" % struct.unpack("<I", struct.pack("<f", x))[0]
STAMPS = False
VAR = set()
SPIN_MAX = 200000
N_INIT = 9
CHK, PI = 11, 9
D_POLL = 7
VAR.add('wgarr')
WT_IT, WT_POS = 4, 0
ALIGN = 0
DBG_IT = 2
FB0 = 4
KVF = 'sc1'
NEARLY = 12
KVT, KVP = [7, 0, 1, 2], 0
FTS, WDT = [2, 4, 6], [28, 30, 34, 36]
S1_SKIP = (5, 7)
PADTO, PADAT = 0, 'end'
ARR, R2C, NW0 = -1, 2, 0
OUTF = ''

S_X, S_W, S_KW, S_WS, S_KV, S_WR, S_WG, S_WU = 4, 8, 12, 16, 20, 24, 28, 32
S_OUT, S_WD = S_WR, S_KW
RB, HB, ROT, T0, T1, T2, T3 = 36, 37, 38, 39, 40, 41, 42
W1K, MODE, W4K, XSO, TD, SP, RT, HD, ROWT, RG = 43, 44, 45, 46, 47, 48, 49, 50, 51, 52
SEL, IDX, RKEY, FCG, RB2, CB2, OSO, XO2, CNT, OBASE = 53, 54, 55, 56, 57, 58, 59, 60, 61, 62
W8K, EXS, FW = 63, 64, 66
PT = 68
P_X, P_WQ, P_WK, P_WV, P_WO, P_BX, P_WR, P_WG, P_WU, P_WD, P_OUT, P_DBG, P_WS = [PT + 2 * i for i in range(13)]
STMP = 96
def sr(b): return f"s[{b}:{b+3}]"
def vr(b, n): return f"v[{b}:{b+n-1}]"

VN, VH, VOX, VOW, VL16, VST = 3, 4, 18, 19, 20, 21
MA, IDXC, IDXD, STAT = 24, 28, 29, 30
QF, NM, VA, SA, SB, OA, LS, KA, VK1 = 32, 40, 56, 64, 80, 96, 112, 116, 17

def srd(a, d, base, nbytes):
    a(f"s_mov_b32 s{d}, s{base}")
    a(f"s_and_b32 s{d+1}, s{base+1}, 0xffff")
    a(f"s_mov_b32 s{d+2}, {nbytes:#x}")
    a(f"s_mov_b32 s{d+3}, 0x20000")

def bf16r(a, dst, src):
    a(f"v_cvt_pk_bf16_f32 v{dst}, v{src}, v{src}")
    a(f"v_lshlrev_b32 v{dst}, 16, v{dst}")

_lbl = [0]
def L(p="L"):
    _lbl[0] += 1
    return f"{p}_{_lbl[0]}"

class Cnt:
    def __init__(self, a, name, mx): self.a, self.name, self.mx, self.tags, self.total, self.marks = a, name, mx, [], 0, {}
    def add(self, tag, n=1): self.tags += [tag] * n; self.total += n
    def mark(self, m): self.marks[m] = self.total
    def since(self, m): return min(self.total - self.marks[m], self.mx)
    def wait(self, *tags):
        idx = [i for i, t in enumerate(self.tags) if t in tags]
        if not idx: return
        n = min(len(self.tags) - 1 - max(idx), self.mx)
        self.a(f"s_waitcnt {self.name}({n})")
        self.tags = self.tags[len(self.tags) - n:] if n else []
    def wait_all(self):
        self.a(f"s_waitcnt {self.name}(0)"); self.tags = []

STAMP_NAMES = []
class K:
    def __init__(self):
        self.a = Asm()
        self.vm = Cnt(self.a, "vmcnt", 63)
        self.lg = Cnt(self.a, "lgkmcnt", 15)
    def stamp(self, name):
        if PADTO and name == PADAT:
            a = self.a; lp = L()
            a.label(lp)
            a(f"s_memrealtime s[{STMP+2}:{STMP+3}]"); a("s_waitcnt lgkmcnt(0)")
            a(f"s_sub_u32 s{STMP+2}, s{STMP+2}, s{STMP}")
            a(f"s_cmp_lt_u32 s{STMP+2}, {PADTO}")
            a(f"s_cbranch_scc1 {lp}")
            return
        if "dbgstamp" in VAR:
            a = self.a
            names = ["entry", "S0", "B0", "B_end", "loop_start", "loop_end", "E2", "end"]
            if name not in names: return
            slot = 8 + names.index(name)
            if name == "entry":
                a(f"s_memrealtime s[{STMP+2}:{STMP+3}]"); a("s_waitcnt lgkmcnt(0)")
                a("s_and_b32 s100, s2, 31"); a("s_lshl_b32 s101, s3, 8"); a("s_add_u32 s100, s100, s101"); return
            def st():
                a(f"s_memrealtime s[{STMP}:{STMP+1}]"); a("s_waitcnt lgkmcnt(0)")
                a(f"s_sub_u32 s{STMP}, s{STMP}, s{STMP+2}")
                a(f"v_mov_b32 v{VST+1}, s{STMP}")
                a(f"v_mov_b32 v{VST}, {slot*4}")
                a("s_mov_b64 exec, 1")
                a(f"global_atomic_umax v{VST}, v{VST+1}, s[{P_DBG}:{P_DBG+1}]")
                a("s_mov_b64 exec, -1")
            self.only("s_cmp_eq_u32 s100, 9", st)
            return
        if not STAMPS: return
        a = self.a
        slot = len(STAMP_NAMES); STAMP_NAMES.append(str(name)); assert slot < 32
        if name != "entry":
            a(f"s_memrealtime s[{STMP}:{STMP+1}]")
            a(f"s_memtime s[{STMP+2}:{STMP+3}]")
        a("s_waitcnt lgkmcnt(0)")
        a(f"s_lshl_b32 s{STMP+1}, s2, 11")
        a(f"s_lshl_b32 s{STMP+3}, s3, 8")
        a(f"s_add_u32 s{STMP+1}, s{STMP+1}, s{STMP+3}")
        a(f"s_add_u32 s{STMP+1}, s{STMP+1}, {WS_STAMP + slot * 8:#x}")
        a(f"v_mov_b32 v{VST+1}, s{STMP}")
        a(f"v_mov_b32 v{VST+2}, s{STMP+2}")
        a(f"v_mov_b32 v{VST}, s{STMP+1}")
        a(f"buffer_store_dwordx2 v[{VST+1}:{VST+2}], v{VST}, {sr(S_WS)}, 0 offen")
        self.vm.add("st")
    def delay(self, wg):
        if "delay" not in VAR: return
        def d():
            for _ in range(6): self.a("s_sleep 127")
        self.only(f"s_cmp_eq_u32 s2, {wg}", d)
    def only(self, cond, fn):
        a = self.a; skip = L()
        a(cond); a(f"s_cbranch_scc0 {skip}")
        snap = a.snapshot(); fn(); a.label(skip); a.join(snap)
    def ifelse(self, cond, f1, f2):
        a = self.a; lv, lj = L(), L()
        a(cond); a(f"s_cbranch_scc0 {lv}")
        snap = a.snapshot(); f1(); a(f"s_branch {lj}"); snap2 = a.snapshot()
        a.label(lv); a.hist = snap[0]; a.alts = [(h, 0) for h in snap[1:]]
        f2(); a.label(lj); a.join(snap2)
    def poll(self, vaddr, vdat, soff, expect, cnt=CNT):
        a = self.a; top, chk, done = L("poll"), L("pchk"), L("pdone")
        a(f"s_mov_b32 s{cnt}, 0")
        a(f"s_branch {chk}")
        a.label(top)
        a(f"buffer_load_dword v{vdat}, v{vaddr}, {sr(S_WS)}, s{soff} offen sc1")
        a("s_waitcnt vmcnt(0)")
        a.label(chk)
        a(f"v_cmp_ne_u32 vcc, {expect}, v{vdat}")
        a(f"s_add_u32 s{cnt}, s{cnt}, 1")
        a(f"s_cbranch_vccz {done}")
        a("s_sleep 2")
        a(f"s_cmp_lt_u32 s{cnt}, {SPIN_MAX}")
        a(f"s_cbranch_scc1 {top}")
        a.label(done)
    def ds(self, text, tag):
        self.a(text); self.lg.add(tag)

class Pager:
    def __init__(self, k, free, seq):
        self.k, self.free, self.seq, self.pos, self.page, self.rel = k, list(free), seq, 0, {}, {}
        self.hold, self.hold_until, self.log = set(), 0, []
    def release(self, it):
        for p in self.rel.pop(it, []): self.free.append(p)
    def take(self, n, stop=None):
        out = []
        while len(out) < n and self.pos < len(self.seq):
            tag, emit, last, pref = self.seq[self.pos]
            if stop is not None and tag == stop: break
            cand = [p for p in pref if p in self.free and not (p in self.hold and (last is None or last + 2 > self.hold_until))]
            if not cand: break
            p = cand[0]; self.free.remove(p); self.page[tag] = p
            if last is not None: self.rel.setdefault(last + 2, []).append(p)
            out.append((tag, emit(p))); self.pos += 1
        self.log.append([(t, self.page[t]) for t, _ in out])
        return out
    def issue(self, grp):
        tag, text = grp
        self.k.a(text); self.k.vm.add(tag)

def spread(groups, extra, first=True):
    n = len(groups)
    per = -(-len(extra) // max(n, 1)) if extra else 0
    for i, g in enumerate(groups):
        for e in extra[i * per:(i + 1) * per]: e()
        g()
    for e in extra[n * per:]: e()

def interleave(ms, os):
    n = len(ms)
    for i, m in enumerate(ms):
        m()
        for o in os[i * len(os) // n:(i + 1) * len(os) // n]: o()

def prologue(k):
    a, vm = k.a, k.vm
    a.raw(f".globl {KN}"); a.raw(".p2align 8"); a.raw(f".type {KN},@function"); a.raw(f"{KN}:")
    if STAMPS or PADTO:
        a(f"s_memrealtime s[{STMP}:{STMP+1}]")
        a(f"s_memtime s[{STMP+2}:{STMP+3}]")
    a("s_cmp_ge_u32 s2, 256")
    a("s_cbranch_scc1 L_end")
    a(f"s_load_dwordx16 s[{PT}:{PT+15}], s[0:1], 0")
    a(f"s_load_dwordx8 s[{PT+16}:{PT+23}], s[0:1], 64")
    a(f"s_load_dwordx2 s[{PT+24}:{PT+25}], s[0:1], 96")
    a("s_getpc_b64 s[94:95]")
    a("v_lshrrev_b32 v1, 6, v0")
    a("v_and_b32 v2, 63, v0")
    a("v_readfirstlane_b32 s3, v1")
    a("s_and_b32 s4, s2, 0xf8")
    a("s_mul_i32 s4, s4, 160")
    a("v_lshlrev_b32 v8, 7, v0")
    a("v_cmp_gt_u32 vcc, 10, v0")
    a("v_add_u32 v8, s4, v8")
    a("v_min_u32 v8, CODE_BYTES, v8")
    a(f"s_and_saveexec_b64 s[{EXS}:{EXS+1}], vcc")
    l2 = L(); a(f"s_cbranch_execz {l2}")
    if "nocpf" not in VAR: a("global_load_dword v47, v8, s[94:95]")
    a.label(l2)
    a(f"s_mov_b64 exec, s[{EXS}:{EXS+1}]")
    a(f"v_lshlrev_b32 v{VL16}, 4, v2")
    a(f"v_and_b32 v{VN}, 31, v2")
    a(f"v_lshrrev_b32 v{VH}, 5, v2")
    a(f"s_and_b32 s{T0}, s2, 7")
    a(f"s_lshr_b32 s{T1}, s2, 3")
    a(f"s_lshr_b32 s{RB}, s{T0}, 1")
    a(f"s_lshl_b32 s{RB}, s{RB}, 3")
    a(f"s_and_b32 s{SEL}, s{T0}, 1")
    a(f"s_lshl_b32 s{T2}, s{SEL}, 2")
    a(f"s_add_u32 s{RB2}, s{RB}, s{T2}")
    a(f"s_and_b32 s{T3}, s{T1}, 3")
    a(f"s_add_u32 s{RB2}, s{RB2}, s{T3}")
    a(f"s_lshr_b32 s{CB2}, s{T1}, 2")
    a(f"s_and_b32 s{ROT}, s{T1}, 7")
    a(f"s_add_u32 s{RB}, s{RB}, s{ROT}")
    a(f"s_lshr_b32 s{T3}, s{T1}, 3")
    a(f"s_add_u32 s{HB}, s{T2}, s{T3}")
    a(f"s_lshl_b32 s{RG}, s{RB}, 2")
    a(f"s_add_u32 s{RG}, s{RG}, s{T3}")
    a(f"s_mul_i32 s{FCG}, s{T0}, 28")
    a(f"s_add_u32 s{FCG}, s{FCG}, s{T1}")
    a(f"s_lshl_b32 s{W1K}, s3, 10")
    a(f"s_lshl_b32 s{W4K}, s3, 12")
    a(f"s_lshl_b32 s{W8K}, s3, 13")
    a(f"s_and_b32 s{RT}, s3, 1")
    a(f"s_lshr_b32 s{HD}, s3, 1")
    a(f"s_lshl_b32 s{ROWT}, s{RB}, 1")
    a(f"s_add_u32 s{ROWT}, s{ROWT}, s{RT}")
    a(f"s_lshl_b32 s{XO2}, s{RB}, 17")
    a(f"s_lshl_b32 s{OSO}, s{HB}, 8")
    a(f"s_sub_u32 s{FW}, s3, {FB0 + 1}")
    a("s_cmp_lt_u32 s3, 4")
    a(f"s_cselect_b32 s{MODE}, s{SEL}, 2")
    a("v_lshrrev_b32 v5, 4, v2")
    a(f"s_lshl_b32 s{T0}, s3, 2")
    a(f"v_add_u32 v6, s{T0}, v5")
    a("v_xor_b32 v7, v6, v2")
    a("v_and_b32 v7, 7, v7")
    a("v_lshlrev_b32 v7, 4, v7")
    a("v_lshrrev_b32 v8, 3, v2")
    a("v_lshl_add_u32 v7, v8, 11, v7")
    a(f"s_lshl_b32 s{T0}, s3, 14")
    a(f"v_add_u32 v{VOX}, s{T0}, v7")
    a("v_lshrrev_b32 v7, 2, v2")
    a("v_lshlrev_b32 v7, 11, v7")
    a("v_and_b32 v8, 3, v2")
    a("v_lshl_add_u32 v7, v8, 4, v7")
    a(f"s_lshl_b32 s{T0}, s{RT}, 16")
    a(f"s_lshl_b32 s{T1}, s{HD}, 6")
    a(f"s_add_u32 s{T0}, s{T0}, s{T1}")
    a(f"v_add_u32 v{VOW}, s{T0}, v7")
    if "fake128" in VAR:
        a("v_lshrrev_b32 v7, 3, v2")
        a("v_lshlrev_b32 v7, 11, v7")
        a("v_and_b32 v8, 7, v2")
        a("v_lshl_add_u32 v7, v8, 4, v7")
        a(f"s_lshl_b32 s{T0}, s{RT}, 16")
        a(f"s_and_b32 s{T1}, s{HD}, 1")
        a(f"s_lshl_b32 s{T1}, s{T1}, 14")
        a(f"s_add_u32 s{T0}, s{T0}, s{T1}")
        a(f"s_lshr_b32 s{T1}, s{HD}, 1")
        a(f"s_lshl_b32 s{T1}, s{T1}, 7")
        a(f"s_add_u32 s{T0}, s{T0}, s{T1}")
        a(f"v_add_u32 v{VOW}, s{T0}, v7")
    a("v_lshlrev_b32 v7, 2, v2")
    a("v_mov_b32 v9, 0")
    a("v_mov_b32 v17, 0")
    a("v_mov_b32 v16, 1")
    a(f"s_xor_b32 s{CNT}, s3, 7")
    a(f"s_lshl_b32 s{CNT}, s{CNT}, 8")
    a(f"s_add_u32 s{CNT}, s{CNT}, s2")
    a("v_and_b32 v1, 28, v7")
    a("s_waitcnt lgkmcnt(0)")
    srd(a, S_X, P_X, 2048 * 2048)
    a(f"s_cmp_eq_u32 s{SEL}, 0")
    a(f"s_cselect_b32 s{S_KW}, s{P_WK}, s{P_WV}")
    a(f"s_cselect_b32 s{S_KW+1}, s{P_WK+1}, s{P_WV+1}")
    a(f"s_and_b32 s{S_KW+1}, s{S_KW+1}, 0xffff")
    a(f"s_mov_b32 s{S_KW+2}, 0x10000")
    a(f"s_mov_b32 s{S_KW+3}, 0x20000")
    srd(a, S_WS, P_WS, WS_SIZE)
    srd(a, S_WR, P_WR, 2048)
    k.stamp("entry")
    k.delay(3)
    def zero():
        a("v_mov_b32 v10, 0"); a("v_mov_b32 v11, 0"); a("v_mov_b32 v8, 0")
        a(f"s_lshl_b32 s{T2}, s2, 12")
        a(f"s_add_u32 s{T2}, s{T2}, {SY1:#x}")
        for i in range(4): a(f"buffer_store_dwordx4 v[8:11], v{VL16}, {sr(S_WS)}, s{T2} offen offset:{i*1024} sc1")
        a(f"s_lshl_b32 s{T2}, s2, 2")
        a("s_waitcnt vmcnt(0)")
        a(f"v_mov_b32 v10, s{T2}")
        a(f"global_store_dword v10, v16, s[{P_DBG}:{P_DBG+1}] sc1")
    k.only(f"s_cmp_lt_u32 s{CNT}, 8", zero)

AUX = 19 * 8192
TAB = AUX + 2304
RED = 4 * 8192

def phaseAB(k):
    a, vm, lg = k.a, k.vm, k.lg
    VXA, VW, ACC, WF, FT, XREG, CS = 32, 44, 48, 64, 96, 128, 12
    XF, ACCX, ACCO = XREG, 48, 80
    def rot(j, shift, extra, base):
        return f"""s_add_u32 s{TD}, s{ROT}, {j}
        s_and_b32 s{TD}, s{TD}, 7
        s_lshl_b32 s{TD}, s{TD}, {shift}
        s_add_u32 s{TD}, s{TD}, s{base}""" + (f"\ns_add_u32 s{TD}, s{TD}, {extra}" if extra else "")
    def ldx(c): return lambda p: f"s_add_u32 m0, s{W1K}, {p*8192}\n" + rot(c >> 1, 8, (c & 1) * 128, XO2) + f"\nbuffer_load_dwordx4 v{VOX}, {sr(S_X)}, s{TD} offen lds"
    def ldk(j): return lambda p: f"s_add_u32 m0, s{W1K}, {p*8192}\n" + rot(j, 13, 0, W1K) + f"\nbuffer_load_dwordx4 v{VL16}, {sr(S_KW)}, s{TD} offen lds"
    def ldw(c, h): return lambda p: f"s_add_u32 m0, s{W1K}, {p*8192}\n" + rot(c >> 1, 18, ((c & 1) * 64 + h * 16) * 2048, OSO) + f"\nbuffer_load_dwordx4 v{VOW}, {sr(S_W)}, s{TD} offen lds"
    seq = []
    hi = list(range(8, 19))
    for j in range(8):
        seq.append((("k", j), ldk(j), j, [4, 5, 6, 7] if 1 <= j <= 4 else hi[::-1]))
        for e in range(2):
            c = 2 * j + e
            seq.append((("x", c), ldx(c), j if c < 8 else None, [0, 1, 2, 3] if 8 <= c <= 11 else hi[::-1] if c < 8 else hi[:3:-1]))
    for c in range(16):
        for h in range(2):
            seq.append((("w", c, h), ldw(c, h), None, hi + [4, 5, 6, 7]))
    pg = Pager(k, range(19), seq)
    pg.hold, pg.hold_until = {4, 5, 6, 7}, 6
    k.pgAB = pg
    srd(a, S_W, P_WQ, 1024 * 2048)
    a(f"v_lshlrev_b32 v8, 7, v{VN}")
    a(f"s_lshl_b32 s{T0}, s{RG}, 15")
    a(f"s_add_u32 s{T0}, s{T0}, s{W4K}")
    a(f"buffer_load_dword v47, v8, {sr(S_X)}, s{T0} offen"); vm.add("xt")
    def wtouch():
        if "wt256" in VAR:
            a(f"v_lshrrev_b32 v8, 1, v{VN}")
            a("v_lshlrev_b32 v8, 11, v8")
            a("v_and_b32 v10, 1, v2")
            a("v_lshl_add_u32 v8, v10, 7, v8")
            a(f"s_lshl_b32 s{T0}, s{ROT}, 3")
            a(f"s_add_u32 s{T0}, s{T0}, s3")
            a(f"s_lshl_b32 s{T0}, s{T0}, 15")
            a(f"s_add_u32 s{T0}, s{T0}, s{OSO}")
        else:
            a(f"v_lshrrev_b32 v8, 3, v{VN}")
            a("v_lshlrev_b32 v8, 11, v8")
            a("v_and_b32 v10, 7, v2")
            a("v_lshl_add_u32 v8, v10, 7, v8")
            a(f"s_lshr_b32 s{T0}, s2, 3")
            a(f"s_lshl_b32 s{T0}, s{T0}, 16")
            a(f"s_add_u32 s{T0}, s{T0}, s{W8K}")
            a(f"s_lshl_b32 s{T1}, s{SEL}, 10")
            a(f"s_add_u32 s{T0}, s{T0}, s{T1}")
        a(f"buffer_load_dword v47, v8, {sr(S_W)}, s{T0} offen"); vm.add("wt")
    if WT_IT < 0: wtouch()
    a(f"s_lshl_b32 s{T1}, s3, 8")
    a(f"s_add_u32 m0, s{T1}, {AUX}")
    a(f"s_add_u32 s{TD}, s{ROT}, s3")
    a(f"s_and_b32 s{TD}, s{TD}, 7")
    a(f"s_lshl_b32 s{TD}, s{TD}, 8")
    a(f"buffer_load_dword v7, {sr(S_WR)}, s{TD} offen lds"); vm.add("wr")
    first = pg.take(N_INIT)
    for g_ in first[:3]: pg.issue(g_)
    k.stamp("issued")
    srd(a, S_KV, P_WS, 0x40000)
    srd(a, S_WG, P_WG, 1024 * 7168)
    srd(a, S_WU, P_WU, 1024 * 7168)
    a(f"v_mov_b32 v8, {ONES:#x}")
    a(f"v_add_u32 v9, {AUX + 2048}, v7")
    k.ds("ds_write_b32 v9, v8", "ones")
    k.ds("ds_write_b32 v9, v17 offset:384", "ones")
    a(f"v_bfe_u32 v5, v{VN}, 1, 3")
    a(f"v_xor_b32 v5, v5, v{VH}")
    a(f"s_lshl_b32 s{T0}, s{RT}, 12")
    a(f"s_lshl_b32 s{T1}, s{RT}, 2")
    a(f"v_lshlrev_b32 v6, 7, v{VN}")
    a(f"v_add_u32 v8, s{T0}, v6")
    a(f"v_xor_b32 v9, s{T1}, v5")
    a(f"v_lshl_add_u32 v{VXA}, v9, 4, v8")
    a(f"v_xor_b32 v{VXA+1}, 32, v{VXA}")
    a(f"v_xor_b32 v{VXA+2}, 0x1000, v{VXA}")
    a(f"v_xor_b32 v{VXA+3}, 0x1020, v{VXA}")
    for s in range(4):
        a(f"v_add_u32 v{VXA+4+s}, 0x10000, v{VXA+s}")
        a(f"v_add_u32 v{VXA+8+s}, 0x20000, v{VXA+s}")
    BX, MX, I17, AX, AW, BW = FT, FT + 2, FT + 3, FT + 4, FT + 6, FT + 7
    a(f"s_and_b32 s{T0}, s{HB}, 3")
    a(f"s_lshl_b32 s{T0}, s{T0}, 11")
    a(f"v_add_u32 v8, s{T0}, v6")
    a(f"s_lshl_b32 s{T1}, s{RT}, 2")
    a(f"v_xor_b32 v9, s{T1}, v5")
    a(f"v_lshl_add_u32 v{BX}, v9, 4, v8")
    a("v_xor_b32 v9, 2, v9")
    a(f"v_lshl_add_u32 v{BX+1}, v9, 4, v8")
    a(f"s_and_b32 s{T2}, s3, 3")
    a(f"s_lshl_b32 s{T3}, s{T2}, 6")
    a(f"s_add_u32 s{T3}, s{T3}, {AUX}")
    a(f"v_lshlrev_b32 v8, 4, v{VH}")
    a(f"v_add_u32 v8, s{T3}, v8")
    a(f"v_mov_b32 v9, {AUX + 2048}")
    a(f"v_cmp_eq_u32 vcc, 17, v{VN}")
    a("v_mov_b32 v10, 256")
    a("v_cndmask_b32 v8, v9, v8, vcc")
    a(f"v_cndmask_b32 v{I17}, 0, v10, vcc")
    a("v_add_u32 v9, 32, v8")
    a(f"v_cmp_gt_u32 vcc, 16, v{VN}")
    a(f"v_cndmask_b32 v{MX}, 0, 1, vcc")
    a(f"v_cndmask_b32 v{BX}, v8, v{BX}, vcc")
    a(f"v_cndmask_b32 v{BX+1}, v9, v{BX+1}, vcc")
    a("v_bfe_u32 v5, v2, 2, 2")
    a(f"v_lshl_add_u32 v6, v{VH}, 3, v5")
    a("v_bfe_u32 v8, v2, 4, 1")
    a("v_lshlrev_b32 v8, 5, v8")
    a("v_and_b32 v9, 3, v2")
    a("v_lshl_add_u32 v8, v9, 3, v8")
    a("v_lshl_add_u32 v9, v6, 6, v8")
    a(f"s_lshl_b32 s{T3}, s{T2}, 11")
    a(f"v_add_u32 v{BW}, s{T3}, v9")
    a(f"v_add_u32 v{VW}, s{W1K}, v9")
    a(f"v_add_u32 v{VW+1}, 0x10000, v{VW}")
    a(f"v_add_u32 v{VW+2}, 0x20000, v{VW}")
    a("v_bfe_u32 v5, v2, 2, 1")
    a("v_cmp_eq_u32 vcc, 0, v5")
    a(f"v_mov_b32 v6, {ONES:#x}")
    a(f"v_cndmask_b32 v{MA}, 0, v6, vcc")
    a(f"v_cndmask_b32 v{MA+1}, 0, v6, vcc")
    a(f"v_cndmask_b32 v{MA+2}, v6, 0, vcc")
    a(f"v_cndmask_b32 v{MA+3}, v6, 0, vcc")
    a("v_and_b32 v5, 2, v2")
    a("v_cmp_eq_u32 vcc, 0, v5")
    for i in range(4): a(f"v_cndmask_b32 v{MA+i}, 0, v{MA+i}, vcc")
    a("v_and_b32 v5, 1, v2")
    a("v_cmp_eq_u32 vcc, 0, v5")
    a("v_mov_b32 v6, 0x44444444")
    a("v_mov_b32 v8, 0xeeeeeeee")
    a(f"v_cndmask_b32 v{IDXC}, v8, v6, vcc")
    a(f"v_mov_b32 v{IDXD}, 0xdddddddd")
    for i in range(4): a(f"v_mov_b32 v{CS+i}, 0")
    for g_ in first[3:]: pg.issue(g_)
    lg.wait_all()

    def xread(c, s, dst, tag):
        p = pg.page[("x", c)]
        k.ds(f"ds_read_b128 {vr(dst, 4)}, v{VXA + 4*(p >> 3) + s} offset:{(p & 7) * 8192}", tag)
    def kv_mfma(j):
        b = WF + 16 * (j & 1)
        def mm(x, y):
            for e in range(2):
                c = "0" if (j == 0 and e == 0) else vr(ACC, 16)
                a(f"v_mfma_f32_32x32x16_bf16 {vr(ACC,16)}, {vr(b+x+4*e,4)}, {vr(b+y+4*e,4)}, {c}")
        k.ifelse(f"s_cmp_eq_u32 s{MODE}, 2", lambda: mm(0, 0),
                 lambda: k.ifelse(f"s_cmp_eq_u32 s{MODE}, 0", lambda: mm(8, 0), lambda: mm(0, 8)))
    for j in range(8):
        if j not in S1_SKIP:
            jj = j + 1 if (j + 1) in S1_SKIP else j
            vm.wait(*[t_ for q in range(j, jj + 1) for t_ in (("x", 2*q), ("x", 2*q+1), ("k", q))])
            a("s_barrier")
            if j == 0: k.stamp(f"S{j}")
            for q in range(j + 1): pg.release(q)
        d = [lambda g=g: pg.issue(g) for g in pg.take(6 if j < 2 else 4, stop=(('w', 0, 0) if 'nohold' not in VAR else None))]
        b = WF + 16 * (j & 1)
        def g0():
            a("s_bitcmp1_b32 s3, 1")
            a(f"s_mov_b32 s{SP}, {pg.page[('x', 2*j)]*8192}")
            a(f"s_cselect_b32 s{SP}, {pg.page[('x', 2*j+1)]*8192}, s{SP}")
            a(f"v_mul_u32_u24 v8, s{SP}, v{MX}")
            a(f"v_add_u32 v{AX}, v8, v{BX}")
            a(f"v_add_u32 v{AX+1}, v8, v{BX+1}")
            a(f"v_add_u32 v{AW}, {pg.page[('k', j)]*8192}, v{BW}")
            for e in range(2): k.ds(f"ds_read_b128 {vr(b+4*e,4)}, v{AX+e}", ("s", j))
            for e in range(2):
                for u in range(2):
                    k.ds(f"ds_read_b64_tr_b16 {vr(b+8+4*e+2*u,2)}, v{AW} offset:{(16*e+4*u)*64}", ("s", j))
            a(f"v_add_u32 v{BX}, v{I17}, v{BX}")
            a(f"v_add_u32 v{BX+1}, v{I17}, v{BX+1}")
        def g1():
            if j > 0:
                lg.wait(("s", j - 1), ("xr", j - 1))
                kv_mfma(j - 1)
        def g2(e):
            if j < 4:
                for s in range(4): xread(2*j+e, s, XREG + 16*(2*j+e) + 4*s, ("xr", j))
        if j == WT_IT: d.insert(WT_POS, wtouch)
        if j == DBG_IT: d.insert(2 if j == 3 else 0, lambda: k.only(f's_cmp_eq_u32 s3, {FB0}', lambda: a(f'global_load_dword v16, v1, s[{P_DBG}:{P_DBG+1}] sc1')))
        g2(0)
        spread([g0, g1, lambda: g2(1)], d)
    F = FT
    R2 = RED + 16384
    SF = WF + 16
    M, RI, R, V = SF + 2, SF + 3, SF + 1, SF + 8
    def st_reads():
        a("v_and_b32 v5, 15, v2")
        a("v_lshlrev_b32 v6, 4, v5")
        for w in range(4): a(f"ds_read_b64 {vr(SF+2*w,2)}, v6 offset:{R2+w*4096+2*1024}")
        a("v_bfe_u32 v8, v5, 2, 1")
        a("v_lshl_add_u32 v8, v8, 9, v6")
        a("v_lshrrev_b32 v9, 3, v5")
        a("v_lshl_add_u32 v8, v9, 10, v8")
        a("v_and_b32 v9, 3, v5")
        a("v_lshl_add_u32 v8, v9, 2, v8")
        for w in range(4): a(f"ds_read_b32 v{SF+8+w}, v8 offset:{R2+w*4096}")
    def st_compute(extra=()):
        extra = list(extra)
        def fill(n):
            for _ in range(min(n, len(extra))): a(extra.pop(0))
        for w in range(1, 4):
            a(f"v_add_f32 v{SF}, v{SF}, v{SF+2*w}")
            a(f"v_add_f32 v{V}, v{V}, v{V+w}")
            a(f"v_add_f32 v{SF+1}, v{SF+1}, v{SF+2*w+1}")
        chain = [f"v_mul_f32 v{SF}, {f32(1/1024)}, v{SF}", f"v_mul_f32 v{V}, {f32(1/1024)}, v{V}",
                 f"v_fma_f32 v{V}, -v{SF}, v{SF}, v{V}", f"v_max_f32 v{V}, 0, v{V}",
                 f"v_cvt_pk_bf16_f32 v{M}, v{SF}, v{SF}", f"v_cvt_pk_bf16_f32 v{V}, v{V}, v{V}",
                 f"v_lshlrev_b32 v{M}, 16, v{M}", f"v_lshlrev_b32 v{V}, 16, v{V}",
                 f"v_add_f32 v{V}, {f32(1e-5)}, v{V}", f"v_cvt_pk_bf16_f32 v{V}, v{V}, v{V}", f"v_lshlrev_b32 v{V}, 16, v{V}",
                 f"v_sqrt_f32 v{V}, v{V}", f"v_cvt_pk_bf16_f32 v{V}, v{V}, v{V}", f"v_lshlrev_b32 v{V}, 16, v{V}",
                 f"v_rcp_f32 v{RI}, v{V}"]
        for x in chain: a(x); fill(2)
        fill(100)
    def fin0():
        st_reads()
        a(f"v_mov_b32 v9, {16*16 + 4}")
        for w in range(4): a(f"ds_read_b32 v{SF+12+w}, v9 offset:{R2+w*4096+2*1024}")
        a(f"s_lshl_b32 s{T0}, s2, 8")
        a(f"s_add_u32 s{T0}, s{T0}, {WS_YACC:#x}")
        a("v_lshlrev_b32 v8, 2, v2")
        a(f"buffer_store_dword v17, v8, {sr(S_WS)}, s{T0} offen sc1")
        a(f"s_add_u32 s{T0}, s{T0}, {SYB - WS_YACC:#x}")
        a(f"buffer_store_dword v17, v8, {sr(S_WS)}, s{T0} offen sc1")
        a("s_waitcnt lgkmcnt(0)")
        def rk():
            st_compute([f"v_add_f32 v{SF+12}, v{SF+12}, v{SF+12+w}" for w in range(1, 4)] +
                       [f"s_lshl_b32 s{T0}, s{RG}, 4", f"v_add_u32 v9, s{T0}, v5", "v_sub_u32 v9, 0xffff, v9", "v_lshlrev_b32 v6, 3, v5",
                        f"s_lshl_b32 s{T0}, s{RG}, 7", f"s_add_u32 s{T0}, s{T0}, {WS_STAT:#x}",
                        f"s_lshl_b32 s{T1}, s{RG}, 2", f"s_add_u32 s{T1}, s{T1}, {WS_RKEY:#x}"])
            a(f"v_fma_f32 v{R}, -v{M}, v{SF+12}, v{R}")
            a("s_mov_b64 exec, 0xffff")
            a(f"buffer_store_dwordx2 v[{M}:{RI}], v6, {sr(S_WS)}, s{T0} offen sc1")
            a(f"v_mul_f32 v{R}, v{R}, v{RI}")
            a(f"v_cvt_pk_bf16_f32 v{R}, v{R}, v{R}")
            a(f"v_ashrrev_i32 v8, 31, v{R}")
            a("v_or_b32 v8, 0x80000000, v8")
            a(f"v_xor_b32 v{R}, v{R}, v8")
            a(f"v_and_b32 v{R}, 0xffff0000, v{R}")
            a(f"v_or_b32 v{R}, v{R}, v9")
            for sh in (8, 4, 2, 1):
                a(f"v_max_u32_dpp v{R}, v{R}, v{R} row_ror:{sh} row_mask:0xf bank_mask:0xf")
            a("s_mov_b64 exec, 1")
            a(f"buffer_store_dword v{R}, v6, {sr(S_WS)}, s{T1} offen sc1")
            a("s_mov_b64 exec, -1")
        k.only(f"s_cmp_eq_u32 s{SEL}, 0", rk)
    def fin12():
        st_reads()
        adds = [f"v_add_f32 v{F+e}, v{F+e}, v{F+4*w+e}" for w in range(1, 4) for e in range(4)]
        a(f"s_lshr_b32 s{T2}, s{RG}, 1")
        a(f"s_lshl_b32 s{T2}, s{T2}, 12")
        a(f"s_and_b32 s{T1}, s{RG}, 1")
        def kk():
            a("v_bfe_u32 v9, v2, 4, 1")
            a("v_lshlrev_b32 v8, 9, v9")
            a(f"v_lshl_add_u32 v8, v{VH}, 10, v8")
            a(f"s_lshl_b32 s{T0}, s{FW}, 11")
            a(f"v_add_u32 v8, s{T0}, v8")
            a("v_add_u32 v9, v6, v8")
            for w in range(4): a(f"ds_read_b128 {vr(F+4*w,4)}, v9 offset:{RED+w*4096}")
            for w in range(4): a(f"ds_read_b128 {vr(F+16+4*w,4)}, v8 offset:{RED+w*4096+256}")
            a("v_and_b32 v8, 3, v5")
            a("v_bfe_u32 v9, v5, 2, 1")
            a("v_lshl_add_u32 v8, v9, 3, v8")
            a("v_bfe_u32 v9, v5, 3, 1")
            a("v_lshl_add_u32 v8, v9, 2, v8")
            a("v_bfe_u32 v9, v2, 4, 1")
            a("v_lshl_add_u32 v8, v9, 5, v8")
            a("v_lshlrev_b32 v8, 4, v8")
            a(f"v_lshl_add_u32 v8, v{VH}, 3, v8")
            a(f"s_lshl_b32 s{T0}, s{FW}, 10")
            a(f"s_add_u32 s{T2}, s{T2}, s{T0}")
            a(f"s_lshl_b32 s{T1}, s{T1}, 8")
            a(f"s_add_u32 s{T2}, s{T2}, s{T1}")
            a("s_waitcnt lgkmcnt(0)")
            st_compute(adds + [f"v_add_f32 v{F+16+e}, v{F+16+e}, v{F+16+4*w+e}" for w in range(1, 4) for e in range(4)])
            for e in range(4): a(f"v_fma_f32 v{F+e}, -v{M}, v{F+16+e}, v{F+e}")
            for e in range(4): a(f"v_mul_f32 v{F+e}, v{F+e}, v{RI}")
        def vv():
            a(f"s_lshl_b32 s{T0}, s{FW}, 10")
            a(f"v_add_u32 v9, s{T0}, v{VL16}")
            for w in range(4): a(f"ds_read_b128 {vr(F+4*w,4)}, v9 offset:{RED+w*4096}")
            a(f"v_lshlrev_b32 v8, 4, v{VN}")
            for w in range(4): a(f"ds_read_b32 v{F+16+w}, v8 offset:{RED+w*4096+2048}")
            a(f"v_mov_b32 v8, v{VL16}")
            a(f"s_lshl_b32 s{T1}, s{T1}, 10")
            a(f"s_add_u32 s{T2}, s{T2}, s{T1}")
            a(f"s_lshl_b32 s{T1}, s{FW}, 3")
            a(f"s_add_u32 s{T2}, s{T2}, s{T1}")
            a(f"s_add_u32 s{T2}, s{T2}, 2048")
            a(f"s_lshl_b32 s{T0}, s{FW}, 5")
            a(f"v_lshlrev_b32 v6, 4, v{VH}")
            a(f"v_add_u32 v6, s{T0}, v6")
            a("s_waitcnt lgkmcnt(0)")
            st_compute(adds + [f"v_add_f32 v{F+16}, v{F+16}, v{F+16+w}" for w in range(1, 4)])
            for e in range(4): a(f"ds_bpermute_b32 v{F+20+e}, v6, v{M} offset:{4*e}")
            for e in range(4): a(f"ds_bpermute_b32 v{F+24+e}, v6, v{RI} offset:{4*e}")
            a("s_waitcnt lgkmcnt(4)")
            for e in range(4): a(f"v_fma_f32 v{F+e}, -v{F+20+e}, v{F+16}, v{F+e}")
            a("s_waitcnt lgkmcnt(0)")
            for e in range(4): a(f"v_mul_f32 v{F+e}, v{F+e}, v{F+24+e}")
        k.ifelse(f"s_cmp_eq_u32 s{SEL}, 0", kk, vv)
        a(f"v_cvt_pk_bf16_f32 v{F+12}, v{F}, v{F+1}")
        a(f"v_cvt_pk_bf16_f32 v{F+13}, v{F+2}, v{F+3}")
        a(f"buffer_store_dwordx2 {vr(F+12,2)}, v8, {sr(S_WS)}, s{T2} offen sc1")
    def fin_arrive():
        a(f"s_waitcnt vmcnt({vm.since('fs')})")
        top, done = L(), L()
        a(f"s_mov_b32 s{CNT}, 0")
        a.label(top)
        a("v_cmp_eq_u32 vcc, 0, v16")
        a(f"s_add_u32 s{CNT}, s{CNT}, 1")
        a(f"s_cbranch_vccz {done}")
        a(f"global_load_dword v16, v1, s[{P_DBG}:{P_DBG+1}] sc1")
        a("s_waitcnt vmcnt(0)")
        a(f"s_cmp_lt_u32 s{CNT}, {SPIN_MAX}")
        a(f"s_cbranch_scc1 {top}")
        a.label(done)
        a("v_mov_b32 v8, 1")
        a(f"v_mov_b32 v9, {TAB + 128}")
        a("s_mov_b64 exec, 1")
        a("ds_add_rtn_u32 v9, v9, v8")
        a("s_waitcnt lgkmcnt(0)")
        a("v_cmp_eq_u32 vcc, 2, v9")
        a("s_mov_b64 exec, 0xff")
        nl = L()
        a(f"s_cbranch_vccz {nl}")
        a(f"s_lshr_b32 s{T0}, s2, 3")
        a(f"s_lshl_b32 s{T0}, s{T0}, 7")
        a(f"s_add_u32 s{T0}, s{T0}, {SY1:#x}")
        a("v_lshlrev_b32 v9, 12, v2")
        a(f"buffer_atomic_add v8, v9, {sr(S_WS)}, s{T0} offen sc1")
        a.label(nl)
        a("s_mov_b64 exec, -1")
    W0, W12, W012 = f"s_cmp_eq_u32 s3, {FB0}", f"s_cmp_lt_u32 s{FW}, 2", ("s_cmp_lt_u32 s3, 3" if FB0 == 0 else f"s_add_u32 s{T0}, s{FW}, 1\ns_cmp_lt_u32 s{T0}, 3")
    def kv_dma(i, chunk):
        a(f"s_add_u32 m0, s{W4K}, {chunk*32768 + i*1024}")
        a(f"s_add_u32 s{XSO}, s{W4K}, {chunk*32768 + i*1024}")
        a(f"buffer_load_dwordx4 v{VL16}, {sr(S_KV)}, s{XSO} offen sc1 lds"); vm.add(("kv", chunk))
    RK, PV, ST2 = 126, 122, 124
    pool = [WF, WF + 8]
    wreg, xreg = {}, {c: (XREG + 16*c, XREG + 16*c + 8) for c in range(8)}
    def rd_ops(c):
        need = 1 if c < 8 else 3
        if len(pool) < need: return None
        wreg[c] = pool.pop(0)
        if c >= 8: xreg[c] = (pool.pop(0), pool.pop(0))
        ops = []
        for e in range(2):
            def w(e=e):
                vm.wait(("w", c, e))
                p = pg.page[("w", c, e)]
                for u in range(2):
                    k.ds(f"ds_read_b64_tr_b16 {vr(wreg[c]+4*e+2*u,2)}, v{VW + (p >> 3)} offset:{(p & 7)*8192 + 4*u*64}", ("q", c, e))
            def x(e=e):
                for t in range(2): xread(c, 2*t+e, xreg[c][t] + 4*e, ("q", c, e))
            if c >= 8: ops.append(x)
            ops.append(w)
        return ops
    def rd(c):
        for o in rd_ops(c): o()
    def mm_ops(c):
        def m(e, t):
            if t == 0:
                lg.wait(("q", c, e)); pg.free.append(pg.page[("w", c, e)])
            acc = ACCX if t else ACCO
            cc = "0" if (c == 0 and e == 0) else vr(acc, 16)
            if 'nomm' not in VAR: a(f"v_mfma_f32_32x32x16_bf16 {vr(acc,16)}, {vr(wreg[c]+4*e,4)}, {vr(xreg[c][t]+4*e,4)}, {cc}")
        def s():
            a(f"v_smfmac_f32_16x16x64_bf16 {vr(CS,4)}, {vr(MA,4)}, {vr(wreg[c],8)}, v{IDXC}")
            pool.append(wreg[c])
            if c not in (2, 5, 6): pool.extend(xreg[c])
        return [lambda: m(0, 0), lambda: m(0, 1), lambda: m(1, 0), lambda: m(1, 1), s]
    def dmas(n):
        for g_ in pg.take(n): pg.issue(g_)
    def ld_stat():
        a(f"s_lshl_b32 s{T0}, s{ROWT}, 8")
        a(f"s_add_u32 s{T0}, s{T0}, {WS_STAT:#x}")
        a(f"v_lshlrev_b32 v5, 3, v{VN}")
        a(f"buffer_load_dwordx2 {vr(STAT,2)}, v5, {sr(S_WS)}, s{T0} offen sc1"); vm.add("stat")
    def ld_stat2():
        a(f"s_xor_b32 s{T0}, s{T0}, 0x100")
        a(f"buffer_load_dword v{ST2}, v5, {sr(S_WS)}, s{T0} offen sc1"); vm.add("stat")
    def ld_rk():
        a("v_lshlrev_b32 v5, 3, v2")
        a(f"s_mov_b32 s{T0}, {WS_RKEY:#x}")
        a(f"buffer_load_dwordx2 {vr(RK,2)}, v5, {sr(S_WS)}, s{T0} offen sc1"); vm.add("rk")
    def kvt():
        a(f"s_lshr_b32 s{T0}, s2, 3")
        a(f"s_lshl_b32 s{T0}, s{T0}, 13")
        a("v_lshlrev_b32 v5, 7, v2")
        a(f"buffer_load_dword v16, v5, {sr(S_KV)}, s{T0} offen sc1")
    pl = [ld_stat, ld_stat2] + [lambda i=i: kv_dma(i, 0) for i in range(4)] + [ld_rk, lambda: k.only("s_cmp_eq_u32 s3, 6", kvt)]
    post = {CHK + 1: pl[:4], CHK + 2: pl[4:]} if CHK <= 11 else {13: pl}
    post.update({
            5: [lambda: k.ffn.early(0)], 6: [lambda: k.ffn.early(1)], 7: [lambda: k.ffn.early(2)]})
    k.stamp("B0")
    k.delay(77)
    lg.wait(("s", 7)); kv_mfma(7)
    dmas(NW0)
    a(f"v_add_u32 v8, s{W4K}, v{VL16}")
    for q in range(4): k.ds(f"ds_write_b128 v8, {vr(ACC+4*q,4)} offset:{RED + q*1024}", "red")
    lg.wait_all()
    a("s_barrier"); pg.release(7); pg.release(8); pg.release(9)
    k.only(W0, fin0); k.only(W12, fin12); vm.mark("fs")
    dmas(7)
    if ARR < 0: k.only(W012, fin_arrive)
    rd(0); rd(1)
    k.stamp('R1')
    for c in range(14):
        if c == PI:
            a(f"v_lshlrev_b32 v{PV}, 7, v{VN}")
            a(f"s_and_b32 s{T3}, s2, 7")
            a(f"s_lshl_b32 s{T3}, s{T3}, 12")
            a(f"s_add_u32 s{T3}, s{T3}, {SY1:#x}")
            k.only(W0, lambda: a(f"buffer_load_dword v{PV+1}, v{PV}, {sr(S_WS)}, s{T3} offen sc1"))
            vm.mark("poll")
        ro = rd_ops(c + 2) if c + 2 < 16 else []
        d1 = lambda: dmas(1)
        extra = post.pop(c, [])
        if 'nopost' in VAR: extra = []
        if ro is None: interleave(mm_ops(c), [d1, d1, d1]); rd(c + 2)
        else:
            h = len(ro) // 2
            interleave(mm_ops(c), [d1] + ro[:h] + [d1] + ro[h:] + [d1] + extra)
        if 'fine' in VAR and c in (1, 2, 4, 6, 8, 10, 12, 13, 14): k.stamp(f'M{c}')
        if c == ARR: k.only(W012, fin_arrive)
        if c == R2C:
            a("s_barrier"); pg.hold = set()
        if c == CHK:
            def chk():
                a(f"s_waitcnt vmcnt({vm.since('poll')})")
                k.poll(PV, PV + 1, T3, 8)
            if 'nopub' not in VAR: k.only(W0, chk)
            if 'nor3' not in VAR: a("s_barrier")
    EX, MB = 208, 224
    assert all(b not in list(wreg[c_] for c_ in (14, 15)) + list(xreg[14]) + list(xreg[15]) for b in (208, 216, 224)), (wreg, xreg)
    m14, m15 = mm_ops(14), mm_ops(15)
    lg.wait(("q", 14, 0), ("q", 14, 1)); m14[4]()
    m14[1]()
    a(f"v_cmp_eq_u32 vcc, 0, v{VH}")
    vm.wait("stat")
    a(f"v_cvt_pk_bf16_f32 v{MB}, -v{STAT}, -v{STAT}")
    a(f"v_cvt_pk_bf16_f32 v{MB+4}, -v{ST2}, -v{ST2}")
    lg.wait(("q", 15, 0), ("q", 15, 1)); m15[4]()
    m14[3]()
    a(f"v_cndmask_b32 v{MB}, 0, v{MB}, vcc")
    a(f"v_cndmask_b32 v{MB+4}, 0, v{MB+4}, vcc")
    a(f"v_mov_b32 v{MB+1}, v{MB}"); a(f"v_mov_b32 v{MB+5}, v{MB+4}")
    for i in (2, 3, 6, 7): a(f"v_mov_b32 v{MB+i}, 0")
    m15[1]()
    a("v_mov_b32 v10, 0"); a("v_mov_b32 v11, 0")
    a(f"v_add_f32 v6, v{CS}, v{CS+1}")
    a("v_cvt_pk_bf16_f32 v5, v6, v6")
    a("v_lshlrev_b32 v5, 16, v5")
    a("v_sub_f32 v5, v6, v5")
    m15[3]()
    a("v_cvt_pk_bf16_f32 v8, v6, v5")
    a("v_and_b32 v6, 0xffff0000, v8")
    a("v_sub_f32 v5, v5, v6")
    a("v_cvt_pk_bf16_f32 v9, v5, 0")
    a(f"v_add_u32 v12, s{W1K}, v{VL16}")
    a("v_add_u32 v12, 0x10000, v12")
    a(f"v_mfma_f32_32x32x16_bf16 {vr(ACCX,16)}, v[8:11], {vr(MB+4,4)}, {vr(ACCX,16)}")
    a("v_and_b32 v5, 1, v2")
    a("v_cmp_eq_u32 vcc, 0, v5")
    m14[0]()
    a(f"v_mul_f32 v6, {f32(QSCALE)}, v{STAT+1}")
    a("v_xor_b32 v13, 0x400, v12")
    for i in range(4): a(f"v_cndmask_b32 v{MA+i}, 0, v{MA+i}, vcc")
    m14[2]()
    for i in range(4): a(f"v_pk_mov_b32 {vr(OA+2*i,2)}, 0, 0")
    for q in range(2): a(f"ds_write_b128 v12, {vr(ACCX+4*q,4)} offset:{q*8192}")
    m15[0]()
    for q in range(2, 4): a(f"ds_write_b128 v12, {vr(ACCX+4*q,4)} offset:{q*8192}")
    for i in range(4, 8): a(f"v_pk_mov_b32 {vr(OA+2*i,2)}, 0, 0")
    m15[2]()
    for i in range(2): a(f"v_pk_mov_b32 {vr(LS+2*i,2)}, 0, 0")
    a(f"v_add_u32 v{VK1}, 0x10000, v{VL16}")
    a(f"v_mfma_f32_32x32x16_bf16 {vr(ACCO,16)}, v[8:11], {vr(MB,4)}, {vr(ACCO,16)}")
    k.EX = EX
    for p in (8, 9, 10, 11): assert p in pg.free
    k.stamp("B_end")
    if "stopB" in VAR: a("s_endpgm")
    k.ACCX, k.ACCO, k.ST2 = ACCX, ACCO, ST2
    k.ACC, k.CS, k.RK = ACC, CS, RK


def attention(k):
    a, vm, lg, ffn = k.a, k.vm, k.lg, k.ffn
    ACCX, ACC, CS, ST2 = k.ACCX, k.ACCO, k.CS, k.ST2
    EX = k.EX
    srd(a, S_W, P_WO, 1024 * 2048)
    vm.wait(("kv", 0))
    a("s_waitcnt lgkmcnt(0)")
    a("s_barrier")
    for q in range(4): a(f"ds_read_b128 {vr(EX+4*q,4)}, v13 offset:{q*8192}")
    a(f"ds_read_b128 {vr(KA,4)}, v{VL16}")
    a(f"ds_read_b128 {vr(KA+4,4)}, v{VL16} offset:1024")
    a(f"s_add_u32 m0, s{W4K}, 32768")
    a(f"s_add_u32 s{XSO}, s{W4K}, 32768")
    a(f"buffer_load_dwordx4 v{VL16}, {sr(S_KV)}, s{XSO} offen sc1 lds"); vm.add(("kv", 1))
    for q in range(4):
        a(f"s_waitcnt lgkmcnt({5-q})")
        for i in (2*q, 2*q+1): a(f"v_pk_add_f32 {vr(ACC+2*i,2)}, {vr(ACC+2*i,2)}, {vr(EX+2*i,2)}")
        for i in (2*q, 2*q+1): a(f"v_pk_mul_f32 {vr(ACC+2*i,2)}, {vr(ACC+2*i,2)}, v[6:7] op_sel_hi:[1,0]")
        for i in (2*q, 2*q+1): a(f"v_cvt_pk_bf16_f32 v{QF+i}, v{ACC+2*i}, v{ACC+2*i+1}")
    a("s_waitcnt lgkmcnt(0)")
    a(f"v_mfma_f32_32x32x16_bf16 {vr(SA,16)}, {vr(KA,4)}, {vr(QF,4)}, 0")
    a(f"v_mfma_f32_32x32x16_bf16 {vr(SA,16)}, {vr(KA+4,4)}, {vr(QF+4,4)}, {vr(SA,16)}")
    def kvaddr(tile, off):
        p = ((tile >> 3) % 3) * 32768 + (tile & 7) * 4096 + off
        return (f"v{VL16} offset:{p}" if p < 65536 else f"v{VK1} offset:{p - 65536}")
    lg.tags = []
    k.ds(f"ds_read_b128 {vr(KA,4)}, {kvaddr(1, 0)}", ("K", 1))
    k.ds(f"ds_read_b128 {vr(KA+4,4)}, {kvaddr(1, 1024)}", ("K", 1))
    k.ds(f"ds_read_b128 {vr(VA,4)}, {kvaddr(0, 2048)}", ("V0", 0))
    a(f"v_max3_f32 v6, v{SA}, v{SA+1}, v{SA+2}")
    a(f"v_max3_f32 v5, v{SA+3}, v{SA+4}, v{SA+5}")
    a(f"v_max3_f32 v6, v6, v{SA+6}, v{SA+7}")
    a(f"v_max3_f32 v5, v5, v{SA+8}, v{SA+9}")
    a(f"v_max3_f32 v6, v6, v{SA+10}, v{SA+11}")
    a(f"v_max3_f32 v5, v5, v{SA+12}, v{SA+13}")
    a(f"v_max3_f32 v6, v6, v{SA+14}, v{SA+15}")
    a("v_max_f32 v6, v6, v5")
    a("v_mov_b32 v5, v6")
    a("v_permlane32_swap_b32 v6, v5")
    a("v_max_f32 v6, v6, v5")
    a(f"v_sub_f32 v{NM}, 0, v6")
    a(f"v_sub_f32 v{NM+1}, 0, v6")
    for i in range(8): a(f"v_pk_add_f32 {vr(SA+2*i,2)}, {vr(SA+2*i,2)}, {vr(NM,2)}")
    for i in range(1, 8): a(f"v_pk_mov_b32 {vr(NM+2*i,2)}, {vr(NM,2)}, {vr(NM,2)}")
    k.stamp("loop_start")
    for T in range(64):
        c, t = T >> 3, T & 7
        S, P = (SA, SB) if T % 2 == 0 else (SB, SA)
        e = lambda i: a(f"v_exp_f32 v{S+i}, v{S+i}")
        if "pr2" in VAR: a(f"s_setprio {1 - (T & 1)}")
        elif "prh" in VAR: a(f"s_setprio {3 - ((2*T) & 3)}")
        elif "noprio" not in VAR: a(f"s_setprio {3 - ((T + 1) & 3)}")
        if "dense" in VAR:
            PK = 140
            cv = lambda i, B: a(f"v_cvt_pk_bf16_f32 v{PK+i}, v{B+2*i}, v{B+2*i+1}")
            e(0)
            if T > 0: cv(7, P)
            e(1); e(2)
            if T > 0:
                lg.wait(("V1", T - 1))
                a(f"v_mfma_f32_32x32x16_bf16 {vr(OA,16)}, {vr(VA+4,4)}, {vr(PK+4,4)}, {vr(OA,16)}")
            k.ds(f"ds_read_b128 {vr(VA+4,4)}, {kvaddr(T, 3072)}", ("V1", T))
            e(3); e(4); e(5)
            if T > 0: a(f"v_smfmac_f32_16x16x64_bf16 {vr(LS,4)}, {vr(MA,4)}, {vr(PK,8)}, v{IDXC}")
            cv(0, S)
            if T < 63:
                lg.wait(("K", T + 1))
                a(f"v_mfma_f32_32x32x16_bf16 {vr(P,16)}, {vr(KA,4)}, {vr(QF,4)}, {vr(NM,16)}")
            e(6); cv(1, S); e(7); cv(2, S)
            if T < 63:
                a(f"v_mfma_f32_32x32x16_bf16 {vr(P,16)}, {vr(KA+4,4)}, {vr(QF+4,4)}, {vr(P,16)}")
            if t == 6 and c < 7:
                vm.wait(("kv", c + 1))
                a("s_barrier")
            if T + 2 <= 63:
                k.ds(f"ds_read_b128 {vr(KA,4)}, {kvaddr(T + 2, 0)}", ("K", T + 2))
                k.ds(f"ds_read_b128 {vr(KA+4,4)}, {kvaddr(T + 2, 1024)}", ("K", T + 2))
            kc, kp = (c + 2, 0) if t == 7 else (c + 1, t + 1)
            if (t == 7 or t <= 2) and kc <= 7:
                a(f"s_add_u32 m0, s{W4K}, {(kc % 3) * 32768 + kp * 1024}")
                a(f"s_add_u32 s{XSO}, s{W4K}, {kc * 32768 + kp * 1024}")
                a(f"buffer_load_dwordx4 v{VL16}, {sr(S_KV)}, s{XSO} offen {KVF} lds"); vm.add(("kv", kc))
            cv(3, S); e(8); e(9); e(10)
            lg.wait(("V0", T))
            a(f"v_mfma_f32_32x32x16_bf16 {vr(OA,16)}, {vr(VA,4)}, {vr(PK,4)}, {vr(OA,16)}")
            if T < 63: k.ds(f"ds_read_b128 {vr(VA,4)}, {kvaddr(T + 1, 2048)}", ("V0", T + 1))
            cv(4, S); e(11); e(12); cv(5, S); e(13); e(14); cv(6, S); e(15)
        else:
            e(0); e(1)
            if T > 0:
                lg.wait(("V1", T - 1))
                a(f"v_smfmac_f32_32x32x32_bf16 {vr(OA,16)}, {vr(VA+4,4)}, {vr(P+8,8)}, v{IDXD}")
            k.ds(f"ds_read_b128 {vr(VA+4,4)}, {kvaddr(T, 3072)}", ("V1", T))
            e(2); e(3); e(4)
            if T > 0: a(f"v_smfmac_f32_16x16x64_bf16 {vr(LS,4)}, {vr(MA,4)}, {vr(P+8,8)}, v{IDXD}")
            e(5)
            if T < 63:
                lg.wait(("K", T + 1))
                a(f"v_mfma_f32_32x32x16_bf16 {vr(P,16)}, {vr(KA,4)}, {vr(QF,4)}, {vr(NM,16)}")
            e(6); e(7); e(8)
            if T < 63:
                a(f"v_mfma_f32_32x32x16_bf16 {vr(P,16)}, {vr(KA+4,4)}, {vr(QF+4,4)}, {vr(P,16)}")
            if t == 6 and c < 7:
                vm.wait(("kv", c + 1))
                if "racy" not in VAR: a("s_barrier")
            if T + 2 <= 63:
                k.ds(f"ds_read_b128 {vr(KA,4)}, {kvaddr(T + 2, 0)}", ("K", T + 2))
                k.ds(f"ds_read_b128 {vr(KA+4,4)}, {kvaddr(T + 2, 1024)}", ("K", T + 2))
            def kvd():
                for kp in range(4):
                    if KVT[kp] != t: continue
                    kc = c + 2 if t >= 6 else c + 1
                    if kc > 7 or (kc == 1 and kp == 0): continue
                    a(f"s_add_u32 m0, s{W4K}, {(kc % 3) * 32768 + kp * 1024}")
                    a(f"s_add_u32 s{XSO}, s{W4K}, {kc * 32768 + kp * 1024}")
                    a(f"buffer_load_dwordx4 v{VL16}, {sr(S_KV)}, s{XSO} offen {KVF} lds"); vm.add(("kv", kc))
                if T == 0:
                    for kp in range(1, 4):
                        if KVT[kp] >= 6:
                            a(f"s_add_u32 m0, s{W4K}, {32768 + kp * 1024}")
                            a(f"s_add_u32 s{XSO}, s{W4K}, {32768 + kp * 1024}")
                            a(f"buffer_load_dwordx4 v{VL16}, {sr(S_KV)}, s{XSO} offen {KVF} lds"); vm.add(("kv", 1))
            if KVP == 0: kvd()
            if "prh" in VAR: a(f"s_setprio {3 - ((2*T+1) & 3)}")
            e(9); e(10); e(11)
            lg.wait(("V0", T))
            a(f"v_smfmac_f32_32x32x32_bf16 {vr(OA,16)}, {vr(VA,4)}, {vr(S,8)}, v{IDXD}")
            if T < 63: k.ds(f"ds_read_b128 {vr(VA,4)}, {kvaddr(T + 1, 2048)}", ("V0", T + 1))
            if KVP == 1: kvd()
            e(12); e(13); e(14)
            a(f"v_smfmac_f32_16x16x64_bf16 {vr(LS,4)}, {vr(MA,4)}, {vr(S,8)}, v{IDXD}")
            e(15)
            if KVP == 2: kvd()
        if "noffn" not in VAR: ffn.tile_end(T)
        if 'nod' not in VAR: k.D.tile_end(T)
    a("s_setprio 0")
    lg.wait_all()
    a(f"v_smfmac_f32_32x32x32_bf16 {vr(OA,16)}, {vr(VA+4,4)}, {vr(SB+8,8)}, v{IDXD}")
    a(f"v_smfmac_f32_16x16x64_bf16 {vr(LS,4)}, {vr(MA,4)}, {vr(SB+8,8)}, v{IDXD}")
    k.stamp("loop_end")
    k.delay(200)
    if "stopC" in VAR: a("s_endpgm")

FBASE = 98304
class FFN:
    VGU, VTR, VOD, VTD, XSL, VL4, XST, TMP, XS, WB, DD = 160, 161, 162, 163, 164, 165, 166, 168, 176, 192, 224
    FB, GSO, DSO, YSO, ASO = 66, 67, 94, 95, 65
    def __init__(self, k): self.k, self.a, self.vm = k, k.a, k.vm
    def early(self, part):
        t = self.TMP
        lines = []
        a = lines.append
        a(f"s_add_u32 s{self.FB}, s{W8K}, {FBASE}")
        a(f"v_lshrrev_b32 v{t}, 3, v2")
        a(f"v_mul_u32_u24 v{t}, 7168, v{t}")
        a(f"v_and_b32 v{t+1}, 7, v2")
        a(f"v_lshl_add_u32 v{self.VGU}, v{t+1}, 4, v{t}")
        a(f"v_bfe_u32 v{t}, v2, 2, 2")
        a(f"v_lshrrev_b32 v{t+1}, 4, v2")
        a(f"v_lshl_add_u32 v{t+1}, v{t+1}, 3, v{t}")
        a(f"v_lshlrev_b32 v{t+1}, 7, v{t+1}")
        a(f"v_and_b32 v{t+2}, 3, v2")
        a(f"v_lshl_add_u32 v{t+1}, v{t+2}, 3, v{t+1}")
        a(f"v_add_u32 v{self.VTR}, s{self.FB}, v{t+1}")
        a(f"v_lshrrev_b32 v{t+1}, 4, v2")
        a(f"v_lshlrev_b32 v{t+3}, 2, v{t+1}")
        a(f"v_xor_b32 v{t+3}, v{t+3}, v2")
        a(f"v_and_b32 v{t+3}, 15, v{t+3}")
        a(f"v_lshlrev_b32 v{t+3}, 4, v{t+3}")
        a(f"v_lshl_add_u32 v{t+3}, v{t+1}, 11, v{t+3}")
        a(f"s_lshl_b32 s{T0}, s3, 8")
        a(f"v_add_u32 v{self.VOD}, s{T0}, v{t+3}")
        a(f"v_mul_u32_u24 v{t}, 320, v{t}")
        a(f"v_lshl_add_u32 v{t}, v{VH}, 11, v{t}")
        a(f"v_bfe_u32 v{t+1}, v2, 4, 1")
        a(f"v_lshl_add_u32 v{t}, v{t+1}, 5, v{t}")
        a(f"v_lshl_add_u32 v{t}, v{t+2}, 3, v{t}")
        a(f"v_add_u32 v{self.VTD}, s{self.FB}, v{t}")
        a(f"v_lshlrev_b32 v{self.VL4}, 2, v2")
        a(f"v_and_b32 v{t}, 60, v{self.VL4}")
        a(f"v_mov_b32 v{t+1}, 0")
        a(f"s_and_b32 s{T0}, s{FCG}, 3")
        a(f"s_lshl_b32 s{T0}, s{T0}, 3")
        a(f"s_add_u32 s{T0}, s{T0}, s3")
        a(f"s_lshl_b32 s{SP}, s{T0}, 6")
        a(f"s_mul_i32 s{self.GSO}, s{T0}, {32*7168}")
        a(f"s_lshr_b32 s{T1}, s{FCG}, 2")
        a(f"s_lshl_b32 s{T2}, s{T1}, 7")
        a(f"s_add_u32 s{self.GSO}, s{self.GSO}, s{T2}")
        a(f"s_lshl_b32 s{self.ASO}, s{T1}, 8")
        a(f"s_add_u32 s{self.ASO}, s{self.ASO}, {WS_GU:#x}")
        a(f"s_lshl_b32 s{self.DSO}, s{FCG}, 15")
        a(f"s_and_b32 s{self.YSO}, s2, 7")
        a(f"s_lshl_b32 s{self.YSO}, s{self.YSO}, 12")
        a(f"s_lshl_b32 s{T0}, s3, 9")
        a(f"s_add_u32 s{self.YSO}, s{self.YSO}, s{T0}")
        a(f"s_add_u32 s{self.YSO}, s{self.YSO}, {WS_YACC:#x}")
        a("s_cmp_lt_u32 s2, 224")
        for r in (self.GSO, self.DSO, self.YSO, self.ASO):
            a(f"s_cselect_b32 s{r}, s{r}, 0x40000000")
        srd(a, S_WD, P_WD, 3584 * 2048)
        srd(a, S_OUT, P_OUT, 2048 * 2048)
        cut = [0, 12, 29, len(lines)]
        for x in lines[cut[part]:cut[part+1]]: self.a(x)
    def argmax1(self):
        a, RK = self.a, self.k.RK
        self.vm.wait('rk')
        a(f"v_max_u32 v5, v{RK}, v{RK+1}")
        for sh in (8, 4, 2, 1):
            a(f"v_max_u32_dpp v5, v5, v5 row_ror:{sh} row_mask:0xf bank_mask:0xf")
        for i, s in enumerate((T0, T1, T2, T3)): a(f"v_readlane_b32 s{s}, v5, {16*i}")
    def argmax2(self):
        a, vm = self.a, self.vm
        a(f"s_max_u32 s{T0}, s{T0}, s{T1}")
        a(f"s_max_u32 s{T2}, s{T2}, s{T3}")
        a(f"s_max_u32 s{RKEY}, s{T0}, s{T2}")
        a(f"s_and_b32 s{IDX}, s{RKEY}, 0xffff")
        a(f"s_sub_u32 s{IDX}, 0xffff, s{IDX}")
        a(f"s_and_b32 s{IDX}, s{IDX}, 2047")
    def arrive(self, soff):
        a, t = self.a, self.TMP
        a(f"v_mov_b32 v{t+6}, 1")
        a("s_mov_b64 exec, 1")
        a(f"buffer_atomic_add v{t+6}, v{self.VL4}, {sr(S_WS)}, s{soff} offen sc1"); self.vm.add("arr")
        a("s_mov_b64 exec, -1")
    def tile_end(self, T):
        k, a, vm, t = self.k, self.a, self.vm, self.TMP
        GU_T = [8*(i // 3) + FTS[i % 3] for i in range(8)]
        WD_T = WDT
        if T == 1: self.argmax1(); self.argmax2()
        if T == 3:
            a(f"s_lshl_b32 s{T0}, s{IDX}, 11")
            a(f"s_add_u32 s{T0}, s{T0}, s{SP}")
            a(f"buffer_load_dword v{self.XSL}, v{t}, {sr(S_X)}, s{T0} offen"); vm.add("xs")
        if T == 5:
            a(f"s_lshl_b32 s{T0}, s{IDX}, 3")
            a(f"s_add_u32 s{T0}, s{T0}, {WS_STAT:#x}")
            a(f"buffer_load_dwordx2 {vr(self.XST,2)}, v{t+1}, {sr(S_WS)}, s{T0} offen sc1"); vm.add("xs")
        if T in GU_T:
            i = GU_T.index(T); mat, j = i >> 2, i & 3
            a(f"s_add_u32 m0, s{self.FB}, {i*1024}")
            a(f"s_add_u32 s{T0}, s{self.GSO}, {j*8*7168}")
            a(f"buffer_load_dwordx4 v{self.VGU}, {sr(S_WU if mat else S_WG)}, s{T0} offen lds"); vm.add("u" if mat else "g")
        if T == 16:
            vm.wait("xs")
            a(f"v_lshlrev_b32 v{t}, 16, v{self.XSL}")
            a(f"v_and_b32 v{t+1}, 0xffff0000, v{self.XSL}")
            a(f"v_sub_f32 v{t}, v{t}, v{self.XST}")
            a(f"v_sub_f32 v{t+1}, v{t+1}, v{self.XST}")
            a(f"v_cvt_pk_bf16_f32 v{t+2}, v{t}, v{t+1}")
            a(f"v_lshlrev_b32 v{t}, 16, v{t+2}")
            a(f"v_and_b32 v{t+1}, 0xffff0000, v{t+2}")
            a(f"v_mul_f32 v{t}, v{t}, v{self.XST+1}")
            a(f"v_mul_f32 v{t+1}, v{t+1}, v{self.XST+1}")
            a(f"v_cvt_pk_bf16_f32 v{t+2}, v{t}, v{t+1}")
            a(f"v_and_b32 v{t+3}, 0x30, v2")
            for j in range(4):
                k.ds(f"ds_bpermute_b32 v{self.XS+j}, v{t+3}, v{t+2} offset:{4*j}", "xsf")
        if 22 <= T <= 25:
            if T == 22: vm.wait("g")
            if T == 24: vm.wait("u")
            m, hf = (T - 22) >> 1, (T - 22) & 1
            for ct in (2*hf, 2*hf+1):
                for u in range(2):
                    k.ds(f"ds_read_b64_tr_b16 {vr(self.WB+16*m+4*ct+2*u,2)}, v{self.VTR} offset:{m*4096 + u*512 + ct*32}", ("gw", T))
        if 24 <= T <= 27:
            m, hf = (T - 24) >> 1, (T - 24) & 1
            k.lg.wait(("gw", T - 2), "xsf")
            for ct in (2*hf, 2*hf+1):
                a(f"v_mfma_f32_16x16x32_bf16 {vr(self.DD+16*m+4*ct,4)}, {vr(self.XS,4)}, {vr(self.WB+16*m+4*ct,4)}, 0")
        if T == 28: k.delay(41)
        if T == 51: k.delay(130)
        if T == 28:
            for ct in range(1, 4):
                for m in range(2):
                    D = self.DD + 16*m
                    a(f"v_mov_b32_dpp v{D}, v{D+4*ct} quad_perm:[0,1,2,3] row_mask:{1 << ct:#x} bank_mask:0xf")
            a(f"s_add_u32 s{T0}, s{self.ASO}, {3584*4}")
            a(f"buffer_atomic_add_f32 v{self.DD}, v{self.VL4}, {sr(S_WS)}, s{self.ASO} offen"); vm.add("at1")
            a(f"buffer_atomic_add_f32 v{self.DD+16}, v{self.VL4}, {sr(S_WS)}, s{T0} offen"); vm.add("at1")
        if T in WD_T:
            j = WD_T.index(T)
            a(f"s_add_u32 m0, s{self.FB}, {j*1024}")
            a(f"s_add_u32 s{T0}, s{self.DSO}, {j*8192}")
            a(f"buffer_load_dwordx4 v{self.VOD}, {sr(S_WD)}, s{T0} offen lds"); vm.add("wd")
        if T == 35:
            vm.wait("at1")
            a(f"s_lshr_b32 s{self.GSO}, s{FCG}, 2")
            a(f"s_lshl_b32 s{self.GSO}, s{self.GSO}, 7")
            a(f"s_add_u32 s{self.GSO}, s{self.GSO}, {SY4:#x}")
            a("s_cmp_lt_u32 s2, 224")
            a(f"s_cselect_b32 s{self.GSO}, s{self.GSO}, 0x40000000")
            self.arrive(self.GSO)
        G = self.DD
        W0F = f"s_cmp_lt_u32 s{CNT}, 224"
        if T == 40:
            a(f"s_lshl_b32 s{CNT}, s3, 8")
            a(f"s_add_u32 s{CNT}, s{CNT}, s2")
            a(f"v_mov_b32 v{t}, 0")
            k.only(W0F, lambda: a(f"buffer_load_dword v{t+1}, v{t}, {sr(S_WS)}, s{self.GSO} offen sc1"))
            vm.mark("p4")
        if T == 42:
            def p2():
                a(f"s_waitcnt vmcnt({vm.since('p4')})")
                k.poll(t, t + 1, self.GSO, 32, cnt=T3)
                a(f"v_and_b32 v{t}, 60, v{self.VL4}")
                a(f"v_bfe_u32 v{t+1}, v2, 4, 1")
                a(f"v_mul_u32_u24 v{t+1}, {3584*4}, v{t+1}")
                a(f"v_add_u32 v{t+1}, v{t+1}, v{t}")
                a(f"s_lshl_b32 s{T0}, s{FCG}, 6")
                a(f"s_add_u32 s{T0}, s{T0}, {WS_GU:#x}")
                a(f"buffer_load_dword v{G}, v{t+1}, {sr(S_WS)}, s{T0} offen sc1")
            k.only(W0F, p2)
            vm.mark("gl")
        if T == 45:
            def hh():
                a(f"s_waitcnt vmcnt({vm.since('gl')})")
                bf16r(a, G, G)
                a(f"v_mov_b32 v{G+1}, v{G}")
                a(f"v_permlane16_swap_b32 v{G}, v{G+1}")
                a(f"v_mul_f32 v{G+2}, {f32(-LOG2E)}, v{G}")
                a(f"v_exp_f32 v{G+2}, v{G+2}")
                a(f"v_add_f32 v{G+2}, 1.0, v{G+2}")
                a(f"v_rcp_f32 v{G+2}, v{G+2}")
                a(f"v_mul_f32 v{G}, v{G}, v{G+2}")
                bf16r(a, G, G)
                a(f"v_mul_f32 v{G}, v{G}, v{G+1}")
                a(f"v_cvt_pk_bf16_f32 v{G}, v{G}, v{G}")
                a(f"v_lshrrev_b32 v{t}, 1, v{t}")
                a(f"v_add_u32 v{t}, {FBASE + 4096}, v{t}")
                a(f"ds_write_b16 v{t}, v{G}")
                a("s_waitcnt lgkmcnt(0)")
            k.only(W0F, hh)
        HF, WD, DD = 168, 176, 192
        if T in (43, 44):
            if T == 43: vm.wait("wd")
            for j in (2*(T-43), 2*(T-43)+1):
                if j: a(f"v_xor_b32 v{t+4+j}, {64*j}, v{self.VTD}")
                ad = (t + 4 + j) if j else self.VTD
                for u in range(2):
                    k.ds(f"ds_read_b64_tr_b16 {vr(WD+4*j+2*u,2)}, v{ad} offset:{u*1024}", "wdf")
        if T == 46:
            a(f"v_lshlrev_b32 v{t+4}, 4, v{VH}")
            a(f"v_add_u32 v{t+4}, {FBASE + 4096}, v{t+4}")
            k.ds(f"ds_read_b128 {vr(HF,4)}, v{t+4}", "hf")
        if 47 <= T <= 50:
            j = T - 47
            k.lg.wait("hf", "wdf")
            a(f"v_mfma_f32_32x32x16_bf16 {vr(DD+16*j,16)}, {vr(HF,4)}, {vr(WD+4*j,4)}, 0")
        if T == 51:
            a(f"v_mov_b32_dpp v{DD}, v{DD+16} quad_perm:[0,1,2,3] row_mask:0xc bank_mask:0xf")
            a(f"v_mov_b32_dpp v{DD+32}, v{DD+48} quad_perm:[0,1,2,3] row_mask:0xc bank_mask:0xf")
            a(f"buffer_atomic_add_f32 v{DD}, v{self.VL4}, {sr(S_WS)}, s{self.YSO} offen"); vm.add("at")
            a(f"buffer_atomic_add_f32 v{DD+32}, v{self.VL4}, {sr(S_WS)}, s{self.YSO} offen offset:256"); vm.add("at")
        if T == 59:
            vm.wait("at")
            a(f"s_lshr_b32 s{T0}, s2, 3")
            a(f"s_lshl_b32 s{T0}, s{T0}, 7")
            a(f"s_add_u32 s{T0}, s{T0}, {SY3:#x}")
            self.arrive(T0)

class PhaseD:
    XR, ST, VXO = 8, 30, 16
    VOF, VWD = 24, (17, 18, 1)
    XFL, G, XF, ACCO, ACCX, WREG = 32, 48, 64, 96, 112, 128
    def __init__(self, k):
        self.k, self.a, self.vm = k, k.a, k.vm
        def rot(c, shift, extra, base):
            return f"""s_add_u32 s{TD}, s{ROT}, {c}
            s_and_b32 s{TD}, s{TD}, 15
            s_lshl_b32 s{TD}, s{TD}, {shift}
            s_add_u32 s{TD}, s{TD}, s{base}""" + (f"\ns_add_u32 s{TD}, s{TD}, {extra}" if extra else "")
        def ldw(n): return lambda p: f"s_add_u32 m0, s{W1K}, {p*8192}\n" + rot(n >> 1, 17, (n & 1) * 16 * 2048, SEL) + f"\nbuffer_load_dwordx4 v{VOW}, {sr(S_W)}, s{TD} offen lds"
        def ldo(c): return lambda p: f"s_add_u32 m0, s{W1K}, {p*8192}\n" + rot(c, 12, 0, OBASE) + f"\nbuffer_load_dwordx4 v{VL16}, {sr(S_WS)}, s{TD} offen sc1 lds"
        seq = [(("w", n), ldw(n), None, list(range(19, -1, -1))) for n in range(24)]
        seq += [(("o", c), ldo(c), None, list(range(16))) for c in range(16)]
        seq += [(("w", n), ldw(n), None, [16, 17, 18, 19]) for n in range(24, 32)]
        self.pg = Pager(k, range(8, 20), seq)
    def tile_end(self, T):
        k, a, vm = self.k, self.a, self.vm
        if T == 44:
            a(f"s_lshr_b32 s{T0}, s2, 3")
            a(f"s_lshl_b32 s{T0}, s{T0}, 16")
            a(f"v_lshlrev_b32 v{self.VXO}, 7, v0")
            a(f"buffer_load_dword v{self.XR}, v{self.VXO}, {sr(S_W)}, s{T0} offen"); vm.add("pf")
        if T == 51:
            a(f"v_lshlrev_b32 v{self.VXO}, 11, v{VN}")
            a(f"v_lshl_add_u32 v{self.VXO}, v{VH}, 5, v{self.VXO}")
            a(f"s_lshl_b32 s{T1}, s{RB2}, 1")
            a(f"s_add_u32 s{T1}, s{T1}, s{RT}")
            a(f"s_lshl_b32 s{XO2}, s{T1}, 16")
            a(f"s_lshl_b32 s{SEL}, s{CB2}, 8")
            a(f"s_add_u32 s{XO2}, s{XO2}, s{SEL}")
            a(f"s_lshl_b32 s{T0}, s{HD}, 6")
            a(f"s_add_u32 s{XO2}, s{XO2}, s{T0}")
            a(f"buffer_load_dwordx4 {vr(self.XR,4)}, v{self.VXO}, {sr(S_X)}, s{XO2} offen"); vm.add("x2")
            a(f"s_lshl_b32 s{ROT}, s{CB2}, 1")
            a(f"s_lshr_b32 s{T0}, s{IDX}, 5")
            a(f"s_cmp_eq_u32 s{T0}, s{T1}")
            a(f"s_cselect_b32 s{MODE}, 1, 0")
        if T == 52:
            a(f"s_lshl_b32 s{T1}, s{RB2}, 1")
            a(f"s_add_u32 s{T1}, s{T1}, s{RT}")
            a(f"s_lshl_b32 s{T0}, s{T1}, 8")
            a(f"s_add_u32 s{T0}, s{T0}, {WS_STAT:#x}")
            a(f"v_lshlrev_b32 v5, 3, v{VN}")
            a(f"buffer_load_dwordx2 {vr(self.ST,2)}, v5, {sr(S_WS)}, s{T0} offen sc1"); vm.add("x2")
        if T == 53:
            a(f"buffer_load_dwordx4 {vr(self.XR+4,4)}, v{self.VXO}, {sr(S_X)}, s{XO2} offen offset:16"); vm.add("x2")
            a(f"s_lshl_b32 s{T0}, s{ROWT}, 5")
            a(f"s_lshl_b32 s{T1}, s{HB}, 2")
            a(f"s_add_u32 s{T0}, s{T0}, s{T1}")
            a(f"s_add_u32 s{T0}, s{T0}, s{HD}")
            a(f"s_lshl_b32 s{T0}, s{T0}, 11")
            a(f"s_add_u32 s{OSO}, s{T0}, {WS_OF:#x}")
        if 54 <= T <= 61:
            ne = (T - 53) * NEARLY // 8 - (T - 54) * NEARLY // 8
            for g in self.pg.take(ne): self.pg.issue(g)
    def run(self):
        k, a, vm, lg, pg = self.k, self.a, self.vm, self.k.lg, self.pg
        XR, ST, VXO, VOF, VWD, XFL, G, XF, ACCO, ACCX, WREG = (self.XR, self.ST, self.VXO, self.VOF, self.VWD, self.XFL,
                                                              self.G, self.XF, self.ACCO, self.ACCX, self.WREG)
        a("v_bfe_u32 v5, v2, 2, 2")
        a(f"v_lshl_add_u32 v6, v{VH}, 2, v5")
        a("v_lshlrev_b32 v6, 6, v6")
        a("v_and_b32 v5, 1, v2")
        a("v_lshl_add_u32 v6, v5, 5, v6")
        a("v_bfe_u32 v5, v2, 4, 1")
        a("v_lshl_add_u32 v6, v5, 4, v6")
        a("v_bfe_u32 v5, v2, 1, 1")
        a("v_lshl_add_u32 v6, v5, 3, v6")
        a(f"v_add_u32 v{VWD[0]}, s{W1K}, v6")
        a(f"v_add_u32 v{VWD[1]}, 0x10000, v{VWD[0]}")
        a(f"v_add_u32 v{VWD[2]}, 0x20000, v{VWD[0]}")
        a(f"v_mov_b32 v6, {f32(2.0**64)}")
        for i in range(4): a(f"v_pk_add_f32 {vr(SA+2*i,2)}, {vr(OA+4*i,2)}, {vr(OA+4*i+2,2)}")
        a(f"v_pk_add_f32 {vr(SA,2)}, {vr(SA,2)}, {vr(SA+2,2)}")
        a(f"v_pk_add_f32 {vr(SA+4,2)}, {vr(SA+4,2)}, {vr(SA+6,2)}")
        a(f"v_pk_add_f32 {vr(SA,2)}, {vr(SA,2)}, {vr(SA+4,2)}")
        a(f"v_add_f32 v5, v{SA}, v{SA+1}")
        a(f"v_fma_f32 v5, v5, 0, v{LS}")
        a("v_cmp_nlt_f32 vcc, v5, v6")
        a("s_nop 1")
        if "forcefb" in VAR: a("s_branch L_fallback")
        a("s_cbranch_vccnz L_fallback")
        a.label("L_fin")
        a(f"v_rcp_f32 v6, v{LS}")
        for i in range(8): a(f"v_pk_mul_f32 {vr(OA+2*i,2)}, {vr(OA+2*i,2)}, v[6:7] op_sel_hi:[1,0]")
        for i in range(8): a(f"v_cvt_pk_bf16_f32 v{SA+i}, v{OA+2*i}, v{OA+2*i+1}")
        a(f"buffer_store_dwordx4 {vr(SA,4)}, v{VL16}, {sr(S_WS)}, s{OSO} offen sc1"); vm.add("ost")
        a(f"buffer_store_dwordx4 {vr(SA+4,4)}, v{VL16}, {sr(S_WS)}, s{OSO} offen offset:1024 sc1"); vm.add("ost")
        def wread(n):
            vm.wait(("w", n))
            p = pg.page[("w", n)]
            for u in range(2):
                k.ds(f"ds_read_b64_tr_b16 {vr(WREG+4*n+2*u,2)}, v{VWD[p >> 3]} offset:{(p & 7)*8192 + 8*u*64}", ("wr", n))
        def wfree(n):
            lg.wait(("wr", n)); pg.free.append(pg.page[("w", n)])
        def xn_ops(src, lo, hi, g0, g1, m, ri, t0=6):
            return [f"v_lshlrev_b32 v{lo}, 16, v{src}", f"v_and_b32 v{hi}, 0xffff0000, v{src}",
                    f"v_sub_f32 v{g0}, v{lo}, v{m}", f"v_sub_f32 v{g1}, v{hi}, v{m}",
                    f"v_cvt_pk_bf16_f32 v{t0}, v{g0}, v{g1}",
                    f"v_lshlrev_b32 v{g0}, 16, v{t0}", f"v_and_b32 v{g1}, 0xffff0000, v{t0}",
                    f"v_mul_f32 v{g0}, v{g0}, v{ri}", f"v_mul_f32 v{g1}, v{g1}, v{ri}",
                    f"v_cvt_pk_bf16_f32 v{t0}, v{g0}, v{g1}",
                    f"v_lshlrev_b32 v{g0}, 16, v{t0}", f"v_and_b32 v{g1}, 0xffff0000, v{t0}"]
        def silu_ops(g0, g1, t0=6, t1=7):
            return [f"v_mul_f32 v{t0}, {f32(-LOG2E)}, v{g0}", f"v_mul_f32 v{t1}, {f32(-LOG2E)}, v{g1}",
                    f"v_exp_f32 v{t0}, v{t0}", f"v_exp_f32 v{t1}, v{t1}",
                    f"v_add_f32 v{t0}, 1.0, v{t0}", f"v_add_f32 v{t1}, 1.0, v{t1}",
                    f"v_rcp_f32 v{t0}, v{t0}", f"v_rcp_f32 v{t1}, v{t1}",
                    f"v_mul_f32 v{g0}, v{g0}, v{t0}", f"v_mul_f32 v{g1}, v{g1}, v{t1}",
                    f"v_cvt_pk_bf16_f32 v{t0}, v{g0}, v{g1}",
                    f"v_lshlrev_b32 v{g0}, 16, v{t0}", f"v_and_b32 v{g1}, 0xffff0000, v{t0}"]
        gate = []
        for p in range(8): gate += xn_ops(XR+p, XFL+2*p, XFL+2*p+1, G+2*p, G+2*p+1, ST, ST+1)
        for p in range(8): gate += silu_ops(G+2*p, G+2*p+1)
        def gops(n):
            for _ in range(min(n, len(gate))): a(gate.pop(0))
        for g in pg.take(12 - NEARLY): pg.issue(g)
        for n in range(12): wread(n)
        for n in range(4):
            wfree(n)
            for g in pg.take(1): pg.issue(g)
        a(f"s_lshl_b32 s{T0}, s{RB}, 3")
        a(f"s_add_u32 s{T0}, s{T0}, s{HB}")
        a(f"s_lshl_b32 s{T0}, s{T0}, 7")
        a(f"s_add_u32 s{T0}, s{T0}, {SY2:#x}")
        a("v_mov_b32 v5, 1")
        a("v_mov_b32 v6, 0")
        vm.wait("ost")
        def arr():
            a("s_mov_b64 exec, 1")
            a(f"buffer_store_dword v5, v6, {sr(S_WS)}, s{T0} offen sc1" if "stflag" in VAR else f"buffer_atomic_add v5, v6, {sr(S_WS)}, s{T0} offen sc1")
            a("s_mov_b64 exec, -1")
        if "wgarr" in VAR:
            a("s_barrier")
            k.only("s_cmp_eq_u32 s3, 0", arr)
        else:
            arr(); vm.add("arr")
        k.stamp("E1")
        for n in range(4, 12): wfree(n)
        PV = XF
        a(f"v_and_b32 v{PV}, 7, v2")
        a(f"v_lshlrev_b32 v{PV}, 7, v{PV}")
        a(f"s_lshl_b32 s{T3}, s{RB2}, 10")
        a(f"s_add_u32 s{T3}, s{T3}, {SY2:#x}")
        nxt = 12
        for i, g in enumerate(pg.take(16, stop=("o", 0))):
            pg.issue(g); gops(8)
            if i >= 2: wread(nxt); nxt += 1
            if i == D_POLL:
                k.only("s_cmp_eq_u32 s3, 7", lambda: a(f"buffer_load_dword v{PV+1}, v{PV}, {sr(S_WS)}, s{T3} offen sc1"))
        a(f"s_lshl_b32 s{OBASE}, s{RB2}, 1")
        a(f"s_lshr_b32 s{T0}, s3, 2")
        a(f"s_add_u32 s{OBASE}, s{OBASE}, s{T0}")
        a(f"s_lshl_b32 s{OBASE}, s{OBASE}, 16")
        a(f"s_and_b32 s{T0}, s3, 3")
        a(f"s_lshl_b32 s{T0}, s{T0}, 10")
        a(f"s_add_u32 s{OBASE}, s{OBASE}, s{T0}")
        a(f"s_add_u32 s{OBASE}, s{OBASE}, {WS_OF:#x}")
        a(f"s_mul_i32 s{T0}, s{RT}, {4096 + 2048}")
        a(f"v_add_u32 v{VOF}, s{T0}, v{VL16}")
        a(f"v_xor_b32 v{VOF+1}, 0x1000, v{VOF}")
        a(f"v_add_u32 v{VOF+2}, 0x10000, v{VOF}")
        a(f"v_add_u32 v{VOF+3}, 0x10000, v{VOF+1}")
        while nxt < 24:
            wread(nxt); nxt += 1; gops(6)
        lg.wait_all()
        k.only("s_cmp_eq_u32 s3, 7", lambda: k.poll(PV, PV + 1, T3, 1 if 'wgarr' in VAR else 8, cnt=T2))
        a("s_barrier")
        k.stamp("E2")
        pg.free = list(range(20))
        od = pg.take(20)
        for g in od[:6]:
            pg.issue(g); gops(8)
        od = od[6:]
        gops(1000)
        a(f"s_cmp_eq_u32 s{MODE}, 1")
        a("s_cbranch_scc1 L_own")
        st = (list(vm.tags), vm.total, dict(vm.marks), list(lg.tags), list(pg.free), pg.pos, a.snapshot(), list(STAMP_NAMES))
        self.dloop(False, list(od), wread, wfree, xn_ops, silu_ops)
        a("s_endpgm")
        a.label("L_own")
        vm.tags, vm.total, vm.marks, lg.tags, pg.free, pg.pos = list(st[0]), st[1], dict(st[2]), list(st[3]), list(st[4]), st[5]
        a.hist = st[6][0]; a.alts = [(h, 0) for h in st[6][1:]]
        STAMP_NAMES[:] = st[7]
        self.dloop(True, list(od), wread, wfree, xn_ops, silu_ops)
    def dloop(self, own, od, wread, wfree, xn_ops, silu_ops):
        k, a, vm, lg, pg = self.k, self.a, self.vm, self.k.lg, self.pg
        XR, ST, VXO, VOF, VWD, XFL, G, XF, ACCO, ACCX, WREG = (self.XR, self.ST, self.VXO, self.VOF, self.VWD, self.XFL,
                                                              self.G, self.XF, self.ACCO, self.ACCX, self.WREG)
        Y, X4, XN, YS, YB, YA, YD = WREG + 16, WREG + 20, WREG + 24, WREG + 28, WREG + 32, 28, 29
        ys = {}
        if own:
            def I(x): return lambda: a(x)
            def br(d): return [f"v_cvt_pk_bf16_f32 v{d}, v{d}, v{d}", f"v_lshlrev_b32 v{d}, 16, v{d}"]
            def y_poll():
                a(f"v_lshlrev_b32 v{YA}, 7, v{VN}")
                a(f"s_mov_b32 s{T3}, {SY3:#x}")
                a(f"buffer_load_dword v{YD}, v{YA}, {sr(S_WS)}, s{T3} offen sc1"); vm.add("yp")
            def y_chk():
                vm.wait("yp"); k.poll(YA, YD, T3, 64)
            def y_l1():
                a(f"v_lshrrev_b32 v{YA}, 3, v2")
                a(f"v_lshlrev_b32 v{YA}, 12, v{YA}")
                a(f"v_and_b32 v{YD}, 7, v2")
                a(f"v_lshl_add_u32 v{YA}, v{YD}, 4, v{YA}")
                a(f"s_lshl_b32 s{T0}, s{CB2}, 9")
                a(f"s_lshl_b32 s{T1}, s{HD}, 7")
                a(f"s_add_u32 s{T0}, s{T0}, s{T1}")
                a(f"s_add_u32 s{T1}, s{T0}, {WS_YACC:#x}")
                a(f"buffer_load_dwordx4 {vr(Y,4)}, v{YA}, {sr(S_WS)}, s{T1} offen sc1"); vm.add("yl")
            def y_l2():
                a(f"s_lshr_b32 s{T0}, s{T0}, 1")
                a(f"s_lshl_b32 s{T1}, s{IDX}, 11")
                a(f"s_add_u32 s{T0}, s{T0}, s{T1}")
                a(f"v_lshlrev_b32 v{YD}, 3, v{YD}")
                a(f"buffer_load_dwordx2 {vr(X4,2)}, v{YD}, {sr(S_X)}, s{T0} offen"); vm.add("yl")
            def y_rs():
                a(f"s_and_b32 s{T1}, s{RKEY}, 0xffff0000")
                a(f"s_xor_b32 s{T2}, s{T1}, 0x80000000")
                a(f"s_xor_b32 s{T0}, s{T1}, 0xffff0000")
                a(f"s_bitcmp1_b32 s{T1}, 31")
                a(f"s_cselect_b32 s{T1}, s{T2}, s{T0}")
                a(f"v_mov_b32 v{YA}, s{T1}")
            def y_st():
                a(f"s_and_b32 s{T1}, s{IDX}, 31")
                a(f"v_readlane_b32 s{T0}, v{ST}, s{T1}")
                a(f"v_readlane_b32 s{T2}, v{ST+1}, s{T1}")
                a(f"v_mov_b32 v{YS}, s{T0}")
                a(f"v_mov_b32 v{YS+1}, s{T2}")
            rs2 = [f"v_mul_f32 v{YA}, {f32(-LOG2E)}, v{YA}", f"v_exp_f32 v{YA}, v{YA}", f"v_add_f32 v{YA}, 1.0, v{YA}", f"v_rcp_f32 v{YA}, v{YA}"] + br(YA)
            sm = [f"v_add_f32_dpp v{Y+e}, v{Y+e}, v{Y+e} row_ror:8 row_mask:0xf bank_mask:0xf" for e in range(4)]
            for sw in ("v_permlane16_swap_b32", "v_permlane32_swap_b32"):
                sm += [f"v_mov_b32 v{YB+4+e}, v{Y+e}" for e in range(4)] + [f"{sw} v{Y+e}, v{YB+4+e}" for e in range(4)]
                sm += [f"v_add_f32 v{Y+e}, v{Y+e}, v{YB+4+e}" for e in range(4)]
            def rr(p, q): return [f"v_cvt_pk_bf16_f32 v{YB+2}, v{p}, v{q}", f"v_lshlrev_b32 v{p}, 16, v{YB+2}", f"v_and_b32 v{q}, 0xffff0000, v{YB+2}"]
            sc = []
            for p in (0, 2):
                sc += rr(Y+p, Y+p+1) + [f"v_mul_f32 v{Y+p}, v{Y+p}, v{YA}", f"v_mul_f32 v{Y+p+1}, v{Y+p+1}, v{YA}"] + rr(Y+p, Y+p+1)
            xn = xn_ops(X4, YB, YB+1, XN, XN+1, YS, YS+1, YB+2) + xn_ops(X4+1, YB, YB+1, XN+2, XN+3, YS, YS+1, YB+2)
            ad = []
            for p in (0, 2):
                ad += [f"v_add_f32 v{XN+p}, v{XN+p}, v{Y+p}", f"v_add_f32 v{XN+p+1}, v{XN+p+1}, v{Y+p+1}"] + rr(XN+p, XN+p+1)
            sl = silu_ops(XN, XN+1, YB+2, YB+3) + silu_ops(XN+2, XN+3, YB+2, YB+3) + [f"v_lshlrev_b32 v{YD}, 4, v{VH}"]
            bp = [lambda q=q, e=e: k.ds(f"ds_bpermute_b32 v{YB+4*q+e}, v{YD}, v{XN+e} offset:{4*q}", "yb") for q in range(4) for e in range(4)]
            allv = [I(x) for x in sm + sc + xn + ad + sl]
            ys = {0: [y_poll], 4: [y_chk, y_l1, y_l2], 5: [y_rs, y_st] + [I(x) for x in rs2]}
            per = -(-len(allv) // 5)
            for i in range(5): ys[7 + i] = ([lambda: vm.wait("yl")] if i == 0 else []) + allv[i*per:(i+1)*per]
            ys[12] = bp
            def y_mask():
                lg.wait("yb")
                a(f"s_and_b32 s{T1}, s{IDX}, 31")
                a(f"v_cmp_eq_u32 vcc, s{T1}, v{VN}")
            ys[13] = [y_mask] + [I(f"v_cndmask_b32 v{G+i}, v{G+i}, v{YB+i}, vcc") for i in range(16)]
        avail = {0: 2, 2: 4, 4: 8, 8: 12, 12: 16}
        pool = [XF, XF + 16]
        xb = {}
        def rd_ops(c):
            if not pool: return None
            xb[c] = pool.pop(0)
            def bar():
                vm.wait(*[("o", i) for i in range(avail[c])])
                a("s_barrier")
            def r(e):
                p = pg.page[("o", c)]
                for t in range(2):
                    k.ds(f"ds_read_b128 {vr(xb[c]+4*(2*t+e),4)}, v{VOF + 2*(p >> 3) + t} offset:{(p & 7)*8192 + e*1024}", ("d", c, e))
            return ([bar] if c in avail else []) + [lambda: r(0), lambda: r(1)]
        def rd(c):
            for o in rd_ops(c): o()
        rd(0); k.stamp("D0"); rd(1)
        def mf(c, e, t):
            acc = ACCX if t else ACCO
            cc = "0" if (c == 0 and e == 0) else vr(acc, 16)
            a(f"v_mfma_f32_32x32x16_bf16 {vr(acc,16)}, {vr(WREG+4*(2*c+e),4)}, {vr(xb[c]+4*(2*t+e),4)}, {cc}")
        def d1():
            if od: pg.issue(od.pop(0))
        for c in range(14):
            def m0(e):
                lg.wait(("d", c, e), ("wr", 2*c+e)); mf(c, e, 0)
            ms = [lambda: m0(0), lambda: mf(c, 0, 1), lambda: m0(1), lambda: mf(c, 1, 1)]
            extra = []
            if c == 8: extra = [lambda n=n: wread(n) for n in range(24, 28)]
            if c == 12: extra = [lambda n=n: wread(n) for n in range(28, 32)]
            if c == 9:
                for n in range(24, 28): wfree(n)
                od += pg.take(4)
            ro = rd_ops(c + 2)
            base = [d1, d1] + (ro or []) + extra
            y = ys.get(c, [])
            if y:
                for i, m in enumerate(ms):
                    m()
                    for o in base[i * len(base) // 4:(i + 1) * len(base) // 4]: o()
                    for o in y[i * len(y) // 4:(i + 1) * len(y) // 4]: o()
            else: interleave(ms, base)
            pool.append(xb[c])
            if c == 1: pool.append(WREG)
            if ro is None: rd(c + 2)
        lg.wait_all()
        a(f"v_add_u32 v5, s{W1K}, v{VL16}")
        for c in (14, 15):
            for e in range(2): mf(c, e, 1)
        a("v_add_u32 v5, 0x20000, v5")
        a("v_xor_b32 v6, 0x400, v5")
        mf(14, 0, 0); mf(14, 1, 0); mf(15, 0, 0)
        a("s_nop 6")
        for q in range(4): a(f"ds_write_b128 v5, {vr(ACCX+4*q,4)} offset:{q*8192}")
        mf(15, 1, 0)
        k.stamp("D_end")
        a("s_waitcnt lgkmcnt(0)")
        a("s_barrier")
        for q in range(4): a(f"ds_read_b128 {vr(WREG+16+4*q,4)}, v6 offset:{q*8192}")
        for q in range(4):
            a(f"s_waitcnt lgkmcnt({3-q})")
            for i in (2*q, 2*q+1): a(f"v_pk_add_f32 {vr(ACCO+2*i,2)}, {vr(ACCO+2*i,2)}, {vr(WREG+16+2*i,2)}")
            for i in (2*q, 2*q+1): a(f"v_pk_fma_f32 {vr(ACCO+2*i,2)}, {vr(ACCO+2*i,2)}, {vr(G+2*i,2)}, {vr(XFL+2*i,2)}")
            for i in (2*q, 2*q+1): a(f"v_cvt_pk_bf16_f32 v{XR+i}, v{ACCO+2*i}, v{ACCO+2*i+1}")
            if q == 1: a(f"buffer_store_dwordx4 {vr(XR,4)}, v{VXO}, {sr(S_OUT)}, s{XO2} offen")
        a(f"buffer_store_dwordx4 {vr(XR+4,4)}, v{VXO}, {sr(S_OUT)}, s{XO2} offen offset:16")
        k.stamp("end")

def fallback(k):
    a = k.a
    a.label("L_fallback")
    a.flush()
    a("v_mov_b32 v6, 0xff800000")
    a(f"s_mov_b32 s{T0}, 0")
    a.label("L_fb1")
    a(f"buffer_load_dwordx4 {vr(KA,4)}, v{VL16}, {sr(S_KV)}, s{T0} offen sc1")
    a(f"buffer_load_dwordx4 {vr(KA+4,4)}, v{VL16}, {sr(S_KV)}, s{T0} offen offset:1024 sc1")
    a("s_waitcnt vmcnt(0)")
    a(f"v_mfma_f32_32x32x16_bf16 {vr(SA,16)}, {vr(KA,4)}, {vr(QF,4)}, 0")
    a(f"v_mfma_f32_32x32x16_bf16 {vr(SA,16)}, {vr(KA+4,4)}, {vr(QF+4,4)}, {vr(SA,16)}")
    for i in range(0, 16, 2): a(f"v_max3_f32 v6, v6, v{SA+i}, v{SA+i+1}")
    a(f"s_add_u32 s{T0}, s{T0}, 4096")
    a(f"s_cmp_lt_u32 s{T0}, 0x40000")
    a("s_cbranch_scc1 L_fb1")
    a("v_mov_b32 v5, v6")
    a("v_permlane32_swap_b32 v6, v5")
    a("v_max_f32 v6, v6, v5")
    for i in range(16): a(f"v_sub_f32 v{NM+i}, 0, v6")
    for i in range(16): a(f"v_mov_b32 v{OA+i}, 0")
    for i in range(4): a(f"v_mov_b32 v{LS+i}, 0")
    a(f"s_mov_b32 s{T0}, 0")
    a.label("L_fb2")
    a(f"buffer_load_dwordx4 {vr(KA,4)}, v{VL16}, {sr(S_KV)}, s{T0} offen sc1")
    a(f"buffer_load_dwordx4 {vr(KA+4,4)}, v{VL16}, {sr(S_KV)}, s{T0} offen offset:1024 sc1")
    a(f"buffer_load_dwordx4 {vr(VA,4)}, v{VL16}, {sr(S_KV)}, s{T0} offen offset:2048 sc1")
    a(f"buffer_load_dwordx4 {vr(VA+4,4)}, v{VL16}, {sr(S_KV)}, s{T0} offen offset:3072 sc1")
    a("s_waitcnt vmcnt(0)")
    a(f"v_mfma_f32_32x32x16_bf16 {vr(SA,16)}, {vr(KA,4)}, {vr(QF,4)}, {vr(NM,16)}")
    a(f"v_mfma_f32_32x32x16_bf16 {vr(SA,16)}, {vr(KA+4,4)}, {vr(QF+4,4)}, {vr(SA,16)}")
    for i in range(16): a(f"v_exp_f32 v{SA+i}, v{SA+i}")
    a(f"v_smfmac_f32_32x32x32_bf16 {vr(OA,16)}, {vr(VA,4)}, {vr(SA,8)}, v{IDXD}")
    a(f"v_smfmac_f32_16x16x64_bf16 {vr(LS,4)}, {vr(MA,4)}, {vr(SA,8)}, v{IDXD}")
    a(f"v_smfmac_f32_32x32x32_bf16 {vr(OA,16)}, {vr(VA+4,4)}, {vr(SA+8,8)}, v{IDXD}")
    a(f"v_smfmac_f32_16x16x64_bf16 {vr(LS,4)}, {vr(MA,4)}, {vr(SA+8,8)}, v{IDXD}")
    a(f"s_add_u32 s{T0}, s{T0}, 4096")
    a(f"s_cmp_lt_u32 s{T0}, 0x40000")
    a("s_nop 7")
    a("s_cbranch_scc1 L_fb2")
    a.flush()
    a("s_branch L_fin")
    a.label("L_code_end")

def build(path):
    k = K()
    k.ffn = FFN(k); k.D = PhaseD(k)
    prologue(k); phaseAB(k); attention(k)
    if 'nod' not in VAR: k.D.run()
    else: k.a.label('L_fin')
    k.a.label("L_end"); k.a("s_endpgm")
    fallback(k)
    top = open("cdna_kernels/" + NAME + ".s.ref").read().split("; Override launch geometry")[0]
    if STAMPS: top += "; stamps: " + " ".join(STAMP_NAMES) + "\n"
    top += "; @launch grid=(256,1,1) block=(512,1,1) lds=163840\n"
    top += '.amdgcn_target "amdgcn-amd-amdhsa--gfx950"\n.text\n'
    top += f".set CODE_BYTES, L_code_end - {KN} - 64\n"
    kd = f""".section .rodata,"a"
.p2align 6
.amdhsa_kernel {KN}
  .amdhsa_next_free_vgpr 256
  .amdhsa_next_free_sgpr 102
  .amdhsa_accum_offset 256
  .amdhsa_group_segment_fixed_size 0
  .amdhsa_kernarg_size 104
  .amdhsa_user_sgpr_count 2
  .amdhsa_user_sgpr_kernarg_segment_ptr 1
  .amdhsa_system_sgpr_workgroup_id_x 1
.end_amdhsa_kernel
"""
    open(path, "w").write(top + k.a.text() + kd)
    return k

if __name__ == "__main__":
    out = sys.argv[1] if len(sys.argv) > 1 else "cdna_kernels/" + NAME + ".s"
    if len(sys.argv) > 2 and sys.argv[2] == "stamps": STAMPS = True
    VAR.update(sys.argv[3:])
    for v in VAR:
        if v.startswith('init'): N_INIT = int(v[4:])
        if v.startswith('wt') and '_' in v: WT_IT, WT_POS = [int(x) for x in v[2:].split('_')]
        if v.startswith('chk'): CHK, PI = [int(x) for x in v[3:].split('_')]
        if v.startswith('dp'): D_POLL = int(v[2:])
        if v.startswith('al'): ALIGN = int(v[2:])
        if v == 'noskip': S1_SKIP = ()
        if v.startswith('fb'): FB0 = int(v[2:])
        if v.startswith('kvt'): KVT = [int(x) for x in v[3:]]
        if v.startswith('kvp'): KVP = int(v[3:])
        if v.startswith('fts'): FTS = [int(x) for x in v[3:]]; WDT = [28, 29, 32 + FTS[0], 32 + FTS[1]]
        if v.startswith('ne'): NEARLY = int(v[2:])
        if v.startswith('kvf'): KVF = v[3:].replace('_', ' ')
        if v.startswith('pad'): PADAT, PADTO = v[3:].split('@')[0], int(v[3:].split('@')[1])
        if v.startswith('nw'): NW0, ARR, R2C = [int(x) for x in v[2:].split('_')]
        if v.startswith('out'): OUTF = ' ' + v[3:].replace('_', ' ')
    k = build(out)
    if "-v" in VAR:
        for l in k.a.log: print("nop", l)
        for l in k.pgAB.log: print("AB", l)
        for l in k.D.pg.log: print("D", l)
```

```python
import sys, struct
from asmlib import Asm

NAME = "recurrent_scan__grouped_kv_mqa__moe_arch_mod__prompt"
KN = NAME + "_kernel"
WS_KV, WS_STAT, WS_RKEY, WS_SY, WS_YACC, WS_GU, WS_STAMP, WS_OF = 0x0, 0x40000, 0x46000, 0x48000, 0x50000, 0x58000, 0x80000, 0x100000
WS_SIZE = 0x500000
SYB = 0x68000
SY1, SY2, SY3, SY4 = 0x60000, SYB + 0x8000, SYB, SYB + 64 * 128
ONES = 0x3F803F80
LOG2E = 1.4426950408889634
QSCALE = 0.17677669529663687 * LOG2E
def f32(x): return "0x%08x" % struct.unpack("<I", struct.pack("<f", x))[0]
STAMPS = False
VAR = set()
SPIN_MAX = 200000
N_INIT = 9
CHK, PI = 11, 9
D_POLL = 7
VAR.add('wgarr')
WT_IT, WT_POS = 4, 0
ALIGN = 0
DBG_IT = 2
FB0 = 4
KVF = 'sc1'
NEARLY = 12
KVT, KVP = [7, 0, 1, 2], 0
FTS, WDT = [2, 4, 6], [28, 30, 34, 36]
S1_SKIP = (5, 7)
PADTO, PADAT = 0, 'end'
ARR, R2C, NW0 = -1, 2, 0
OUTF = ''

S_X, S_W, S_KW, S_WS, S_KV, S_WR, S_WG, S_WU = 4, 8, 12, 16, 20, 24, 28, 32
S_OUT, S_WD = S_WR, S_KW
RB, HB, ROT, T0, T1, T2, T3 = 36, 37, 38, 39, 40, 41, 42
W1K, MODE, W4K, XSO, TD, SP, RT, HD, ROWT, RG = 43, 44, 45, 46, 47, 48, 49, 50, 51, 52
SEL, IDX, RKEY, FCG, RB2, CB2, OSO, XO2, CNT, OBASE = 53, 54, 55, 56, 57, 58, 59, 60, 61, 62
W8K, EXS, FW = 63, 64, 66
PT = 68
P_X, P_WQ, P_WK, P_WV, P_WO, P_BX, P_WR, P_WG, P_WU, P_WD, P_OUT, P_DBG, P_WS = [PT + 2 * i for i in range(13)]
STMP = 96
def sr(b): return f"s[{b}:{b+3}]"
def vr(b, n): return f"v[{b}:{b+n-1}]"

VN, VH, VOX, VOW, VL16, VST = 3, 4, 18, 19, 20, 21
MA, IDXC, IDXD, STAT = 24, 28, 29, 30
QF, NM, VA, SA, SB, OA, LS, KA, VK1 = 32, 40, 56, 64, 80, 96, 112, 116, 17

def srd(a, d, base, nbytes):
    a(f"s_mov_b32 s{d}, s{base}")
    a(f"s_and_b32 s{d+1}, s{base+1}, 0xffff")
    a(f"s_mov_b32 s{d+2}, {nbytes:#x}")
    a(f"s_mov_b32 s{d+3}, 0x20000")

def bf16r(a, dst, src):
    a(f"v_cvt_pk_bf16_f32 v{dst}, v{src}, v{src}")
    a(f"v_lshlrev_b32 v{dst}, 16, v{dst}")

_lbl = [0]
def L(p="L"):
    _lbl[0] += 1
    return f"{p}_{_lbl[0]}"

class Cnt:
    def __init__(self, a, name, mx): self.a, self.name, self.mx, self.tags, self.total, self.marks = a, name, mx, [], 0, {}
    def add(self, tag, n=1): self.tags += [tag] * n; self.total += n
    def mark(self, m): self.marks[m] = self.total
    def since(self, m): return min(self.total - self.marks[m], self.mx)
    def wait(self, *tags):
        idx = [i for i, t in enumerate(self.tags) if t in tags]
        if not idx: return
        n = min(len(self.tags) - 1 - max(idx), self.mx)
        self.a(f"s_waitcnt {self.name}({n})")
        self.tags = self.tags[len(self.tags) - n:] if n else []
    def wait_all(self):
        self.a(f"s_waitcnt {self.name}(0)"); self.tags = []

STAMP_NAMES = []
class K:
    def __init__(self):
        self.a = Asm()
        self.vm = Cnt(self.a, "vmcnt", 63)
        self.lg = Cnt(self.a, "lgkmcnt", 15)
    def stamp(self, name):
        if PADTO and name == PADAT:
            a = self.a; lp = L()
            a.label(lp)
            a(f"s_memrealtime s[{STMP+2}:{STMP+3}]"); a("s_waitcnt lgkmcnt(0)")
            a(f"s_sub_u32 s{STMP+2}, s{STMP+2}, s{STMP}")
            a(f"s_cmp_lt_u32 s{STMP+2}, {PADTO}")
            a(f"s_cbranch_scc1 {lp}")
            return
        if "dbgstamp" in VAR:
            a = self.a
            names = ["entry", "S0", "B0", "B_end", "loop_start", "loop_end", "E2", "end"]
            if name not in names: return
            slot = 8 + names.index(name)
            if name == "entry":
                a(f"s_memrealtime s[{STMP+2}:{STMP+3}]"); a("s_waitcnt lgkmcnt(0)")
                a("s_and_b32 s100, s2, 31"); a("s_lshl_b32 s101, s3, 8"); a("s_add_u32 s100, s100, s101"); return
            def st():
                a(f"s_memrealtime s[{STMP}:{STMP+1}]"); a("s_waitcnt lgkmcnt(0)")
                a(f"s_sub_u32 s{STMP}, s{STMP}, s{STMP+2}")
                a(f"v_mov_b32 v{VST+1}, s{STMP}")
                a(f"v_mov_b32 v{VST}, {slot*4}")
                a("s_mov_b64 exec, 1")
                a(f"global_atomic_umax v{VST}, v{VST+1}, s[{P_DBG}:{P_DBG+1}]")
                a("s_mov_b64 exec, -1")
            self.only("s_cmp_eq_u32 s100, 9", st)
            return
        if not STAMPS: return
        a = self.a
        slot = len(STAMP_NAMES); STAMP_NAMES.append(str(name)); assert slot < 32
        if name != "entry":
            a(f"s_memrealtime s[{STMP}:{STMP+1}]")
            a(f"s_memtime s[{STMP+2}:{STMP+3}]")
        a("s_waitcnt lgkmcnt(0)")
        a(f"s_lshl_b32 s{STMP+1}, s2, 11")
        a(f"s_lshl_b32 s{STMP+3}, s3, 8")
        a(f"s_add_u32 s{STMP+1}, s{STMP+1}, s{STMP+3}")
        a(f"s_add_u32 s{STMP+1}, s{STMP+1}, {WS_STAMP + slot * 8:#x}")
        a(f"v_mov_b32 v{VST+1}, s{STMP}")
        a(f"v_mov_b32 v{VST+2}, s{STMP+2}")
        a(f"v_mov_b32 v{VST}, s{STMP+1}")
        a(f"buffer_store_dwordx2 v[{VST+1}:{VST+2}], v{VST}, {sr(S_WS)}, 0 offen")
        self.vm.add("st")
    def delay(self, wg):
        if "delay" not in VAR: return
        def d():
            for _ in range(6): self.a("s_sleep 127")
        self.only(f"s_cmp_eq_u32 s2, {wg}", d)
    def only(self, cond, fn):
        a = self.a; skip = L()
        a(cond); a(f"s_cbranch_scc0 {skip}")
        snap = a.snapshot(); fn(); a.label(skip); a.join(snap)
    def ifelse(self, cond, f1, f2):
        a = self.a; lv, lj = L(), L()
        a(cond); a(f"s_cbranch_scc0 {lv}")
        snap = a.snapshot(); f1(); a(f"s_branch {lj}"); snap2 = a.snapshot()
        a.label(lv); a.hist = snap[0]; a.alts = [(h, 0) for h in snap[1:]]
        f2(); a.label(lj); a.join(snap2)
    def poll(self, vaddr, vdat, soff, expect, cnt=CNT):
        a = self.a; top, chk, done = L("poll"), L("pchk"), L("pdone")
        a(f"s_mov_b32 s{cnt}, 0")
        a(f"s_branch {chk}")
        a.label(top)
        a(f"buffer_load_dword v{vdat}, v{vaddr}, {sr(S_WS)}, s{soff} offen sc1")
        a("s_waitcnt vmcnt(0)")
        a.label(chk)
        a(f"v_cmp_ne_u32 vcc, {expect}, v{vdat}")
        a(f"s_add_u32 s{cnt}, s{cnt}, 1")
        a(f"s_cbranch_vccz {done}")
        a("s_sleep 2")
        a(f"s_cmp_lt_u32 s{cnt}, {SPIN_MAX}")
        a(f"s_cbranch_scc1 {top}")
        a.label(done)
    def ds(self, text, tag):
        self.a(text); self.lg.add(tag)

class Pager:
    def __init__(self, k, free, seq):
        self.k, self.free, self.seq, self.pos, self.page, self.rel = k, list(free), seq, 0, {}, {}
        self.hold, self.hold_until, self.log = set(), 0, []
    def release(self, it):
        for p in self.rel.pop(it, []): self.free.append(p)
    def take(self, n, stop=None):
        out = []
        while len(out) < n and self.pos < len(self.seq):
            tag, emit, last, pref = self.seq[self.pos]
            if stop is not None and tag == stop: break
            cand = [p for p in pref if p in self.free and not (p in self.hold and (last is None or last + 2 > self.hold_until))]
            if not cand: break
            p = cand[0]; self.free.remove(p); self.page[tag] = p
            if last is not None: self.rel.setdefault(last + 2, []).append(p)
            out.append((tag, emit(p))); self.pos += 1
        self.log.append([(t, self.page[t]) for t, _ in out])
        return out
    def issue(self, grp):
        tag, text = grp
        self.k.a(text); self.k.vm.add(tag)

def spread(groups, extra, first=True):
    n = len(groups)
    per = -(-len(extra) // max(n, 1)) if extra else 0
    for i, g in enumerate(groups):
        for e in extra[i * per:(i + 1) * per]: e()
        g()
    for e in extra[n * per:]: e()

def interleave(ms, os):
    n = len(ms)
    for i, m in enumerate(ms):
        m()
        for o in os[i * len(os) // n:(i + 1) * len(os) // n]: o()

def prologue(k):
    a, vm = k.a, k.vm
    a.raw(f".globl {KN}"); a.raw(".p2align 8"); a.raw(f".type {KN},@function"); a.raw(f"{KN}:")
    if STAMPS or PADTO:
        a(f"s_memrealtime s[{STMP}:{STMP+1}]")
        a(f"s_memtime s[{STMP+2}:{STMP+3}]")
    a("s_cmp_ge_u32 s2, 256")
    a("s_cbranch_scc1 L_end")
    a(f"s_load_dwordx16 s[{PT}:{PT+15}], s[0:1], 0")
    a(f"s_load_dwordx8 s[{PT+16}:{PT+23}], s[0:1], 64")
    a(f"s_load_dwordx2 s[{PT+24}:{PT+25}], s[0:1], 96")
    a("s_getpc_b64 s[94:95]")
    a("v_lshrrev_b32 v1, 6, v0")
    a("v_and_b32 v2, 63, v0")
    a("v_readfirstlane_b32 s3, v1")
    a("s_and_b32 s4, s2, 0xf8")
    a("s_mul_i32 s4, s4, 160")
    a("v_lshlrev_b32 v8, 7, v0")
    a("v_cmp_gt_u32 vcc, 10, v0")
    a("v_add_u32 v8, s4, v8")
    a("v_min_u32 v8, CODE_BYTES, v8")
    a(f"s_and_saveexec_b64 s[{EXS}:{EXS+1}], vcc")
    l2 = L(); a(f"s_cbranch_execz {l2}")
    if "nocpf" not in VAR: a("global_load_dword v47, v8, s[94:95]")
    a.label(l2)
    a(f"s_mov_b64 exec, s[{EXS}:{EXS+1}]")
    a(f"v_lshlrev_b32 v{VL16}, 4, v2")
    a(f"v_and_b32 v{VN}, 31, v2")
    a(f"v_lshrrev_b32 v{VH}, 5, v2")
    a(f"s_and_b32 s{T0}, s2, 7")
    a(f"s_lshr_b32 s{T1}, s2, 3")
    a(f"s_lshr_b32 s{RB}, s{T0}, 1")
    a(f"s_lshl_b32 s{RB}, s{RB}, 3")
    a(f"s_and_b32 s{SEL}, s{T0}, 1")
    a(f"s_lshl_b32 s{T2}, s{SEL}, 2")
    a(f"s_add_u32 s{RB2}, s{RB}, s{T2}")
    a(f"s_and_b32 s{T3}, s{T1}, 3")
    a(f"s_add_u32 s{RB2}, s{RB2}, s{T3}")
    a(f"s_lshr_b32 s{CB2}, s{T1}, 2")
    a(f"s_and_b32 s{ROT}, s{T1}, 7")
    a(f"s_add_u32 s{RB}, s{RB}, s{ROT}")
    a(f"s_lshr_b32 s{T3}, s{T1}, 3")
    a(f"s_add_u32 s{HB}, s{T2}, s{T3}")
    a(f"s_lshl_b32 s{RG}, s{RB}, 2")
    a(f"s_add_u32 s{RG}, s{RG}, s{T3}")
    a(f"s_mul_i32 s{FCG}, s{T0}, 28")
    a(f"s_add_u32 s{FCG}, s{FCG}, s{T1}")
    a(f"s_lshl_b32 s{W1K}, s3, 10")
    a(f"s_lshl_b32 s{W4K}, s3, 12")
    a(f"s_lshl_b32 s{W8K}, s3, 13")
    a(f"s_and_b32 s{RT}, s3, 1")
    a(f"s_lshr_b32 s{HD}, s3, 1")
    a(f"s_lshl_b32 s{ROWT}, s{RB}, 1")
    a(f"s_add_u32 s{ROWT}, s{ROWT}, s{RT}")
    a(f"s_lshl_b32 s{XO2}, s{RB}, 17")
    a(f"s_lshl_b32 s{OSO}, s{HB}, 8")
    a(f"s_sub_u32 s{FW}, s3, {FB0 + 1}")
    a("s_cmp_lt_u32 s3, 4")
    a(f"s_cselect_b32 s{MODE}, s{SEL}, 2")
    a("v_lshrrev_b32 v5, 4, v2")
    a(f"s_lshl_b32 s{T0}, s3, 2")
    a(f"v_add_u32 v6, s{T0}, v5")
    a("v_xor_b32 v7, v6, v2")
    a("v_and_b32 v7, 7, v7")
    a("v_lshlrev_b32 v7, 4, v7")
    a("v_lshrrev_b32 v8, 3, v2")
    a("v_lshl_add_u32 v7, v8, 11, v7")
    a(f"s_lshl_b32 s{T0}, s3, 14")
    a(f"v_add_u32 v{VOX}, s{T0}, v7")
    a("v_lshrrev_b32 v7, 2, v2")
    a("v_lshlrev_b32 v7, 11, v7")
    a("v_and_b32 v8, 3, v2")
    a("v_lshl_add_u32 v7, v8, 4, v7")
    a(f"s_lshl_b32 s{T0}, s{RT}, 16")
    a(f"s_lshl_b32 s{T1}, s{HD}, 6")
    a(f"s_add_u32 s{T0}, s{T0}, s{T1}")
    a(f"v_add_u32 v{VOW}, s{T0}, v7")
    if "fake128" in VAR:
        a("v_lshrrev_b32 v7, 3, v2")
        a("v_lshlrev_b32 v7, 11, v7")
        a("v_and_b32 v8, 7, v2")
        a("v_lshl_add_u32 v7, v8, 4, v7")
        a(f"s_lshl_b32 s{T0}, s{RT}, 16")
        a(f"s_and_b32 s{T1}, s{HD}, 1")
        a(f"s_lshl_b32 s{T1}, s{T1}, 14")
        a(f"s_add_u32 s{T0}, s{T0}, s{T1}")
        a(f"s_lshr_b32 s{T1}, s{HD}, 1")
        a(f"s_lshl_b32 s{T1}, s{T1}, 7")
        a(f"s_add_u32 s{T0}, s{T0}, s{T1}")
        a(f"v_add_u32 v{VOW}, s{T0}, v7")
    a("v_lshlrev_b32 v7, 2, v2")
    a("v_mov_b32 v9, 0")
    a("v_mov_b32 v17, 0")
    a("v_mov_b32 v16, 1")
    a(f"s_xor_b32 s{CNT}, s3, 7")
    a(f"s_lshl_b32 s{CNT}, s{CNT}, 8")
    a(f"s_add_u32 s{CNT}, s{CNT}, s2")
    a("v_and_b32 v1, 28, v7")
    a("s_waitcnt lgkmcnt(0)")
    srd(a, S_X, P_X, 2048 * 2048)
    a(f"s_cmp_eq_u32 s{SEL}, 0")
    a(f"s_cselect_b32 s{S_KW}, s{P_WK}, s{P_WV}")
    a(f"s_cselect_b32 s{S_KW+1}, s{P_WK+1}, s{P_WV+1}")
    a(f"s_and_b32 s{S_KW+1}, s{S_KW+1}, 0xffff")
    a(f"s_mov_b32 s{S_KW+2}, 0x10000")
    a(f"s_mov_b32 s{S_KW+3}, 0x20000")
    srd(a, S_WS, P_WS, WS_SIZE)
    srd(a, S_WR, P_WR, 2048)
    k.stamp("entry")
    k.delay(3)
    def zero():
        a("v_mov_b32 v10, 0"); a("v_mov_b32 v11, 0"); a("v_mov_b32 v8, 0")
        a(f"s_lshl_b32 s{T2}, s2, 12")
        a(f"s_add_u32 s{T2}, s{T2}, {SY1:#x}")
        for i in range(4): a(f"buffer_store_dwordx4 v[8:11], v{VL16}, {sr(S_WS)}, s{T2} offen offset:{i*1024} sc1")
        a(f"s_lshl_b32 s{T2}, s2, 2")
        a("s_waitcnt vmcnt(0)")
        a(f"v_mov_b32 v10, s{T2}")
        a(f"global_store_dword v10, v16, s[{P_DBG}:{P_DBG+1}] sc1")
    k.only(f"s_cmp_lt_u32 s{CNT}, 8", zero)

AUX = 19 * 8192
TAB = AUX + 2304
RED = 4 * 8192

def phaseAB(k):
    a, vm, lg = k.a, k.vm, k.lg
    VXA, VW, ACC, WF, FT, XREG, CS = 32, 44, 48, 64, 96, 128, 12
    XF, ACCX, ACCO = XREG, 48, 80
    def rot(j, shift, extra, base):
        return f"""s_add_u32 s{TD}, s{ROT}, {j}
        s_and_b32 s{TD}, s{TD}, 7
        s_lshl_b32 s{TD}, s{TD}, {shift}
        s_add_u32 s{TD}, s{TD}, s{base}""" + (f"\ns_add_u32 s{TD}, s{TD}, {extra}" if extra else "")
    def ldx(c): return lambda p: f"s_add_u32 m0, s{W1K}, {p*8192}\n" + rot(c >> 1, 8, (c & 1) * 128, XO2) + f"\nbuffer_load_dwordx4 v{VOX}, {sr(S_X)}, s{TD} offen lds"
    def ldk(j): return lambda p: f"s_add_u32 m0, s{W1K}, {p*8192}\n" + rot(j, 13, 0, W1K) + f"\nbuffer_load_dwordx4 v{VL16}, {sr(S_KW)}, s{TD} offen lds"
    def ldw(c, h): return lambda p: f"s_add_u32 m0, s{W1K}, {p*8192}\n" + rot(c >> 1, 18, ((c & 1) * 64 + h * 16) * 2048, OSO) + f"\nbuffer_load_dwordx4 v{VOW}, {sr(S_W)}, s{TD} offen lds"
    seq = []
    hi = list(range(8, 19))
    for j in range(8):
        seq.append((("k", j), ldk(j), j, [4, 5, 6, 7] if 1 <= j <= 4 else hi[::-1]))
        for e in range(2):
            c = 2 * j + e
            seq.append((("x", c), ldx(c), j if c < 8 else None, [0, 1, 2, 3] if 8 <= c <= 11 else hi[::-1] if c < 8 else hi[:3:-1]))
    for c in range(16):
        for h in range(2):
            seq.append((("w", c, h), ldw(c, h), None, hi + [4, 5, 6, 7]))
    pg = Pager(k, range(19), seq)
    pg.hold, pg.hold_until = {4, 5, 6, 7}, 6
    k.pgAB = pg
    srd(a, S_W, P_WQ, 1024 * 2048)
    a(f"v_lshlrev_b32 v8, 7, v{VN}")
    a(f"s_lshl_b32 s{T0}, s{RG}, 15")
    a(f"s_add_u32 s{T0}, s{T0}, s{W4K}")
    a(f"buffer_load_dword v47, v8, {sr(S_X)}, s{T0} offen"); vm.add("xt")
    def wtouch():
        if "wt256" in VAR:
            a(f"v_lshrrev_b32 v8, 1, v{VN}")
            a("v_lshlrev_b32 v8, 11, v8")
            a("v_and_b32 v10, 1, v2")
            a("v_lshl_add_u32 v8, v10, 7, v8")
            a(f"s_lshl_b32 s{T0}, s{ROT}, 3")
            a(f"s_add_u32 s{T0}, s{T0}, s3")
            a(f"s_lshl_b32 s{T0}, s{T0}, 15")
            a(f"s_add_u32 s{T0}, s{T0}, s{OSO}")
        else:
            a(f"v_lshrrev_b32 v8, 3, v{VN}")
            a("v_lshlrev_b32 v8, 11, v8")
            a("v_and_b32 v10, 7, v2")
            a("v_lshl_add_u32 v8, v10, 7, v8")
            a(f"s_lshr_b32 s{T0}, s2, 3")
            a(f"s_lshl_b32 s{T0}, s{T0}, 16")
            a(f"s_add_u32 s{T0}, s{T0}, s{W8K}")
            a(f"s_lshl_b32 s{T1}, s{SEL}, 10")
            a(f"s_add_u32 s{T0}, s{T0}, s{T1}")
        a(f"buffer_load_dword v47, v8, {sr(S_W)}, s{T0} offen"); vm.add("wt")
    if WT_IT < 0: wtouch()
    a(f"s_lshl_b32 s{T1}, s3, 8")
    a(f"s_add_u32 m0, s{T1}, {AUX}")
    a(f"s_add_u32 s{TD}, s{ROT}, s3")
    a(f"s_and_b32 s{TD}, s{TD}, 7")
    a(f"s_lshl_b32 s{TD}, s{TD}, 8")
    a(f"buffer_load_dword v7, {sr(S_WR)}, s{TD} offen lds"); vm.add("wr")
    first = pg.take(N_INIT)
    for g_ in first[:3]: pg.issue(g_)
    k.stamp("issued")
    srd(a, S_KV, P_WS, 0x40000)
    srd(a, S_WG, P_WG, 1024 * 7168)
    srd(a, S_WU, P_WU, 1024 * 7168)
    a(f"v_mov_b32 v8, {ONES:#x}")
    a(f"v_add_u32 v9, {AUX + 2048}, v7")
    k.ds("ds_write_b32 v9, v8", "ones")
    k.ds("ds_write_b32 v9, v17 offset:384", "ones")
    a(f"v_bfe_u32 v5, v{VN}, 1, 3")
    a(f"v_xor_b32 v5, v5, v{VH}")
    a(f"s_lshl_b32 s{T0}, s{RT}, 12")
    a(f"s_lshl_b32 s{T1}, s{RT}, 2")
    a(f"v_lshlrev_b32 v6, 7, v{VN}")
    a(f"v_add_u32 v8, s{T0}, v6")
    a(f"v_xor_b32 v9, s{T1}, v5")
    a(f"v_lshl_add_u32 v{VXA}, v9, 4, v8")
    a(f"v_xor_b32 v{VXA+1}, 32, v{VXA}")
    a(f"v_xor_b32 v{VXA+2}, 0x1000, v{VXA}")
    a(f"v_xor_b32 v{VXA+3}, 0x1020, v{VXA}")
    for s in range(4):
        a(f"v_add_u32 v{VXA+4+s}, 0x10000, v{VXA+s}")
        a(f"v_add_u32 v{VXA+8+s}, 0x20000, v{VXA+s}")
    BX, MX, I17, AX, AW, BW = FT, FT + 2, FT + 3, FT + 4, FT + 6, FT + 7
    a(f"s_and_b32 s{T0}, s{HB}, 3")
    a(f"s_lshl_b32 s{T0}, s{T0}, 11")
    a(f"v_add_u32 v8, s{T0}, v6")
    a(f"s_lshl_b32 s{T1}, s{RT}, 2")
    a(f"v_xor_b32 v9, s{T1}, v5")
    a(f"v_lshl_add_u32 v{BX}, v9, 4, v8")
    a("v_xor_b32 v9, 2, v9")
    a(f"v_lshl_add_u32 v{BX+1}, v9, 4, v8")
    a(f"s_and_b32 s{T2}, s3, 3")
    a(f"s_lshl_b32 s{T3}, s{T2}, 6")
    a(f"s_add_u32 s{T3}, s{T3}, {AUX}")
    a(f"v_lshlrev_b32 v8, 4, v{VH}")
    a(f"v_add_u32 v8, s{T3}, v8")
    a(f"v_mov_b32 v9, {AUX + 2048}")
    a(f"v_cmp_eq_u32 vcc, 17, v{VN}")
    a("v_mov_b32 v10, 256")
    a("v_cndmask_b32 v8, v9, v8, vcc")
    a(f"v_cndmask_b32 v{I17}, 0, v10, vcc")
    a("v_add_u32 v9, 32, v8")
    a(f"v_cmp_gt_u32 vcc, 16, v{VN}")
    a(f"v_cndmask_b32 v{MX}, 0, 1, vcc")
    a(f"v_cndmask_b32 v{BX}, v8, v{BX}, vcc")
    a(f"v_cndmask_b32 v{BX+1}, v9, v{BX+1}, vcc")
    a("v_bfe_u32 v5, v2, 2, 2")
    a(f"v_lshl_add_u32 v6, v{VH}, 3, v5")
    a("v_bfe_u32 v8, v2, 4, 1")
    a("v_lshlrev_b32 v8, 5, v8")
    a("v_and_b32 v9, 3, v2")
    a("v_lshl_add_u32 v8, v9, 3, v8")
    a("v_lshl_add_u32 v9, v6, 6, v8")
    a(f"s_lshl_b32 s{T3}, s{T2}, 11")
    a(f"v_add_u32 v{BW}, s{T3}, v9")
    a(f"v_add_u32 v{VW}, s{W1K}, v9")
    a(f"v_add_u32 v{VW+1}, 0x10000, v{VW}")
    a(f"v_add_u32 v{VW+2}, 0x20000, v{VW}")
    a("v_bfe_u32 v5, v2, 2, 1")
    a("v_cmp_eq_u32 vcc, 0, v5")
    a(f"v_mov_b32 v6, {ONES:#x}")
    a(f"v_cndmask_b32 v{MA}, 0, v6, vcc")
    a(f"v_cndmask_b32 v{MA+1}, 0, v6, vcc")
    a(f"v_cndmask_b32 v{MA+2}, v6, 0, vcc")
    a(f"v_cndmask_b32 v{MA+3}, v6, 0, vcc")
    a("v_and_b32 v5, 2, v2")
    a("v_cmp_eq_u32 vcc, 0, v5")
    for i in range(4): a(f"v_cndmask_b32 v{MA+i}, 0, v{MA+i}, vcc")
    a("v_and_b32 v5, 1, v2")
    a("v_cmp_eq_u32 vcc, 0, v5")
    a("v_mov_b32 v6, 0x44444444")
    a("v_mov_b32 v8, 0xeeeeeeee")
    a(f"v_cndmask_b32 v{IDXC}, v8, v6, vcc")
    a(f"v_mov_b32 v{IDXD}, 0xdddddddd")
    for i in range(4): a(f"v_mov_b32 v{CS+i}, 0")
    for g_ in first[3:]: pg.issue(g_)
    lg.wait_all()

    def xread(c, s, dst, tag):
        p = pg.page[("x", c)]
        k.ds(f"ds_read_b128 {vr(dst, 4)}, v{VXA + 4*(p >> 3) + s} offset:{(p & 7) * 8192}", tag)
    def kv_mfma(j):
        b = WF + 16 * (j & 1)
        def mm(x, y):
            for e in range(2):
                c = "0" if (j == 0 and e == 0) else vr(ACC, 16)
                a(f"v_mfma_f32_32x32x16_bf16 {vr(ACC,16)}, {vr(b+x+4*e,4)}, {vr(b+y+4*e,4)}, {c}")
        k.ifelse(f"s_cmp_eq_u32 s{MODE}, 2", lambda: mm(0, 0),
                 lambda: k.ifelse(f"s_cmp_eq_u32 s{MODE}, 0", lambda: mm(8, 0), lambda: mm(0, 8)))
    for j in range(8):
        if j not in S1_SKIP:
            jj = j + 1 if (j + 1) in S1_SKIP else j
            vm.wait(*[t_ for q in range(j, jj + 1) for t_ in (("x", 2*q), ("x", 2*q+1), ("k", q))])
            a("s_barrier")
            if j == 0: k.stamp(f"S{j}")
            for q in range(j + 1): pg.release(q)
        d = [lambda g=g: pg.issue(g) for g in pg.take(6 if j < 2 else 4, stop=(('w', 0, 0) if 'nohold' not in VAR else None))]
        b = WF + 16 * (j & 1)
        def g0():
            a("s_bitcmp1_b32 s3, 1")
            a(f"s_mov_b32 s{SP}, {pg.page[('x', 2*j)]*8192}")
            a(f"s_cselect_b32 s{SP}, {pg.page[('x', 2*j+1)]*8192}, s{SP}")
            a(f"v_mul_u32_u24 v8, s{SP}, v{MX}")
            a(f"v_add_u32 v{AX}, v8, v{BX}")
            a(f"v_add_u32 v{AX+1}, v8, v{BX+1}")
            a(f"v_add_u32 v{AW}, {pg.page[('k', j)]*8192}, v{BW}")
            for e in range(2): k.ds(f"ds_read_b128 {vr(b+4*e,4)}, v{AX+e}", ("s", j))
            for e in range(2):
                for u in range(2):
                    k.ds(f"ds_read_b64_tr_b16 {vr(b+8+4*e+2*u,2)}, v{AW} offset:{(16*e+4*u)*64}", ("s", j))
            a(f"v_add_u32 v{BX}, v{I17}, v{BX}")
            a(f"v_add_u32 v{BX+1}, v{I17}, v{BX+1}")
        def g1():
            if j > 0:
                lg.wait(("s", j - 1), ("xr", j - 1))
                kv_mfma(j - 1)
        def g2(e):
            if j < 4:
                for s in range(4): xread(2*j+e, s, XREG + 16*(2*j+e) + 4*s, ("xr", j))
        if j == WT_IT: d.insert(WT_POS, wtouch)
        if j == DBG_IT: d.insert(2 if j == 3 else 0, lambda: k.only(f's_cmp_eq_u32 s3, {FB0}', lambda: a(f'global_load_dword v16, v1, s[{P_DBG}:{P_DBG+1}] sc1')))
        g2(0)
        spread([g0, g1, lambda: g2(1)], d)
    F = FT
    R2 = RED + 16384
    SF = WF + 16
    M, RI, R, V = SF + 2, SF + 3, SF + 1, SF + 8
    def st_reads():
        a("v_and_b32 v5, 15, v2")
        a("v_lshlrev_b32 v6, 4, v5")
        for w in range(4): a(f"ds_read_b64 {vr(SF+2*w,2)}, v6 offset:{R2+w*4096+2*1024}")
        a("v_bfe_u32 v8, v5, 2, 1")
        a("v_lshl_add_u32 v8, v8, 9, v6")
        a("v_lshrrev_b32 v9, 3, v5")
        a("v_lshl_add_u32 v8, v9, 10, v8")
        a("v_and_b32 v9, 3, v5")
        a("v_lshl_add_u32 v8, v9, 2, v8")
        for w in range(4): a(f"ds_read_b32 v{SF+8+w}, v8 offset:{R2+w*4096}")
    def st_compute(extra=()):
        extra = list(extra)
        def fill(n):
            for _ in range(min(n, len(extra))): a(extra.pop(0))
        for w in range(1, 4):
            a(f"v_add_f32 v{SF}, v{SF}, v{SF+2*w}")
            a(f"v_add_f32 v{V}, v{V}, v{V+w}")
            a(f"v_add_f32 v{SF+1}, v{SF+1}, v{SF+2*w+1}")
        chain = [f"v_mul_f32 v{SF}, {f32(1/1024)}, v{SF}", f"v_mul_f32 v{V}, {f32(1/1024)}, v{V}",
                 f"v_fma_f32 v{V}, -v{SF}, v{SF}, v{V}", f"v_max_f32 v{V}, 0, v{V}",
                 f"v_cvt_pk_bf16_f32 v{M}, v{SF}, v{SF}", f"v_cvt_pk_bf16_f32 v{V}, v{V}, v{V}",
                 f"v_lshlrev_b32 v{M}, 16, v{M}", f"v_lshlrev_b32 v{V}, 16, v{V}",
                 f"v_add_f32 v{V}, {f32(1e-5)}, v{V}", f"v_cvt_pk_bf16_f32 v{V}, v{V}, v{V}", f"v_lshlrev_b32 v{V}, 16, v{V}",
                 f"v_sqrt_f32 v{V}, v{V}", f"v_cvt_pk_bf16_f32 v{V}, v{V}, v{V}", f"v_lshlrev_b32 v{V}, 16, v{V}",
                 f"v_rcp_f32 v{RI}, v{V}"]
        for x in chain: a(x); fill(2)
        fill(100)
    def fin0():
        st_reads()
        a(f"v_mov_b32 v9, {16*16 + 4}")
        for w in range(4): a(f"ds_read_b32 v{SF+12+w}, v9 offset:{R2+w*4096+2*1024}")
        a(f"s_lshl_b32 s{T0}, s2, 8")
        a(f"s_add_u32 s{T0}, s{T0}, {WS_YACC:#x}")
        a("v_lshlrev_b32 v8, 2, v2")
        a(f"buffer_store_dword v17, v8, {sr(S_WS)}, s{T0} offen sc1")
        a(f"s_add_u32 s{T0}, s{T0}, {SYB - WS_YACC:#x}")
        a(f"buffer_store_dword v17, v8, {sr(S_WS)}, s{T0} offen sc1")
        a("s_waitcnt lgkmcnt(0)")
        def rk():
            st_compute([f"v_add_f32 v{SF+12}, v{SF+12}, v{SF+12+w}" for w in range(1, 4)] +
                       [f"s_lshl_b32 s{T0}, s{RG}, 4", f"v_add_u32 v9, s{T0}, v5", "v_sub_u32 v9, 0xffff, v9", "v_lshlrev_b32 v6, 3, v5",
                        f"s_lshl_b32 s{T0}, s{RG}, 7", f"s_add_u32 s{T0}, s{T0}, {WS_STAT:#x}",
                        f"s_lshl_b32 s{T1}, s{RG}, 2", f"s_add_u32 s{T1}, s{T1}, {WS_RKEY:#x}"])
            a(f"v_fma_f32 v{R}, -v{M}, v{SF+12}, v{R}")
            a("s_mov_b64 exec, 0xffff")
            a(f"buffer_store_dwordx2 v[{M}:{RI}], v6, {sr(S_WS)}, s{T0} offen sc1")
            a(f"v_mul_f32 v{R}, v{R}, v{RI}")
            a(f"v_cvt_pk_bf16_f32 v{R}, v{R}, v{R}")
            a(f"v_ashrrev_i32 v8, 31, v{R}")
            a("v_or_b32 v8, 0x80000000, v8")
            a(f"v_xor_b32 v{R}, v{R}, v8")
            a(f"v_and_b32 v{R}, 0xffff0000, v{R}")
            a(f"v_or_b32 v{R}, v{R}, v9")
            for sh in (8, 4, 2, 1):
                a(f"v_max_u32_dpp v{R}, v{R}, v{R} row_ror:{sh} row_mask:0xf bank_mask:0xf")
            a("s_mov_b64 exec, 1")
            a(f"buffer_store_dword v{R}, v6, {sr(S_WS)}, s{T1} offen sc1")
            a("s_mov_b64 exec, -1")
        k.only(f"s_cmp_eq_u32 s{SEL}, 0", rk)
    def fin12():
        st_reads()
        adds = [f"v_add_f32 v{F+e}, v{F+e}, v{F+4*w+e}" for w in range(1, 4) for e in range(4)]
        a(f"s_lshr_b32 s{T2}, s{RG}, 1")
        a(f"s_lshl_b32 s{T2}, s{T2}, 12")
        a(f"s_and_b32 s{T1}, s{RG}, 1")
        def kk():
            a("v_bfe_u32 v9, v2, 4, 1")
            a("v_lshlrev_b32 v8, 9, v9")
            a(f"v_lshl_add_u32 v8, v{VH}, 10, v8")
            a(f"s_lshl_b32 s{T0}, s{FW}, 11")
            a(f"v_add_u32 v8, s{T0}, v8")
            a("v_add_u32 v9, v6, v8")
            for w in range(4): a(f"ds_read_b128 {vr(F+4*w,4)}, v9 offset:{RED+w*4096}")
            for w in range(4): a(f"ds_read_b128 {vr(F+16+4*w,4)}, v8 offset:{RED+w*4096+256}")
            a("v_and_b32 v8, 3, v5")
            a("v_bfe_u32 v9, v5, 2, 1")
            a("v_lshl_add_u32 v8, v9, 3, v8")
            a("v_bfe_u32 v9, v5, 3, 1")
            a("v_lshl_add_u32 v8, v9, 2, v8")
            a("v_bfe_u32 v9, v2, 4, 1")
            a("v_lshl_add_u32 v8, v9, 5, v8")
            a("v_lshlrev_b32 v8, 4, v8")
            a(f"v_lshl_add_u32 v8, v{VH}, 3, v8")
            a(f"s_lshl_b32 s{T0}, s{FW}, 10")
            a(f"s_add_u32 s{T2}, s{T2}, s{T0}")
            a(f"s_lshl_b32 s{T1}, s{T1}, 8")
            a(f"s_add_u32 s{T2}, s{T2}, s{T1}")
            a("s_waitcnt lgkmcnt(0)")
            st_compute(adds + [f"v_add_f32 v{F+16+e}, v{F+16+e}, v{F+16+4*w+e}" for w in range(1, 4) for e in range(4)])
            for e in range(4): a(f"v_fma_f32 v{F+e}, -v{M}, v{F+16+e}, v{F+e}")
            for e in range(4): a(f"v_mul_f32 v{F+e}, v{F+e}, v{RI}")
        def vv():
            a(f"s_lshl_b32 s{T0}, s{FW}, 10")
            a(f"v_add_u32 v9, s{T0}, v{VL16}")
            for w in range(4): a(f"ds_read_b128 {vr(F+4*w,4)}, v9 offset:{RED+w*4096}")
            a(f"v_lshlrev_b32 v8, 4, v{VN}")
            for w in range(4): a(f"ds_read_b32 v{F+16+w}, v8 offset:{RED+w*4096+2048}")
            a(f"v_mov_b32 v8, v{VL16}")
            a(f"s_lshl_b32 s{T1}, s{T1}, 10")
            a(f"s_add_u32 s{T2}, s{T2}, s{T1}")
            a(f"s_lshl_b32 s{T1}, s{FW}, 3")
            a(f"s_add_u32 s{T2}, s{T2}, s{T1}")
            a(f"s_add_u32 s{T2}, s{T2}, 2048")
            a(f"s_lshl_b32 s{T0}, s{FW}, 5")
            a(f"v_lshlrev_b32 v6, 4, v{VH}")
            a(f"v_add_u32 v6, s{T0}, v6")
            a("s_waitcnt lgkmcnt(0)")
            st_compute(adds + [f"v_add_f32 v{F+16}, v{F+16}, v{F+16+w}" for w in range(1, 4)])
            for e in range(4): a(f"ds_bpermute_b32 v{F+20+e}, v6, v{M} offset:{4*e}")
            for e in range(4): a(f"ds_bpermute_b32 v{F+24+e}, v6, v{RI} offset:{4*e}")
            a("s_waitcnt lgkmcnt(4)")
            for e in range(4): a(f"v_fma_f32 v{F+e}, -v{F+20+e}, v{F+16}, v{F+e}")
            a("s_waitcnt lgkmcnt(0)")
            for e in range(4): a(f"v_mul_f32 v{F+e}, v{F+e}, v{F+24+e}")
        k.ifelse(f"s_cmp_eq_u32 s{SEL}, 0", kk, vv)
        a(f"v_cvt_pk_bf16_f32 v{F+12}, v{F}, v{F+1}")
        a(f"v_cvt_pk_bf16_f32 v{F+13}, v{F+2}, v{F+3}")
        a(f"buffer_store_dwordx2 {vr(F+12,2)}, v8, {sr(S_WS)}, s{T2} offen sc1")
    def fin_arrive():
        a(f"s_waitcnt vmcnt({vm.since('fs')})")
        top, done = L(), L()
        a(f"s_mov_b32 s{CNT}, 0")
        a.label(top)
        a("v_cmp_eq_u32 vcc, 0, v16")
        a(f"s_add_u32 s{CNT}, s{CNT}, 1")
        a(f"s_cbranch_vccz {done}")
        a(f"global_load_dword v16, v1, s[{P_DBG}:{P_DBG+1}] sc1")
        a("s_waitcnt vmcnt(0)")
        a(f"s_cmp_lt_u32 s{CNT}, {SPIN_MAX}")
        a(f"s_cbranch_scc1 {top}")
        a.label(done)
        a("v_mov_b32 v8, 1")
        a(f"v_mov_b32 v9, {TAB + 128}")
        a("s_mov_b64 exec, 1")
        a("ds_add_rtn_u32 v9, v9, v8")
        a("s_waitcnt lgkmcnt(0)")
        a("v_cmp_eq_u32 vcc, 2, v9")
        a("s_mov_b64 exec, 0xff")
        nl = L()
        a(f"s_cbranch_vccz {nl}")
        a(f"s_lshr_b32 s{T0}, s2, 3")
        a(f"s_lshl_b32 s{T0}, s{T0}, 7")
        a(f"s_add_u32 s{T0}, s{T0}, {SY1:#x}")
        a("v_lshlrev_b32 v9, 12, v2")
        a(f"buffer_atomic_add v8, v9, {sr(S_WS)}, s{T0} offen sc1")
        a.label(nl)
        a("s_mov_b64 exec, -1")
    W0, W12, W012 = f"s_cmp_eq_u32 s3, {FB0}", f"s_cmp_lt_u32 s{FW}, 2", ("s_cmp_lt_u32 s3, 3" if FB0 == 0 else f"s_add_u32 s{T0}, s{FW}, 1\ns_cmp_lt_u32 s{T0}, 3")
    def kv_dma(i, chunk):
        a(f"s_add_u32 m0, s{W4K}, {chunk*32768 + i*1024}")
        a(f"s_add_u32 s{XSO}, s{W4K}, {chunk*32768 + i*1024}")
        a(f"buffer_load_dwordx4 v{VL16}, {sr(S_KV)}, s{XSO} offen sc1 lds"); vm.add(("kv", chunk))
    RK, PV, ST2 = 126, 122, 124
    pool = [WF, WF + 8]
    wreg, xreg = {}, {c: (XREG + 16*c, XREG + 16*c + 8) for c in range(8)}
    def rd_ops(c):
        need = 1 if c < 8 else 3
        if len(pool) < need: return None
        wreg[c] = pool.pop(0)
        if c >= 8: xreg[c] = (pool.pop(0), pool.pop(0))
        ops = []
        for e in range(2):
            def w(e=e):
                vm.wait(("w", c, e))
                p = pg.page[("w", c, e)]
                for u in range(2):
                    k.ds(f"ds_read_b64_tr_b16 {vr(wreg[c]+4*e+2*u,2)}, v{VW + (p >> 3)} offset:{(p & 7)*8192 + 4*u*64}", ("q", c, e))
            def x(e=e):
                for t in range(2): xread(c, 2*t+e, xreg[c][t] + 4*e, ("q", c, e))
            if c >= 8: ops.append(x)
            ops.append(w)
        return ops
    def rd(c):
        for o in rd_ops(c): o()
    def mm_ops(c):
        def m(e, t):
            if t == 0:
                lg.wait(("q", c, e)); pg.free.append(pg.page[("w", c, e)])
            acc = ACCX if t else ACCO
            cc = "0" if (c == 0 and e == 0) else vr(acc, 16)
            if 'nomm' not in VAR: a(f"v_mfma_f32_32x32x16_bf16 {vr(acc,16)}, {vr(wreg[c]+4*e,4)}, {vr(xreg[c][t]+4*e,4)}, {cc}")
        def s():
            a(f"v_smfmac_f32_16x16x64_bf16 {vr(CS,4)}, {vr(MA,4)}, {vr(wreg[c],8)}, v{IDXC}")
            pool.append(wreg[c])
            if c not in (2, 5, 6): pool.extend(xreg[c])
        return [lambda: m(0, 0), lambda: m(0, 1), lambda: m(1, 0), lambda: m(1, 1), s]
    def dmas(n):
        for g_ in pg.take(n): pg.issue(g_)
    def ld_stat():
        a(f"s_lshl_b32 s{T0}, s{ROWT}, 8")
        a(f"s_add_u32 s{T0}, s{T0}, {WS_STAT:#x}")
        a(f"v_lshlrev_b32 v5, 3, v{VN}")
        a(f"buffer_load_dwordx2 {vr(STAT,2)}, v5, {sr(S_WS)}, s{T0} offen sc1"); vm.add("stat")
    def ld_stat2():
        a(f"s_xor_b32 s{T0}, s{T0}, 0x100")
        a(f"buffer_load_dword v{ST2}, v5, {sr(S_WS)}, s{T0} offen sc1"); vm.add("stat")
    def ld_rk():
        a("v_lshlrev_b32 v5, 3, v2")
        a(f"s_mov_b32 s{T0}, {WS_RKEY:#x}")
        a(f"buffer_load_dwordx2 {vr(RK,2)}, v5, {sr(S_WS)}, s{T0} offen sc1"); vm.add("rk")
    def kvt():
        a(f"s_lshr_b32 s{T0}, s2, 3")
        a(f"s_lshl_b32 s{T0}, s{T0}, 13")
        a("v_lshlrev_b32 v5, 7, v2")
        a(f"buffer_load_dword v16, v5, {sr(S_KV)}, s{T0} offen sc1")
    pl = [ld_stat, ld_stat2] + [lambda i=i: kv_dma(i, 0) for i in range(4)] + [ld_rk, lambda: k.only("s_cmp_eq_u32 s3, 6", kvt)]
    post = {CHK + 1: pl[:4], CHK + 2: pl[4:]} if CHK <= 11 else {13: pl}
    post.update({
            5: [lambda: k.ffn.early(0)], 6: [lambda: k.ffn.early(1)], 7: [lambda: k.ffn.early(2)]})
    k.stamp("B0")
    k.delay(77)
    lg.wait(("s", 7)); kv_mfma(7)
    dmas(NW0)
    a(f"v_add_u32 v8, s{W4K}, v{VL16}")
    for q in range(4): k.ds(f"ds_write_b128 v8, {vr(ACC+4*q,4)} offset:{RED + q*1024}", "red")
    lg.wait_all()
    a("s_barrier"); pg.release(7); pg.release(8); pg.release(9)
    k.only(W0, fin0); k.only(W12, fin12); vm.mark("fs")
    dmas(7)
    if ARR < 0: k.only(W012, fin_arrive)
    rd(0); rd(1)
    k.stamp('R1')
    for c in range(14):
        if c == PI:
            a(f"v_lshlrev_b32 v{PV}, 7, v{VN}")
            a(f"s_and_b32 s{T3}, s2, 7")
            a(f"s_lshl_b32 s{T3}, s{T3}, 12")
            a(f"s_add_u32 s{T3}, s{T3}, {SY1:#x}")
            k.only(W0, lambda: a(f"buffer_load_dword v{PV+1}, v{PV}, {sr(S_WS)}, s{T3} offen sc1"))
            vm.mark("poll")
        ro = rd_ops(c + 2) if c + 2 < 16 else []
        d1 = lambda: dmas(1)
        extra = post.pop(c, [])
        if 'nopost' in VAR: extra = []
        if ro is None: interleave(mm_ops(c), [d1, d1, d1]); rd(c + 2)
        else:
            h = len(ro) // 2
            interleave(mm_ops(c), [d1] + ro[:h] + [d1] + ro[h:] + [d1] + extra)
        if 'fine' in VAR and c in (1, 2, 4, 6, 8, 10, 12, 13, 14): k.stamp(f'M{c}')
        if c == ARR: k.only(W012, fin_arrive)
        if c == R2C:
            a("s_barrier"); pg.hold = set()
        if c == CHK:
            def chk():
                a(f"s_waitcnt vmcnt({vm.since('poll')})")
                k.poll(PV, PV + 1, T3, 8)
            if 'nopub' not in VAR: k.only(W0, chk)
            if 'nor3' not in VAR: a("s_barrier")
    EX, MB = 208, 224
    assert all(b not in list(wreg[c_] for c_ in (14, 15)) + list(xreg[14]) + list(xreg[15]) for b in (208, 216, 224)), (wreg, xreg)
    m14, m15 = mm_ops(14), mm_ops(15)
    lg.wait(("q", 14, 0), ("q", 14, 1)); m14[4]()
    m14[1]()
    a(f"v_cmp_eq_u32 vcc, 0, v{VH}")
    vm.wait("stat")
    a(f"v_cvt_pk_bf16_f32 v{MB}, -v{STAT}, -v{STAT}")
    a(f"v_cvt_pk_bf16_f32 v{MB+4}, -v{ST2}, -v{ST2}")
    lg.wait(("q", 15, 0), ("q", 15, 1)); m15[4]()
    m14[3]()
    a(f"v_cndmask_b32 v{MB}, 0, v{MB}, vcc")
    a(f"v_cndmask_b32 v{MB+4}, 0, v{MB+4}, vcc")
    a(f"v_mov_b32 v{MB+1}, v{MB}"); a(f"v_mov_b32 v{MB+5}, v{MB+4}")
    for i in (2, 3, 6, 7): a(f"v_mov_b32 v{MB+i}, 0")
    m15[1]()
    a("v_mov_b32 v10, 0"); a("v_mov_b32 v11, 0")
    a(f"v_add_f32 v6, v{CS}, v{CS+1}")
    a("v_cvt_pk_bf16_f32 v5, v6, v6")
    a("v_lshlrev_b32 v5, 16, v5")
    a("v_sub_f32 v5, v6, v5")
    m15[3]()
    a("v_cvt_pk_bf16_f32 v8, v6, v5")
    a("v_and_b32 v6, 0xffff0000, v8")
    a("v_sub_f32 v5, v5, v6")
    a("v_cvt_pk_bf16_f32 v9, v5, 0")
    a(f"v_add_u32 v12, s{W1K}, v{VL16}")
    a("v_add_u32 v12, 0x10000, v12")
    a(f"v_mfma_f32_32x32x16_bf16 {vr(ACCX,16)}, v[8:11], {vr(MB+4,4)}, {vr(ACCX,16)}")
    a("v_and_b32 v5, 1, v2")
    a("v_cmp_eq_u32 vcc, 0, v5")
    m14[0]()
    a(f"v_mul_f32 v6, {f32(QSCALE)}, v{STAT+1}")
    a("v_xor_b32 v13, 0x400, v12")
    for i in range(4): a(f"v_cndmask_b32 v{MA+i}, 0, v{MA+i}, vcc")
    m14[2]()
    for i in range(4): a(f"v_pk_mov_b32 {vr(OA+2*i,2)}, 0, 0")
    for q in range(2): a(f"ds_write_b128 v12, {vr(ACCX+4*q,4)} offset:{q*8192}")
    m15[0]()
    for q in range(2, 4): a(f"ds_write_b128 v12, {vr(ACCX+4*q,4)} offset:{q*8192}")
    for i in range(4, 8): a(f"v_pk_mov_b32 {vr(OA+2*i,2)}, 0, 0")
    m15[2]()
    for i in range(2): a(f"v_pk_mov_b32 {vr(LS+2*i,2)}, 0, 0")
    a(f"v_add_u32 v{VK1}, 0x10000, v{VL16}")
    a(f"v_mfma_f32_32x32x16_bf16 {vr(ACCO,16)}, v[8:11], {vr(MB,4)}, {vr(ACCO,16)}")
    k.EX = EX
    for p in (8, 9, 10, 11): assert p in pg.free
    k.stamp("B_end")
    if "stopB" in VAR: a("s_endpgm")
    k.ACCX, k.ACCO, k.ST2 = ACCX, ACCO, ST2
    k.ACC, k.CS, k.RK = ACC, CS, RK


def attention(k):
    a, vm, lg, ffn = k.a, k.vm, k.lg, k.ffn
    ACCX, ACC, CS, ST2 = k.ACCX, k.ACCO, k.CS, k.ST2
    EX = k.EX
    srd(a, S_W, P_WO, 1024 * 2048)
    vm.wait(("kv", 0))
    a("s_waitcnt lgkmcnt(0)")
    a("s_barrier")
    for q in range(4): a(f"ds_read_b128 {vr(EX+4*q,4)}, v13 offset:{q*8192}")
    a(f"ds_read_b128 {vr(KA,4)}, v{VL16}")
    a(f"ds_read_b128 {vr(KA+4,4)}, v{VL16} offset:1024")
    a(f"s_add_u32 m0, s{W4K}, 32768")
    a(f"s_add_u32 s{XSO}, s{W4K}, 32768")
    a(f"buffer_load_dwordx4 v{VL16}, {sr(S_KV)}, s{XSO} offen sc1 lds"); vm.add(("kv", 1))
    for q in range(4):
        a(f"s_waitcnt lgkmcnt({5-q})")
        for i in (2*q, 2*q+1): a(f"v_pk_add_f32 {vr(ACC+2*i,2)}, {vr(ACC+2*i,2)}, {vr(EX+2*i,2)}")
        for i in (2*q, 2*q+1): a(f"v_pk_mul_f32 {vr(ACC+2*i,2)}, {vr(ACC+2*i,2)}, v[6:7] op_sel_hi:[1,0]")
        for i in (2*q, 2*q+1): a(f"v_cvt_pk_bf16_f32 v{QF+i}, v{ACC+2*i}, v{ACC+2*i+1}")
    a("s_waitcnt lgkmcnt(0)")
    a(f"v_mfma_f32_32x32x16_bf16 {vr(SA,16)}, {vr(KA,4)}, {vr(QF,4)}, 0")
    a(f"v_mfma_f32_32x32x16_bf16 {vr(SA,16)}, {vr(KA+4,4)}, {vr(QF+4,4)}, {vr(SA,16)}")
    def kvaddr(tile, off):
        p = ((tile >> 3) % 3) * 32768 + (tile & 7) * 4096 + off
        return (f"v{VL16} offset:{p}" if p < 65536 else f"v{VK1} offset:{p - 65536}")
    lg.tags = []
    k.ds(f"ds_read_b128 {vr(KA,4)}, {kvaddr(1, 0)}", ("K", 1))
    k.ds(f"ds_read_b128 {vr(KA+4,4)}, {kvaddr(1, 1024)}", ("K", 1))
    k.ds(f"ds_read_b128 {vr(VA,4)}, {kvaddr(0, 2048)}", ("V0", 0))
    a(f"v_max3_f32 v6, v{SA}, v{SA+1}, v{SA+2}")
    a(f"v_max3_f32 v5, v{SA+3}, v{SA+4}, v{SA+5}")
    a(f"v_max3_f32 v6, v6, v{SA+6}, v{SA+7}")
    a(f"v_max3_f32 v5, v5, v{SA+8}, v{SA+9}")
    a(f"v_max3_f32 v6, v6, v{SA+10}, v{SA+11}")
    a(f"v_max3_f32 v5, v5, v{SA+12}, v{SA+13}")
    a(f"v_max3_f32 v6, v6, v{SA+14}, v{SA+15}")
    a("v_max_f32 v6, v6, v5")
    a("v_mov_b32 v5, v6")
    a("v_permlane32_swap_b32 v6, v5")
    a("v_max_f32 v6, v6, v5")
    a(f"v_sub_f32 v{NM}, 0, v6")
    a(f"v_sub_f32 v{NM+1}, 0, v6")
    for i in range(8): a(f"v_pk_add_f32 {vr(SA+2*i,2)}, {vr(SA+2*i,2)}, {vr(NM,2)}")
    for i in range(1, 8): a(f"v_pk_mov_b32 {vr(NM+2*i,2)}, {vr(NM,2)}, {vr(NM,2)}")
    k.stamp("loop_start")
    if "pad4" in VAR: a("s_nop 0")
    if "al64" in VAR: a.raw(".p2align 6")
    for T in range(64):
        c, t = T >> 3, T & 7
        S, P = (SA, SB) if T % 2 == 0 else (SB, SA)
        e = lambda i: a(f"v_exp_f32 v{S+i}, v{S+i}")
        if "pr2" in VAR: a(f"s_setprio {1 - (T & 1)}")
        elif "prh" in VAR: a(f"s_setprio {3 - ((2*T) & 3)}")
        elif "noprio" not in VAR: a(f"s_setprio {3 - ((T + 1) & 3)}")
        if "dense" in VAR:
            PK = 140
            cv = lambda i, B: a(f"v_cvt_pk_bf16_f32 v{PK+i}, v{B+2*i}, v{B+2*i+1}")
            e(0)
            if T > 0: cv(7, P)
            e(1); e(2)
            if T > 0:
                lg.wait(("V1", T - 1))
                a(f"v_mfma_f32_32x32x16_bf16 {vr(OA,16)}, {vr(VA+4,4)}, {vr(PK+4,4)}, {vr(OA,16)}")
            k.ds(f"ds_read_b128 {vr(VA+4,4)}, {kvaddr(T, 3072)}", ("V1", T))
            e(3); e(4); e(5)
            if T > 0: a(f"v_smfmac_f32_16x16x64_bf16 {vr(LS,4)}, {vr(MA,4)}, {vr(PK,8)}, v{IDXC}")
            cv(0, S)
            if T < 63:
                lg.wait(("K", T + 1))
                a(f"v_mfma_f32_32x32x16_bf16 {vr(P,16)}, {vr(KA,4)}, {vr(QF,4)}, {vr(NM,16)}")
            e(6); cv(1, S); e(7); cv(2, S)
            if T < 63:
                a(f"v_mfma_f32_32x32x16_bf16 {vr(P,16)}, {vr(KA+4,4)}, {vr(QF+4,4)}, {vr(P,16)}")
            if t == 6 and c < 7:
                vm.wait(("kv", c + 1))
                a("s_barrier")
            if T + 2 <= 63:
                k.ds(f"ds_read_b128 {vr(KA,4)}, {kvaddr(T + 2, 0)}", ("K", T + 2))
                k.ds(f"ds_read_b128 {vr(KA+4,4)}, {kvaddr(T + 2, 1024)}", ("K", T + 2))
            kc, kp = (c + 2, 0) if t == 7 else (c + 1, t + 1)
            if (t == 7 or t <= 2) and kc <= 7:
                a(f"s_add_u32 m0, s{W4K}, {(kc % 3) * 32768 + kp * 1024}")
                a(f"s_add_u32 s{XSO}, s{W4K}, {kc * 32768 + kp * 1024}")
                a(f"buffer_load_dwordx4 v{VL16}, {sr(S_KV)}, s{XSO} offen {KVF} lds"); vm.add(("kv", kc))
            cv(3, S); e(8); e(9); e(10)
            lg.wait(("V0", T))
            a(f"v_mfma_f32_32x32x16_bf16 {vr(OA,16)}, {vr(VA,4)}, {vr(PK,4)}, {vr(OA,16)}")
            if T < 63: k.ds(f"ds_read_b128 {vr(VA,4)}, {kvaddr(T + 1, 2048)}", ("V0", T + 1))
            cv(4, S); e(11); e(12); cv(5, S); e(13); e(14); cv(6, S); e(15)
        else:
            e(0); e(1)
            if T > 0:
                lg.wait(("V1", T - 1))
                a(f"v_smfmac_f32_32x32x32_bf16 {vr(OA,16)}, {vr(VA+4,4)}, {vr(P+8,8)}, v{IDXD}")
            k.ds(f"ds_read_b128 {vr(VA+4,4)}, {kvaddr(T, 3072)}", ("V1", T))
            e(2); e(3); e(4)
            if T > 0: a(f"v_smfmac_f32_16x16x64_bf16 {vr(LS,4)}, {vr(MA,4)}, {vr(P+8,8)}, v{IDXD}")
            e(5)
            if T < 63:
                lg.wait(("K", T + 1))
                a(f"v_mfma_f32_32x32x16_bf16 {vr(P,16)}, {vr(KA,4)}, {vr(QF,4)}, {vr(NM,16)}")
            e(6); e(7); e(8)
            if T < 63:
                a(f"v_mfma_f32_32x32x16_bf16 {vr(P,16)}, {vr(KA+4,4)}, {vr(QF+4,4)}, {vr(P,16)}")
            if t == 6 and c < 7:
                vm.wait(("kv", c + 1))
                if "racy" not in VAR: a("s_barrier")
            if T + 2 <= 63:
                k.ds(f"ds_read_b128 {vr(KA,4)}, {kvaddr(T + 2, 0)}", ("K", T + 2))
                k.ds(f"ds_read_b128 {vr(KA+4,4)}, {kvaddr(T + 2, 1024)}", ("K", T + 2))
            def kvd():
                for kp in range(4):
                    if KVT[kp] != t: continue
                    kc = c + 2 if t >= 6 else c + 1
                    if kc > 7 or (kc == 1 and kp == 0): continue
                    a(f"s_add_u32 m0, s{W4K}, {(kc % 3) * 32768 + kp * 1024}")
                    a(f"s_add_u32 s{XSO}, s{W4K}, {kc * 32768 + kp * 1024}")
                    a(f"buffer_load_dwordx4 v{VL16}, {sr(S_KV)}, s{XSO} offen {KVF} lds"); vm.add(("kv", kc))
                if T == 0:
                    for kp in range(1, 4):
                        if KVT[kp] >= 6:
                            a(f"s_add_u32 m0, s{W4K}, {32768 + kp * 1024}")
                            a(f"s_add_u32 s{XSO}, s{W4K}, {32768 + kp * 1024}")
                            a(f"buffer_load_dwordx4 v{VL16}, {sr(S_KV)}, s{XSO} offen {KVF} lds"); vm.add(("kv", 1))
            if KVP == 0: kvd()
            if "prh" in VAR: a(f"s_setprio {3 - ((2*T+1) & 3)}")
            e(9); e(10); e(11)
            lg.wait(("V0", T))
            a(f"v_smfmac_f32_32x32x32_bf16 {vr(OA,16)}, {vr(VA,4)}, {vr(S,8)}, v{IDXD}")
            if T < 63: k.ds(f"ds_read_b128 {vr(VA,4)}, {kvaddr(T + 1, 2048)}", ("V0", T + 1))
            if KVP == 1: kvd()
            e(12); e(13); e(14)
            a(f"v_smfmac_f32_16x16x64_bf16 {vr(LS,4)}, {vr(MA,4)}, {vr(S,8)}, v{IDXD}")
            e(15)
            if KVP == 2: kvd()
        if "noffn" not in VAR: ffn.tile_end(T)
        if 'nod' not in VAR: k.D.tile_end(T)
    a("s_setprio 0")
    lg.wait_all()
    a(f"v_smfmac_f32_32x32x32_bf16 {vr(OA,16)}, {vr(VA+4,4)}, {vr(SB+8,8)}, v{IDXD}")
    a(f"v_smfmac_f32_16x16x64_bf16 {vr(LS,4)}, {vr(MA,4)}, {vr(SB+8,8)}, v{IDXD}")
    k.stamp("loop_end")
    k.delay(200)
    if "stopC" in VAR: a("s_endpgm")

FBASE = 98304
class FFN:
    VGU, VTR, VOD, VTD, XSL, VL4, XST, TMP, XS, WB, DD = 160, 161, 162, 163, 164, 165, 166, 168, 176, 192, 224
    FB, GSO, DSO, YSO, ASO = 66, 67, 94, 95, 65
    def __init__(self, k): self.k, self.a, self.vm = k, k.a, k.vm
    def early(self, part):
        t = self.TMP
        lines = []
        a = lines.append
        a(f"s_add_u32 s{self.FB}, s{W8K}, {FBASE}")
        a(f"v_lshrrev_b32 v{t}, 3, v2")
        a(f"v_mul_u32_u24 v{t}, 7168, v{t}")
        a(f"v_and_b32 v{t+1}, 7, v2")
        a(f"v_lshl_add_u32 v{self.VGU}, v{t+1}, 4, v{t}")
        a(f"v_bfe_u32 v{t}, v2, 2, 2")
        a(f"v_lshrrev_b32 v{t+1}, 4, v2")
        a(f"v_lshl_add_u32 v{t+1}, v{t+1}, 3, v{t}")
        a(f"v_lshlrev_b32 v{t+1}, 7, v{t+1}")
        a(f"v_and_b32 v{t+2}, 3, v2")
        a(f"v_lshl_add_u32 v{t+1}, v{t+2}, 3, v{t+1}")
        a(f"v_add_u32 v{self.VTR}, s{self.FB}, v{t+1}")
        a(f"v_lshrrev_b32 v{t+1}, 4, v2")
        a(f"v_lshlrev_b32 v{t+3}, 2, v{t+1}")
        a(f"v_xor_b32 v{t+3}, v{t+3}, v2")
        a(f"v_and_b32 v{t+3}, 15, v{t+3}")
        a(f"v_lshlrev_b32 v{t+3}, 4, v{t+3}")
        a(f"v_lshl_add_u32 v{t+3}, v{t+1}, 11, v{t+3}")
        a(f"s_lshl_b32 s{T0}, s3, 8")
        a(f"v_add_u32 v{self.VOD}, s{T0}, v{t+3}")
        a(f"v_mul_u32_u24 v{t}, 320, v{t}")
        a(f"v_lshl_add_u32 v{t}, v{VH}, 11, v{t}")
        a(f"v_bfe_u32 v{t+1}, v2, 4, 1")
        a(f"v_lshl_add_u32 v{t}, v{t+1}, 5, v{t}")
        a(f"v_lshl_add_u32 v{t}, v{t+2}, 3, v{t}")
        a(f"v_add_u32 v{self.VTD}, s{self.FB}, v{t}")
        a(f"v_lshlrev_b32 v{self.VL4}, 2, v2")
        a(f"v_and_b32 v{t}, 60, v{self.VL4}")
        a(f"v_mov_b32 v{t+1}, 0")
        a(f"s_and_b32 s{T0}, s{FCG}, 3")
        a(f"s_lshl_b32 s{T0}, s{T0}, 3")
        a(f"s_add_u32 s{T0}, s{T0}, s3")
        a(f"s_lshl_b32 s{SP}, s{T0}, 6")
        a(f"s_mul_i32 s{self.GSO}, s{T0}, {32*7168}")
        a(f"s_lshr_b32 s{T1}, s{FCG}, 2")
        a(f"s_lshl_b32 s{T2}, s{T1}, 7")
        a(f"s_add_u32 s{self.GSO}, s{self.GSO}, s{T2}")
        a(f"s_lshl_b32 s{self.ASO}, s{T1}, 8")
        a(f"s_add_u32 s{self.ASO}, s{self.ASO}, {WS_GU:#x}")
        a(f"s_lshl_b32 s{self.DSO}, s{FCG}, 15")
        a(f"s_and_b32 s{self.YSO}, s2, 7")
        a(f"s_lshl_b32 s{self.YSO}, s{self.YSO}, 12")
        a(f"s_lshl_b32 s{T0}, s3, 9")
        a(f"s_add_u32 s{self.YSO}, s{self.YSO}, s{T0}")
        a(f"s_add_u32 s{self.YSO}, s{self.YSO}, {WS_YACC:#x}")
        a("s_cmp_lt_u32 s2, 224")
        for r in (self.GSO, self.DSO, self.YSO, self.ASO):
            a(f"s_cselect_b32 s{r}, s{r}, 0x40000000")
        srd(a, S_WD, P_WD, 3584 * 2048)
        srd(a, S_OUT, P_OUT, 2048 * 2048)
        cut = [0, 12, 29, len(lines)]
        for x in lines[cut[part]:cut[part+1]]: self.a(x)
    def argmax1(self):
        a, RK = self.a, self.k.RK
        self.vm.wait('rk')
        a(f"v_max_u32 v5, v{RK}, v{RK+1}")
        for sh in (8, 4, 2, 1):
            a(f"v_max_u32_dpp v5, v5, v5 row_ror:{sh} row_mask:0xf bank_mask:0xf")
        for i, s in enumerate((T0, T1, T2, T3)): a(f"v_readlane_b32 s{s}, v5, {16*i}")
    def argmax2(self):
        a, vm = self.a, self.vm
        a(f"s_max_u32 s{T0}, s{T0}, s{T1}")
        a(f"s_max_u32 s{T2}, s{T2}, s{T3}")
        a(f"s_max_u32 s{RKEY}, s{T0}, s{T2}")
        a(f"s_and_b32 s{IDX}, s{RKEY}, 0xffff")
        a(f"s_sub_u32 s{IDX}, 0xffff, s{IDX}")
        a(f"s_and_b32 s{IDX}, s{IDX}, 2047")
    def arrive(self, soff):
        a, t = self.a, self.TMP
        a(f"v_mov_b32 v{t+6}, 1")
        a("s_mov_b64 exec, 1")
        a(f"buffer_atomic_add v{t+6}, v{self.VL4}, {sr(S_WS)}, s{soff} offen sc1"); self.vm.add("arr")
        a("s_mov_b64 exec, -1")
    def tile_end(self, T):
        k, a, vm, t = self.k, self.a, self.vm, self.TMP
        GU_T = [8*(i // 3) + FTS[i % 3] for i in range(8)]
        WD_T = WDT
        if T == 1: self.argmax1(); self.argmax2()
        if T == 3:
            a(f"s_lshl_b32 s{T0}, s{IDX}, 11")
            a(f"s_add_u32 s{T0}, s{T0}, s{SP}")
            a(f"buffer_load_dword v{self.XSL}, v{t}, {sr(S_X)}, s{T0} offen"); vm.add("xs")
        if T == 5:
            a(f"s_lshl_b32 s{T0}, s{IDX}, 3")
            a(f"s_add_u32 s{T0}, s{T0}, {WS_STAT:#x}")
            a(f"buffer_load_dwordx2 {vr(self.XST,2)}, v{t+1}, {sr(S_WS)}, s{T0} offen sc1"); vm.add("xs")
        if T in GU_T:
            i = GU_T.index(T); mat, j = i >> 2, i & 3
            a(f"s_add_u32 m0, s{self.FB}, {i*1024}")
            a(f"s_add_u32 s{T0}, s{self.GSO}, {j*8*7168}")
            a(f"buffer_load_dwordx4 v{self.VGU}, {sr(S_WU if mat else S_WG)}, s{T0} offen lds"); vm.add("u" if mat else "g")
        if T == 16:
            vm.wait("xs")
            a(f"v_lshlrev_b32 v{t}, 16, v{self.XSL}")
            a(f"v_and_b32 v{t+1}, 0xffff0000, v{self.XSL}")
            a(f"v_sub_f32 v{t}, v{t}, v{self.XST}")
            a(f"v_sub_f32 v{t+1}, v{t+1}, v{self.XST}")
            a(f"v_cvt_pk_bf16_f32 v{t+2}, v{t}, v{t+1}")
            a(f"v_lshlrev_b32 v{t}, 16, v{t+2}")
            a(f"v_and_b32 v{t+1}, 0xffff0000, v{t+2}")
            a(f"v_mul_f32 v{t}, v{t}, v{self.XST+1}")
            a(f"v_mul_f32 v{t+1}, v{t+1}, v{self.XST+1}")
            a(f"v_cvt_pk_bf16_f32 v{t+2}, v{t}, v{t+1}")
            a(f"v_and_b32 v{t+3}, 0x30, v2")
            for j in range(4):
                k.ds(f"ds_bpermute_b32 v{self.XS+j}, v{t+3}, v{t+2} offset:{4*j}", "xsf")
        if 22 <= T <= 25:
            if T == 22: vm.wait("g")
            if T == 24: vm.wait("u")
            m, hf = (T - 22) >> 1, (T - 22) & 1
            for ct in (2*hf, 2*hf+1):
                for u in range(2):
                    k.ds(f"ds_read_b64_tr_b16 {vr(self.WB+16*m+4*ct+2*u,2)}, v{self.VTR} offset:{m*4096 + u*512 + ct*32}", ("gw", T))
        if 24 <= T <= 27:
            m, hf = (T - 24) >> 1, (T - 24) & 1
            k.lg.wait(("gw", T - 2), "xsf")
            for ct in (2*hf, 2*hf+1):
                a(f"v_mfma_f32_16x16x32_bf16 {vr(self.DD+16*m+4*ct,4)}, {vr(self.XS,4)}, {vr(self.WB+16*m+4*ct,4)}, 0")
        if T == 28: k.delay(41)
        if T == 51: k.delay(130)
        if T == 28:
            for ct in range(1, 4):
                for m in range(2):
                    D = self.DD + 16*m
                    a(f"v_mov_b32_dpp v{D}, v{D+4*ct} quad_perm:[0,1,2,3] row_mask:{1 << ct:#x} bank_mask:0xf")
            a(f"s_add_u32 s{T0}, s{self.ASO}, {3584*4}")
            a(f"buffer_atomic_add_f32 v{self.DD}, v{self.VL4}, {sr(S_WS)}, s{self.ASO} offen"); vm.add("at1")
            a(f"buffer_atomic_add_f32 v{self.DD+16}, v{self.VL4}, {sr(S_WS)}, s{T0} offen"); vm.add("at1")
        if T in WD_T:
            j = WD_T.index(T)
            a(f"s_add_u32 m0, s{self.FB}, {j*1024}")
            a(f"s_add_u32 s{T0}, s{self.DSO}, {j*8192}")
            a(f"buffer_load_dwordx4 v{self.VOD}, {sr(S_WD)}, s{T0} offen lds"); vm.add("wd")
        if T == 35:
            vm.wait("at1")
            a(f"s_lshr_b32 s{self.GSO}, s{FCG}, 2")
            a(f"s_lshl_b32 s{self.GSO}, s{self.GSO}, 7")
            a(f"s_add_u32 s{self.GSO}, s{self.GSO}, {SY4:#x}")
            a("s_cmp_lt_u32 s2, 224")
            a(f"s_cselect_b32 s{self.GSO}, s{self.GSO}, 0x40000000")
            self.arrive(self.GSO)
        G = self.DD
        W0F = f"s_cmp_lt_u32 s{CNT}, 224"
        if T == 40:
            a(f"s_lshl_b32 s{CNT}, s3, 8")
            a(f"s_add_u32 s{CNT}, s{CNT}, s2")
            a(f"v_mov_b32 v{t}, 0")
            k.only(W0F, lambda: a(f"buffer_load_dword v{t+1}, v{t}, {sr(S_WS)}, s{self.GSO} offen sc1"))
            vm.mark("p4")
        if T == 42:
            def p2():
                a(f"s_waitcnt vmcnt({vm.since('p4')})")
                k.poll(t, t + 1, self.GSO, 32, cnt=T3)
                a(f"v_and_b32 v{t}, 60, v{self.VL4}")
                a(f"v_bfe_u32 v{t+1}, v2, 4, 1")
                a(f"v_mul_u32_u24 v{t+1}, {3584*4}, v{t+1}")
                a(f"v_add_u32 v{t+1}, v{t+1}, v{t}")
                a(f"s_lshl_b32 s{T0}, s{FCG}, 6")
                a(f"s_add_u32 s{T0}, s{T0}, {WS_GU:#x}")
                a(f"buffer_load_dword v{G}, v{t+1}, {sr(S_WS)}, s{T0} offen sc1")
            k.only(W0F, p2)
            vm.mark("gl")
        if T == 45:
            def hh():
                a(f"s_waitcnt vmcnt({vm.since('gl')})")
                bf16r(a, G, G)
                a(f"v_mov_b32 v{G+1}, v{G}")
                a(f"v_permlane16_swap_b32 v{G}, v{G+1}")
                a(f"v_mul_f32 v{G+2}, {f32(-LOG2E)}, v{G}")
                a(f"v_exp_f32 v{G+2}, v{G+2}")
                a(f"v_add_f32 v{G+2}, 1.0, v{G+2}")
                a(f"v_rcp_f32 v{G+2}, v{G+2}")
                a(f"v_mul_f32 v{G}, v{G}, v{G+2}")
                bf16r(a, G, G)
                a(f"v_mul_f32 v{G}, v{G}, v{G+1}")
                a(f"v_cvt_pk_bf16_f32 v{G}, v{G}, v{G}")
                a(f"v_lshrrev_b32 v{t}, 1, v{t}")
                a(f"v_add_u32 v{t}, {FBASE + 4096}, v{t}")
                a(f"ds_write_b16 v{t}, v{G}")
                a("s_waitcnt lgkmcnt(0)")
            k.only(W0F, hh)
        HF, WD, DD = 168, 176, 192
        if T in (43, 44):
            if T == 43: vm.wait("wd")
            for j in (2*(T-43), 2*(T-43)+1):
                if j: a(f"v_xor_b32 v{t+4+j}, {64*j}, v{self.VTD}")
                ad = (t + 4 + j) if j else self.VTD
                for u in range(2):
                    k.ds(f"ds_read_b64_tr_b16 {vr(WD+4*j+2*u,2)}, v{ad} offset:{u*1024}", "wdf")
        if T == 46:
            a(f"v_lshlrev_b32 v{t+4}, 4, v{VH}")
            a(f"v_add_u32 v{t+4}, {FBASE + 4096}, v{t+4}")
            k.ds(f"ds_read_b128 {vr(HF,4)}, v{t+4}", "hf")
        if 47 <= T <= 50:
            j = T - 47
            k.lg.wait("hf", "wdf")
            a(f"v_mfma_f32_32x32x16_bf16 {vr(DD+16*j,16)}, {vr(HF,4)}, {vr(WD+4*j,4)}, 0")
        if T == 51:
            a(f"v_mov_b32_dpp v{DD}, v{DD+16} quad_perm:[0,1,2,3] row_mask:0xc bank_mask:0xf")
            a(f"v_mov_b32_dpp v{DD+32}, v{DD+48} quad_perm:[0,1,2,3] row_mask:0xc bank_mask:0xf")
            a(f"buffer_atomic_add_f32 v{DD}, v{self.VL4}, {sr(S_WS)}, s{self.YSO} offen"); vm.add("at")
            a(f"buffer_atomic_add_f32 v{DD+32}, v{self.VL4}, {sr(S_WS)}, s{self.YSO} offen offset:256"); vm.add("at")
        if T == 59:
            vm.wait("at")
            a(f"s_lshr_b32 s{T0}, s2, 3")
            a(f"s_lshl_b32 s{T0}, s{T0}, 7")
            a(f"s_add_u32 s{T0}, s{T0}, {SY3:#x}")
            self.arrive(T0)

class PhaseD:
    XR, ST, VXO = 8, 30, 16
    VOF, VWD = 24, (17, 18, 1)
    XFL, G, XF, ACCO, ACCX, WREG = 32, 48, 64, 96, 112, 128
    def __init__(self, k):
        self.k, self.a, self.vm = k, k.a, k.vm
        def rot(c, shift, extra, base):
            return f"""s_add_u32 s{TD}, s{ROT}, {c}
            s_and_b32 s{TD}, s{TD}, 15
            s_lshl_b32 s{TD}, s{TD}, {shift}
            s_add_u32 s{TD}, s{TD}, s{base}""" + (f"\ns_add_u32 s{TD}, s{TD}, {extra}" if extra else "")
        def ldw(n): return lambda p: f"s_add_u32 m0, s{W1K}, {p*8192}\n" + rot(n >> 1, 17, (n & 1) * 16 * 2048, SEL) + f"\nbuffer_load_dwordx4 v{VOW}, {sr(S_W)}, s{TD} offen lds"
        def ldo(c): return lambda p: f"s_add_u32 m0, s{W1K}, {p*8192}\n" + rot(c, 12, 0, OBASE) + f"\nbuffer_load_dwordx4 v{VL16}, {sr(S_WS)}, s{TD} offen sc1 lds"
        seq = [(("w", n), ldw(n), None, list(range(19, -1, -1))) for n in range(24)]
        seq += [(("o", c), ldo(c), None, list(range(16))) for c in range(16)]
        seq += [(("w", n), ldw(n), None, [16, 17, 18, 19]) for n in range(24, 32)]
        self.pg = Pager(k, range(8, 20), seq)
    def tile_end(self, T):
        k, a, vm = self.k, self.a, self.vm
        if T == 44:
            a(f"s_lshr_b32 s{T0}, s2, 3")
            a(f"s_lshl_b32 s{T0}, s{T0}, 16")
            a(f"v_lshlrev_b32 v{self.VXO}, 7, v0")
            a(f"buffer_load_dword v{self.XR}, v{self.VXO}, {sr(S_W)}, s{T0} offen"); vm.add("pf")
        if T == 51:
            a(f"v_lshlrev_b32 v{self.VXO}, 11, v{VN}")
            a(f"v_lshl_add_u32 v{self.VXO}, v{VH}, 5, v{self.VXO}")
            a(f"s_lshl_b32 s{T1}, s{RB2}, 1")
            a(f"s_add_u32 s{T1}, s{T1}, s{RT}")
            a(f"s_lshl_b32 s{XO2}, s{T1}, 16")
            a(f"s_lshl_b32 s{SEL}, s{CB2}, 8")
            a(f"s_add_u32 s{XO2}, s{XO2}, s{SEL}")
            a(f"s_lshl_b32 s{T0}, s{HD}, 6")
            a(f"s_add_u32 s{XO2}, s{XO2}, s{T0}")
            a(f"buffer_load_dwordx4 {vr(self.XR,4)}, v{self.VXO}, {sr(S_X)}, s{XO2} offen"); vm.add("x2")
            a(f"s_lshl_b32 s{ROT}, s{CB2}, 1")
            a(f"s_lshr_b32 s{T0}, s{IDX}, 5")
            a(f"s_cmp_eq_u32 s{T0}, s{T1}")
            a(f"s_cselect_b32 s{MODE}, 1, 0")
        if T == 52:
            a(f"s_lshl_b32 s{T1}, s{RB2}, 1")
            a(f"s_add_u32 s{T1}, s{T1}, s{RT}")
            a(f"s_lshl_b32 s{T0}, s{T1}, 8")
            a(f"s_add_u32 s{T0}, s{T0}, {WS_STAT:#x}")
            a(f"v_lshlrev_b32 v5, 3, v{VN}")
            a(f"buffer_load_dwordx2 {vr(self.ST,2)}, v5, {sr(S_WS)}, s{T0} offen sc1"); vm.add("x2")
        if T == 53:
            a(f"buffer_load_dwordx4 {vr(self.XR+4,4)}, v{self.VXO}, {sr(S_X)}, s{XO2} offen offset:16"); vm.add("x2")
            a(f"s_lshl_b32 s{T0}, s{ROWT}, 5")
            a(f"s_lshl_b32 s{T1}, s{HB}, 2")
            a(f"s_add_u32 s{T0}, s{T0}, s{T1}")
            a(f"s_add_u32 s{T0}, s{T0}, s{HD}")
            a(f"s_lshl_b32 s{T0}, s{T0}, 11")
            a(f"s_add_u32 s{OSO}, s{T0}, {WS_OF:#x}")
        if 54 <= T <= 61:
            ne = (T - 53) * NEARLY // 8 - (T - 54) * NEARLY // 8
            if 'oldne' in VAR: ne = 2 if T < 58 else 1
            for g in self.pg.take(ne): self.pg.issue(g)
    def run(self):
        k, a, vm, lg, pg = self.k, self.a, self.vm, self.k.lg, self.pg
        XR, ST, VXO, VOF, VWD, XFL, G, XF, ACCO, ACCX, WREG = (self.XR, self.ST, self.VXO, self.VOF, self.VWD, self.XFL,
                                                              self.G, self.XF, self.ACCO, self.ACCX, self.WREG)
        a("v_bfe_u32 v5, v2, 2, 2")
        a(f"v_lshl_add_u32 v6, v{VH}, 2, v5")
        a("v_lshlrev_b32 v6, 6, v6")
        a("v_and_b32 v5, 1, v2")
        a("v_lshl_add_u32 v6, v5, 5, v6")
        a("v_bfe_u32 v5, v2, 4, 1")
        a("v_lshl_add_u32 v6, v5, 4, v6")
        a("v_bfe_u32 v5, v2, 1, 1")
        a("v_lshl_add_u32 v6, v5, 3, v6")
        a(f"v_add_u32 v{VWD[0]}, s{W1K}, v6")
        a(f"v_add_u32 v{VWD[1]}, 0x10000, v{VWD[0]}")
        a(f"v_add_u32 v{VWD[2]}, 0x20000, v{VWD[0]}")
        a(f"v_mov_b32 v6, {f32(2.0**64)}")
        for i in range(4): a(f"v_pk_add_f32 {vr(SA+2*i,2)}, {vr(OA+4*i,2)}, {vr(OA+4*i+2,2)}")
        a(f"v_pk_add_f32 {vr(SA,2)}, {vr(SA,2)}, {vr(SA+2,2)}")
        a(f"v_pk_add_f32 {vr(SA+4,2)}, {vr(SA+4,2)}, {vr(SA+6,2)}")
        a(f"v_pk_add_f32 {vr(SA,2)}, {vr(SA,2)}, {vr(SA+4,2)}")
        a(f"v_add_f32 v5, v{SA}, v{SA+1}")
        a(f"v_fma_f32 v5, v5, 0, v{LS}")
        a("v_cmp_nlt_f32 vcc, v5, v6")
        a("s_nop 1")
        if "forcefb" in VAR: a("s_branch L_fallback")
        a("s_cbranch_vccnz L_fallback")
        a.label("L_fin")
        a(f"v_rcp_f32 v6, v{LS}")
        for i in range(8): a(f"v_pk_mul_f32 {vr(OA+2*i,2)}, {vr(OA+2*i,2)}, v[6:7] op_sel_hi:[1,0]")
        for i in range(8): a(f"v_cvt_pk_bf16_f32 v{SA+i}, v{OA+2*i}, v{OA+2*i+1}")
        a(f"buffer_store_dwordx4 {vr(SA,4)}, v{VL16}, {sr(S_WS)}, s{OSO} offen sc1"); vm.add("ost")
        a(f"buffer_store_dwordx4 {vr(SA+4,4)}, v{VL16}, {sr(S_WS)}, s{OSO} offen offset:1024 sc1"); vm.add("ost")
        def wread(n):
            vm.wait(("w", n))
            p = pg.page[("w", n)]
            for u in range(2):
                k.ds(f"ds_read_b64_tr_b16 {vr(WREG+4*n+2*u,2)}, v{VWD[p >> 3]} offset:{(p & 7)*8192 + 8*u*64}", ("wr", n))
        def wfree(n):
            lg.wait(("wr", n)); pg.free.append(pg.page[("w", n)])
        def xn_ops(src, lo, hi, g0, g1, m, ri, t0=6):
            return [f"v_lshlrev_b32 v{lo}, 16, v{src}", f"v_and_b32 v{hi}, 0xffff0000, v{src}",
                    f"v_sub_f32 v{g0}, v{lo}, v{m}", f"v_sub_f32 v{g1}, v{hi}, v{m}",
                    f"v_cvt_pk_bf16_f32 v{t0}, v{g0}, v{g1}",
                    f"v_lshlrev_b32 v{g0}, 16, v{t0}", f"v_and_b32 v{g1}, 0xffff0000, v{t0}",
                    f"v_mul_f32 v{g0}, v{g0}, v{ri}", f"v_mul_f32 v{g1}, v{g1}, v{ri}",
                    f"v_cvt_pk_bf16_f32 v{t0}, v{g0}, v{g1}",
                    f"v_lshlrev_b32 v{g0}, 16, v{t0}", f"v_and_b32 v{g1}, 0xffff0000, v{t0}"]
        def silu_ops(g0, g1, t0=6, t1=7):
            return [f"v_mul_f32 v{t0}, {f32(-LOG2E)}, v{g0}", f"v_mul_f32 v{t1}, {f32(-LOG2E)}, v{g1}",
                    f"v_exp_f32 v{t0}, v{t0}", f"v_exp_f32 v{t1}, v{t1}",
                    f"v_add_f32 v{t0}, 1.0, v{t0}", f"v_add_f32 v{t1}, 1.0, v{t1}",
                    f"v_rcp_f32 v{t0}, v{t0}", f"v_rcp_f32 v{t1}, v{t1}",
                    f"v_mul_f32 v{g0}, v{g0}, v{t0}", f"v_mul_f32 v{g1}, v{g1}, v{t1}",
                    f"v_cvt_pk_bf16_f32 v{t0}, v{g0}, v{g1}",
                    f"v_lshlrev_b32 v{g0}, 16, v{t0}", f"v_and_b32 v{g1}, 0xffff0000, v{t0}"]
        gate = []
        for p in range(8): gate += xn_ops(XR+p, XFL+2*p, XFL+2*p+1, G+2*p, G+2*p+1, ST, ST+1)
        for p in range(8): gate += silu_ops(G+2*p, G+2*p+1)
        def gops(n):
            for _ in range(min(n, len(gate))): a(gate.pop(0))
        for g in pg.take(12 - NEARLY): pg.issue(g)
        for n in range(12): wread(n)
        for n in range(4):
            wfree(n)
            for g in pg.take(1): pg.issue(g)
        a(f"s_lshl_b32 s{T0}, s{RB}, 3")
        a(f"s_add_u32 s{T0}, s{T0}, s{HB}")
        a(f"s_lshl_b32 s{T0}, s{T0}, 7")
        a(f"s_add_u32 s{T0}, s{T0}, {SY2:#x}")
        a("v_mov_b32 v5, 1")
        a("v_mov_b32 v6, 0")
        vm.wait("ost")
        def arr():
            a("s_mov_b64 exec, 1")
            a(f"buffer_store_dword v5, v6, {sr(S_WS)}, s{T0} offen sc1" if "stflag" in VAR else f"buffer_atomic_add v5, v6, {sr(S_WS)}, s{T0} offen sc1")
            a("s_mov_b64 exec, -1")
        if "wgarr" in VAR:
            a("s_barrier")
            k.only("s_cmp_eq_u32 s3, 0", arr)
        else:
            arr(); vm.add("arr")
        k.stamp("E1")
        for n in range(4, 12): wfree(n)
        PV = XF
        a(f"v_and_b32 v{PV}, 7, v2")
        a(f"v_lshlrev_b32 v{PV}, 7, v{PV}")
        a(f"s_lshl_b32 s{T3}, s{RB2}, 10")
        a(f"s_add_u32 s{T3}, s{T3}, {SY2:#x}")
        nxt = 12
        for i, g in enumerate(pg.take(16, stop=("o", 0))):
            pg.issue(g); gops(8)
            if i >= 2: wread(nxt); nxt += 1
            if i == D_POLL:
                k.only("s_cmp_eq_u32 s3, 7", lambda: a(f"buffer_load_dword v{PV+1}, v{PV}, {sr(S_WS)}, s{T3} offen sc1"))
        a(f"s_lshl_b32 s{OBASE}, s{RB2}, 1")
        a(f"s_lshr_b32 s{T0}, s3, 2")
        a(f"s_add_u32 s{OBASE}, s{OBASE}, s{T0}")
        a(f"s_lshl_b32 s{OBASE}, s{OBASE}, 16")
        a(f"s_and_b32 s{T0}, s3, 3")
        a(f"s_lshl_b32 s{T0}, s{T0}, 10")
        a(f"s_add_u32 s{OBASE}, s{OBASE}, s{T0}")
        a(f"s_add_u32 s{OBASE}, s{OBASE}, {WS_OF:#x}")
        a(f"s_mul_i32 s{T0}, s{RT}, {4096 + 2048}")
        a(f"v_add_u32 v{VOF}, s{T0}, v{VL16}")
        a(f"v_xor_b32 v{VOF+1}, 0x1000, v{VOF}")
        a(f"v_add_u32 v{VOF+2}, 0x10000, v{VOF}")
        a(f"v_add_u32 v{VOF+3}, 0x10000, v{VOF+1}")
        while nxt < 24:
            wread(nxt); nxt += 1; gops(6)
        lg.wait_all()
        k.only("s_cmp_eq_u32 s3, 7", lambda: k.poll(PV, PV + 1, T3, 1 if 'wgarr' in VAR else 8, cnt=T2))
        a("s_barrier")
        k.stamp("E2")
        pg.free = list(range(20))
        od = pg.take(20)
        for g in od[:6]:
            pg.issue(g); gops(8)
        od = od[6:]
        gops(1000)
        a(f"s_cmp_eq_u32 s{MODE}, 1")
        a("s_cbranch_scc1 L_own")
        st = (list(vm.tags), vm.total, dict(vm.marks), list(lg.tags), list(pg.free), pg.pos, a.snapshot(), list(STAMP_NAMES))
        self.dloop(False, list(od), wread, wfree, xn_ops, silu_ops)
        a("s_endpgm")
        a.label("L_own")
        vm.tags, vm.total, vm.marks, lg.tags, pg.free, pg.pos = list(st[0]), st[1], dict(st[2]), list(st[3]), list(st[4]), st[5]
        a.hist = st[6][0]; a.alts = [(h, 0) for h in st[6][1:]]
        STAMP_NAMES[:] = st[7]
        self.dloop(True, list(od), wread, wfree, xn_ops, silu_ops)
    def dloop(self, own, od, wread, wfree, xn_ops, silu_ops):
        k, a, vm, lg, pg = self.k, self.a, self.vm, self.k.lg, self.pg
        XR, ST, VXO, VOF, VWD, XFL, G, XF, ACCO, ACCX, WREG = (self.XR, self.ST, self.VXO, self.VOF, self.VWD, self.XFL,
                                                              self.G, self.XF, self.ACCO, self.ACCX, self.WREG)
        Y, X4, XN, YS, YB, YA, YD = WREG + 16, WREG + 20, WREG + 24, WREG + 28, WREG + 32, 28, 29
        ys = {}
        if own:
            def I(x): return lambda: a(x)
            def br(d): return [f"v_cvt_pk_bf16_f32 v{d}, v{d}, v{d}", f"v_lshlrev_b32 v{d}, 16, v{d}"]
            def y_poll():
                a(f"v_lshlrev_b32 v{YA}, 7, v{VN}")
                a(f"s_mov_b32 s{T3}, {SY3:#x}")
                a(f"buffer_load_dword v{YD}, v{YA}, {sr(S_WS)}, s{T3} offen sc1"); vm.add("yp")
            def y_chk():
                vm.wait("yp"); k.poll(YA, YD, T3, 64)
            def y_l1():
                a(f"v_lshrrev_b32 v{YA}, 3, v2")
                a(f"v_lshlrev_b32 v{YA}, 12, v{YA}")
                a(f"v_and_b32 v{YD}, 7, v2")
                a(f"v_lshl_add_u32 v{YA}, v{YD}, 4, v{YA}")
                a(f"s_lshl_b32 s{T0}, s{CB2}, 9")
                a(f"s_lshl_b32 s{T1}, s{HD}, 7")
                a(f"s_add_u32 s{T0}, s{T0}, s{T1}")
                a(f"s_add_u32 s{T1}, s{T0}, {WS_YACC:#x}")
                a(f"buffer_load_dwordx4 {vr(Y,4)}, v{YA}, {sr(S_WS)}, s{T1} offen sc1"); vm.add("yl")
            def y_l2():
                a(f"s_lshr_b32 s{T0}, s{T0}, 1")
                a(f"s_lshl_b32 s{T1}, s{IDX}, 11")
                a(f"s_add_u32 s{T0}, s{T0}, s{T1}")
                a(f"v_lshlrev_b32 v{YD}, 3, v{YD}")
                a(f"buffer_load_dwordx2 {vr(X4,2)}, v{YD}, {sr(S_X)}, s{T0} offen"); vm.add("yl")
            def y_rs():
                a(f"s_and_b32 s{T1}, s{RKEY}, 0xffff0000")
                a(f"s_xor_b32 s{T2}, s{T1}, 0x80000000")
                a(f"s_xor_b32 s{T0}, s{T1}, 0xffff0000")
                a(f"s_bitcmp1_b32 s{T1}, 31")
                a(f"s_cselect_b32 s{T1}, s{T2}, s{T0}")
                a(f"v_mov_b32 v{YA}, s{T1}")
            def y_st():
                a(f"s_and_b32 s{T1}, s{IDX}, 31")
                a(f"v_readlane_b32 s{T0}, v{ST}, s{T1}")
                a(f"v_readlane_b32 s{T2}, v{ST+1}, s{T1}")
                a(f"v_mov_b32 v{YS}, s{T0}")
                a(f"v_mov_b32 v{YS+1}, s{T2}")
            rs2 = [f"v_mul_f32 v{YA}, {f32(-LOG2E)}, v{YA}", f"v_exp_f32 v{YA}, v{YA}", f"v_add_f32 v{YA}, 1.0, v{YA}", f"v_rcp_f32 v{YA}, v{YA}"] + br(YA)
            sm = [f"v_add_f32_dpp v{Y+e}, v{Y+e}, v{Y+e} row_ror:8 row_mask:0xf bank_mask:0xf" for e in range(4)]
            for sw in ("v_permlane16_swap_b32", "v_permlane32_swap_b32"):
                sm += [f"v_mov_b32 v{YB+4+e}, v{Y+e}" for e in range(4)] + [f"{sw} v{Y+e}, v{YB+4+e}" for e in range(4)]
                sm += [f"v_add_f32 v{Y+e}, v{Y+e}, v{YB+4+e}" for e in range(4)]
            def rr(p, q): return [f"v_cvt_pk_bf16_f32 v{YB+2}, v{p}, v{q}", f"v_lshlrev_b32 v{p}, 16, v{YB+2}", f"v_and_b32 v{q}, 0xffff0000, v{YB+2}"]
            sc = []
            for p in (0, 2):
                sc += rr(Y+p, Y+p+1) + [f"v_mul_f32 v{Y+p}, v{Y+p}, v{YA}", f"v_mul_f32 v{Y+p+1}, v{Y+p+1}, v{YA}"] + rr(Y+p, Y+p+1)
            xn = xn_ops(X4, YB, YB+1, XN, XN+1, YS, YS+1, YB+2) + xn_ops(X4+1, YB, YB+1, XN+2, XN+3, YS, YS+1, YB+2)
            ad = []
            for p in (0, 2):
                ad += [f"v_add_f32 v{XN+p}, v{XN+p}, v{Y+p}", f"v_add_f32 v{XN+p+1}, v{XN+p+1}, v{Y+p+1}"] + rr(XN+p, XN+p+1)
            sl = silu_ops(XN, XN+1, YB+2, YB+3) + silu_ops(XN+2, XN+3, YB+2, YB+3) + [f"v_lshlrev_b32 v{YD}, 4, v{VH}"]
            bp = [lambda q=q, e=e: k.ds(f"ds_bpermute_b32 v{YB+4*q+e}, v{YD}, v{XN+e} offset:{4*q}", "yb") for q in range(4) for e in range(4)]
            allv = [I(x) for x in sm + sc + xn + ad + sl]
            ys = {0: [y_poll], 4: [y_chk, y_l1, y_l2], 5: [y_rs, y_st] + [I(x) for x in rs2]}
            per = -(-len(allv) // 5)
            for i in range(5): ys[7 + i] = ([lambda: vm.wait("yl")] if i == 0 else []) + allv[i*per:(i+1)*per]
            ys[12] = bp
            def y_mask():
                lg.wait("yb")
                a(f"s_and_b32 s{T1}, s{IDX}, 31")
                a(f"v_cmp_eq_u32 vcc, s{T1}, v{VN}")
            ys[13] = [y_mask] + [I(f"v_cndmask_b32 v{G+i}, v{G+i}, v{YB+i}, vcc") for i in range(16)]
        avail = {0: 2, 2: 4, 4: 8, 8: 12, 12: 16}
        pool = [XF, XF + 16]
        xb = {}
        def rd_ops(c):
            if not pool: return None
            xb[c] = pool.pop(0)
            def bar():
                vm.wait(*[("o", i) for i in range(avail[c])])
                a("s_barrier")
            def r(e):
                p = pg.page[("o", c)]
                for t in range(2):
                    k.ds(f"ds_read_b128 {vr(xb[c]+4*(2*t+e),4)}, v{VOF + 2*(p >> 3) + t} offset:{(p & 7)*8192 + e*1024}", ("d", c, e))
            return ([bar] if c in avail else []) + [lambda: r(0), lambda: r(1)]
        def rd(c):
            for o in rd_ops(c): o()
        rd(0); k.stamp("D0"); rd(1)
        def mf(c, e, t):
            acc = ACCX if t else ACCO
            cc = "0" if (c == 0 and e == 0) else vr(acc, 16)
            a(f"v_mfma_f32_32x32x16_bf16 {vr(acc,16)}, {vr(WREG+4*(2*c+e),4)}, {vr(xb[c]+4*(2*t+e),4)}, {cc}")
        def d1():
            if od: pg.issue(od.pop(0))
        for c in range(14):
            def m0(e):
                lg.wait(("d", c, e), ("wr", 2*c+e)); mf(c, e, 0)
            ms = [lambda: m0(0), lambda: mf(c, 0, 1), lambda: m0(1), lambda: mf(c, 1, 1)]
            extra = []
            if c == 8: extra = [lambda n=n: wread(n) for n in range(24, 28)]
            if c == 12: extra = [lambda n=n: wread(n) for n in range(28, 32)]
            if c == 9:
                for n in range(24, 28): wfree(n)
                od += pg.take(4)
            ro = rd_ops(c + 2)
            base = [d1, d1] + (ro or []) + extra
            y = ys.get(c, [])
            if y:
                for i, m in enumerate(ms):
                    m()
                    for o in base[i * len(base) // 4:(i + 1) * len(base) // 4]: o()
                    for o in y[i * len(y) // 4:(i + 1) * len(y) // 4]: o()
            else: interleave(ms, base)
            pool.append(xb[c])
            if c == 1: pool.append(WREG)
            if ro is None: rd(c + 2)
        lg.wait_all()
        a(f"v_add_u32 v5, s{W1K}, v{VL16}")
        for c in (14, 15):
            for e in range(2): mf(c, e, 1)
        a("v_add_u32 v5, 0x20000, v5")
        a("v_xor_b32 v6, 0x400, v5")
        mf(14, 0, 0); mf(14, 1, 0); mf(15, 0, 0)
        a("s_nop 6")
        for q in range(4): a(f"ds_write_b128 v5, {vr(ACCX+4*q,4)} offset:{q*8192}")
        mf(15, 1, 0)
        k.stamp("D_end")
        a("s_waitcnt lgkmcnt(0)")
        a("s_barrier")
        for q in range(4): a(f"ds_read_b128 {vr(WREG+16+4*q,4)}, v6 offset:{q*8192}")
        for q in range(4):
            a(f"s_waitcnt lgkmcnt({3-q})")
            for i in (2*q, 2*q+1): a(f"v_pk_add_f32 {vr(ACCO+2*i,2)}, {vr(ACCO+2*i,2)}, {vr(WREG+16+2*i,2)}")
            for i in (2*q, 2*q+1): a(f"v_pk_fma_f32 {vr(ACCO+2*i,2)}, {vr(ACCO+2*i,2)}, {vr(G+2*i,2)}, {vr(XFL+2*i,2)}")
            for i in (2*q, 2*q+1): a(f"v_cvt_pk_bf16_f32 v{XR+i}, v{ACCO+2*i}, v{ACCO+2*i+1}")
            if q == 1: a(f"buffer_store_dwordx4 {vr(XR,4)}, v{VXO}, {sr(S_OUT)}, s{XO2} offen")
        a(f"buffer_store_dwordx4 {vr(XR+4,4)}, v{VXO}, {sr(S_OUT)}, s{XO2} offen offset:16")
        k.stamp("end")

def fallback(k):
    a = k.a
    a.label("L_fallback")
    a.flush()
    a("v_mov_b32 v6, 0xff800000")
    a(f"s_mov_b32 s{T0}, 0")
    a.label("L_fb1")
    a(f"buffer_load_dwordx4 {vr(KA,4)}, v{VL16}, {sr(S_KV)}, s{T0} offen sc1")
    a(f"buffer_load_dwordx4 {vr(KA+4,4)}, v{VL16}, {sr(S_KV)}, s{T0} offen offset:1024 sc1")
    a("s_waitcnt vmcnt(0)")
    a(f"v_mfma_f32_32x32x16_bf16 {vr(SA,16)}, {vr(KA,4)}, {vr(QF,4)}, 0")
    a(f"v_mfma_f32_32x32x16_bf16 {vr(SA,16)}, {vr(KA+4,4)}, {vr(QF+4,4)}, {vr(SA,16)}")
    for i in range(0, 16, 2): a(f"v_max3_f32 v6, v6, v{SA+i}, v{SA+i+1}")
    a(f"s_add_u32 s{T0}, s{T0}, 4096")
    a(f"s_cmp_lt_u32 s{T0}, 0x40000")
    a("s_cbranch_scc1 L_fb1")
    a("v_mov_b32 v5, v6")
    a("v_permlane32_swap_b32 v6, v5")
    a("v_max_f32 v6, v6, v5")
    for i in range(16): a(f"v_sub_f32 v{NM+i}, 0, v6")
    for i in range(16): a(f"v_mov_b32 v{OA+i}, 0")
    for i in range(4): a(f"v_mov_b32 v{LS+i}, 0")
    a(f"s_mov_b32 s{T0}, 0")
    a.label("L_fb2")
    a(f"buffer_load_dwordx4 {vr(KA,4)}, v{VL16}, {sr(S_KV)}, s{T0} offen sc1")
    a(f"buffer_load_dwordx4 {vr(KA+4,4)}, v{VL16}, {sr(S_KV)}, s{T0} offen offset:1024 sc1")
    a(f"buffer_load_dwordx4 {vr(VA,4)}, v{VL16}, {sr(S_KV)}, s{T0} offen offset:2048 sc1")
    a(f"buffer_load_dwordx4 {vr(VA+4,4)}, v{VL16}, {sr(S_KV)}, s{T0} offen offset:3072 sc1")
    a("s_waitcnt vmcnt(0)")
    a(f"v_mfma_f32_32x32x16_bf16 {vr(SA,16)}, {vr(KA,4)}, {vr(QF,4)}, {vr(NM,16)}")
    a(f"v_mfma_f32_32x32x16_bf16 {vr(SA,16)}, {vr(KA+4,4)}, {vr(QF+4,4)}, {vr(SA,16)}")
    for i in range(16): a(f"v_exp_f32 v{SA+i}, v{SA+i}")
    a(f"v_smfmac_f32_32x32x32_bf16 {vr(OA,16)}, {vr(VA,4)}, {vr(SA,8)}, v{IDXD}")
    a(f"v_smfmac_f32_16x16x64_bf16 {vr(LS,4)}, {vr(MA,4)}, {vr(SA,8)}, v{IDXD}")
    a(f"v_smfmac_f32_32x32x32_bf16 {vr(OA,16)}, {vr(VA+4,4)}, {vr(SA+8,8)}, v{IDXD}")
    a(f"v_smfmac_f32_16x16x64_bf16 {vr(LS,4)}, {vr(MA,4)}, {vr(SA+8,8)}, v{IDXD}")
    a(f"s_add_u32 s{T0}, s{T0}, 4096")
    a(f"s_cmp_lt_u32 s{T0}, 0x40000")
    a("s_nop 7")
    a("s_cbranch_scc1 L_fb2")
    a.flush()
    a("s_branch L_fin")
    a.label("L_code_end")

def build(path):
    k = K()
    k.ffn = FFN(k); k.D = PhaseD(k)
    prologue(k); phaseAB(k); attention(k)
    if 'nod' not in VAR: k.D.run()
    else: k.a.label('L_fin')
    k.a.label("L_end"); k.a("s_endpgm")
    fallback(k)
    top = open("cdna_kernels/" + NAME + ".s.ref").read().split("; Override launch geometry")[0]
    if STAMPS: top += "; stamps: " + " ".join(STAMP_NAMES) + "\n"
    top += "; @launch grid=(256,1,1) block=(512,1,1) lds=163840\n"
    top += '.amdgcn_target "amdgcn-amd-amdhsa--gfx950"\n.text\n'
    top += f".set CODE_BYTES, L_code_end - {KN} - 64\n"
    kd = f""".section .rodata,"a"
.p2align 6
.amdhsa_kernel {KN}
  .amdhsa_next_free_vgpr 256
  .amdhsa_next_free_sgpr 102
  .amdhsa_accum_offset 256
  .amdhsa_group_segment_fixed_size 0
  .amdhsa_kernarg_size 104
  .amdhsa_user_sgpr_count 2
  .amdhsa_user_sgpr_kernarg_segment_ptr 1
  .amdhsa_system_sgpr_workgroup_id_x 1
.end_amdhsa_kernel
"""
    open(path, "w").write(top + k.a.text() + kd)
    return k

if __name__ == "__main__":
    out = sys.argv[1] if len(sys.argv) > 1 else "cdna_kernels/" + NAME + ".s"
    if len(sys.argv) > 2 and sys.argv[2] == "stamps": STAMPS = True
    VAR.update(sys.argv[3:])
    for v in VAR:
        if v.startswith('init'): N_INIT = int(v[4:])
        if v.startswith('wt') and '_' in v: WT_IT, WT_POS = [int(x) for x in v[2:].split('_')]
        if v.startswith('chk'): CHK, PI = [int(x) for x in v[3:].split('_')]
        if v.startswith('dp'): D_POLL = int(v[2:])
        if v == 'noskip': S1_SKIP = ()
        if v.startswith('fb'): FB0 = int(v[2:])
        if v.startswith('kvt'): KVT = [int(x) for x in v[3:]]
        if v.startswith('kvp'): KVP = int(v[3:])
        if v.startswith('fts'): FTS = [int(x) for x in v[3:]]; WDT = [28, 29, 32 + FTS[0], 32 + FTS[1]]
        if v.startswith('ne'): NEARLY = int(v[2:])
        if v.startswith('kvf'): KVF = v[3:].replace('_', ' ')
        if v.startswith('pad') and '@' in v: PADAT, PADTO = v[3:].split('@')[0], int(v[3:].split('@')[1])
        if v.startswith('nw'): NW0, ARR, R2C = [int(x) for x in v[2:].split('_')]
        if v.startswith('out'): OUTF = ' ' + v[3:].replace('_', ' ')
    k = build(out)
    if "-v" in VAR:
        for l in k.a.log: print("nop", l)
        for l in k.pgAB.log: print("AB", l)
        for l in k.D.pg.log: print("D", l)
```

```python
import sys, struct
from asmlib import Asm

NAME = "recurrent_scan__grouped_kv_mqa__moe_arch_mod__prompt"
KN = NAME + "_kernel"
WS_KV, WS_STAT, WS_RKEY, WS_SY, WS_YACC, WS_GU, WS_STAMP, WS_OF = 0x0, 0x40000, 0x46000, 0x48000, 0x50000, 0x58000, 0x80000, 0x100000
WS_SIZE = 0x500000
SYB = 0x68000
SY1, SY2, SY3, SY4 = 0x60000, SYB + 0x8000, SYB, SYB + 64 * 128
ONES = 0x3F803F80
LOG2E = 1.4426950408889634
QSCALE = 0.17677669529663687 * LOG2E
def f32(x): return "0x%08x" % struct.unpack("<I", struct.pack("<f", x))[0]
STAMPS = False
VAR = set()
SPIN_MAX = 200000
N_INIT = 9
CHK, PI = 11, 9
D_POLL = 7
VAR.add('wgarr')
WT_IT, WT_POS = 4, 0
ALIGN = 0
DBG_IT = 2
FB0 = 4
KVF = 'sc1'
NEARLY = 12
KVT, KVP = [7, 0, 1, 2], 1
FTS, WDT = [2, 4, 6], [28, 30, 34, 36]
S1_SKIP = (5, 7)
PADTO, PADAT = 0, 'end'
ARR, R2C, NW0 = -1, 2, 0
OUTF = ''

S_X, S_W, S_KW, S_WS, S_KV, S_WR, S_WG, S_WU = 4, 8, 12, 16, 20, 24, 28, 32
S_OUT, S_WD = S_WR, S_KW
RB, HB, ROT, T0, T1, T2, T3 = 36, 37, 38, 39, 40, 41, 42
W1K, MODE, W4K, XSO, TD, SP, RT, HD, ROWT, RG = 43, 44, 45, 46, 47, 48, 49, 50, 51, 52
SEL, IDX, RKEY, FCG, RB2, CB2, OSO, XO2, CNT, OBASE = 53, 54, 55, 56, 57, 58, 59, 60, 61, 62
W8K, EXS, FW = 63, 64, 66
PT = 68
P_X, P_WQ, P_WK, P_WV, P_WO, P_BX, P_WR, P_WG, P_WU, P_WD, P_OUT, P_DBG, P_WS = [PT + 2 * i for i in range(13)]
STMP = 96
def sr(b): return f"s[{b}:{b+3}]"
def vr(b, n): return f"v[{b}:{b+n-1}]"

VN, VH, VOX, VOW, VL16, VST = 3, 4, 18, 19, 20, 21
MA, IDXC, IDXD, STAT = 24, 28, 29, 30
QF, NM, VA, SA, SB, OA, LS, KA, VK1 = 32, 40, 56, 64, 80, 96, 112, 116, 17

def srd(a, d, base, nbytes):
    a(f"s_mov_b32 s{d}, s{base}")
    a(f"s_and_b32 s{d+1}, s{base+1}, 0xffff")
    a(f"s_mov_b32 s{d+2}, {nbytes:#x}")
    a(f"s_mov_b32 s{d+3}, 0x20000")

def bf16r(a, dst, src):
    a(f"v_cvt_pk_bf16_f32 v{dst}, v{src}, v{src}")
    a(f"v_lshlrev_b32 v{dst}, 16, v{dst}")

_lbl = [0]
def L(p="L"):
    _lbl[0] += 1
    return f"{p}_{_lbl[0]}"

class Cnt:
    def __init__(self, a, name, mx): self.a, self.name, self.mx, self.tags, self.total, self.marks = a, name, mx, [], 0, {}
    def add(self, tag, n=1): self.tags += [tag] * n; self.total += n
    def mark(self, m): self.marks[m] = self.total
    def since(self, m): return min(self.total - self.marks[m], self.mx)
    def wait(self, *tags):
        idx = [i for i, t in enumerate(self.tags) if t in tags]
        if not idx: return
        n = min(len(self.tags) - 1 - max(idx), self.mx)
        self.a(f"s_waitcnt {self.name}({n})")
        self.tags = self.tags[len(self.tags) - n:] if n else []
    def wait_all(self):
        self.a(f"s_waitcnt {self.name}(0)"); self.tags = []

STAMP_NAMES = []
class K:
    def __init__(self):
        self.a = Asm()
        self.vm = Cnt(self.a, "vmcnt", 63)
        self.lg = Cnt(self.a, "lgkmcnt", 15)
    def stamp(self, name):
        if PADTO and name == PADAT:
            a = self.a; lp = L()
            a.label(lp)
            a(f"s_memrealtime s[{STMP+2}:{STMP+3}]"); a("s_waitcnt lgkmcnt(0)")
            a(f"s_sub_u32 s{STMP+2}, s{STMP+2}, s{STMP}")
            a(f"s_cmp_lt_u32 s{STMP+2}, {PADTO}")
            a(f"s_cbranch_scc1 {lp}")
            return
        if "dbgstamp" in VAR:
            a = self.a
            names = ["entry", "S0", "B0", "B_end", "loop_start", "loop_end", "E2", "end"]
            if name not in names: return
            slot = 8 + names.index(name)
            if name == "entry":
                a(f"s_memrealtime s[{STMP+2}:{STMP+3}]"); a("s_waitcnt lgkmcnt(0)")
                a("s_and_b32 s100, s2, 31"); a("s_lshl_b32 s101, s3, 8"); a("s_add_u32 s100, s100, s101"); return
            def st():
                a(f"s_memrealtime s[{STMP}:{STMP+1}]"); a("s_waitcnt lgkmcnt(0)")
                a(f"s_sub_u32 s{STMP}, s{STMP}, s{STMP+2}")
                a(f"v_mov_b32 v{VST+1}, s{STMP}")
                a(f"v_mov_b32 v{VST}, {slot*4}")
                a("s_mov_b64 exec, 1")
                a(f"global_atomic_umax v{VST}, v{VST+1}, s[{P_DBG}:{P_DBG+1}]")
                a("s_mov_b64 exec, -1")
            self.only("s_cmp_eq_u32 s100, 9", st)
            return
        if not STAMPS: return
        a = self.a
        slot = len(STAMP_NAMES); STAMP_NAMES.append(str(name)); assert slot < 32
        if name != "entry":
            a(f"s_memrealtime s[{STMP}:{STMP+1}]")
            a(f"s_memtime s[{STMP+2}:{STMP+3}]")
        a("s_waitcnt lgkmcnt(0)")
        a(f"s_lshl_b32 s{STMP+1}, s2, 11")
        a(f"s_lshl_b32 s{STMP+3}, s3, 8")
        a(f"s_add_u32 s{STMP+1}, s{STMP+1}, s{STMP+3}")
        a(f"s_add_u32 s{STMP+1}, s{STMP+1}, {WS_STAMP + slot * 8:#x}")
        a(f"v_mov_b32 v{VST+1}, s{STMP}")
        a(f"v_mov_b32 v{VST+2}, s{STMP+2}")
        a(f"v_mov_b32 v{VST}, s{STMP+1}")
        a(f"buffer_store_dwordx2 v[{VST+1}:{VST+2}], v{VST}, {sr(S_WS)}, 0 offen")
        self.vm.add("st")
    def delay(self, wg):
        if "delay" not in VAR: return
        def d():
            for _ in range(6): self.a("s_sleep 127")
        self.only(f"s_cmp_eq_u32 s2, {wg}", d)
    def only(self, cond, fn):
        a = self.a; skip = L()
        a(cond); a(f"s_cbranch_scc0 {skip}")
        snap = a.snapshot(); fn(); a.label(skip); a.join(snap)
    def ifelse(self, cond, f1, f2):
        a = self.a; lv, lj = L(), L()
        a(cond); a(f"s_cbranch_scc0 {lv}")
        snap = a.snapshot(); f1(); a(f"s_branch {lj}"); snap2 = a.snapshot()
        a.label(lv); a.hist = snap[0]; a.alts = [(h, 0) for h in snap[1:]]
        f2(); a.label(lj); a.join(snap2)
    def poll(self, vaddr, vdat, soff, expect, cnt=CNT):
        a = self.a; top, chk, done = L("poll"), L("pchk"), L("pdone")
        a(f"s_mov_b32 s{cnt}, 0")
        a(f"s_branch {chk}")
        a.label(top)
        a(f"buffer_load_dword v{vdat}, v{vaddr}, {sr(S_WS)}, s{soff} offen sc1")
        a("s_waitcnt vmcnt(0)")
        a.label(chk)
        a(f"v_cmp_ne_u32 vcc, {expect}, v{vdat}")
        a(f"s_add_u32 s{cnt}, s{cnt}, 1")
        a(f"s_cbranch_vccz {done}")
        a("s_sleep 2")
        a(f"s_cmp_lt_u32 s{cnt}, {SPIN_MAX}")
        a(f"s_cbranch_scc1 {top}")
        a.label(done)
    def ds(self, text, tag):
        self.a(text); self.lg.add(tag)

class Pager:
    def __init__(self, k, free, seq):
        self.k, self.free, self.seq, self.pos, self.page, self.rel = k, list(free), seq, 0, {}, {}
        self.hold, self.hold_until, self.log = set(), 0, []
    def release(self, it):
        for p in self.rel.pop(it, []): self.free.append(p)
    def take(self, n, stop=None):
        out = []
        while len(out) < n and self.pos < len(self.seq):
            tag, emit, last, pref = self.seq[self.pos]
            if stop is not None and tag == stop: break
            cand = [p for p in pref if p in self.free and not (p in self.hold and (last is None or last + 2 > self.hold_until))]
            if not cand: break
            p = cand[0]; self.free.remove(p); self.page[tag] = p
            if last is not None: self.rel.setdefault(last + 2, []).append(p)
            out.append((tag, emit(p))); self.pos += 1
        self.log.append([(t, self.page[t]) for t, _ in out])
        return out
    def issue(self, grp):
        tag, text = grp
        self.k.a(text); self.k.vm.add(tag)

def spread(groups, extra, first=True):
    n = len(groups)
    per = -(-len(extra) // max(n, 1)) if extra else 0
    for i, g in enumerate(groups):
        for e in extra[i * per:(i + 1) * per]: e()
        g()
    for e in extra[n * per:]: e()

def interleave(ms, os):
    n = len(ms)
    for i, m in enumerate(ms):
        m()
        for o in os[i * len(os) // n:(i + 1) * len(os) // n]: o()

def prologue(k):
    a, vm = k.a, k.vm
    a.raw(f".globl {KN}"); a.raw(".p2align 8"); a.raw(f".type {KN},@function"); a.raw(f"{KN}:")
    if STAMPS or PADTO:
        a(f"s_memrealtime s[{STMP}:{STMP+1}]")
        a(f"s_memtime s[{STMP+2}:{STMP+3}]")
    a("s_cmp_ge_u32 s2, 256")
    a("s_cbranch_scc1 L_end")
    a(f"s_load_dwordx16 s[{PT}:{PT+15}], s[0:1], 0")
    a(f"s_load_dwordx8 s[{PT+16}:{PT+23}], s[0:1], 64")
    a(f"s_load_dwordx2 s[{PT+24}:{PT+25}], s[0:1], 96")
    a("s_getpc_b64 s[94:95]")
    a("v_lshrrev_b32 v1, 6, v0")
    a("v_and_b32 v2, 63, v0")
    a("v_readfirstlane_b32 s3, v1")
    a("s_and_b32 s4, s2, 0xf8")
    a("s_mul_i32 s4, s4, 160")
    a("v_lshlrev_b32 v8, 7, v0")
    a("v_cmp_gt_u32 vcc, 10, v0")
    a("v_add_u32 v8, s4, v8")
    a("v_min_u32 v8, CODE_BYTES, v8")
    a(f"s_and_saveexec_b64 s[{EXS}:{EXS+1}], vcc")
    l2 = L(); a(f"s_cbranch_execz {l2}")
    if "nocpf" not in VAR: a("global_load_dword v47, v8, s[94:95]")
    a.label(l2)
    a(f"s_mov_b64 exec, s[{EXS}:{EXS+1}]")
    a(f"v_lshlrev_b32 v{VL16}, 4, v2")
    a(f"v_and_b32 v{VN}, 31, v2")
    a(f"v_lshrrev_b32 v{VH}, 5, v2")
    a(f"s_and_b32 s{T0}, s2, 7")
    a(f"s_lshr_b32 s{T1}, s2, 3")
    a(f"s_lshr_b32 s{RB}, s{T0}, 1")
    a(f"s_lshl_b32 s{RB}, s{RB}, 3")
    a(f"s_and_b32 s{SEL}, s{T0}, 1")
    a(f"s_lshl_b32 s{T2}, s{SEL}, 2")
    a(f"s_add_u32 s{RB2}, s{RB}, s{T2}")
    a(f"s_and_b32 s{T3}, s{T1}, 3")
    a(f"s_add_u32 s{RB2}, s{RB2}, s{T3}")
    a(f"s_lshr_b32 s{CB2}, s{T1}, 2")
    a(f"s_and_b32 s{ROT}, s{T1}, 7")
    a(f"s_add_u32 s{RB}, s{RB}, s{ROT}")
    a(f"s_lshr_b32 s{T3}, s{T1}, 3")
    a(f"s_add_u32 s{HB}, s{T2}, s{T3}")
    a(f"s_lshl_b32 s{RG}, s{RB}, 2")
    a(f"s_add_u32 s{RG}, s{RG}, s{T3}")
    a(f"s_mul_i32 s{FCG}, s{T0}, 28")
    a(f"s_add_u32 s{FCG}, s{FCG}, s{T1}")
    a(f"s_lshl_b32 s{W1K}, s3, 10")
    a(f"s_lshl_b32 s{W4K}, s3, 12")
    a(f"s_lshl_b32 s{W8K}, s3, 13")
    a(f"s_and_b32 s{RT}, s3, 1")
    a(f"s_lshr_b32 s{HD}, s3, 1")
    a(f"s_lshl_b32 s{ROWT}, s{RB}, 1")
    a(f"s_add_u32 s{ROWT}, s{ROWT}, s{RT}")
    a(f"s_lshl_b32 s{XO2}, s{RB}, 17")
    a(f"s_lshl_b32 s{OSO}, s{HB}, 8")
    a(f"s_sub_u32 s{FW}, s3, {FB0 + 1}")
    a("s_cmp_lt_u32 s3, 4")
    a(f"s_cselect_b32 s{MODE}, s{SEL}, 2")
    a("v_lshrrev_b32 v5, 4, v2")
    a(f"s_lshl_b32 s{T0}, s3, 2")
    a(f"v_add_u32 v6, s{T0}, v5")
    a("v_xor_b32 v7, v6, v2")
    a("v_and_b32 v7, 7, v7")
    a("v_lshlrev_b32 v7, 4, v7")
    a("v_lshrrev_b32 v8, 3, v2")
    a("v_lshl_add_u32 v7, v8, 11, v7")
    a(f"s_lshl_b32 s{T0}, s3, 14")
    a(f"v_add_u32 v{VOX}, s{T0}, v7")
    a("v_lshrrev_b32 v7, 2, v2")
    a("v_lshlrev_b32 v7, 11, v7")
    a("v_and_b32 v8, 3, v2")
    a("v_lshl_add_u32 v7, v8, 4, v7")
    a(f"s_lshl_b32 s{T0}, s{RT}, 16")
    a(f"s_lshl_b32 s{T1}, s{HD}, 6")
    a(f"s_add_u32 s{T0}, s{T0}, s{T1}")
    a(f"v_add_u32 v{VOW}, s{T0}, v7")
    if "fake128" in VAR:
        a("v_lshrrev_b32 v7, 3, v2")
        a("v_lshlrev_b32 v7, 11, v7")
        a("v_and_b32 v8, 7, v2")
        a("v_lshl_add_u32 v7, v8, 4, v7")
        a(f"s_lshl_b32 s{T0}, s{RT}, 16")
        a(f"s_and_b32 s{T1}, s{HD}, 1")
        a(f"s_lshl_b32 s{T1}, s{T1}, 14")
        a(f"s_add_u32 s{T0}, s{T0}, s{T1}")
        a(f"s_lshr_b32 s{T1}, s{HD}, 1")
        a(f"s_lshl_b32 s{T1}, s{T1}, 7")
        a(f"s_add_u32 s{T0}, s{T0}, s{T1}")
        a(f"v_add_u32 v{VOW}, s{T0}, v7")
    a("v_lshlrev_b32 v7, 2, v2")
    a("v_mov_b32 v9, 0")
    a("v_mov_b32 v17, 0")
    a("v_mov_b32 v16, 1")
    a(f"s_xor_b32 s{CNT}, s3, 7")
    a(f"s_lshl_b32 s{CNT}, s{CNT}, 8")
    a(f"s_add_u32 s{CNT}, s{CNT}, s2")
    a("v_and_b32 v1, 28, v7")
    a("s_waitcnt lgkmcnt(0)")
    srd(a, S_X, P_X, 2048 * 2048)
    a(f"s_cmp_eq_u32 s{SEL}, 0")
    a(f"s_cselect_b32 s{S_KW}, s{P_WK}, s{P_WV}")
    a(f"s_cselect_b32 s{S_KW+1}, s{P_WK+1}, s{P_WV+1}")
    a(f"s_and_b32 s{S_KW+1}, s{S_KW+1}, 0xffff")
    a(f"s_mov_b32 s{S_KW+2}, 0x10000")
    a(f"s_mov_b32 s{S_KW+3}, 0x20000")
    srd(a, S_WS, P_WS, WS_SIZE)
    srd(a, S_WR, P_WR, 2048)
    k.stamp("entry")
    k.delay(3)
    def zero():
        a("v_mov_b32 v10, 0"); a("v_mov_b32 v11, 0"); a("v_mov_b32 v8, 0")
        a(f"s_lshl_b32 s{T2}, s2, 12")
        a(f"s_add_u32 s{T2}, s{T2}, {SY1:#x}")
        for i in range(4): a(f"buffer_store_dwordx4 v[8:11], v{VL16}, {sr(S_WS)}, s{T2} offen offset:{i*1024} sc1")
        a(f"s_lshl_b32 s{T2}, s2, 2")
        a("s_waitcnt vmcnt(0)")
        a(f"v_mov_b32 v10, s{T2}")
        a(f"global_store_dword v10, v16, s[{P_DBG}:{P_DBG+1}] sc1")
    k.only(f"s_cmp_lt_u32 s{CNT}, 8", zero)

AUX = 19 * 8192
TAB = AUX + 2304
RED = 4 * 8192

def phaseAB(k):
    a, vm, lg = k.a, k.vm, k.lg
    VXA, VW, ACC, WF, FT, XREG, CS = 32, 44, 48, 64, 96, 128, 12
    XF, ACCX, ACCO = XREG, 48, 80
    def rot(j, shift, extra, base):
        return f"""s_add_u32 s{TD}, s{ROT}, {j}
        s_and_b32 s{TD}, s{TD}, 7
        s_lshl_b32 s{TD}, s{TD}, {shift}
        s_add_u32 s{TD}, s{TD}, s{base}""" + (f"\ns_add_u32 s{TD}, s{TD}, {extra}" if extra else "")
    def ldx(c): return lambda p: f"s_add_u32 m0, s{W1K}, {p*8192}\n" + rot(c >> 1, 8, (c & 1) * 128, XO2) + f"\nbuffer_load_dwordx4 v{VOX}, {sr(S_X)}, s{TD} offen lds"
    def ldk(j): return lambda p: f"s_add_u32 m0, s{W1K}, {p*8192}\n" + rot(j, 13, 0, W1K) + f"\nbuffer_load_dwordx4 v{VL16}, {sr(S_KW)}, s{TD} offen lds"
    def ldw(c, h): return lambda p: f"s_add_u32 m0, s{W1K}, {p*8192}\n" + rot(c >> 1, 18, ((c & 1) * 64 + h * 16) * 2048, OSO) + f"\nbuffer_load_dwordx4 v{VOW}, {sr(S_W)}, s{TD} offen lds"
    seq = []
    hi = list(range(8, 19))
    for j in range(8):
        seq.append((("k", j), ldk(j), j, [4, 5, 6, 7] if 1 <= j <= 4 else hi[::-1]))
        for e in range(2):
            c = 2 * j + e
            seq.append((("x", c), ldx(c), j if c < 8 else None, [0, 1, 2, 3] if 8 <= c <= 11 else hi[::-1] if c < 8 else hi[:3:-1]))
    for c in range(16):
        for h in range(2):
            seq.append((("w", c, h), ldw(c, h), None, hi + [4, 5, 6, 7]))
    pg = Pager(k, range(19), seq)
    pg.hold, pg.hold_until = {4, 5, 6, 7}, 6
    k.pgAB = pg
    srd(a, S_W, P_WQ, 1024 * 2048)
    a(f"v_lshlrev_b32 v8, 7, v{VN}")
    a(f"s_lshl_b32 s{T0}, s{RG}, 15")
    a(f"s_add_u32 s{T0}, s{T0}, s{W4K}")
    a(f"buffer_load_dword v47, v8, {sr(S_X)}, s{T0} offen"); vm.add("xt")
    def wtouch():
        if "wt256" in VAR:
            a(f"v_lshrrev_b32 v8, 1, v{VN}")
            a("v_lshlrev_b32 v8, 11, v8")
            a("v_and_b32 v10, 1, v2")
            a("v_lshl_add_u32 v8, v10, 7, v8")
            a(f"s_lshl_b32 s{T0}, s{ROT}, 3")
            a(f"s_add_u32 s{T0}, s{T0}, s3")
            a(f"s_lshl_b32 s{T0}, s{T0}, 15")
            a(f"s_add_u32 s{T0}, s{T0}, s{OSO}")
        else:
            a(f"v_lshrrev_b32 v8, 3, v{VN}")
            a("v_lshlrev_b32 v8, 11, v8")
            a("v_and_b32 v10, 7, v2")
            a("v_lshl_add_u32 v8, v10, 7, v8")
            a(f"s_lshr_b32 s{T0}, s2, 3")
            a(f"s_lshl_b32 s{T0}, s{T0}, 16")
            a(f"s_add_u32 s{T0}, s{T0}, s{W8K}")
            a(f"s_lshl_b32 s{T1}, s{SEL}, 10")
            a(f"s_add_u32 s{T0}, s{T0}, s{T1}")
        a(f"buffer_load_dword v47, v8, {sr(S_W)}, s{T0} offen"); vm.add("wt")
    if WT_IT < 0: wtouch()
    a(f"s_lshl_b32 s{T1}, s3, 8")
    a(f"s_add_u32 m0, s{T1}, {AUX}")
    a(f"s_add_u32 s{TD}, s{ROT}, s3")
    a(f"s_and_b32 s{TD}, s{TD}, 7")
    a(f"s_lshl_b32 s{TD}, s{TD}, 8")
    a(f"buffer_load_dword v7, {sr(S_WR)}, s{TD} offen lds"); vm.add("wr")
    first = pg.take(N_INIT)
    for g_ in first[:3]: pg.issue(g_)
    k.stamp("issued")
    srd(a, S_KV, P_WS, 0x40000)
    srd(a, S_WG, P_WG, 1024 * 7168)
    srd(a, S_WU, P_WU, 1024 * 7168)
    a(f"v_mov_b32 v8, {ONES:#x}")
    a(f"v_add_u32 v9, {AUX + 2048}, v7")
    k.ds("ds_write_b32 v9, v8", "ones")
    k.ds("ds_write_b32 v9, v17 offset:384", "ones")
    a(f"v_bfe_u32 v5, v{VN}, 1, 3")
    a(f"v_xor_b32 v5, v5, v{VH}")
    a(f"s_lshl_b32 s{T0}, s{RT}, 12")
    a(f"s_lshl_b32 s{T1}, s{RT}, 2")
    a(f"v_lshlrev_b32 v6, 7, v{VN}")
    a(f"v_add_u32 v8, s{T0}, v6")
    a(f"v_xor_b32 v9, s{T1}, v5")
    a(f"v_lshl_add_u32 v{VXA}, v9, 4, v8")
    a(f"v_xor_b32 v{VXA+1}, 32, v{VXA}")
    a(f"v_xor_b32 v{VXA+2}, 0x1000, v{VXA}")
    a(f"v_xor_b32 v{VXA+3}, 0x1020, v{VXA}")
    for s in range(4):
        a(f"v_add_u32 v{VXA+4+s}, 0x10000, v{VXA+s}")
        a(f"v_add_u32 v{VXA+8+s}, 0x20000, v{VXA+s}")
    BX, MX, I17, AX, AW, BW = FT, FT + 2, FT + 3, FT + 4, FT + 6, FT + 7
    a(f"s_and_b32 s{T0}, s{HB}, 3")
    a(f"s_lshl_b32 s{T0}, s{T0}, 11")
    a(f"v_add_u32 v8, s{T0}, v6")
    a(f"s_lshl_b32 s{T1}, s{RT}, 2")
    a(f"v_xor_b32 v9, s{T1}, v5")
    a(f"v_lshl_add_u32 v{BX}, v9, 4, v8")
    a("v_xor_b32 v9, 2, v9")
    a(f"v_lshl_add_u32 v{BX+1}, v9, 4, v8")
    a(f"s_and_b32 s{T2}, s3, 3")
    a(f"s_lshl_b32 s{T3}, s{T2}, 6")
    a(f"s_add_u32 s{T3}, s{T3}, {AUX}")
    a(f"v_lshlrev_b32 v8, 4, v{VH}")
    a(f"v_add_u32 v8, s{T3}, v8")
    a(f"v_mov_b32 v9, {AUX + 2048}")
    a(f"v_cmp_eq_u32 vcc, 17, v{VN}")
    a("v_mov_b32 v10, 256")
    a("v_cndmask_b32 v8, v9, v8, vcc")
    a(f"v_cndmask_b32 v{I17}, 0, v10, vcc")
    a("v_add_u32 v9, 32, v8")
    a(f"v_cmp_gt_u32 vcc, 16, v{VN}")
    a(f"v_cndmask_b32 v{MX}, 0, 1, vcc")
    a(f"v_cndmask_b32 v{BX}, v8, v{BX}, vcc")
    a(f"v_cndmask_b32 v{BX+1}, v9, v{BX+1}, vcc")
    a("v_bfe_u32 v5, v2, 2, 2")
    a(f"v_lshl_add_u32 v6, v{VH}, 3, v5")
    a("v_bfe_u32 v8, v2, 4, 1")
    a("v_lshlrev_b32 v8, 5, v8")
    a("v_and_b32 v9, 3, v2")
    a("v_lshl_add_u32 v8, v9, 3, v8")
    a("v_lshl_add_u32 v9, v6, 6, v8")
    a(f"s_lshl_b32 s{T3}, s{T2}, 11")
    a(f"v_add_u32 v{BW}, s{T3}, v9")
    a(f"v_add_u32 v{VW}, s{W1K}, v9")
    a(f"v_add_u32 v{VW+1}, 0x10000, v{VW}")
    a(f"v_add_u32 v{VW+2}, 0x20000, v{VW}")
    a("v_bfe_u32 v5, v2, 2, 1")
    a("v_cmp_eq_u32 vcc, 0, v5")
    a(f"v_mov_b32 v6, {ONES:#x}")
    a(f"v_cndmask_b32 v{MA}, 0, v6, vcc")
    a(f"v_cndmask_b32 v{MA+1}, 0, v6, vcc")
    a(f"v_cndmask_b32 v{MA+2}, v6, 0, vcc")
    a(f"v_cndmask_b32 v{MA+3}, v6, 0, vcc")
    a("v_and_b32 v5, 2, v2")
    a("v_cmp_eq_u32 vcc, 0, v5")
    for i in range(4): a(f"v_cndmask_b32 v{MA+i}, 0, v{MA+i}, vcc")
    a("v_and_b32 v5, 1, v2")
    a("v_cmp_eq_u32 vcc, 0, v5")
    a("v_mov_b32 v6, 0x44444444")
    a("v_mov_b32 v8, 0xeeeeeeee")
    a(f"v_cndmask_b32 v{IDXC}, v8, v6, vcc")
    a(f"v_mov_b32 v{IDXD}, 0xdddddddd")
    for i in range(4): a(f"v_mov_b32 v{CS+i}, 0")
    for g_ in first[3:]: pg.issue(g_)
    lg.wait_all()

    def xread(c, s, dst, tag):
        p = pg.page[("x", c)]
        k.ds(f"ds_read_b128 {vr(dst, 4)}, v{VXA + 4*(p >> 3) + s} offset:{(p & 7) * 8192}", tag)
    def kv_mfma(j):
        b = WF + 16 * (j & 1)
        def mm(x, y):
            for e in range(2):
                c = "0" if (j == 0 and e == 0) else vr(ACC, 16)
                a(f"v_mfma_f32_32x32x16_bf16 {vr(ACC,16)}, {vr(b+x+4*e,4)}, {vr(b+y+4*e,4)}, {c}")
        k.ifelse(f"s_cmp_eq_u32 s{MODE}, 2", lambda: mm(0, 0),
                 lambda: k.ifelse(f"s_cmp_eq_u32 s{MODE}, 0", lambda: mm(8, 0), lambda: mm(0, 8)))
    for j in range(8):
        if j not in S1_SKIP:
            jj = j + 1 if (j + 1) in S1_SKIP else j
            vm.wait(*[t_ for q in range(j, jj + 1) for t_ in (("x", 2*q), ("x", 2*q+1), ("k", q))])
            a("s_barrier")
            if j == 0: k.stamp(f"S{j}")
            for q in range(j + 1): pg.release(q)
        d = [lambda g=g: pg.issue(g) for g in pg.take(6 if j < 2 else 4, stop=(('w', 0, 0) if 'nohold' not in VAR else None))]
        b = WF + 16 * (j & 1)
        def g0():
            a("s_bitcmp1_b32 s3, 1")
            a(f"s_mov_b32 s{SP}, {pg.page[('x', 2*j)]*8192}")
            a(f"s_cselect_b32 s{SP}, {pg.page[('x', 2*j+1)]*8192}, s{SP}")
            a(f"v_mul_u32_u24 v8, s{SP}, v{MX}")
            a(f"v_add_u32 v{AX}, v8, v{BX}")
            a(f"v_add_u32 v{AX+1}, v8, v{BX+1}")
            a(f"v_add_u32 v{AW}, {pg.page[('k', j)]*8192}, v{BW}")
            for e in range(2): k.ds(f"ds_read_b128 {vr(b+4*e,4)}, v{AX+e}", ("s", j))
            for e in range(2):
                for u in range(2):
                    k.ds(f"ds_read_b64_tr_b16 {vr(b+8+4*e+2*u,2)}, v{AW} offset:{(16*e+4*u)*64}", ("s", j))
            a(f"v_add_u32 v{BX}, v{I17}, v{BX}")
            a(f"v_add_u32 v{BX+1}, v{I17}, v{BX+1}")
        def g1():
            if j > 0:
                lg.wait(("s", j - 1), ("xr", j - 1))
                kv_mfma(j - 1)
        def g2(e):
            if j < 4:
                for s in range(4): xread(2*j+e, s, XREG + 16*(2*j+e) + 4*s, ("xr", j))
        if j == WT_IT: d.insert(WT_POS, wtouch)
        if j == DBG_IT: d.insert(2 if j == 3 else 0, lambda: k.only(f's_cmp_eq_u32 s3, {FB0}', lambda: a(f'global_load_dword v16, v1, s[{P_DBG}:{P_DBG+1}] sc1')))
        g2(0)
        spread([g0, g1, lambda: g2(1)], d)
    F = FT
    R2 = RED + 16384
    SF = WF + 16
    M, RI, R, V = SF + 2, SF + 3, SF + 1, SF + 8
    def st_reads():
        a("v_and_b32 v5, 15, v2")
        a("v_lshlrev_b32 v6, 4, v5")
        for w in range(4): a(f"ds_read_b64 {vr(SF+2*w,2)}, v6 offset:{R2+w*4096+2*1024}")
        a("v_bfe_u32 v8, v5, 2, 1")
        a("v_lshl_add_u32 v8, v8, 9, v6")
        a("v_lshrrev_b32 v9, 3, v5")
        a("v_lshl_add_u32 v8, v9, 10, v8")
        a("v_and_b32 v9, 3, v5")
        a("v_lshl_add_u32 v8, v9, 2, v8")
        for w in range(4): a(f"ds_read_b32 v{SF+8+w}, v8 offset:{R2+w*4096}")
    def st_compute(extra=()):
        extra = list(extra)
        def fill(n):
            for _ in range(min(n, len(extra))): a(extra.pop(0))
        for w in range(1, 4):
            a(f"v_add_f32 v{SF}, v{SF}, v{SF+2*w}")
            a(f"v_add_f32 v{V}, v{V}, v{V+w}")
            a(f"v_add_f32 v{SF+1}, v{SF+1}, v{SF+2*w+1}")
        chain = [f"v_mul_f32 v{SF}, {f32(1/1024)}, v{SF}", f"v_mul_f32 v{V}, {f32(1/1024)}, v{V}",
                 f"v_fma_f32 v{V}, -v{SF}, v{SF}, v{V}", f"v_max_f32 v{V}, 0, v{V}",
                 f"v_cvt_pk_bf16_f32 v{M}, v{SF}, v{SF}", f"v_cvt_pk_bf16_f32 v{V}, v{V}, v{V}",
                 f"v_lshlrev_b32 v{M}, 16, v{M}", f"v_lshlrev_b32 v{V}, 16, v{V}",
                 f"v_add_f32 v{V}, {f32(1e-5)}, v{V}", f"v_cvt_pk_bf16_f32 v{V}, v{V}, v{V}", f"v_lshlrev_b32 v{V}, 16, v{V}",
                 f"v_sqrt_f32 v{V}, v{V}", f"v_cvt_pk_bf16_f32 v{V}, v{V}, v{V}", f"v_lshlrev_b32 v{V}, 16, v{V}",
                 f"v_rcp_f32 v{RI}, v{V}"]
        for x in chain: a(x); fill(2)
        fill(100)
    def fin0():
        st_reads()
        a(f"v_mov_b32 v9, {16*16 + 4}")
        for w in range(4): a(f"ds_read_b32 v{SF+12+w}, v9 offset:{R2+w*4096+2*1024}")
        a(f"s_lshl_b32 s{T0}, s2, 8")
        a(f"s_add_u32 s{T0}, s{T0}, {WS_YACC:#x}")
        a("v_lshlrev_b32 v8, 2, v2")
        a(f"buffer_store_dword v17, v8, {sr(S_WS)}, s{T0} offen sc1")
        a(f"s_add_u32 s{T0}, s{T0}, {SYB - WS_YACC:#x}")
        a(f"buffer_store_dword v17, v8, {sr(S_WS)}, s{T0} offen sc1")
        a("s_waitcnt lgkmcnt(0)")
        def rk():
            st_compute([f"v_add_f32 v{SF+12}, v{SF+12}, v{SF+12+w}" for w in range(1, 4)] +
                       [f"s_lshl_b32 s{T0}, s{RG}, 4", f"v_add_u32 v9, s{T0}, v5", "v_sub_u32 v9, 0xffff, v9", "v_lshlrev_b32 v6, 3, v5",
                        f"s_lshl_b32 s{T0}, s{RG}, 7", f"s_add_u32 s{T0}, s{T0}, {WS_STAT:#x}",
                        f"s_lshl_b32 s{T1}, s{RG}, 2", f"s_add_u32 s{T1}, s{T1}, {WS_RKEY:#x}"])
            a(f"v_fma_f32 v{R}, -v{M}, v{SF+12}, v{R}")
            a("s_mov_b64 exec, 0xffff")
            a(f"buffer_store_dwordx2 v[{M}:{RI}], v6, {sr(S_WS)}, s{T0} offen sc1")
            a(f"v_mul_f32 v{R}, v{R}, v{RI}")
            a(f"v_cvt_pk_bf16_f32 v{R}, v{R}, v{R}")
            a(f"v_ashrrev_i32 v8, 31, v{R}")
            a("v_or_b32 v8, 0x80000000, v8")
            a(f"v_xor_b32 v{R}, v{R}, v8")
            a(f"v_and_b32 v{R}, 0xffff0000, v{R}")
            a(f"v_or_b32 v{R}, v{R}, v9")
            for sh in (8, 4, 2, 1):
                a(f"v_max_u32_dpp v{R}, v{R}, v{R} row_ror:{sh} row_mask:0xf bank_mask:0xf")
            a("s_mov_b64 exec, 1")
            a(f"buffer_store_dword v{R}, v6, {sr(S_WS)}, s{T1} offen sc1")
            a("s_mov_b64 exec, -1")
        k.only(f"s_cmp_eq_u32 s{SEL}, 0", rk)
    def fin12():
        st_reads()
        adds = [f"v_add_f32 v{F+e}, v{F+e}, v{F+4*w+e}" for w in range(1, 4) for e in range(4)]
        a(f"s_lshr_b32 s{T2}, s{RG}, 1")
        a(f"s_lshl_b32 s{T2}, s{T2}, 12")
        a(f"s_and_b32 s{T1}, s{RG}, 1")
        def kk():
            a("v_bfe_u32 v9, v2, 4, 1")
            a("v_lshlrev_b32 v8, 9, v9")
            a(f"v_lshl_add_u32 v8, v{VH}, 10, v8")
            a(f"s_lshl_b32 s{T0}, s{FW}, 11")
            a(f"v_add_u32 v8, s{T0}, v8")
            a("v_add_u32 v9, v6, v8")
            for w in range(4): a(f"ds_read_b128 {vr(F+4*w,4)}, v9 offset:{RED+w*4096}")
            for w in range(4): a(f"ds_read_b128 {vr(F+16+4*w,4)}, v8 offset:{RED+w*4096+256}")
            a("v_and_b32 v8, 3, v5")
            a("v_bfe_u32 v9, v5, 2, 1")
            a("v_lshl_add_u32 v8, v9, 3, v8")
            a("v_bfe_u32 v9, v5, 3, 1")
            a("v_lshl_add_u32 v8, v9, 2, v8")
            a("v_bfe_u32 v9, v2, 4, 1")
            a("v_lshl_add_u32 v8, v9, 5, v8")
            a("v_lshlrev_b32 v8, 4, v8")
            a(f"v_lshl_add_u32 v8, v{VH}, 3, v8")
            a(f"s_lshl_b32 s{T0}, s{FW}, 10")
            a(f"s_add_u32 s{T2}, s{T2}, s{T0}")
            a(f"s_lshl_b32 s{T1}, s{T1}, 8")
            a(f"s_add_u32 s{T2}, s{T2}, s{T1}")
            a("s_waitcnt lgkmcnt(0)")
            st_compute(adds + [f"v_add_f32 v{F+16+e}, v{F+16+e}, v{F+16+4*w+e}" for w in range(1, 4) for e in range(4)])
            for e in range(4): a(f"v_fma_f32 v{F+e}, -v{M}, v{F+16+e}, v{F+e}")
            for e in range(4): a(f"v_mul_f32 v{F+e}, v{F+e}, v{RI}")
        def vv():
            a(f"s_lshl_b32 s{T0}, s{FW}, 10")
            a(f"v_add_u32 v9, s{T0}, v{VL16}")
            for w in range(4): a(f"ds_read_b128 {vr(F+4*w,4)}, v9 offset:{RED+w*4096}")
            a(f"v_lshlrev_b32 v8, 4, v{VN}")
            for w in range(4): a(f"ds_read_b32 v{F+16+w}, v8 offset:{RED+w*4096+2048}")
            a(f"v_mov_b32 v8, v{VL16}")
            a(f"s_lshl_b32 s{T1}, s{T1}, 10")
            a(f"s_add_u32 s{T2}, s{T2}, s{T1}")
            a(f"s_lshl_b32 s{T1}, s{FW}, 3")
            a(f"s_add_u32 s{T2}, s{T2}, s{T1}")
            a(f"s_add_u32 s{T2}, s{T2}, 2048")
            a(f"s_lshl_b32 s{T0}, s{FW}, 5")
            a(f"v_lshlrev_b32 v6, 4, v{VH}")
            a(f"v_add_u32 v6, s{T0}, v6")
            a("s_waitcnt lgkmcnt(0)")
            st_compute(adds + [f"v_add_f32 v{F+16}, v{F+16}, v{F+16+w}" for w in range(1, 4)])
            for e in range(4): a(f"ds_bpermute_b32 v{F+20+e}, v6, v{M} offset:{4*e}")
            for e in range(4): a(f"ds_bpermute_b32 v{F+24+e}, v6, v{RI} offset:{4*e}")
            a("s_waitcnt lgkmcnt(4)")
            for e in range(4): a(f"v_fma_f32 v{F+e}, -v{F+20+e}, v{F+16}, v{F+e}")
            a("s_waitcnt lgkmcnt(0)")
            for e in range(4): a(f"v_mul_f32 v{F+e}, v{F+e}, v{F+24+e}")
        k.ifelse(f"s_cmp_eq_u32 s{SEL}, 0", kk, vv)
        a(f"v_cvt_pk_bf16_f32 v{F+12}, v{F}, v{F+1}")
        a(f"v_cvt_pk_bf16_f32 v{F+13}, v{F+2}, v{F+3}")
        a(f"buffer_store_dwordx2 {vr(F+12,2)}, v8, {sr(S_WS)}, s{T2} offen sc1")
    def fin_arrive():
        a(f"s_waitcnt vmcnt({vm.since('fs')})")
        top, done = L(), L()
        a(f"s_mov_b32 s{CNT}, 0")
        a.label(top)
        a("v_cmp_eq_u32 vcc, 0, v16")
        a(f"s_add_u32 s{CNT}, s{CNT}, 1")
        a(f"s_cbranch_vccz {done}")
        a(f"global_load_dword v16, v1, s[{P_DBG}:{P_DBG+1}] sc1")
        a("s_waitcnt vmcnt(0)")
        a(f"s_cmp_lt_u32 s{CNT}, {SPIN_MAX}")
        a(f"s_cbranch_scc1 {top}")
        a.label(done)
        a("v_mov_b32 v8, 1")
        a(f"v_mov_b32 v9, {TAB + 128}")
        a("s_mov_b64 exec, 1")
        a("ds_add_rtn_u32 v9, v9, v8")
        a("s_waitcnt lgkmcnt(0)")
        a("v_cmp_eq_u32 vcc, 2, v9")
        a("s_mov_b64 exec, 0xff")
        nl = L()
        a(f"s_cbranch_vccz {nl}")
        a(f"s_lshr_b32 s{T0}, s2, 3")
        a(f"s_lshl_b32 s{T0}, s{T0}, 7")
        a(f"s_add_u32 s{T0}, s{T0}, {SY1:#x}")
        a("v_lshlrev_b32 v9, 12, v2")
        a(f"buffer_atomic_add v8, v9, {sr(S_WS)}, s{T0} offen sc1")
        a.label(nl)
        a("s_mov_b64 exec, -1")
    W0, W12, W012 = f"s_cmp_eq_u32 s3, {FB0}", f"s_cmp_lt_u32 s{FW}, 2", ("s_cmp_lt_u32 s3, 3" if FB0 == 0 else f"s_add_u32 s{T0}, s{FW}, 1\ns_cmp_lt_u32 s{T0}, 3")
    def kv_dma(i, chunk):
        a(f"s_add_u32 m0, s{W4K}, {chunk*32768 + i*1024}")
        a(f"s_add_u32 s{XSO}, s{W4K}, {chunk*32768 + i*1024}")
        a(f"buffer_load_dwordx4 v{VL16}, {sr(S_KV)}, s{XSO} offen sc1 lds"); vm.add(("kv", chunk))
    RK, PV, ST2 = 126, 122, 124
    pool = [WF, WF + 8]
    wreg, xreg = {}, {c: (XREG + 16*c, XREG + 16*c + 8) for c in range(8)}
    def rd_ops(c):
        need = 1 if c < 8 else 3
        if len(pool) < need: return None
        wreg[c] = pool.pop(0)
        if c >= 8: xreg[c] = (pool.pop(0), pool.pop(0))
        ops = []
        for e in range(2):
            def w(e=e):
                vm.wait(("w", c, e))
                p = pg.page[("w", c, e)]
                for u in range(2):
                    k.ds(f"ds_read_b64_tr_b16 {vr(wreg[c]+4*e+2*u,2)}, v{VW + (p >> 3)} offset:{(p & 7)*8192 + 4*u*64}", ("q", c, e))
            def x(e=e):
                for t in range(2): xread(c, 2*t+e, xreg[c][t] + 4*e, ("q", c, e))
            if c >= 8: ops.append(x)
            ops.append(w)
        return ops
    def rd(c):
        for o in rd_ops(c): o()
    def mm_ops(c):
        def m(e, t):
            if t == 0:
                lg.wait(("q", c, e)); pg.free.append(pg.page[("w", c, e)])
            acc = ACCX if t else ACCO
            cc = "0" if (c == 0 and e == 0) else vr(acc, 16)
            if 'nomm' not in VAR: a(f"v_mfma_f32_32x32x16_bf16 {vr(acc,16)}, {vr(wreg[c]+4*e,4)}, {vr(xreg[c][t]+4*e,4)}, {cc}")
        def s():
            a(f"v_smfmac_f32_16x16x64_bf16 {vr(CS,4)}, {vr(MA,4)}, {vr(wreg[c],8)}, v{IDXC}")
            pool.append(wreg[c])
            if c not in (2, 5, 6): pool.extend(xreg[c])
        return [lambda: m(0, 0), lambda: m(0, 1), lambda: m(1, 0), lambda: m(1, 1), s]
    def dmas(n):
        for g_ in pg.take(n): pg.issue(g_)
    def ld_stat():
        a(f"s_lshl_b32 s{T0}, s{ROWT}, 8")
        a(f"s_add_u32 s{T0}, s{T0}, {WS_STAT:#x}")
        a(f"v_lshlrev_b32 v5, 3, v{VN}")
        a(f"buffer_load_dwordx2 {vr(STAT,2)}, v5, {sr(S_WS)}, s{T0} offen sc1"); vm.add("stat")
    def ld_stat2():
        a(f"s_xor_b32 s{T0}, s{T0}, 0x100")
        a(f"buffer_load_dword v{ST2}, v5, {sr(S_WS)}, s{T0} offen sc1"); vm.add("stat")
    def ld_rk():
        a("v_lshlrev_b32 v5, 3, v2")
        a(f"s_mov_b32 s{T0}, {WS_RKEY:#x}")
        a(f"buffer_load_dwordx2 {vr(RK,2)}, v5, {sr(S_WS)}, s{T0} offen sc1"); vm.add("rk")
    def kvt():
        a(f"s_lshr_b32 s{T0}, s2, 3")
        a(f"s_lshl_b32 s{T0}, s{T0}, 13")
        a("v_lshlrev_b32 v5, 7, v2")
        a(f"buffer_load_dword v16, v5, {sr(S_KV)}, s{T0} offen sc1")
    pl = [ld_stat, ld_stat2] + [lambda i=i: kv_dma(i, 0) for i in range(4)] + [ld_rk, lambda: k.only("s_cmp_eq_u32 s3, 6", kvt)]
    post = {CHK + 1: pl[:4], CHK + 2: pl[4:]} if CHK <= 11 else {13: pl}
    post.update({
            5: [lambda: k.ffn.early(0)], 6: [lambda: k.ffn.early(1)], 7: [lambda: k.ffn.early(2)]})
    k.stamp("B0")
    k.delay(77)
    lg.wait(("s", 7)); kv_mfma(7)
    dmas(NW0)
    a(f"v_add_u32 v8, s{W4K}, v{VL16}")
    for q in range(4): k.ds(f"ds_write_b128 v8, {vr(ACC+4*q,4)} offset:{RED + q*1024}", "red")
    lg.wait_all()
    a("s_barrier"); pg.release(7); pg.release(8); pg.release(9)
    k.only(W0, fin0); k.only(W12, fin12); vm.mark("fs")
    dmas(7)
    if ARR < 0: k.only(W012, fin_arrive)
    rd(0); rd(1)
    k.stamp('R1')
    for c in range(14):
        if c == PI:
            a(f"v_lshlrev_b32 v{PV}, 7, v{VN}")
            a(f"s_and_b32 s{T3}, s2, 7")
            a(f"s_lshl_b32 s{T3}, s{T3}, 12")
            a(f"s_add_u32 s{T3}, s{T3}, {SY1:#x}")
            k.only(W0, lambda: a(f"buffer_load_dword v{PV+1}, v{PV}, {sr(S_WS)}, s{T3} offen sc1"))
            vm.mark("poll")
        ro = rd_ops(c + 2) if c + 2 < 16 else []
        d1 = lambda: dmas(1)
        extra = post.pop(c, [])
        if 'nopost' in VAR: extra = []
        if ro is None: interleave(mm_ops(c), [d1, d1, d1]); rd(c + 2)
        else:
            h = len(ro) // 2
            interleave(mm_ops(c), [d1] + ro[:h] + [d1] + ro[h:] + [d1] + extra)
        if 'fine' in VAR and c in (1, 2, 4, 6, 8, 10, 12, 13, 14): k.stamp(f'M{c}')
        if c == ARR: k.only(W012, fin_arrive)
        if c == R2C:
            a("s_barrier"); pg.hold = set()
        if c == CHK:
            def chk():
                a(f"s_waitcnt vmcnt({vm.since('poll')})")
                k.poll(PV, PV + 1, T3, 8)
            if 'nopub' not in VAR: k.only(W0, chk)
            if 'nor3' not in VAR: a("s_barrier")
    EX, MB = 208, 224
    assert all(b not in list(wreg[c_] for c_ in (14, 15)) + list(xreg[14]) + list(xreg[15]) for b in (208, 216, 224)), (wreg, xreg)
    m14, m15 = mm_ops(14), mm_ops(15)
    lg.wait(("q", 14, 0), ("q", 14, 1)); m14[4]()
    m14[1]()
    a(f"v_cmp_eq_u32 vcc, 0, v{VH}")
    vm.wait("stat")
    a(f"v_cvt_pk_bf16_f32 v{MB}, -v{STAT}, -v{STAT}")
    a(f"v_cvt_pk_bf16_f32 v{MB+4}, -v{ST2}, -v{ST2}")
    lg.wait(("q", 15, 0), ("q", 15, 1)); m15[4]()
    m14[3]()
    a(f"v_cndmask_b32 v{MB}, 0, v{MB}, vcc")
    a(f"v_cndmask_b32 v{MB+4}, 0, v{MB+4}, vcc")
    a(f"v_mov_b32 v{MB+1}, v{MB}"); a(f"v_mov_b32 v{MB+5}, v{MB+4}")
    for i in (2, 3, 6, 7): a(f"v_mov_b32 v{MB+i}, 0")
    m15[1]()
    a("v_mov_b32 v10, 0"); a("v_mov_b32 v11, 0")
    a(f"v_add_f32 v6, v{CS}, v{CS+1}")
    a("v_cvt_pk_bf16_f32 v5, v6, v6")
    a("v_lshlrev_b32 v5, 16, v5")
    a("v_sub_f32 v5, v6, v5")
    m15[3]()
    a("v_cvt_pk_bf16_f32 v8, v6, v5")
    a("v_and_b32 v6, 0xffff0000, v8")
    a("v_sub_f32 v5, v5, v6")
    a("v_cvt_pk_bf16_f32 v9, v5, 0")
    a(f"v_add_u32 v12, s{W1K}, v{VL16}")
    a("v_add_u32 v12, 0x10000, v12")
    a(f"v_mfma_f32_32x32x16_bf16 {vr(ACCX,16)}, v[8:11], {vr(MB+4,4)}, {vr(ACCX,16)}")
    a("v_and_b32 v5, 1, v2")
    a("v_cmp_eq_u32 vcc, 0, v5")
    m14[0]()
    a(f"v_mul_f32 v6, {f32(QSCALE)}, v{STAT+1}")
    a("v_xor_b32 v13, 0x400, v12")
    for i in range(4): a(f"v_cndmask_b32 v{MA+i}, 0, v{MA+i}, vcc")
    m14[2]()
    for i in range(4): a(f"v_pk_mov_b32 {vr(OA+2*i,2)}, 0, 0")
    for q in range(2): a(f"ds_write_b128 v12, {vr(ACCX+4*q,4)} offset:{q*8192}")
    m15[0]()
    for q in range(2, 4): a(f"ds_write_b128 v12, {vr(ACCX+4*q,4)} offset:{q*8192}")
    for i in range(4, 8): a(f"v_pk_mov_b32 {vr(OA+2*i,2)}, 0, 0")
    m15[2]()
    for i in range(2): a(f"v_pk_mov_b32 {vr(LS+2*i,2)}, 0, 0")
    a(f"v_add_u32 v{VK1}, 0x10000, v{VL16}")
    a(f"v_mfma_f32_32x32x16_bf16 {vr(ACCO,16)}, v[8:11], {vr(MB,4)}, {vr(ACCO,16)}")
    k.EX = EX
    for p in (8, 9, 10, 11): assert p in pg.free
    k.stamp("B_end")
    if "stopB" in VAR: a("s_endpgm")
    k.ACCX, k.ACCO, k.ST2 = ACCX, ACCO, ST2
    k.ACC, k.CS, k.RK = ACC, CS, RK


def attention(k):
    a, vm, lg, ffn = k.a, k.vm, k.lg, k.ffn
    ACCX, ACC, CS, ST2 = k.ACCX, k.ACCO, k.CS, k.ST2
    EX = k.EX
    srd(a, S_W, P_WO, 1024 * 2048)
    vm.wait(("kv", 0))
    a("s_waitcnt lgkmcnt(0)")
    a("s_barrier")
    for q in range(4): a(f"ds_read_b128 {vr(EX+4*q,4)}, v13 offset:{q*8192}")
    a(f"ds_read_b128 {vr(KA,4)}, v{VL16}")
    a(f"ds_read_b128 {vr(KA+4,4)}, v{VL16} offset:1024")
    a(f"s_add_u32 m0, s{W4K}, 32768")
    a(f"s_add_u32 s{XSO}, s{W4K}, 32768")
    a(f"buffer_load_dwordx4 v{VL16}, {sr(S_KV)}, s{XSO} offen sc1 lds"); vm.add(("kv", 1))
    for q in range(4):
        a(f"s_waitcnt lgkmcnt({5-q})")
        for i in (2*q, 2*q+1): a(f"v_pk_add_f32 {vr(ACC+2*i,2)}, {vr(ACC+2*i,2)}, {vr(EX+2*i,2)}")
        for i in (2*q, 2*q+1): a(f"v_pk_mul_f32 {vr(ACC+2*i,2)}, {vr(ACC+2*i,2)}, v[6:7] op_sel_hi:[1,0]")
        for i in (2*q, 2*q+1): a(f"v_cvt_pk_bf16_f32 v{QF+i}, v{ACC+2*i}, v{ACC+2*i+1}")
    a("s_waitcnt lgkmcnt(0)")
    a(f"v_mfma_f32_32x32x16_bf16 {vr(SA,16)}, {vr(KA,4)}, {vr(QF,4)}, 0")
    a(f"v_mfma_f32_32x32x16_bf16 {vr(SA,16)}, {vr(KA+4,4)}, {vr(QF+4,4)}, {vr(SA,16)}")
    def kvaddr(tile, off):
        p = ((tile >> 3) % 3) * 32768 + (tile & 7) * 4096 + off
        return (f"v{VL16} offset:{p}" if p < 65536 else f"v{VK1} offset:{p - 65536}")
    lg.tags = []
    k.ds(f"ds_read_b128 {vr(KA,4)}, {kvaddr(1, 0)}", ("K", 1))
    k.ds(f"ds_read_b128 {vr(KA+4,4)}, {kvaddr(1, 1024)}", ("K", 1))
    k.ds(f"ds_read_b128 {vr(VA,4)}, {kvaddr(0, 2048)}", ("V0", 0))
    a(f"v_max3_f32 v6, v{SA}, v{SA+1}, v{SA+2}")
    a(f"v_max3_f32 v5, v{SA+3}, v{SA+4}, v{SA+5}")
    a(f"v_max3_f32 v6, v6, v{SA+6}, v{SA+7}")
    a(f"v_max3_f32 v5, v5, v{SA+8}, v{SA+9}")
    a(f"v_max3_f32 v6, v6, v{SA+10}, v{SA+11}")
    a(f"v_max3_f32 v5, v5, v{SA+12}, v{SA+13}")
    a(f"v_max3_f32 v6, v6, v{SA+14}, v{SA+15}")
    a("v_max_f32 v6, v6, v5")
    a("v_mov_b32 v5, v6")
    a("v_permlane32_swap_b32 v6, v5")
    a("v_max_f32 v6, v6, v5")
    a(f"v_sub_f32 v{NM}, 0, v6")
    a(f"v_sub_f32 v{NM+1}, 0, v6")
    for i in range(8): a(f"v_pk_add_f32 {vr(SA+2*i,2)}, {vr(SA+2*i,2)}, {vr(NM,2)}")
    for i in range(1, 8): a(f"v_pk_mov_b32 {vr(NM+2*i,2)}, {vr(NM,2)}, {vr(NM,2)}")
    k.stamp("loop_start")
    if "pad4" in VAR: a("s_nop 0")
    if "al64" in VAR: a.raw(".p2align 6")
    for T in range(64):
        c, t = T >> 3, T & 7
        S, P = (SA, SB) if T % 2 == 0 else (SB, SA)
        e = lambda i: a(f"v_exp_f32 v{S+i}, v{S+i}")
        if "pr2" in VAR: a(f"s_setprio {1 - (T & 1)}")
        elif "prh" in VAR: a(f"s_setprio {3 - ((2*T) & 3)}")
        elif "noprio" not in VAR: a(f"s_setprio {3 - ((T + 1) & 3)}")
        if "dense" in VAR:
            PK = 140
            cv = lambda i, B: a(f"v_cvt_pk_bf16_f32 v{PK+i}, v{B+2*i}, v{B+2*i+1}")
            e(0)
            if T > 0: cv(7, P)
            e(1); e(2)
            if T > 0:
                lg.wait(("V1", T - 1))
                a(f"v_mfma_f32_32x32x16_bf16 {vr(OA,16)}, {vr(VA+4,4)}, {vr(PK+4,4)}, {vr(OA,16)}")
            k.ds(f"ds_read_b128 {vr(VA+4,4)}, {kvaddr(T, 3072)}", ("V1", T))
            e(3); e(4); e(5)
            if T > 0: a(f"v_smfmac_f32_16x16x64_bf16 {vr(LS,4)}, {vr(MA,4)}, {vr(PK,8)}, v{IDXC}")
            cv(0, S)
            if T < 63:
                lg.wait(("K", T + 1))
                a(f"v_mfma_f32_32x32x16_bf16 {vr(P,16)}, {vr(KA,4)}, {vr(QF,4)}, {vr(NM,16)}")
            e(6); cv(1, S); e(7); cv(2, S)
            if T < 63:
                a(f"v_mfma_f32_32x32x16_bf16 {vr(P,16)}, {vr(KA+4,4)}, {vr(QF+4,4)}, {vr(P,16)}")
            if t == 6 and c < 7:
                vm.wait(("kv", c + 1))
                a("s_barrier")
            if T + 2 <= 63:
                k.ds(f"ds_read_b128 {vr(KA,4)}, {kvaddr(T + 2, 0)}", ("K", T + 2))
                k.ds(f"ds_read_b128 {vr(KA+4,4)}, {kvaddr(T + 2, 1024)}", ("K", T + 2))
            kc, kp = (c + 2, 0) if t == 7 else (c + 1, t + 1)
            if (t == 7 or t <= 2) and kc <= 7:
                a(f"s_add_u32 m0, s{W4K}, {(kc % 3) * 32768 + kp * 1024}")
                a(f"s_add_u32 s{XSO}, s{W4K}, {kc * 32768 + kp * 1024}")
                a(f"buffer_load_dwordx4 v{VL16}, {sr(S_KV)}, s{XSO} offen {KVF} lds"); vm.add(("kv", kc))
            cv(3, S); e(8); e(9); e(10)
            lg.wait(("V0", T))
            a(f"v_mfma_f32_32x32x16_bf16 {vr(OA,16)}, {vr(VA,4)}, {vr(PK,4)}, {vr(OA,16)}")
            if T < 63: k.ds(f"ds_read_b128 {vr(VA,4)}, {kvaddr(T + 1, 2048)}", ("V0", T + 1))
            cv(4, S); e(11); e(12); cv(5, S); e(13); e(14); cv(6, S); e(15)
        else:
            e(0); e(1)
            if T > 0:
                lg.wait(("V1", T - 1))
                a(f"v_smfmac_f32_32x32x32_bf16 {vr(OA,16)}, {vr(VA+4,4)}, {vr(P+8,8)}, v{IDXD}")
            k.ds(f"ds_read_b128 {vr(VA+4,4)}, {kvaddr(T, 3072)}", ("V1", T))
            e(2); e(3); e(4)
            if T > 0: a(f"v_smfmac_f32_16x16x64_bf16 {vr(LS,4)}, {vr(MA,4)}, {vr(P+8,8)}, v{IDXD}")
            e(5)
            if T < 63:
                lg.wait(("K", T + 1))
                a(f"v_mfma_f32_32x32x16_bf16 {vr(P,16)}, {vr(KA,4)}, {vr(QF,4)}, {vr(NM,16)}")
            e(6); e(7); e(8)
            if T < 63:
                a(f"v_mfma_f32_32x32x16_bf16 {vr(P,16)}, {vr(KA+4,4)}, {vr(QF+4,4)}, {vr(P,16)}")
            if t == 6 and c < 7:
                vm.wait(("kv", c + 1))
                if "racy" not in VAR: a("s_barrier")
            if T + 2 <= 63:
                k.ds(f"ds_read_b128 {vr(KA,4)}, {kvaddr(T + 2, 0)}", ("K", T + 2))
                k.ds(f"ds_read_b128 {vr(KA+4,4)}, {kvaddr(T + 2, 1024)}", ("K", T + 2))
            def kvd():
                for kp in range(4):
                    if KVT[kp] != t: continue
                    kc = c + 2 if t >= 6 else c + 1
                    if kc > 7 or (kc == 1 and kp == 0): continue
                    a(f"s_add_u32 m0, s{W4K}, {(kc % 3) * 32768 + kp * 1024}")
                    a(f"s_add_u32 s{XSO}, s{W4K}, {kc * 32768 + kp * 1024}")
                    a(f"buffer_load_dwordx4 v{VL16}, {sr(S_KV)}, s{XSO} offen {KVF} lds"); vm.add(("kv", kc))
                if T == 0:
                    for kp in range(1, 4):
                        if KVT[kp] >= 6:
                            a(f"s_add_u32 m0, s{W4K}, {32768 + kp * 1024}")
                            a(f"s_add_u32 s{XSO}, s{W4K}, {32768 + kp * 1024}")
                            a(f"buffer_load_dwordx4 v{VL16}, {sr(S_KV)}, s{XSO} offen {KVF} lds"); vm.add(("kv", 1))
            if KVP == 0: kvd()
            if "prh" in VAR: a(f"s_setprio {3 - ((2*T+1) & 3)}")
            e(9); e(10); e(11)
            lg.wait(("V0", T))
            a(f"v_smfmac_f32_32x32x32_bf16 {vr(OA,16)}, {vr(VA,4)}, {vr(S,8)}, v{IDXD}")
            if T < 63: k.ds(f"ds_read_b128 {vr(VA,4)}, {kvaddr(T + 1, 2048)}", ("V0", T + 1))
            if KVP == 1: kvd()
            e(12); e(13); e(14)
            a(f"v_smfmac_f32_16x16x64_bf16 {vr(LS,4)}, {vr(MA,4)}, {vr(S,8)}, v{IDXD}")
            e(15)
            if KVP == 2: kvd()
        if "noffn" not in VAR: ffn.tile_end(T)
        if 'nod' not in VAR: k.D.tile_end(T)
    a("s_setprio 0")
    lg.wait_all()
    a(f"v_smfmac_f32_32x32x32_bf16 {vr(OA,16)}, {vr(VA+4,4)}, {vr(SB+8,8)}, v{IDXD}")
    a(f"v_smfmac_f32_16x16x64_bf16 {vr(LS,4)}, {vr(MA,4)}, {vr(SB+8,8)}, v{IDXD}")
    k.stamp("loop_end")
    k.delay(200)
    if "stopC" in VAR: a("s_endpgm")

FBASE = 98304
class FFN:
    VGU, VTR, VOD, VTD, XSL, VL4, XST, TMP, XS, WB, DD = 160, 161, 162, 163, 164, 165, 166, 168, 176, 192, 224
    FB, GSO, DSO, YSO, ASO = 66, 67, 94, 95, 65
    def __init__(self, k): self.k, self.a, self.vm = k, k.a, k.vm
    def early(self, part):
        t = self.TMP
        lines = []
        a = lines.append
        a(f"s_add_u32 s{self.FB}, s{W8K}, {FBASE}")
        a(f"v_lshrrev_b32 v{t}, 3, v2")
        a(f"v_mul_u32_u24 v{t}, 7168, v{t}")
        a(f"v_and_b32 v{t+1}, 7, v2")
        a(f"v_lshl_add_u32 v{self.VGU}, v{t+1}, 4, v{t}")
        a(f"v_bfe_u32 v{t}, v2, 2, 2")
        a(f"v_lshrrev_b32 v{t+1}, 4, v2")
        a(f"v_lshl_add_u32 v{t+1}, v{t+1}, 3, v{t}")
        a(f"v_lshlrev_b32 v{t+1}, 7, v{t+1}")
        a(f"v_and_b32 v{t+2}, 3, v2")
        a(f"v_lshl_add_u32 v{t+1}, v{t+2}, 3, v{t+1}")
        a(f"v_add_u32 v{self.VTR}, s{self.FB}, v{t+1}")
        a(f"v_lshrrev_b32 v{t+1}, 4, v2")
        a(f"v_lshlrev_b32 v{t+3}, 2, v{t+1}")
        a(f"v_xor_b32 v{t+3}, v{t+3}, v2")
        a(f"v_and_b32 v{t+3}, 15, v{t+3}")
        a(f"v_lshlrev_b32 v{t+3}, 4, v{t+3}")
        a(f"v_lshl_add_u32 v{t+3}, v{t+1}, 11, v{t+3}")
        a(f"s_lshl_b32 s{T0}, s3, 8")
        a(f"v_add_u32 v{self.VOD}, s{T0}, v{t+3}")
        a(f"v_mul_u32_u24 v{t}, 320, v{t}")
        a(f"v_lshl_add_u32 v{t}, v{VH}, 11, v{t}")
        a(f"v_bfe_u32 v{t+1}, v2, 4, 1")
        a(f"v_lshl_add_u32 v{t}, v{t+1}, 5, v{t}")
        a(f"v_lshl_add_u32 v{t}, v{t+2}, 3, v{t}")
        a(f"v_add_u32 v{self.VTD}, s{self.FB}, v{t}")
        a(f"v_lshlrev_b32 v{self.VL4}, 2, v2")
        a(f"v_and_b32 v{t}, 60, v{self.VL4}")
        a(f"v_mov_b32 v{t+1}, 0")
        a(f"s_and_b32 s{T0}, s{FCG}, 3")
        a(f"s_lshl_b32 s{T0}, s{T0}, 3")
        a(f"s_add_u32 s{T0}, s{T0}, s3")
        a(f"s_lshl_b32 s{SP}, s{T0}, 6")
        a(f"s_mul_i32 s{self.GSO}, s{T0}, {32*7168}")
        a(f"s_lshr_b32 s{T1}, s{FCG}, 2")
        a(f"s_lshl_b32 s{T2}, s{T1}, 7")
        a(f"s_add_u32 s{self.GSO}, s{self.GSO}, s{T2}")
        a(f"s_lshl_b32 s{self.ASO}, s{T1}, 8")
        a(f"s_add_u32 s{self.ASO}, s{self.ASO}, {WS_GU:#x}")
        a(f"s_lshl_b32 s{self.DSO}, s{FCG}, 15")
        a(f"s_and_b32 s{self.YSO}, s2, 7")
        a(f"s_lshl_b32 s{self.YSO}, s{self.YSO}, 12")
        a(f"s_lshl_b32 s{T0}, s3, 9")
        a(f"s_add_u32 s{self.YSO}, s{self.YSO}, s{T0}")
        a(f"s_add_u32 s{self.YSO}, s{self.YSO}, {WS_YACC:#x}")
        a("s_cmp_lt_u32 s2, 224")
        for r in (self.GSO, self.DSO, self.YSO, self.ASO):
            a(f"s_cselect_b32 s{r}, s{r}, 0x40000000")
        srd(a, S_WD, P_WD, 3584 * 2048)
        srd(a, S_OUT, P_OUT, 2048 * 2048)
        cut = [0, 12, 29, len(lines)]
        for x in lines[cut[part]:cut[part+1]]: self.a(x)
    def argmax1(self):
        a, RK = self.a, self.k.RK
        self.vm.wait('rk')
        a(f"v_max_u32 v5, v{RK}, v{RK+1}")
        for sh in (8, 4, 2, 1):
            a(f"v_max_u32_dpp v5, v5, v5 row_ror:{sh} row_mask:0xf bank_mask:0xf")
        for i, s in enumerate((T0, T1, T2, T3)): a(f"v_readlane_b32 s{s}, v5, {16*i}")
    def argmax2(self):
        a, vm = self.a, self.vm
        a(f"s_max_u32 s{T0}, s{T0}, s{T1}")
        a(f"s_max_u32 s{T2}, s{T2}, s{T3}")
        a(f"s_max_u32 s{RKEY}, s{T0}, s{T2}")
        a(f"s_and_b32 s{IDX}, s{RKEY}, 0xffff")
        a(f"s_sub_u32 s{IDX}, 0xffff, s{IDX}")
        a(f"s_and_b32 s{IDX}, s{IDX}, 2047")
    def arrive(self, soff):
        a, t = self.a, self.TMP
        a(f"v_mov_b32 v{t+6}, 1")
        a("s_mov_b64 exec, 1")
        a(f"buffer_atomic_add v{t+6}, v{self.VL4}, {sr(S_WS)}, s{soff} offen sc1"); self.vm.add("arr")
        a("s_mov_b64 exec, -1")
    def tile_end(self, T):
        k, a, vm, t = self.k, self.a, self.vm, self.TMP
        GU_T = [8*(i // 3) + FTS[i % 3] for i in range(8)]
        WD_T = WDT
        if T == 1: self.argmax1(); self.argmax2()
        if T == 3:
            a(f"s_lshl_b32 s{T0}, s{IDX}, 11")
            a(f"s_add_u32 s{T0}, s{T0}, s{SP}")
            a(f"buffer_load_dword v{self.XSL}, v{t}, {sr(S_X)}, s{T0} offen"); vm.add("xs")
        if T == 5:
            a(f"s_lshl_b32 s{T0}, s{IDX}, 3")
            a(f"s_add_u32 s{T0}, s{T0}, {WS_STAT:#x}")
            a(f"buffer_load_dwordx2 {vr(self.XST,2)}, v{t+1}, {sr(S_WS)}, s{T0} offen sc1"); vm.add("xs")
        if T in GU_T:
            i = GU_T.index(T); mat, j = i >> 2, i & 3
            a(f"s_add_u32 m0, s{self.FB}, {i*1024}")
            a(f"s_add_u32 s{T0}, s{self.GSO}, {j*8*7168}")
            a(f"buffer_load_dwordx4 v{self.VGU}, {sr(S_WU if mat else S_WG)}, s{T0} offen lds"); vm.add("u" if mat else "g")
        if T == 16:
            vm.wait("xs")
            a(f"v_lshlrev_b32 v{t}, 16, v{self.XSL}")
            a(f"v_and_b32 v{t+1}, 0xffff0000, v{self.XSL}")
            a(f"v_sub_f32 v{t}, v{t}, v{self.XST}")
            a(f"v_sub_f32 v{t+1}, v{t+1}, v{self.XST}")
            a(f"v_cvt_pk_bf16_f32 v{t+2}, v{t}, v{t+1}")
            a(f"v_lshlrev_b32 v{t}, 16, v{t+2}")
            a(f"v_and_b32 v{t+1}, 0xffff0000, v{t+2}")
            a(f"v_mul_f32 v{t}, v{t}, v{self.XST+1}")
            a(f"v_mul_f32 v{t+1}, v{t+1}, v{self.XST+1}")
            a(f"v_cvt_pk_bf16_f32 v{t+2}, v{t}, v{t+1}")
            a(f"v_and_b32 v{t+3}, 0x30, v2")
            for j in range(4):
                k.ds(f"ds_bpermute_b32 v{self.XS+j}, v{t+3}, v{t+2} offset:{4*j}", "xsf")
        if 22 <= T <= 25:
            if T == 22: vm.wait("g")
            if T == 24: vm.wait("u")
            m, hf = (T - 22) >> 1, (T - 22) & 1
            for ct in (2*hf, 2*hf+1):
                for u in range(2):
                    k.ds(f"ds_read_b64_tr_b16 {vr(self.WB+16*m+4*ct+2*u,2)}, v{self.VTR} offset:{m*4096 + u*512 + ct*32}", ("gw", T))
        if 24 <= T <= 27:
            m, hf = (T - 24) >> 1, (T - 24) & 1
            k.lg.wait(("gw", T - 2), "xsf")
            for ct in (2*hf, 2*hf+1):
                a(f"v_mfma_f32_16x16x32_bf16 {vr(self.DD+16*m+4*ct,4)}, {vr(self.XS,4)}, {vr(self.WB+16*m+4*ct,4)}, 0")
        if T == 28: k.delay(41)
        if T == 51: k.delay(130)
        if T == 28:
            for ct in range(1, 4):
                for m in range(2):
                    D = self.DD + 16*m
                    a(f"v_mov_b32_dpp v{D}, v{D+4*ct} quad_perm:[0,1,2,3] row_mask:{1 << ct:#x} bank_mask:0xf")
            a(f"s_add_u32 s{T0}, s{self.ASO}, {3584*4}")
            a(f"buffer_atomic_add_f32 v{self.DD}, v{self.VL4}, {sr(S_WS)}, s{self.ASO} offen"); vm.add("at1")
            a(f"buffer_atomic_add_f32 v{self.DD+16}, v{self.VL4}, {sr(S_WS)}, s{T0} offen"); vm.add("at1")
        if T in WD_T:
            j = WD_T.index(T)
            a(f"s_add_u32 m0, s{self.FB}, {j*1024}")
            a(f"s_add_u32 s{T0}, s{self.DSO}, {j*8192}")
            a(f"buffer_load_dwordx4 v{self.VOD}, {sr(S_WD)}, s{T0} offen lds"); vm.add("wd")
        if T == 35:
            vm.wait("at1")
            a(f"s_lshr_b32 s{self.GSO}, s{FCG}, 2")
            a(f"s_lshl_b32 s{self.GSO}, s{self.GSO}, 7")
            a(f"s_add_u32 s{self.GSO}, s{self.GSO}, {SY4:#x}")
            a("s_cmp_lt_u32 s2, 224")
            a(f"s_cselect_b32 s{self.GSO}, s{self.GSO}, 0x40000000")
            self.arrive(self.GSO)
        G = self.DD
        W0F = f"s_cmp_lt_u32 s{CNT}, 224"
        if T == 40:
            a(f"s_lshl_b32 s{CNT}, s3, 8")
            a(f"s_add_u32 s{CNT}, s{CNT}, s2")
            a(f"v_mov_b32 v{t}, 0")
            k.only(W0F, lambda: a(f"buffer_load_dword v{t+1}, v{t}, {sr(S_WS)}, s{self.GSO} offen sc1"))
            vm.mark("p4")
        if T == 42:
            def p2():
                a(f"s_waitcnt vmcnt({vm.since('p4')})")
                k.poll(t, t + 1, self.GSO, 32, cnt=T3)
                a(f"v_and_b32 v{t}, 60, v{self.VL4}")
                a(f"v_bfe_u32 v{t+1}, v2, 4, 1")
                a(f"v_mul_u32_u24 v{t+1}, {3584*4}, v{t+1}")
                a(f"v_add_u32 v{t+1}, v{t+1}, v{t}")
                a(f"s_lshl_b32 s{T0}, s{FCG}, 6")
                a(f"s_add_u32 s{T0}, s{T0}, {WS_GU:#x}")
                a(f"buffer_load_dword v{G}, v{t+1}, {sr(S_WS)}, s{T0} offen sc1")
            k.only(W0F, p2)
            vm.mark("gl")
        if T == 45:
            def hh():
                a(f"s_waitcnt vmcnt({vm.since('gl')})")
                bf16r(a, G, G)
                a(f"v_mov_b32 v{G+1}, v{G}")
                a(f"v_permlane16_swap_b32 v{G}, v{G+1}")
                a(f"v_mul_f32 v{G+2}, {f32(-LOG2E)}, v{G}")
                a(f"v_exp_f32 v{G+2}, v{G+2}")
                a(f"v_add_f32 v{G+2}, 1.0, v{G+2}")
                a(f"v_rcp_f32 v{G+2}, v{G+2}")
                a(f"v_mul_f32 v{G}, v{G}, v{G+2}")
                bf16r(a, G, G)
                a(f"v_mul_f32 v{G}, v{G}, v{G+1}")
                a(f"v_cvt_pk_bf16_f32 v{G}, v{G}, v{G}")
                a(f"v_lshrrev_b32 v{t}, 1, v{t}")
                a(f"v_add_u32 v{t}, {FBASE + 4096}, v{t}")
                a(f"ds_write_b16 v{t}, v{G}")
                a("s_waitcnt lgkmcnt(0)")
            k.only(W0F, hh)
        HF, WD, DD = 168, 176, 192
        if T in (43, 44):
            if T == 43: vm.wait("wd")
            for j in (2*(T-43), 2*(T-43)+1):
                if j: a(f"v_xor_b32 v{t+4+j}, {64*j}, v{self.VTD}")
                ad = (t + 4 + j) if j else self.VTD
                for u in range(2):
                    k.ds(f"ds_read_b64_tr_b16 {vr(WD+4*j+2*u,2)}, v{ad} offset:{u*1024}", "wdf")
        if T == 46:
            a(f"v_lshlrev_b32 v{t+4}, 4, v{VH}")
            a(f"v_add_u32 v{t+4}, {FBASE + 4096}, v{t+4}")
            k.ds(f"ds_read_b128 {vr(HF,4)}, v{t+4}", "hf")
        if 47 <= T <= 50:
            j = T - 47
            k.lg.wait("hf", "wdf")
            a(f"v_mfma_f32_32x32x16_bf16 {vr(DD+16*j,16)}, {vr(HF,4)}, {vr(WD+4*j,4)}, 0")
        if T == 51:
            a(f"v_mov_b32_dpp v{DD}, v{DD+16} quad_perm:[0,1,2,3] row_mask:0xc bank_mask:0xf")
            a(f"v_mov_b32_dpp v{DD+32}, v{DD+48} quad_perm:[0,1,2,3] row_mask:0xc bank_mask:0xf")
            a(f"buffer_atomic_add_f32 v{DD}, v{self.VL4}, {sr(S_WS)}, s{self.YSO} offen"); vm.add("at")
            a(f"buffer_atomic_add_f32 v{DD+32}, v{self.VL4}, {sr(S_WS)}, s{self.YSO} offen offset:256"); vm.add("at")
        if T == 59:
            vm.wait("at")
            a(f"s_lshr_b32 s{T0}, s2, 3")
            a(f"s_lshl_b32 s{T0}, s{T0}, 7")
            a(f"s_add_u32 s{T0}, s{T0}, {SY3:#x}")
            self.arrive(T0)

class PhaseD:
    XR, ST, VXO = 8, 30, 16
    VOF, VWD = 24, (17, 18, 1)
    XFL, G, XF, ACCO, ACCX, WREG = 32, 48, 64, 96, 112, 128
    def __init__(self, k):
        self.k, self.a, self.vm = k, k.a, k.vm
        def rot(c, shift, extra, base):
            return f"""s_add_u32 s{TD}, s{ROT}, {c}
            s_and_b32 s{TD}, s{TD}, 15
            s_lshl_b32 s{TD}, s{TD}, {shift}
            s_add_u32 s{TD}, s{TD}, s{base}""" + (f"\ns_add_u32 s{TD}, s{TD}, {extra}" if extra else "")
        def ldw(n): return lambda p: f"s_add_u32 m0, s{W1K}, {p*8192}\n" + rot(n >> 1, 17, (n & 1) * 16 * 2048, SEL) + f"\nbuffer_load_dwordx4 v{VOW}, {sr(S_W)}, s{TD} offen lds"
        def ldo(c): return lambda p: f"s_add_u32 m0, s{W1K}, {p*8192}\n" + rot(c, 12, 0, OBASE) + f"\nbuffer_load_dwordx4 v{VL16}, {sr(S_WS)}, s{TD} offen sc1 lds"
        seq = [(("w", n), ldw(n), None, list(range(19, -1, -1))) for n in range(24)]
        seq += [(("o", c), ldo(c), None, list(range(16))) for c in range(16)]
        seq += [(("w", n), ldw(n), None, [16, 17, 18, 19]) for n in range(24, 32)]
        self.pg = Pager(k, range(8, 20), seq)
    def tile_end(self, T):
        k, a, vm = self.k, self.a, self.vm
        if T == 44:
            a(f"s_lshr_b32 s{T0}, s2, 3")
            a(f"s_lshl_b32 s{T0}, s{T0}, 16")
            a(f"v_lshlrev_b32 v{self.VXO}, 7, v0")
            a(f"buffer_load_dword v{self.XR}, v{self.VXO}, {sr(S_W)}, s{T0} offen"); vm.add("pf")
        if T == 51:
            a(f"v_lshlrev_b32 v{self.VXO}, 11, v{VN}")
            a(f"v_lshl_add_u32 v{self.VXO}, v{VH}, 5, v{self.VXO}")
            a(f"s_lshl_b32 s{T1}, s{RB2}, 1")
            a(f"s_add_u32 s{T1}, s{T1}, s{RT}")
            a(f"s_lshl_b32 s{XO2}, s{T1}, 16")
            a(f"s_lshl_b32 s{SEL}, s{CB2}, 8")
            a(f"s_add_u32 s{XO2}, s{XO2}, s{SEL}")
            a(f"s_lshl_b32 s{T0}, s{HD}, 6")
            a(f"s_add_u32 s{XO2}, s{XO2}, s{T0}")
            a(f"buffer_load_dwordx4 {vr(self.XR,4)}, v{self.VXO}, {sr(S_X)}, s{XO2} offen"); vm.add("x2")
            a(f"s_lshl_b32 s{ROT}, s{CB2}, 1")
            a(f"s_lshr_b32 s{T0}, s{IDX}, 5")
            a(f"s_cmp_eq_u32 s{T0}, s{T1}")
            a(f"s_cselect_b32 s{MODE}, 1, 0")
        if T == 52:
            a(f"s_lshl_b32 s{T1}, s{RB2}, 1")
            a(f"s_add_u32 s{T1}, s{T1}, s{RT}")
            a(f"s_lshl_b32 s{T0}, s{T1}, 8")
            a(f"s_add_u32 s{T0}, s{T0}, {WS_STAT:#x}")
            a(f"v_lshlrev_b32 v5, 3, v{VN}")
            a(f"buffer_load_dwordx2 {vr(self.ST,2)}, v5, {sr(S_WS)}, s{T0} offen sc1"); vm.add("x2")
        if T == 53:
            a(f"buffer_load_dwordx4 {vr(self.XR+4,4)}, v{self.VXO}, {sr(S_X)}, s{XO2} offen offset:16"); vm.add("x2")
            a(f"s_lshl_b32 s{T0}, s{ROWT}, 5")
            a(f"s_lshl_b32 s{T1}, s{HB}, 2")
            a(f"s_add_u32 s{T0}, s{T0}, s{T1}")
            a(f"s_add_u32 s{T0}, s{T0}, s{HD}")
            a(f"s_lshl_b32 s{T0}, s{T0}, 11")
            a(f"s_add_u32 s{OSO}, s{T0}, {WS_OF:#x}")
        if 54 <= T <= 61:
            ne = (T - 53) * NEARLY // 8 - (T - 54) * NEARLY // 8
            if 'oldne' in VAR: ne = 2 if T < 58 else 1
            for g in self.pg.take(ne): self.pg.issue(g)
    def run(self):
        k, a, vm, lg, pg = self.k, self.a, self.vm, self.k.lg, self.pg
        XR, ST, VXO, VOF, VWD, XFL, G, XF, ACCO, ACCX, WREG = (self.XR, self.ST, self.VXO, self.VOF, self.VWD, self.XFL,
                                                              self.G, self.XF, self.ACCO, self.ACCX, self.WREG)
        a("v_bfe_u32 v5, v2, 2, 2")
        a(f"v_lshl_add_u32 v6, v{VH}, 2, v5")
        a("v_lshlrev_b32 v6, 6, v6")
        a("v_and_b32 v5, 1, v2")
        a("v_lshl_add_u32 v6, v5, 5, v6")
        a("v_bfe_u32 v5, v2, 4, 1")
        a("v_lshl_add_u32 v6, v5, 4, v6")
        a("v_bfe_u32 v5, v2, 1, 1")
        a("v_lshl_add_u32 v6, v5, 3, v6")
        a(f"v_add_u32 v{VWD[0]}, s{W1K}, v6")
        a(f"v_add_u32 v{VWD[1]}, 0x10000, v{VWD[0]}")
        a(f"v_add_u32 v{VWD[2]}, 0x20000, v{VWD[0]}")
        a(f"v_mov_b32 v6, {f32(2.0**64)}")
        for i in range(4): a(f"v_pk_add_f32 {vr(SA+2*i,2)}, {vr(OA+4*i,2)}, {vr(OA+4*i+2,2)}")
        a(f"v_pk_add_f32 {vr(SA,2)}, {vr(SA,2)}, {vr(SA+2,2)}")
        a(f"v_pk_add_f32 {vr(SA+4,2)}, {vr(SA+4,2)}, {vr(SA+6,2)}")
        a(f"v_pk_add_f32 {vr(SA,2)}, {vr(SA,2)}, {vr(SA+4,2)}")
        a(f"v_add_f32 v5, v{SA}, v{SA+1}")
        a(f"v_fma_f32 v5, v5, 0, v{LS}")
        a("v_cmp_nlt_f32 vcc, v5, v6")
        a("s_nop 1")
        if "forcefb" in VAR: a("s_branch L_fallback")
        a("s_cbranch_vccnz L_fallback")
        a.label("L_fin")
        a(f"v_rcp_f32 v6, v{LS}")
        for i in range(8): a(f"v_pk_mul_f32 {vr(OA+2*i,2)}, {vr(OA+2*i,2)}, v[6:7] op_sel_hi:[1,0]")
        for i in range(8): a(f"v_cvt_pk_bf16_f32 v{SA+i}, v{OA+2*i}, v{OA+2*i+1}")
        a(f"buffer_store_dwordx4 {vr(SA,4)}, v{VL16}, {sr(S_WS)}, s{OSO} offen sc1"); vm.add("ost")
        a(f"buffer_store_dwordx4 {vr(SA+4,4)}, v{VL16}, {sr(S_WS)}, s{OSO} offen offset:1024 sc1"); vm.add("ost")
        def wread(n):
            vm.wait(("w", n))
            p = pg.page[("w", n)]
            for u in range(2):
                k.ds(f"ds_read_b64_tr_b16 {vr(WREG+4*n+2*u,2)}, v{VWD[p >> 3]} offset:{(p & 7)*8192 + 8*u*64}", ("wr", n))
        def wfree(n):
            lg.wait(("wr", n)); pg.free.append(pg.page[("w", n)])
        def xn_ops(src, lo, hi, g0, g1, m, ri, t0=6):
            return [f"v_lshlrev_b32 v{lo}, 16, v{src}", f"v_and_b32 v{hi}, 0xffff0000, v{src}",
                    f"v_sub_f32 v{g0}, v{lo}, v{m}", f"v_sub_f32 v{g1}, v{hi}, v{m}",
                    f"v_cvt_pk_bf16_f32 v{t0}, v{g0}, v{g1}",
                    f"v_lshlrev_b32 v{g0}, 16, v{t0}", f"v_and_b32 v{g1}, 0xffff0000, v{t0}",
                    f"v_mul_f32 v{g0}, v{g0}, v{ri}", f"v_mul_f32 v{g1}, v{g1}, v{ri}",
                    f"v_cvt_pk_bf16_f32 v{t0}, v{g0}, v{g1}",
                    f"v_lshlrev_b32 v{g0}, 16, v{t0}", f"v_and_b32 v{g1}, 0xffff0000, v{t0}"]
        def silu_ops(g0, g1, t0=6, t1=7):
            return [f"v_mul_f32 v{t0}, {f32(-LOG2E)}, v{g0}", f"v_mul_f32 v{t1}, {f32(-LOG2E)}, v{g1}",
                    f"v_exp_f32 v{t0}, v{t0}", f"v_exp_f32 v{t1}, v{t1}",
                    f"v_add_f32 v{t0}, 1.0, v{t0}", f"v_add_f32 v{t1}, 1.0, v{t1}",
                    f"v_rcp_f32 v{t0}, v{t0}", f"v_rcp_f32 v{t1}, v{t1}",
                    f"v_mul_f32 v{g0}, v{g0}, v{t0}", f"v_mul_f32 v{g1}, v{g1}, v{t1}",
                    f"v_cvt_pk_bf16_f32 v{t0}, v{g0}, v{g1}",
                    f"v_lshlrev_b32 v{g0}, 16, v{t0}", f"v_and_b32 v{g1}, 0xffff0000, v{t0}"]
        gate = []
        for p in range(8): gate += xn_ops(XR+p, XFL+2*p, XFL+2*p+1, G+2*p, G+2*p+1, ST, ST+1)
        for p in range(8): gate += silu_ops(G+2*p, G+2*p+1)
        def gops(n):
            for _ in range(min(n, len(gate))): a(gate.pop(0))
        for g in pg.take(12 - NEARLY): pg.issue(g)
        for n in range(12): wread(n)
        for n in range(4):
            wfree(n)
            for g in pg.take(1): pg.issue(g)
        a(f"s_lshl_b32 s{T0}, s{RB}, 3")
        a(f"s_add_u32 s{T0}, s{T0}, s{HB}")
        a(f"s_lshl_b32 s{T0}, s{T0}, 7")
        a(f"s_add_u32 s{T0}, s{T0}, {SY2:#x}")
        a("v_mov_b32 v5, 1")
        a("v_mov_b32 v6, 0")
        vm.wait("ost")
        def arr():
            a("s_mov_b64 exec, 1")
            a(f"buffer_store_dword v5, v6, {sr(S_WS)}, s{T0} offen sc1" if "stflag" in VAR else f"buffer_atomic_add v5, v6, {sr(S_WS)}, s{T0} offen sc1")
            a("s_mov_b64 exec, -1")
        if "wgarr" in VAR:
            a("s_barrier")
            k.only("s_cmp_eq_u32 s3, 0", arr)
        else:
            arr(); vm.add("arr")
        k.stamp("E1")
        for n in range(4, 12): wfree(n)
        PV = XF
        a(f"v_and_b32 v{PV}, 7, v2")
        a(f"v_lshlrev_b32 v{PV}, 7, v{PV}")
        a(f"s_lshl_b32 s{T3}, s{RB2}, 10")
        a(f"s_add_u32 s{T3}, s{T3}, {SY2:#x}")
        nxt = 12
        for i, g in enumerate(pg.take(16, stop=("o", 0))):
            pg.issue(g); gops(8)
            if i >= 2: wread(nxt); nxt += 1
            if i == D_POLL:
                k.only("s_cmp_eq_u32 s3, 7", lambda: a(f"buffer_load_dword v{PV+1}, v{PV}, {sr(S_WS)}, s{T3} offen sc1"))
        a(f"s_lshl_b32 s{OBASE}, s{RB2}, 1")
        a(f"s_lshr_b32 s{T0}, s3, 2")
        a(f"s_add_u32 s{OBASE}, s{OBASE}, s{T0}")
        a(f"s_lshl_b32 s{OBASE}, s{OBASE}, 16")
        a(f"s_and_b32 s{T0}, s3, 3")
        a(f"s_lshl_b32 s{T0}, s{T0}, 10")
        a(f"s_add_u32 s{OBASE}, s{OBASE}, s{T0}")
        a(f"s_add_u32 s{OBASE}, s{OBASE}, {WS_OF:#x}")
        a(f"s_mul_i32 s{T0}, s{RT}, {4096 + 2048}")
        a(f"v_add_u32 v{VOF}, s{T0}, v{VL16}")
        a(f"v_xor_b32 v{VOF+1}, 0x1000, v{VOF}")
        a(f"v_add_u32 v{VOF+2}, 0x10000, v{VOF}")
        a(f"v_add_u32 v{VOF+3}, 0x10000, v{VOF+1}")
        while nxt < 24:
            wread(nxt); nxt += 1; gops(6)
        lg.wait_all()
        k.only("s_cmp_eq_u32 s3, 7", lambda: k.poll(PV, PV + 1, T3, 1 if 'wgarr' in VAR else 8, cnt=T2))
        a("s_barrier")
        k.stamp("E2")
        pg.free = list(range(20))
        od = pg.take(20)
        for g in od[:6]:
            pg.issue(g); gops(8)
        od = od[6:]
        gops(1000)
        a(f"s_cmp_eq_u32 s{MODE}, 1")
        a("s_cbranch_scc1 L_own")
        st = (list(vm.tags), vm.total, dict(vm.marks), list(lg.tags), list(pg.free), pg.pos, a.snapshot(), list(STAMP_NAMES))
        self.dloop(False, list(od), wread, wfree, xn_ops, silu_ops)
        a("s_endpgm")
        a.label("L_own")
        vm.tags, vm.total, vm.marks, lg.tags, pg.free, pg.pos = list(st[0]), st[1], dict(st[2]), list(st[3]), list(st[4]), st[5]
        a.hist = st[6][0]; a.alts = [(h, 0) for h in st[6][1:]]
        STAMP_NAMES[:] = st[7]
        self.dloop(True, list(od), wread, wfree, xn_ops, silu_ops)
    def dloop(self, own, od, wread, wfree, xn_ops, silu_ops):
        k, a, vm, lg, pg = self.k, self.a, self.vm, self.k.lg, self.pg
        XR, ST, VXO, VOF, VWD, XFL, G, XF, ACCO, ACCX, WREG = (self.XR, self.ST, self.VXO, self.VOF, self.VWD, self.XFL,
                                                              self.G, self.XF, self.ACCO, self.ACCX, self.WREG)
        Y, X4, XN, YS, YB, YA, YD = WREG + 16, WREG + 20, WREG + 24, WREG + 28, WREG + 32, 28, 29
        ys = {}
        if own:
            def I(x): return lambda: a(x)
            def br(d): return [f"v_cvt_pk_bf16_f32 v{d}, v{d}, v{d}", f"v_lshlrev_b32 v{d}, 16, v{d}"]
            def y_poll():
                a(f"v_lshlrev_b32 v{YA}, 7, v{VN}")
                a(f"s_mov_b32 s{T3}, {SY3:#x}")
                a(f"buffer_load_dword v{YD}, v{YA}, {sr(S_WS)}, s{T3} offen sc1"); vm.add("yp")
            def y_chk():
                vm.wait("yp"); k.poll(YA, YD, T3, 64)
            def y_l1():
                a(f"v_lshrrev_b32 v{YA}, 3, v2")
                a(f"v_lshlrev_b32 v{YA}, 12, v{YA}")
                a(f"v_and_b32 v{YD}, 7, v2")
                a(f"v_lshl_add_u32 v{YA}, v{YD}, 4, v{YA}")
                a(f"s_lshl_b32 s{T0}, s{CB2}, 9")
                a(f"s_lshl_b32 s{T1}, s{HD}, 7")
                a(f"s_add_u32 s{T0}, s{T0}, s{T1}")
                a(f"s_add_u32 s{T1}, s{T0}, {WS_YACC:#x}")
                a(f"buffer_load_dwordx4 {vr(Y,4)}, v{YA}, {sr(S_WS)}, s{T1} offen sc1"); vm.add("yl")
            def y_l2():
                a(f"s_lshr_b32 s{T0}, s{T0}, 1")
                a(f"s_lshl_b32 s{T1}, s{IDX}, 11")
                a(f"s_add_u32 s{T0}, s{T0}, s{T1}")
                a(f"v_lshlrev_b32 v{YD}, 3, v{YD}")
                a(f"buffer_load_dwordx2 {vr(X4,2)}, v{YD}, {sr(S_X)}, s{T0} offen"); vm.add("yl")
            def y_rs():
                a(f"s_and_b32 s{T1}, s{RKEY}, 0xffff0000")
                a(f"s_xor_b32 s{T2}, s{T1}, 0x80000000")
                a(f"s_xor_b32 s{T0}, s{T1}, 0xffff0000")
                a(f"s_bitcmp1_b32 s{T1}, 31")
                a(f"s_cselect_b32 s{T1}, s{T2}, s{T0}")
                a(f"v_mov_b32 v{YA}, s{T1}")
            def y_st():
                a(f"s_and_b32 s{T1}, s{IDX}, 31")
                a(f"v_readlane_b32 s{T0}, v{ST}, s{T1}")
                a(f"v_readlane_b32 s{T2}, v{ST+1}, s{T1}")
                a(f"v_mov_b32 v{YS}, s{T0}")
                a(f"v_mov_b32 v{YS+1}, s{T2}")
            rs2 = [f"v_mul_f32 v{YA}, {f32(-LOG2E)}, v{YA}", f"v_exp_f32 v{YA}, v{YA}", f"v_add_f32 v{YA}, 1.0, v{YA}", f"v_rcp_f32 v{YA}, v{YA}"] + br(YA)
            sm = [f"v_add_f32_dpp v{Y+e}, v{Y+e}, v{Y+e} row_ror:8 row_mask:0xf bank_mask:0xf" for e in range(4)]
            for sw in ("v_permlane16_swap_b32", "v_permlane32_swap_b32"):
                sm += [f"v_mov_b32 v{YB+4+e}, v{Y+e}" for e in range(4)] + [f"{sw} v{Y+e}, v{YB+4+e}" for e in range(4)]
                sm += [f"v_add_f32 v{Y+e}, v{Y+e}, v{YB+4+e}" for e in range(4)]
            def rr(p, q): return [f"v_cvt_pk_bf16_f32 v{YB+2}, v{p}, v{q}", f"v_lshlrev_b32 v{p}, 16, v{YB+2}", f"v_and_b32 v{q}, 0xffff0000, v{YB+2}"]
            sc = []
            for p in (0, 2):
                sc += rr(Y+p, Y+p+1) + [f"v_mul_f32 v{Y+p}, v{Y+p}, v{YA}", f"v_mul_f32 v{Y+p+1}, v{Y+p+1}, v{YA}"] + rr(Y+p, Y+p+1)
            xn = xn_ops(X4, YB, YB+1, XN, XN+1, YS, YS+1, YB+2) + xn_ops(X4+1, YB, YB+1, XN+2, XN+3, YS, YS+1, YB+2)
            ad = []
            for p in (0, 2):
                ad += [f"v_add_f32 v{XN+p}, v{XN+p}, v{Y+p}", f"v_add_f32 v{XN+p+1}, v{XN+p+1}, v{Y+p+1}"] + rr(XN+p, XN+p+1)
            sl = silu_ops(XN, XN+1, YB+2, YB+3) + silu_ops(XN+2, XN+3, YB+2, YB+3) + [f"v_lshlrev_b32 v{YD}, 4, v{VH}"]
            bp = [lambda q=q, e=e: k.ds(f"ds_bpermute_b32 v{YB+4*q+e}, v{YD}, v{XN+e} offset:{4*q}", "yb") for q in range(4) for e in range(4)]
            allv = [I(x) for x in sm + sc + xn + ad + sl]
            ys = {0: [y_poll], 4: [y_chk, y_l1, y_l2], 5: [y_rs, y_st] + [I(x) for x in rs2]}
            per = -(-len(allv) // 5)
            for i in range(5): ys[7 + i] = ([lambda: vm.wait("yl")] if i == 0 else []) + allv[i*per:(i+1)*per]
            ys[12] = bp
            def y_mask():
                lg.wait("yb")
                a(f"s_and_b32 s{T1}, s{IDX}, 31")
                a(f"v_cmp_eq_u32 vcc, s{T1}, v{VN}")
            ys[13] = [y_mask] + [I(f"v_cndmask_b32 v{G+i}, v{G+i}, v{YB+i}, vcc") for i in range(16)]
        avail = {0: 2, 2: 4, 4: 8, 8: 12, 12: 16}
        pool = [XF, XF + 16]
        xb = {}
        def rd_ops(c):
            if not pool: return None
            xb[c] = pool.pop(0)
            def bar():
                vm.wait(*[("o", i) for i in range(avail[c])])
                a("s_barrier")
            def r(e):
                p = pg.page[("o", c)]
                for t in range(2):
                    k.ds(f"ds_read_b128 {vr(xb[c]+4*(2*t+e),4)}, v{VOF + 2*(p >> 3) + t} offset:{(p & 7)*8192 + e*1024}", ("d", c, e))
            return ([bar] if c in avail else []) + [lambda: r(0), lambda: r(1)]
        def rd(c):
            for o in rd_ops(c): o()
        rd(0); k.stamp("D0"); rd(1)
        def mf(c, e, t):
            acc = ACCX if t else ACCO
            cc = "0" if (c == 0 and e == 0) else vr(acc, 16)
            a(f"v_mfma_f32_32x32x16_bf16 {vr(acc,16)}, {vr(WREG+4*(2*c+e),4)}, {vr(xb[c]+4*(2*t+e),4)}, {cc}")
        def d1():
            if od: pg.issue(od.pop(0))
        for c in range(14):
            def m0(e):
                lg.wait(("d", c, e), ("wr", 2*c+e)); mf(c, e, 0)
            ms = [lambda: m0(0), lambda: mf(c, 0, 1), lambda: m0(1), lambda: mf(c, 1, 1)]
            extra = []
            if c == 8: extra = [lambda n=n: wread(n) for n in range(24, 28)]
            if c == 12: extra = [lambda n=n: wread(n) for n in range(28, 32)]
            if c == 9:
                for n in range(24, 28): wfree(n)
                od += pg.take(4)
            ro = rd_ops(c + 2)
            base = [d1, d1] + (ro or []) + extra
            y = ys.get(c, [])
            if y:
                for i, m in enumerate(ms):
                    m()
                    for o in base[i * len(base) // 4:(i + 1) * len(base) // 4]: o()
                    for o in y[i * len(y) // 4:(i + 1) * len(y) // 4]: o()
            else: interleave(ms, base)
            pool.append(xb[c])
            if c == 1: pool.append(WREG)
            if ro is None: rd(c + 2)
        lg.wait_all()
        a(f"v_add_u32 v5, s{W1K}, v{VL16}")
        for c in (14, 15):
            for e in range(2): mf(c, e, 1)
        a("v_add_u32 v5, 0x20000, v5")
        a("v_xor_b32 v6, 0x400, v5")
        mf(14, 0, 0); mf(14, 1, 0); mf(15, 0, 0)
        a("s_nop 6")
        for q in range(4): a(f"ds_write_b128 v5, {vr(ACCX+4*q,4)} offset:{q*8192}")
        mf(15, 1, 0)
        k.stamp("D_end")
        a("s_waitcnt lgkmcnt(0)")
        a("s_barrier")
        for q in range(4): a(f"ds_read_b128 {vr(WREG+16+4*q,4)}, v6 offset:{q*8192}")
        for q in range(4):
            a(f"s_waitcnt lgkmcnt({3-q})")
            for i in (2*q, 2*q+1): a(f"v_pk_add_f32 {vr(ACCO+2*i,2)}, {vr(ACCO+2*i,2)}, {vr(WREG+16+2*i,2)}")
            for i in (2*q, 2*q+1): a(f"v_pk_fma_f32 {vr(ACCO+2*i,2)}, {vr(ACCO+2*i,2)}, {vr(G+2*i,2)}, {vr(XFL+2*i,2)}")
            for i in (2*q, 2*q+1): a(f"v_cvt_pk_bf16_f32 v{XR+i}, v{ACCO+2*i}, v{ACCO+2*i+1}")
            if q == 1: a(f"buffer_store_dwordx4 {vr(XR,4)}, v{VXO}, {sr(S_OUT)}, s{XO2} offen")
        a(f"buffer_store_dwordx4 {vr(XR+4,4)}, v{VXO}, {sr(S_OUT)}, s{XO2} offen offset:16")
        k.stamp("end")

def fallback(k):
    a = k.a
    a.label("L_fallback")
    a.flush()
    a("v_mov_b32 v6, 0xff800000")
    a(f"s_mov_b32 s{T0}, 0")
    a.label("L_fb1")
    a(f"buffer_load_dwordx4 {vr(KA,4)}, v{VL16}, {sr(S_KV)}, s{T0} offen sc1")
    a(f"buffer_load_dwordx4 {vr(KA+4,4)}, v{VL16}, {sr(S_KV)}, s{T0} offen offset:1024 sc1")
    a("s_waitcnt vmcnt(0)")
    a(f"v_mfma_f32_32x32x16_bf16 {vr(SA,16)}, {vr(KA,4)}, {vr(QF,4)}, 0")
    a(f"v_mfma_f32_32x32x16_bf16 {vr(SA,16)}, {vr(KA+4,4)}, {vr(QF+4,4)}, {vr(SA,16)}")
    for i in range(0, 16, 2): a(f"v_max3_f32 v6, v6, v{SA+i}, v{SA+i+1}")
    a(f"s_add_u32 s{T0}, s{T0}, 4096")
    a(f"s_cmp_lt_u32 s{T0}, 0x40000")
    a("s_cbranch_scc1 L_fb1")
    a("v_mov_b32 v5, v6")
    a("v_permlane32_swap_b32 v6, v5")
    a("v_max_f32 v6, v6, v5")
    for i in range(16): a(f"v_sub_f32 v{NM+i}, 0, v6")
    for i in range(16): a(f"v_mov_b32 v{OA+i}, 0")
    for i in range(4): a(f"v_mov_b32 v{LS+i}, 0")
    a(f"s_mov_b32 s{T0}, 0")
    a.label("L_fb2")
    a(f"buffer_load_dwordx4 {vr(KA,4)}, v{VL16}, {sr(S_KV)}, s{T0} offen sc1")
    a(f"buffer_load_dwordx4 {vr(KA+4,4)}, v{VL16}, {sr(S_KV)}, s{T0} offen offset:1024 sc1")
    a(f"buffer_load_dwordx4 {vr(VA,4)}, v{VL16}, {sr(S_KV)}, s{T0} offen offset:2048 sc1")
    a(f"buffer_load_dwordx4 {vr(VA+4,4)}, v{VL16}, {sr(S_KV)}, s{T0} offen offset:3072 sc1")
    a("s_waitcnt vmcnt(0)")
    a(f"v_mfma_f32_32x32x16_bf16 {vr(SA,16)}, {vr(KA,4)}, {vr(QF,4)}, {vr(NM,16)}")
    a(f"v_mfma_f32_32x32x16_bf16 {vr(SA,16)}, {vr(KA+4,4)}, {vr(QF+4,4)}, {vr(SA,16)}")
    for i in range(16): a(f"v_exp_f32 v{SA+i}, v{SA+i}")
    a(f"v_smfmac_f32_32x32x32_bf16 {vr(OA,16)}, {vr(VA,4)}, {vr(SA,8)}, v{IDXD}")
    a(f"v_smfmac_f32_16x16x64_bf16 {vr(LS,4)}, {vr(MA,4)}, {vr(SA,8)}, v{IDXD}")
    a(f"v_smfmac_f32_32x32x32_bf16 {vr(OA,16)}, {vr(VA+4,4)}, {vr(SA+8,8)}, v{IDXD}")
    a(f"v_smfmac_f32_16x16x64_bf16 {vr(LS,4)}, {vr(MA,4)}, {vr(SA+8,8)}, v{IDXD}")
    a(f"s_add_u32 s{T0}, s{T0}, 4096")
    a(f"s_cmp_lt_u32 s{T0}, 0x40000")
    a("s_nop 7")
    a("s_cbranch_scc1 L_fb2")
    a.flush()
    a("s_branch L_fin")
    a.label("L_code_end")

def build(path):
    k = K()
    k.ffn = FFN(k); k.D = PhaseD(k)
    prologue(k); phaseAB(k); attention(k)
    if 'nod' not in VAR: k.D.run()
    else: k.a.label('L_fin')
    k.a.label("L_end"); k.a("s_endpgm")
    fallback(k)
    top = open("cdna_kernels/" + NAME + ".s.ref").read().split("; Override launch geometry")[0]
    if STAMPS: top += "; stamps: " + " ".join(STAMP_NAMES) + "\n"
    top += "; @launch grid=(256,1,1) block=(512,1,1) lds=163840\n"
    top += '.amdgcn_target "amdgcn-amd-amdhsa--gfx950"\n.text\n'
    top += f".set CODE_BYTES, L_code_end - {KN} - 64\n"
    kd = f""".section .rodata,"a"
.p2align 6
.amdhsa_kernel {KN}
  .amdhsa_next_free_vgpr 256
  .amdhsa_next_free_sgpr 102
  .amdhsa_accum_offset 256
  .amdhsa_group_segment_fixed_size 0
  .amdhsa_kernarg_size 104
  .amdhsa_user_sgpr_count 2
  .amdhsa_user_sgpr_kernarg_segment_ptr 1
  .amdhsa_system_sgpr_workgroup_id_x 1
.end_amdhsa_kernel
"""
    lines = k.a.out
    if "noal" not in VAR:
        from align import align
        lines, st = align(top, lines, kd, phase=4 if "ph4" in VAR else 0, nops="alnop" in VAR)
        print(path, st)
    open(path, "w").write(top + "\n".join(lines) + "\n" + kd)
    return k

if __name__ == "__main__":
    out = sys.argv[1] if len(sys.argv) > 1 else "cdna_kernels/" + NAME + ".s"
    if len(sys.argv) > 2 and sys.argv[2] == "stamps": STAMPS = True
    VAR.update(sys.argv[3:])
    for v in VAR:
        if v.startswith('init'): N_INIT = int(v[4:])
        if v.startswith('wt') and '_' in v: WT_IT, WT_POS = [int(x) for x in v[2:].split('_')]
        if v.startswith('chk'): CHK, PI = [int(x) for x in v[3:].split('_')]
        if v.startswith('dp'): D_POLL = int(v[2:])
        if v == 'noskip': S1_SKIP = ()
        if v.startswith('fb'): FB0 = int(v[2:])
        if v.startswith('kvt'): KVT = [int(x) for x in v[3:]]
        if v.startswith('kvp'): KVP = int(v[3:])
        if v.startswith('fts'): FTS = [int(x) for x in v[3:]]; WDT = [28, 29, 32 + FTS[0], 32 + FTS[1]]
        if v.startswith('ne'): NEARLY = int(v[2:])
        if v.startswith('kvf'): KVF = v[3:].replace('_', ' ')
        if v.startswith('pad') and '@' in v: PADAT, PADTO = v[3:].split('@')[0], int(v[3:].split('@')[1])
        if v.startswith('nw'): NW0, ARR, R2C = [int(x) for x in v[2:].split('_')]
        if v.startswith('out'): OUTF = ' ' + v[3:].replace('_', ' ')
    k = build(out)
    if "-v" in VAR:
        for l in k.a.log: print("nop", l)
        for l in k.pgAB.log: print("AB", l)
        for l in k.D.pg.log: print("D", l)
```

```python
import sys, struct
from asmlib import Asm

NAME = "recurrent_scan__grouped_kv_mqa__moe_arch_mod__prompt"
KN = NAME + "_kernel"
WS_KV, WS_STAT, WS_RKEY, WS_SY, WS_YACC, WS_GU, WS_STAMP, WS_OF = 0x0, 0x40000, 0x46000, 0x48000, 0x50000, 0x58000, 0x80000, 0x100000
WS_SIZE = 0x500000
SYB = 0x68000
SY1, SY2, SY3, SY4 = 0x60000, SYB + 0x8000, SYB, SYB + 64 * 128
ONES = 0x3F803F80
LOG2E = 1.4426950408889634
QSCALE = 0.17677669529663687 * LOG2E
def f32(x): return "0x%08x" % struct.unpack("<I", struct.pack("<f", x))[0]
STAMPS = False
VAR = set()
SPIN_MAX = 200000
N_INIT = 9
CHK, PI = 11, 9
D_POLL = 7
VAR.add('wgarr')
WT_IT, WT_POS = 4, 0
ALIGN = 0
DBG_IT = 2
FB0 = 4
PRP = 1
KVF = 'sc1'
NEARLY = 12
KVT, KVP = [7, 0, 1, 2], 1
FTS, WDT = [2, 4, 6], [28, 30, 34, 36]
S1_SKIP = (5, 7)
PADTO, PADAT = 0, 'end'
ARR, R2C, NW0 = -1, 2, 0
OUTF = ''

S_X, S_W, S_KW, S_WS, S_KV, S_WR, S_WG, S_WU = 4, 8, 12, 16, 20, 24, 28, 32
S_OUT, S_WD = S_WR, S_KW
RB, HB, ROT, T0, T1, T2, T3 = 36, 37, 38, 39, 40, 41, 42
W1K, MODE, W4K, XSO, TD, SP, RT, HD, ROWT, RG = 43, 44, 45, 46, 47, 48, 49, 50, 51, 52
SEL, IDX, RKEY, FCG, RB2, CB2, OSO, XO2, CNT, OBASE = 53, 54, 55, 56, 57, 58, 59, 60, 61, 62
W8K, EXS, FW = 63, 64, 66
PT = 68
P_X, P_WQ, P_WK, P_WV, P_WO, P_BX, P_WR, P_WG, P_WU, P_WD, P_OUT, P_DBG, P_WS = [PT + 2 * i for i in range(13)]
STMP = 96
def sr(b): return f"s[{b}:{b+3}]"
def vr(b, n): return f"v[{b}:{b+n-1}]"

VN, VH, VOX, VOW, VL16, VST = 3, 4, 18, 19, 20, 21
MA, IDXC, IDXD, STAT = 24, 28, 29, 30
QF, NM, VA, SA, SB, OA, LS, KA, VK1 = 32, 40, 56, 64, 80, 96, 112, 116, 17

def srd(a, d, base, nbytes):
    a(f"s_mov_b32 s{d}, s{base}")
    a(f"s_and_b32 s{d+1}, s{base+1}, 0xffff")
    a(f"s_mov_b32 s{d+2}, {nbytes:#x}")
    a(f"s_mov_b32 s{d+3}, 0x20000")

def bf16r(a, dst, src):
    a(f"v_cvt_pk_bf16_f32 v{dst}, v{src}, v{src}")
    a(f"v_lshlrev_b32 v{dst}, 16, v{dst}")

_lbl = [0]
def L(p="L"):
    _lbl[0] += 1
    return f"{p}_{_lbl[0]}"

class Cnt:
    def __init__(self, a, name, mx): self.a, self.name, self.mx, self.tags, self.total, self.marks = a, name, mx, [], 0, {}
    def add(self, tag, n=1): self.tags += [tag] * n; self.total += n
    def mark(self, m): self.marks[m] = self.total
    def since(self, m): return min(self.total - self.marks[m], self.mx)
    def wait(self, *tags):
        idx = [i for i, t in enumerate(self.tags) if t in tags]
        if not idx: return
        n = min(len(self.tags) - 1 - max(idx), self.mx)
        self.a(f"s_waitcnt {self.name}({n})")
        self.tags = self.tags[len(self.tags) - n:] if n else []
    def wait_all(self):
        self.a(f"s_waitcnt {self.name}(0)"); self.tags = []

STAMP_NAMES = []
class K:
    def __init__(self):
        self.a = Asm()
        self.vm = Cnt(self.a, "vmcnt", 63)
        self.lg = Cnt(self.a, "lgkmcnt", 15)
    def stamp(self, name):
        if PADTO and name == PADAT:
            a = self.a; lp = L()
            a.label(lp)
            a(f"s_memrealtime s[{STMP+2}:{STMP+3}]"); a("s_waitcnt lgkmcnt(0)")
            a(f"s_sub_u32 s{STMP+2}, s{STMP+2}, s{STMP}")
            a(f"s_cmp_lt_u32 s{STMP+2}, {PADTO}")
            a(f"s_cbranch_scc1 {lp}")
            return
        if "dbgstamp" in VAR:
            a = self.a
            names = ["entry", "S0", "B0", "B_end", "loop_start", "loop_end", "E2", "end"]
            if name not in names: return
            slot = 8 + names.index(name)
            if name == "entry":
                a(f"s_memrealtime s[{STMP+2}:{STMP+3}]"); a("s_waitcnt lgkmcnt(0)")
                a("s_and_b32 s100, s2, 31"); a("s_lshl_b32 s101, s3, 8"); a("s_add_u32 s100, s100, s101"); return
            def st():
                a(f"s_memrealtime s[{STMP}:{STMP+1}]"); a("s_waitcnt lgkmcnt(0)")
                a(f"s_sub_u32 s{STMP}, s{STMP}, s{STMP+2}")
                a(f"v_mov_b32 v{VST+1}, s{STMP}")
                a(f"v_mov_b32 v{VST}, {slot*4}")
                a("s_mov_b64 exec, 1")
                a(f"global_atomic_umax v{VST}, v{VST+1}, s[{P_DBG}:{P_DBG+1}]")
                a("s_mov_b64 exec, -1")
            self.only("s_cmp_eq_u32 s100, 9", st)
            return
        if not STAMPS: return
        a = self.a
        slot = len(STAMP_NAMES); STAMP_NAMES.append(str(name)); assert slot < 32
        if name != "entry":
            a(f"s_memrealtime s[{STMP}:{STMP+1}]")
            a(f"s_memtime s[{STMP+2}:{STMP+3}]")
        a("s_waitcnt lgkmcnt(0)")
        a(f"s_lshl_b32 s{STMP+1}, s2, 11")
        a(f"s_lshl_b32 s{STMP+3}, s3, 8")
        a(f"s_add_u32 s{STMP+1}, s{STMP+1}, s{STMP+3}")
        a(f"s_add_u32 s{STMP+1}, s{STMP+1}, {WS_STAMP + slot * 8:#x}")
        a(f"v_mov_b32 v{VST+1}, s{STMP}")
        a(f"v_mov_b32 v{VST+2}, s{STMP+2}")
        a(f"v_mov_b32 v{VST}, s{STMP+1}")
        a(f"buffer_store_dwordx2 v[{VST+1}:{VST+2}], v{VST}, {sr(S_WS)}, 0 offen")
        self.vm.add("st")
    def delay(self, wg):
        if "delay" not in VAR: return
        def d():
            for _ in range(6): self.a("s_sleep 127")
        self.only(f"s_cmp_eq_u32 s2, {wg}", d)
    def only(self, cond, fn):
        a = self.a; skip = L()
        a(cond); a(f"s_cbranch_scc0 {skip}")
        snap = a.snapshot(); fn(); a.label(skip); a.join(snap)
    def ifelse(self, cond, f1, f2):
        a = self.a; lv, lj = L(), L()
        a(cond); a(f"s_cbranch_scc0 {lv}")
        snap = a.snapshot(); f1(); a(f"s_branch {lj}"); snap2 = a.snapshot()
        a.label(lv); a.hist = snap[0]; a.alts = [(h, 0) for h in snap[1:]]
        f2(); a.label(lj); a.join(snap2)
    def poll(self, vaddr, vdat, soff, expect, cnt=CNT):
        a = self.a; top, chk, done = L("poll"), L("pchk"), L("pdone")
        a(f"s_mov_b32 s{cnt}, 0")
        a(f"s_branch {chk}")
        a.label(top)
        a(f"buffer_load_dword v{vdat}, v{vaddr}, {sr(S_WS)}, s{soff} offen sc1")
        a("s_waitcnt vmcnt(0)")
        a.label(chk)
        a(f"v_cmp_ne_u32 vcc, {expect}, v{vdat}")
        a(f"s_add_u32 s{cnt}, s{cnt}, 1")
        a(f"s_cbranch_vccz {done}")
        a("s_sleep 2")
        a(f"s_cmp_lt_u32 s{cnt}, {SPIN_MAX}")
        a(f"s_cbranch_scc1 {top}")
        a.label(done)
    def ds(self, text, tag):
        self.a(text); self.lg.add(tag)

class Pager:
    def __init__(self, k, free, seq):
        self.k, self.free, self.seq, self.pos, self.page, self.rel = k, list(free), seq, 0, {}, {}
        self.hold, self.hold_until, self.log = set(), 0, []
    def release(self, it):
        for p in self.rel.pop(it, []): self.free.append(p)
    def take(self, n, stop=None):
        out = []
        while len(out) < n and self.pos < len(self.seq):
            tag, emit, last, pref = self.seq[self.pos]
            if stop is not None and tag == stop: break
            cand = [p for p in pref if p in self.free and not (p in self.hold and (last is None or last + 2 > self.hold_until))]
            if not cand: break
            p = cand[0]; self.free.remove(p); self.page[tag] = p
            if last is not None: self.rel.setdefault(last + 2, []).append(p)
            out.append((tag, emit(p))); self.pos += 1
        self.log.append([(t, self.page[t]) for t, _ in out])
        return out
    def issue(self, grp):
        tag, text = grp
        self.k.a(text); self.k.vm.add(tag)

def spread(groups, extra, first=True):
    n = len(groups)
    per = -(-len(extra) // max(n, 1)) if extra else 0
    for i, g in enumerate(groups):
        for e in extra[i * per:(i + 1) * per]: e()
        g()
    for e in extra[n * per:]: e()

def interleave(ms, os):
    n = len(ms)
    for i, m in enumerate(ms):
        m()
        for o in os[i * len(os) // n:(i + 1) * len(os) // n]: o()

def prologue(k):
    a, vm = k.a, k.vm
    a.raw(f".globl {KN}"); a.raw(".p2align 8"); a.raw(f".type {KN},@function"); a.raw(f"{KN}:")
    if STAMPS or PADTO:
        a(f"s_memrealtime s[{STMP}:{STMP+1}]")
        a(f"s_memtime s[{STMP+2}:{STMP+3}]")
    a("s_cmp_ge_u32 s2, 256")
    a("s_cbranch_scc1 L_end")
    a(f"s_load_dwordx16 s[{PT}:{PT+15}], s[0:1], 0")
    a(f"s_load_dwordx8 s[{PT+16}:{PT+23}], s[0:1], 64")
    a(f"s_load_dwordx2 s[{PT+24}:{PT+25}], s[0:1], 96")
    a("s_getpc_b64 s[94:95]")
    a("v_lshrrev_b32 v1, 6, v0")
    a("v_and_b32 v2, 63, v0")
    a("v_readfirstlane_b32 s3, v1")
    a("s_and_b32 s4, s2, 0xf8")
    a("s_mul_i32 s4, s4, 160")
    a("v_lshlrev_b32 v8, 7, v0")
    a("v_cmp_gt_u32 vcc, 10, v0")
    a("v_add_u32 v8, s4, v8")
    a("v_min_u32 v8, CODE_BYTES, v8")
    a(f"s_and_saveexec_b64 s[{EXS}:{EXS+1}], vcc")
    l2 = L(); a(f"s_cbranch_execz {l2}")
    if "nocpf" not in VAR: a("global_load_dword v47, v8, s[94:95]")
    a.label(l2)
    a(f"s_mov_b64 exec, s[{EXS}:{EXS+1}]")
    a(f"v_lshlrev_b32 v{VL16}, 4, v2")
    a(f"v_and_b32 v{VN}, 31, v2")
    a(f"v_lshrrev_b32 v{VH}, 5, v2")
    a(f"s_and_b32 s{T0}, s2, 7")
    a(f"s_lshr_b32 s{T1}, s2, 3")
    a(f"s_lshr_b32 s{RB}, s{T0}, 1")
    a(f"s_lshl_b32 s{RB}, s{RB}, 3")
    a(f"s_and_b32 s{SEL}, s{T0}, 1")
    a(f"s_lshl_b32 s{T2}, s{SEL}, 2")
    a(f"s_add_u32 s{RB2}, s{RB}, s{T2}")
    a(f"s_and_b32 s{T3}, s{T1}, 3")
    a(f"s_add_u32 s{RB2}, s{RB2}, s{T3}")
    a(f"s_lshr_b32 s{CB2}, s{T1}, 2")
    a(f"s_and_b32 s{ROT}, s{T1}, 7")
    a(f"s_add_u32 s{RB}, s{RB}, s{ROT}")
    a(f"s_lshr_b32 s{T3}, s{T1}, 3")
    a(f"s_add_u32 s{HB}, s{T2}, s{T3}")
    a(f"s_lshl_b32 s{RG}, s{RB}, 2")
    a(f"s_add_u32 s{RG}, s{RG}, s{T3}")
    a(f"s_mul_i32 s{FCG}, s{T0}, 28")
    a(f"s_add_u32 s{FCG}, s{FCG}, s{T1}")
    a(f"s_lshl_b32 s{W1K}, s3, 10")
    a(f"s_lshl_b32 s{W4K}, s3, 12")
    a(f"s_lshl_b32 s{W8K}, s3, 13")
    a(f"s_and_b32 s{RT}, s3, 1")
    a(f"s_lshr_b32 s{HD}, s3, 1")
    a(f"s_lshl_b32 s{ROWT}, s{RB}, 1")
    a(f"s_add_u32 s{ROWT}, s{ROWT}, s{RT}")
    a(f"s_lshl_b32 s{XO2}, s{RB}, 17")
    a(f"s_lshl_b32 s{OSO}, s{HB}, 8")
    a(f"s_sub_u32 s{FW}, s3, {FB0 + 1}")
    a("s_cmp_lt_u32 s3, 4")
    a(f"s_cselect_b32 s{MODE}, s{SEL}, 2")
    a("v_lshrrev_b32 v5, 4, v2")
    a(f"s_lshl_b32 s{T0}, s3, 2")
    a(f"v_add_u32 v6, s{T0}, v5")
    a("v_xor_b32 v7, v6, v2")
    a("v_and_b32 v7, 7, v7")
    a("v_lshlrev_b32 v7, 4, v7")
    a("v_lshrrev_b32 v8, 3, v2")
    a("v_lshl_add_u32 v7, v8, 11, v7")
    a(f"s_lshl_b32 s{T0}, s3, 14")
    a(f"v_add_u32 v{VOX}, s{T0}, v7")
    a("v_lshrrev_b32 v7, 2, v2")
    a("v_lshlrev_b32 v7, 11, v7")
    a("v_and_b32 v8, 3, v2")
    a("v_lshl_add_u32 v7, v8, 4, v7")
    a(f"s_lshl_b32 s{T0}, s{RT}, 16")
    a(f"s_lshl_b32 s{T1}, s{HD}, 6")
    a(f"s_add_u32 s{T0}, s{T0}, s{T1}")
    a(f"v_add_u32 v{VOW}, s{T0}, v7")
    if "fake128" in VAR:
        a("v_lshrrev_b32 v7, 3, v2")
        a("v_lshlrev_b32 v7, 11, v7")
        a("v_and_b32 v8, 7, v2")
        a("v_lshl_add_u32 v7, v8, 4, v7")
        a(f"s_lshl_b32 s{T0}, s{RT}, 16")
        a(f"s_and_b32 s{T1}, s{HD}, 1")
        a(f"s_lshl_b32 s{T1}, s{T1}, 14")
        a(f"s_add_u32 s{T0}, s{T0}, s{T1}")
        a(f"s_lshr_b32 s{T1}, s{HD}, 1")
        a(f"s_lshl_b32 s{T1}, s{T1}, 7")
        a(f"s_add_u32 s{T0}, s{T0}, s{T1}")
        a(f"v_add_u32 v{VOW}, s{T0}, v7")
    a("v_lshlrev_b32 v7, 2, v2")
    a("v_mov_b32 v9, 0")
    a("v_mov_b32 v17, 0")
    a("v_mov_b32 v16, 1")
    a(f"s_xor_b32 s{CNT}, s3, 7")
    a(f"s_lshl_b32 s{CNT}, s{CNT}, 8")
    a(f"s_add_u32 s{CNT}, s{CNT}, s2")
    a("v_and_b32 v1, 28, v7")
    a("s_waitcnt lgkmcnt(0)")
    srd(a, S_X, P_X, 2048 * 2048)
    a(f"s_cmp_eq_u32 s{SEL}, 0")
    a(f"s_cselect_b32 s{S_KW}, s{P_WK}, s{P_WV}")
    a(f"s_cselect_b32 s{S_KW+1}, s{P_WK+1}, s{P_WV+1}")
    a(f"s_and_b32 s{S_KW+1}, s{S_KW+1}, 0xffff")
    a(f"s_mov_b32 s{S_KW+2}, 0x10000")
    a(f"s_mov_b32 s{S_KW+3}, 0x20000")
    srd(a, S_WS, P_WS, WS_SIZE)
    srd(a, S_WR, P_WR, 2048)
    k.stamp("entry")
    k.delay(3)
    def zero():
        a("v_mov_b32 v10, 0"); a("v_mov_b32 v11, 0"); a("v_mov_b32 v8, 0")
        a(f"s_lshl_b32 s{T2}, s2, 12")
        a(f"s_add_u32 s{T2}, s{T2}, {SY1:#x}")
        for i in range(4): a(f"buffer_store_dwordx4 v[8:11], v{VL16}, {sr(S_WS)}, s{T2} offen offset:{i*1024} sc1")
        a(f"s_lshl_b32 s{T2}, s2, 2")
        a("s_waitcnt vmcnt(0)")
        a(f"v_mov_b32 v10, s{T2}")
        a(f"global_store_dword v10, v16, s[{P_DBG}:{P_DBG+1}] sc1")
    k.only(f"s_cmp_lt_u32 s{CNT}, 8", zero)

AUX = 19 * 8192
TAB = AUX + 2304
RED = 4 * 8192

def phaseAB(k):
    a, vm, lg = k.a, k.vm, k.lg
    VXA, VW, ACC, WF, FT, XREG, CS = 32, 44, 48, 64, 96, 128, 12
    XF, ACCX, ACCO = XREG, 48, 80
    def rot(j, shift, extra, base):
        return f"""s_add_u32 s{TD}, s{ROT}, {j}
        s_and_b32 s{TD}, s{TD}, 7
        s_lshl_b32 s{TD}, s{TD}, {shift}
        s_add_u32 s{TD}, s{TD}, s{base}""" + (f"\ns_add_u32 s{TD}, s{TD}, {extra}" if extra else "")
    def ldx(c): return lambda p: f"s_add_u32 m0, s{W1K}, {p*8192}\n" + rot(c >> 1, 8, (c & 1) * 128, XO2) + f"\nbuffer_load_dwordx4 v{VOX}, {sr(S_X)}, s{TD} offen lds"
    def ldk(j): return lambda p: f"s_add_u32 m0, s{W1K}, {p*8192}\n" + rot(j, 13, 0, W1K) + f"\nbuffer_load_dwordx4 v{VL16}, {sr(S_KW)}, s{TD} offen lds"
    def ldw(c, h): return lambda p: f"s_add_u32 m0, s{W1K}, {p*8192}\n" + rot(c >> 1, 18, ((c & 1) * 64 + h * 16) * 2048, OSO) + f"\nbuffer_load_dwordx4 v{VOW}, {sr(S_W)}, s{TD} offen lds"
    seq = []
    hi = list(range(8, 19))
    for j in range(8):
        seq.append((("k", j), ldk(j), j, [4, 5, 6, 7] if 1 <= j <= 4 else hi[::-1]))
        for e in range(2):
            c = 2 * j + e
            seq.append((("x", c), ldx(c), j if c < 8 else None, [0, 1, 2, 3] if 8 <= c <= 11 else hi[::-1] if c < 8 else hi[:3:-1]))
    for c in range(16):
        for h in range(2):
            seq.append((("w", c, h), ldw(c, h), None, hi + [4, 5, 6, 7]))
    pg = Pager(k, range(19), seq)
    pg.hold, pg.hold_until = {4, 5, 6, 7}, 6
    k.pgAB = pg
    srd(a, S_W, P_WQ, 1024 * 2048)
    a(f"v_lshlrev_b32 v8, 7, v{VN}")
    a(f"s_lshl_b32 s{T0}, s{RG}, 15")
    a(f"s_add_u32 s{T0}, s{T0}, s{W4K}")
    a(f"buffer_load_dword v47, v8, {sr(S_X)}, s{T0} offen"); vm.add("xt")
    def wtouch():
        if "wt256" in VAR:
            a(f"v_lshrrev_b32 v8, 1, v{VN}")
            a("v_lshlrev_b32 v8, 11, v8")
            a("v_and_b32 v10, 1, v2")
            a("v_lshl_add_u32 v8, v10, 7, v8")
            a(f"s_lshl_b32 s{T0}, s{ROT}, 3")
            a(f"s_add_u32 s{T0}, s{T0}, s3")
            a(f"s_lshl_b32 s{T0}, s{T0}, 15")
            a(f"s_add_u32 s{T0}, s{T0}, s{OSO}")
        else:
            a(f"v_lshrrev_b32 v8, 3, v{VN}")
            a("v_lshlrev_b32 v8, 11, v8")
            a("v_and_b32 v10, 7, v2")
            a("v_lshl_add_u32 v8, v10, 7, v8")
            a(f"s_lshr_b32 s{T0}, s2, 3")
            a(f"s_lshl_b32 s{T0}, s{T0}, 16")
            a(f"s_add_u32 s{T0}, s{T0}, s{W8K}")
            a(f"s_lshl_b32 s{T1}, s{SEL}, 10")
            a(f"s_add_u32 s{T0}, s{T0}, s{T1}")
        a(f"buffer_load_dword v47, v8, {sr(S_W)}, s{T0} offen"); vm.add("wt")
    if WT_IT < 0: wtouch()
    a(f"s_lshl_b32 s{T1}, s3, 8")
    a(f"s_add_u32 m0, s{T1}, {AUX}")
    a(f"s_add_u32 s{TD}, s{ROT}, s3")
    a(f"s_and_b32 s{TD}, s{TD}, 7")
    a(f"s_lshl_b32 s{TD}, s{TD}, 8")
    a(f"buffer_load_dword v7, {sr(S_WR)}, s{TD} offen lds"); vm.add("wr")
    first = pg.take(N_INIT)
    for g_ in first[:3]: pg.issue(g_)
    k.stamp("issued")
    srd(a, S_KV, P_WS, 0x40000)
    srd(a, S_WG, P_WG, 1024 * 7168)
    srd(a, S_WU, P_WU, 1024 * 7168)
    a(f"v_mov_b32 v8, {ONES:#x}")
    a(f"v_add_u32 v9, {AUX + 2048}, v7")
    k.ds("ds_write_b32 v9, v8", "ones")
    k.ds("ds_write_b32 v9, v17 offset:384", "ones")
    a(f"v_bfe_u32 v5, v{VN}, 1, 3")
    a(f"v_xor_b32 v5, v5, v{VH}")
    a(f"s_lshl_b32 s{T0}, s{RT}, 12")
    a(f"s_lshl_b32 s{T1}, s{RT}, 2")
    a(f"v_lshlrev_b32 v6, 7, v{VN}")
    a(f"v_add_u32 v8, s{T0}, v6")
    a(f"v_xor_b32 v9, s{T1}, v5")
    a(f"v_lshl_add_u32 v{VXA}, v9, 4, v8")
    a(f"v_xor_b32 v{VXA+1}, 32, v{VXA}")
    a(f"v_xor_b32 v{VXA+2}, 0x1000, v{VXA}")
    a(f"v_xor_b32 v{VXA+3}, 0x1020, v{VXA}")
    for s in range(4):
        a(f"v_add_u32 v{VXA+4+s}, 0x10000, v{VXA+s}")
        a(f"v_add_u32 v{VXA+8+s}, 0x20000, v{VXA+s}")
    BX, MX, I17, AX, AW, BW = FT, FT + 2, FT + 3, FT + 4, FT + 6, FT + 7
    a(f"s_and_b32 s{T0}, s{HB}, 3")
    a(f"s_lshl_b32 s{T0}, s{T0}, 11")
    a(f"v_add_u32 v8, s{T0}, v6")
    a(f"s_lshl_b32 s{T1}, s{RT}, 2")
    a(f"v_xor_b32 v9, s{T1}, v5")
    a(f"v_lshl_add_u32 v{BX}, v9, 4, v8")
    a("v_xor_b32 v9, 2, v9")
    a(f"v_lshl_add_u32 v{BX+1}, v9, 4, v8")
    a(f"s_and_b32 s{T2}, s3, 3")
    a(f"s_lshl_b32 s{T3}, s{T2}, 6")
    a(f"s_add_u32 s{T3}, s{T3}, {AUX}")
    a(f"v_lshlrev_b32 v8, 4, v{VH}")
    a(f"v_add_u32 v8, s{T3}, v8")
    a(f"v_mov_b32 v9, {AUX + 2048}")
    a(f"v_cmp_eq_u32 vcc, 17, v{VN}")
    a("v_mov_b32 v10, 256")
    a("v_cndmask_b32 v8, v9, v8, vcc")
    a(f"v_cndmask_b32 v{I17}, 0, v10, vcc")
    a("v_add_u32 v9, 32, v8")
    a(f"v_cmp_gt_u32 vcc, 16, v{VN}")
    a(f"v_cndmask_b32 v{MX}, 0, 1, vcc")
    a(f"v_cndmask_b32 v{BX}, v8, v{BX}, vcc")
    a(f"v_cndmask_b32 v{BX+1}, v9, v{BX+1}, vcc")
    a("v_bfe_u32 v5, v2, 2, 2")
    a(f"v_lshl_add_u32 v6, v{VH}, 3, v5")
    a("v_bfe_u32 v8, v2, 4, 1")
    a("v_lshlrev_b32 v8, 5, v8")
    a("v_and_b32 v9, 3, v2")
    a("v_lshl_add_u32 v8, v9, 3, v8")
    a("v_lshl_add_u32 v9, v6, 6, v8")
    a(f"s_lshl_b32 s{T3}, s{T2}, 11")
    a(f"v_add_u32 v{BW}, s{T3}, v9")
    a(f"v_add_u32 v{VW}, s{W1K}, v9")
    a(f"v_add_u32 v{VW+1}, 0x10000, v{VW}")
    a(f"v_add_u32 v{VW+2}, 0x20000, v{VW}")
    a("v_bfe_u32 v5, v2, 2, 1")
    a("v_cmp_eq_u32 vcc, 0, v5")
    a(f"v_mov_b32 v6, {ONES:#x}")
    a(f"v_cndmask_b32 v{MA}, 0, v6, vcc")
    a(f"v_cndmask_b32 v{MA+1}, 0, v6, vcc")
    a(f"v_cndmask_b32 v{MA+2}, v6, 0, vcc")
    a(f"v_cndmask_b32 v{MA+3}, v6, 0, vcc")
    a("v_and_b32 v5, 2, v2")
    a("v_cmp_eq_u32 vcc, 0, v5")
    for i in range(4): a(f"v_cndmask_b32 v{MA+i}, 0, v{MA+i}, vcc")
    a("v_and_b32 v5, 1, v2")
    a("v_cmp_eq_u32 vcc, 0, v5")
    a("v_mov_b32 v6, 0x44444444")
    a("v_mov_b32 v8, 0xeeeeeeee")
    a(f"v_cndmask_b32 v{IDXC}, v8, v6, vcc")
    a(f"v_mov_b32 v{IDXD}, 0xdddddddd")
    for i in range(4): a(f"v_mov_b32 v{CS+i}, 0")
    for g_ in first[3:]: pg.issue(g_)
    lg.wait_all()

    def xread(c, s, dst, tag):
        p = pg.page[("x", c)]
        k.ds(f"ds_read_b128 {vr(dst, 4)}, v{VXA + 4*(p >> 3) + s} offset:{(p & 7) * 8192}", tag)
    def kv_mfma(j):
        b = WF + 16 * (j & 1)
        def mm(x, y):
            for e in range(2):
                c = "0" if (j == 0 and e == 0) else vr(ACC, 16)
                a(f"v_mfma_f32_32x32x16_bf16 {vr(ACC,16)}, {vr(b+x+4*e,4)}, {vr(b+y+4*e,4)}, {c}")
        k.ifelse(f"s_cmp_eq_u32 s{MODE}, 2", lambda: mm(0, 0),
                 lambda: k.ifelse(f"s_cmp_eq_u32 s{MODE}, 0", lambda: mm(8, 0), lambda: mm(0, 8)))
    for j in range(8):
        if j not in S1_SKIP:
            jj = j + 1 if (j + 1) in S1_SKIP else j
            vm.wait(*[t_ for q in range(j, jj + 1) for t_ in (("x", 2*q), ("x", 2*q+1), ("k", q))])
            a("s_barrier")
            if j == 0: k.stamp(f"S{j}")
            for q in range(j + 1): pg.release(q)
        d = [lambda g=g: pg.issue(g) for g in pg.take(6 if j < 2 else 4, stop=(('w', 0, 0) if 'nohold' not in VAR else None))]
        b = WF + 16 * (j & 1)
        def g0():
            a("s_bitcmp1_b32 s3, 1")
            a(f"s_mov_b32 s{SP}, {pg.page[('x', 2*j)]*8192}")
            a(f"s_cselect_b32 s{SP}, {pg.page[('x', 2*j+1)]*8192}, s{SP}")
            a(f"v_mul_u32_u24 v8, s{SP}, v{MX}")
            a(f"v_add_u32 v{AX}, v8, v{BX}")
            a(f"v_add_u32 v{AX+1}, v8, v{BX+1}")
            a(f"v_add_u32 v{AW}, {pg.page[('k', j)]*8192}, v{BW}")
            for e in range(2): k.ds(f"ds_read_b128 {vr(b+4*e,4)}, v{AX+e}", ("s", j))
            for e in range(2):
                for u in range(2):
                    k.ds(f"ds_read_b64_tr_b16 {vr(b+8+4*e+2*u,2)}, v{AW} offset:{(16*e+4*u)*64}", ("s", j))
            a(f"v_add_u32 v{BX}, v{I17}, v{BX}")
            a(f"v_add_u32 v{BX+1}, v{I17}, v{BX+1}")
        def g1():
            if j > 0:
                lg.wait(("s", j - 1), ("xr", j - 1))
                kv_mfma(j - 1)
        def g2(e):
            if j < 4:
                for s in range(4): xread(2*j+e, s, XREG + 16*(2*j+e) + 4*s, ("xr", j))
        if j == WT_IT: d.insert(WT_POS, wtouch)
        if j == DBG_IT: d.insert(2 if j == 3 else 0, lambda: k.only(f's_cmp_eq_u32 s3, {FB0}', lambda: a(f'global_load_dword v16, v1, s[{P_DBG}:{P_DBG+1}] sc1')))
        g2(0)
        spread([g0, g1, lambda: g2(1)], d)
    F = FT
    R2 = RED + 16384
    SF = WF + 16
    M, RI, R, V = SF + 2, SF + 3, SF + 1, SF + 8
    def st_reads():
        a("v_and_b32 v5, 15, v2")
        a("v_lshlrev_b32 v6, 4, v5")
        for w in range(4): a(f"ds_read_b64 {vr(SF+2*w,2)}, v6 offset:{R2+w*4096+2*1024}")
        a("v_bfe_u32 v8, v5, 2, 1")
        a("v_lshl_add_u32 v8, v8, 9, v6")
        a("v_lshrrev_b32 v9, 3, v5")
        a("v_lshl_add_u32 v8, v9, 10, v8")
        a("v_and_b32 v9, 3, v5")
        a("v_lshl_add_u32 v8, v9, 2, v8")
        for w in range(4): a(f"ds_read_b32 v{SF+8+w}, v8 offset:{R2+w*4096}")
    def st_compute(extra=()):
        extra = list(extra)
        def fill(n):
            for _ in range(min(n, len(extra))): a(extra.pop(0))
        for w in range(1, 4):
            a(f"v_add_f32 v{SF}, v{SF}, v{SF+2*w}")
            a(f"v_add_f32 v{V}, v{V}, v{V+w}")
            a(f"v_add_f32 v{SF+1}, v{SF+1}, v{SF+2*w+1}")
        chain = [f"v_mul_f32 v{SF}, {f32(1/1024)}, v{SF}", f"v_mul_f32 v{V}, {f32(1/1024)}, v{V}",
                 f"v_fma_f32 v{V}, -v{SF}, v{SF}, v{V}", f"v_max_f32 v{V}, 0, v{V}",
                 f"v_cvt_pk_bf16_f32 v{M}, v{SF}, v{SF}", f"v_cvt_pk_bf16_f32 v{V}, v{V}, v{V}",
                 f"v_lshlrev_b32 v{M}, 16, v{M}", f"v_lshlrev_b32 v{V}, 16, v{V}",
                 f"v_add_f32 v{V}, {f32(1e-5)}, v{V}", f"v_cvt_pk_bf16_f32 v{V}, v{V}, v{V}", f"v_lshlrev_b32 v{V}, 16, v{V}",
                 f"v_sqrt_f32 v{V}, v{V}", f"v_cvt_pk_bf16_f32 v{V}, v{V}, v{V}", f"v_lshlrev_b32 v{V}, 16, v{V}",
                 f"v_rcp_f32 v{RI}, v{V}"]
        for x in chain: a(x); fill(2)
        fill(100)
    def fin0():
        st_reads()
        a(f"v_mov_b32 v9, {16*16 + 4}")
        for w in range(4): a(f"ds_read_b32 v{SF+12+w}, v9 offset:{R2+w*4096+2*1024}")
        a(f"s_lshl_b32 s{T0}, s2, 8")
        a(f"s_add_u32 s{T0}, s{T0}, {WS_YACC:#x}")
        a("v_lshlrev_b32 v8, 2, v2")
        a(f"buffer_store_dword v17, v8, {sr(S_WS)}, s{T0} offen sc1")
        a(f"s_add_u32 s{T0}, s{T0}, {SYB - WS_YACC:#x}")
        a(f"buffer_store_dword v17, v8, {sr(S_WS)}, s{T0} offen sc1")
        a("s_waitcnt lgkmcnt(0)")
        def rk():
            st_compute([f"v_add_f32 v{SF+12}, v{SF+12}, v{SF+12+w}" for w in range(1, 4)] +
                       [f"s_lshl_b32 s{T0}, s{RG}, 4", f"v_add_u32 v9, s{T0}, v5", "v_sub_u32 v9, 0xffff, v9", "v_lshlrev_b32 v6, 3, v5",
                        f"s_lshl_b32 s{T0}, s{RG}, 7", f"s_add_u32 s{T0}, s{T0}, {WS_STAT:#x}",
                        f"s_lshl_b32 s{T1}, s{RG}, 2", f"s_add_u32 s{T1}, s{T1}, {WS_RKEY:#x}"])
            a(f"v_fma_f32 v{R}, -v{M}, v{SF+12}, v{R}")
            a("s_mov_b64 exec, 0xffff")
            a(f"buffer_store_dwordx2 v[{M}:{RI}], v6, {sr(S_WS)}, s{T0} offen sc1")
            a(f"v_mul_f32 v{R}, v{R}, v{RI}")
            a(f"v_cvt_pk_bf16_f32 v{R}, v{R}, v{R}")
            a(f"v_ashrrev_i32 v8, 31, v{R}")
            a("v_or_b32 v8, 0x80000000, v8")
            a(f"v_xor_b32 v{R}, v{R}, v8")
            a(f"v_and_b32 v{R}, 0xffff0000, v{R}")
            a(f"v_or_b32 v{R}, v{R}, v9")
            for sh in (8, 4, 2, 1):
                a(f"v_max_u32_dpp v{R}, v{R}, v{R} row_ror:{sh} row_mask:0xf bank_mask:0xf")
            a("s_mov_b64 exec, 1")
            a(f"buffer_store_dword v{R}, v6, {sr(S_WS)}, s{T1} offen sc1")
            a("s_mov_b64 exec, -1")
        k.only(f"s_cmp_eq_u32 s{SEL}, 0", rk)
    def fin12():
        st_reads()
        adds = [f"v_add_f32 v{F+e}, v{F+e}, v{F+4*w+e}" for w in range(1, 4) for e in range(4)]
        a(f"s_lshr_b32 s{T2}, s{RG}, 1")
        a(f"s_lshl_b32 s{T2}, s{T2}, 12")
        a(f"s_and_b32 s{T1}, s{RG}, 1")
        def kk():
            a("v_bfe_u32 v9, v2, 4, 1")
            a("v_lshlrev_b32 v8, 9, v9")
            a(f"v_lshl_add_u32 v8, v{VH}, 10, v8")
            a(f"s_lshl_b32 s{T0}, s{FW}, 11")
            a(f"v_add_u32 v8, s{T0}, v8")
            a("v_add_u32 v9, v6, v8")
            for w in range(4): a(f"ds_read_b128 {vr(F+4*w,4)}, v9 offset:{RED+w*4096}")
            for w in range(4): a(f"ds_read_b128 {vr(F+16+4*w,4)}, v8 offset:{RED+w*4096+256}")
            a("v_and_b32 v8, 3, v5")
            a("v_bfe_u32 v9, v5, 2, 1")
            a("v_lshl_add_u32 v8, v9, 3, v8")
            a("v_bfe_u32 v9, v5, 3, 1")
            a("v_lshl_add_u32 v8, v9, 2, v8")
            a("v_bfe_u32 v9, v2, 4, 1")
            a("v_lshl_add_u32 v8, v9, 5, v8")
            a("v_lshlrev_b32 v8, 4, v8")
            a(f"v_lshl_add_u32 v8, v{VH}, 3, v8")
            a(f"s_lshl_b32 s{T0}, s{FW}, 10")
            a(f"s_add_u32 s{T2}, s{T2}, s{T0}")
            a(f"s_lshl_b32 s{T1}, s{T1}, 8")
            a(f"s_add_u32 s{T2}, s{T2}, s{T1}")
            a("s_waitcnt lgkmcnt(0)")
            st_compute(adds + [f"v_add_f32 v{F+16+e}, v{F+16+e}, v{F+16+4*w+e}" for w in range(1, 4) for e in range(4)])
            for e in range(4): a(f"v_fma_f32 v{F+e}, -v{M}, v{F+16+e}, v{F+e}")
            for e in range(4): a(f"v_mul_f32 v{F+e}, v{F+e}, v{RI}")
        def vv():
            a(f"s_lshl_b32 s{T0}, s{FW}, 10")
            a(f"v_add_u32 v9, s{T0}, v{VL16}")
            for w in range(4): a(f"ds_read_b128 {vr(F+4*w,4)}, v9 offset:{RED+w*4096}")
            a(f"v_lshlrev_b32 v8, 4, v{VN}")
            for w in range(4): a(f"ds_read_b32 v{F+16+w}, v8 offset:{RED+w*4096+2048}")
            a(f"v_mov_b32 v8, v{VL16}")
            a(f"s_lshl_b32 s{T1}, s{T1}, 10")
            a(f"s_add_u32 s{T2}, s{T2}, s{T1}")
            a(f"s_lshl_b32 s{T1}, s{FW}, 3")
            a(f"s_add_u32 s{T2}, s{T2}, s{T1}")
            a(f"s_add_u32 s{T2}, s{T2}, 2048")
            a(f"s_lshl_b32 s{T0}, s{FW}, 5")
            a(f"v_lshlrev_b32 v6, 4, v{VH}")
            a(f"v_add_u32 v6, s{T0}, v6")
            a("s_waitcnt lgkmcnt(0)")
            st_compute(adds + [f"v_add_f32 v{F+16}, v{F+16}, v{F+16+w}" for w in range(1, 4)])
            for e in range(4): a(f"ds_bpermute_b32 v{F+20+e}, v6, v{M} offset:{4*e}")
            for e in range(4): a(f"ds_bpermute_b32 v{F+24+e}, v6, v{RI} offset:{4*e}")
            a("s_waitcnt lgkmcnt(4)")
            for e in range(4): a(f"v_fma_f32 v{F+e}, -v{F+20+e}, v{F+16}, v{F+e}")
            a("s_waitcnt lgkmcnt(0)")
            for e in range(4): a(f"v_mul_f32 v{F+e}, v{F+e}, v{F+24+e}")
        k.ifelse(f"s_cmp_eq_u32 s{SEL}, 0", kk, vv)
        a(f"v_cvt_pk_bf16_f32 v{F+12}, v{F}, v{F+1}")
        a(f"v_cvt_pk_bf16_f32 v{F+13}, v{F+2}, v{F+3}")
        a(f"buffer_store_dwordx2 {vr(F+12,2)}, v8, {sr(S_WS)}, s{T2} offen sc1")
    def fin_arrive():
        a(f"s_waitcnt vmcnt({vm.since('fs')})")
        top, done = L(), L()
        a(f"s_mov_b32 s{CNT}, 0")
        a.label(top)
        a("v_cmp_eq_u32 vcc, 0, v16")
        a(f"s_add_u32 s{CNT}, s{CNT}, 1")
        a(f"s_cbranch_vccz {done}")
        a(f"global_load_dword v16, v1, s[{P_DBG}:{P_DBG+1}] sc1")
        a("s_waitcnt vmcnt(0)")
        a(f"s_cmp_lt_u32 s{CNT}, {SPIN_MAX}")
        a(f"s_cbranch_scc1 {top}")
        a.label(done)
        a("v_mov_b32 v8, 1")
        a(f"v_mov_b32 v9, {TAB + 128}")
        a("s_mov_b64 exec, 1")
        a("ds_add_rtn_u32 v9, v9, v8")
        a("s_waitcnt lgkmcnt(0)")
        a("v_cmp_eq_u32 vcc, 2, v9")
        a("s_mov_b64 exec, 0xff")
        nl = L()
        a(f"s_cbranch_vccz {nl}")
        a(f"s_lshr_b32 s{T0}, s2, 3")
        a(f"s_lshl_b32 s{T0}, s{T0}, 7")
        a(f"s_add_u32 s{T0}, s{T0}, {SY1:#x}")
        a("v_lshlrev_b32 v9, 12, v2")
        a(f"buffer_atomic_add v8, v9, {sr(S_WS)}, s{T0} offen sc1")
        a.label(nl)
        a("s_mov_b64 exec, -1")
    W0, W12, W012 = f"s_cmp_eq_u32 s3, {FB0}", f"s_cmp_lt_u32 s{FW}, 2", ("s_cmp_lt_u32 s3, 3" if FB0 == 0 else f"s_add_u32 s{T0}, s{FW}, 1\ns_cmp_lt_u32 s{T0}, 3")
    def kv_dma(i, chunk):
        a(f"s_add_u32 m0, s{W4K}, {chunk*32768 + i*1024}")
        a(f"s_add_u32 s{XSO}, s{W4K}, {chunk*32768 + i*1024}")
        a(f"buffer_load_dwordx4 v{VL16}, {sr(S_KV)}, s{XSO} offen sc1 lds"); vm.add(("kv", chunk))
    RK, PV, ST2 = 126, 122, 124
    pool = [WF, WF + 8]
    wreg, xreg = {}, {c: (XREG + 16*c, XREG + 16*c + 8) for c in range(8)}
    def rd_ops(c):
        need = 1 if c < 8 else 3
        if len(pool) < need: return None
        wreg[c] = pool.pop(0)
        if c >= 8: xreg[c] = (pool.pop(0), pool.pop(0))
        ops = []
        for e in range(2):
            def w(e=e):
                vm.wait(("w", c, e))
                p = pg.page[("w", c, e)]
                for u in range(2):
                    k.ds(f"ds_read_b64_tr_b16 {vr(wreg[c]+4*e+2*u,2)}, v{VW + (p >> 3)} offset:{(p & 7)*8192 + 4*u*64}", ("q", c, e))
            def x(e=e):
                for t in range(2): xread(c, 2*t+e, xreg[c][t] + 4*e, ("q", c, e))
            if c >= 8: ops.append(x)
            ops.append(w)
        return ops
    def rd(c):
        for o in rd_ops(c): o()
    def mm_ops(c):
        def m(e, t):
            if t == 0:
                lg.wait(("q", c, e)); pg.free.append(pg.page[("w", c, e)])
            acc = ACCX if t else ACCO
            cc = "0" if (c == 0 and e == 0) else vr(acc, 16)
            if 'nomm' not in VAR: a(f"v_mfma_f32_32x32x16_bf16 {vr(acc,16)}, {vr(wreg[c]+4*e,4)}, {vr(xreg[c][t]+4*e,4)}, {cc}")
        def s():
            a(f"v_smfmac_f32_16x16x64_bf16 {vr(CS,4)}, {vr(MA,4)}, {vr(wreg[c],8)}, v{IDXC}")
            pool.append(wreg[c])
            if c not in (2, 5, 6): pool.extend(xreg[c])
        return [lambda: m(0, 0), lambda: m(0, 1), lambda: m(1, 0), lambda: m(1, 1), s]
    def dmas(n):
        for g_ in pg.take(n): pg.issue(g_)
    def ld_stat():
        a(f"s_lshl_b32 s{T0}, s{ROWT}, 8")
        a(f"s_add_u32 s{T0}, s{T0}, {WS_STAT:#x}")
        a(f"v_lshlrev_b32 v5, 3, v{VN}")
        a(f"buffer_load_dwordx2 {vr(STAT,2)}, v5, {sr(S_WS)}, s{T0} offen sc1"); vm.add("stat")
    def ld_stat2():
        a(f"s_xor_b32 s{T0}, s{T0}, 0x100")
        a(f"buffer_load_dword v{ST2}, v5, {sr(S_WS)}, s{T0} offen sc1"); vm.add("stat")
    def ld_rk():
        a("v_lshlrev_b32 v5, 3, v2")
        a(f"s_mov_b32 s{T0}, {WS_RKEY:#x}")
        a(f"buffer_load_dwordx2 {vr(RK,2)}, v5, {sr(S_WS)}, s{T0} offen sc1"); vm.add("rk")
    def kvt():
        a(f"s_lshr_b32 s{T0}, s2, 3")
        a(f"s_lshl_b32 s{T0}, s{T0}, 13")
        a("v_lshlrev_b32 v5, 7, v2")
        a(f"buffer_load_dword v16, v5, {sr(S_KV)}, s{T0} offen sc1")
    pl = [ld_stat, ld_stat2] + [lambda i=i: kv_dma(i, 0) for i in range(4)] + [ld_rk, lambda: k.only("s_cmp_eq_u32 s3, 6", kvt)]
    post = {CHK + 1: pl[:4], CHK + 2: pl[4:]} if CHK <= 11 else {13: pl}
    post.update({
            5: [lambda: k.ffn.early(0)], 6: [lambda: k.ffn.early(1)], 7: [lambda: k.ffn.early(2)]})
    k.stamp("B0")
    k.delay(77)
    lg.wait(("s", 7)); kv_mfma(7)
    dmas(NW0)
    a(f"v_add_u32 v8, s{W4K}, v{VL16}")
    for q in range(4): k.ds(f"ds_write_b128 v8, {vr(ACC+4*q,4)} offset:{RED + q*1024}", "red")
    lg.wait_all()
    a("s_barrier"); pg.release(7); pg.release(8); pg.release(9)
    k.only(W0, fin0); k.only(W12, fin12); vm.mark("fs")
    dmas(7)
    if ARR < 0: k.only(W012, fin_arrive)
    rd(0); rd(1)
    k.stamp('R1')
    for c in range(14):
        if c == PI:
            a(f"v_lshlrev_b32 v{PV}, 7, v{VN}")
            a(f"s_and_b32 s{T3}, s2, 7")
            a(f"s_lshl_b32 s{T3}, s{T3}, 12")
            a(f"s_add_u32 s{T3}, s{T3}, {SY1:#x}")
            k.only(W0, lambda: a(f"buffer_load_dword v{PV+1}, v{PV}, {sr(S_WS)}, s{T3} offen sc1"))
            vm.mark("poll")
        ro = rd_ops(c + 2) if c + 2 < 16 else []
        d1 = lambda: dmas(1)
        extra = post.pop(c, [])
        if 'nopost' in VAR: extra = []
        if ro is None: interleave(mm_ops(c), [d1, d1, d1]); rd(c + 2)
        else:
            h = len(ro) // 2
            interleave(mm_ops(c), [d1] + ro[:h] + [d1] + ro[h:] + [d1] + extra)
        if 'fine' in VAR and c in (1, 2, 4, 6, 8, 10, 12, 13, 14): k.stamp(f'M{c}')
        if c == ARR: k.only(W012, fin_arrive)
        if c == R2C:
            a("s_barrier"); pg.hold = set()
        if c == CHK:
            def chk():
                a(f"s_waitcnt vmcnt({vm.since('poll')})")
                k.poll(PV, PV + 1, T3, 8)
            if 'nopub' not in VAR: k.only(W0, chk)
            if 'nor3' not in VAR: a("s_barrier")
    EX, MB = 208, 224
    assert all(b not in list(wreg[c_] for c_ in (14, 15)) + list(xreg[14]) + list(xreg[15]) for b in (208, 216, 224)), (wreg, xreg)
    m14, m15 = mm_ops(14), mm_ops(15)
    lg.wait(("q", 14, 0), ("q", 14, 1)); m14[4]()
    m14[1]()
    a(f"v_cmp_eq_u32 vcc, 0, v{VH}")
    vm.wait("stat")
    a(f"v_cvt_pk_bf16_f32 v{MB}, -v{STAT}, -v{STAT}")
    a(f"v_cvt_pk_bf16_f32 v{MB+4}, -v{ST2}, -v{ST2}")
    lg.wait(("q", 15, 0), ("q", 15, 1)); m15[4]()
    m14[3]()
    a(f"v_cndmask_b32 v{MB}, 0, v{MB}, vcc")
    a(f"v_cndmask_b32 v{MB+4}, 0, v{MB+4}, vcc")
    a(f"v_mov_b32 v{MB+1}, v{MB}"); a(f"v_mov_b32 v{MB+5}, v{MB+4}")
    for i in (2, 3, 6, 7): a(f"v_mov_b32 v{MB+i}, 0")
    m15[1]()
    a("v_mov_b32 v10, 0"); a("v_mov_b32 v11, 0")
    a(f"v_add_f32 v6, v{CS}, v{CS+1}")
    a("v_cvt_pk_bf16_f32 v5, v6, v6")
    a("v_lshlrev_b32 v5, 16, v5")
    a("v_sub_f32 v5, v6, v5")
    m15[3]()
    a("v_cvt_pk_bf16_f32 v8, v6, v5")
    a("v_and_b32 v6, 0xffff0000, v8")
    a("v_sub_f32 v5, v5, v6")
    a("v_cvt_pk_bf16_f32 v9, v5, 0")
    a(f"v_add_u32 v12, s{W1K}, v{VL16}")
    a("v_add_u32 v12, 0x10000, v12")
    a(f"v_mfma_f32_32x32x16_bf16 {vr(ACCX,16)}, v[8:11], {vr(MB+4,4)}, {vr(ACCX,16)}")
    a("v_and_b32 v5, 1, v2")
    a("v_cmp_eq_u32 vcc, 0, v5")
    m14[0]()
    a(f"v_mul_f32 v6, {f32(QSCALE)}, v{STAT+1}")
    a("v_xor_b32 v13, 0x400, v12")
    for i in range(4): a(f"v_cndmask_b32 v{MA+i}, 0, v{MA+i}, vcc")
    m14[2]()
    for i in range(4): a(f"v_pk_mov_b32 {vr(OA+2*i,2)}, 0, 0")
    for q in range(2): a(f"ds_write_b128 v12, {vr(ACCX+4*q,4)} offset:{q*8192}")
    m15[0]()
    for q in range(2, 4): a(f"ds_write_b128 v12, {vr(ACCX+4*q,4)} offset:{q*8192}")
    for i in range(4, 8): a(f"v_pk_mov_b32 {vr(OA+2*i,2)}, 0, 0")
    m15[2]()
    for i in range(2): a(f"v_pk_mov_b32 {vr(LS+2*i,2)}, 0, 0")
    a(f"v_add_u32 v{VK1}, 0x10000, v{VL16}")
    a(f"v_mfma_f32_32x32x16_bf16 {vr(ACCO,16)}, v[8:11], {vr(MB,4)}, {vr(ACCO,16)}")
    k.EX = EX
    for p in (8, 9, 10, 11): assert p in pg.free
    k.stamp("B_end")
    if "stopB" in VAR: a("s_endpgm")
    k.ACCX, k.ACCO, k.ST2 = ACCX, ACCO, ST2
    k.ACC, k.CS, k.RK = ACC, CS, RK


def attention(k):
    a, vm, lg, ffn = k.a, k.vm, k.lg, k.ffn
    ACCX, ACC, CS, ST2 = k.ACCX, k.ACCO, k.CS, k.ST2
    EX = k.EX
    srd(a, S_W, P_WO, 1024 * 2048)
    vm.wait(("kv", 0))
    a("s_waitcnt lgkmcnt(0)")
    a("s_barrier")
    for q in range(4): a(f"ds_read_b128 {vr(EX+4*q,4)}, v13 offset:{q*8192}")
    a(f"ds_read_b128 {vr(KA,4)}, v{VL16}")
    a(f"ds_read_b128 {vr(KA+4,4)}, v{VL16} offset:1024")
    a(f"s_add_u32 m0, s{W4K}, 32768")
    a(f"s_add_u32 s{XSO}, s{W4K}, 32768")
    a(f"buffer_load_dwordx4 v{VL16}, {sr(S_KV)}, s{XSO} offen sc1 lds"); vm.add(("kv", 1))
    for q in range(4):
        a(f"s_waitcnt lgkmcnt({5-q})")
        for i in (2*q, 2*q+1): a(f"v_pk_add_f32 {vr(ACC+2*i,2)}, {vr(ACC+2*i,2)}, {vr(EX+2*i,2)}")
        for i in (2*q, 2*q+1): a(f"v_pk_mul_f32 {vr(ACC+2*i,2)}, {vr(ACC+2*i,2)}, v[6:7] op_sel_hi:[1,0]")
        for i in (2*q, 2*q+1): a(f"v_cvt_pk_bf16_f32 v{QF+i}, v{ACC+2*i}, v{ACC+2*i+1}")
    a("s_waitcnt lgkmcnt(0)")
    a(f"v_mfma_f32_32x32x16_bf16 {vr(SA,16)}, {vr(KA,4)}, {vr(QF,4)}, 0")
    a(f"v_mfma_f32_32x32x16_bf16 {vr(SA,16)}, {vr(KA+4,4)}, {vr(QF+4,4)}, {vr(SA,16)}")
    def kvaddr(tile, off):
        p = ((tile >> 3) % 3) * 32768 + (tile & 7) * 4096 + off
        return (f"v{VL16} offset:{p}" if p < 65536 else f"v{VK1} offset:{p - 65536}")
    lg.tags = []
    k.ds(f"ds_read_b128 {vr(KA,4)}, {kvaddr(1, 0)}", ("K", 1))
    k.ds(f"ds_read_b128 {vr(KA+4,4)}, {kvaddr(1, 1024)}", ("K", 1))
    k.ds(f"ds_read_b128 {vr(VA,4)}, {kvaddr(0, 2048)}", ("V0", 0))
    a(f"v_max3_f32 v6, v{SA}, v{SA+1}, v{SA+2}")
    a(f"v_max3_f32 v5, v{SA+3}, v{SA+4}, v{SA+5}")
    a(f"v_max3_f32 v6, v6, v{SA+6}, v{SA+7}")
    a(f"v_max3_f32 v5, v5, v{SA+8}, v{SA+9}")
    a(f"v_max3_f32 v6, v6, v{SA+10}, v{SA+11}")
    a(f"v_max3_f32 v5, v5, v{SA+12}, v{SA+13}")
    a(f"v_max3_f32 v6, v6, v{SA+14}, v{SA+15}")
    a("v_max_f32 v6, v6, v5")
    a("v_mov_b32 v5, v6")
    a("v_permlane32_swap_b32 v6, v5")
    a("v_max_f32 v6, v6, v5")
    a(f"v_sub_f32 v{NM}, 0, v6")
    a(f"v_sub_f32 v{NM+1}, 0, v6")
    for i in range(8): a(f"v_pk_add_f32 {vr(SA+2*i,2)}, {vr(SA+2*i,2)}, {vr(NM,2)}")
    for i in range(1, 8): a(f"v_pk_mov_b32 {vr(NM+2*i,2)}, {vr(NM,2)}, {vr(NM,2)}")
    k.stamp("loop_start")
    if "pad4" in VAR: a("s_nop 0")
    if "al64" in VAR: a.raw(".p2align 6")
    for T in range(64):
        c, t = T >> 3, T & 7
        S, P = (SA, SB) if T % 2 == 0 else (SB, SA)
        e = lambda i: a(f"v_exp_f32 v{S+i}, v{S+i}")
        def kvd():
            for kp in range(4):
                if KVT[kp] != t: continue
                kc = c + 2 if t >= 6 else c + 1
                if kc > 7 or (kc == 1 and kp == 0): continue
                a(f"s_add_u32 m0, s{W4K}, {(kc % 3) * 32768 + kp * 1024}")
                a(f"s_add_u32 s{XSO}, s{W4K}, {kc * 32768 + kp * 1024}")
                a(f"buffer_load_dwordx4 v{VL16}, {sr(S_KV)}, s{XSO} offen {KVF} lds"); vm.add(("kv", kc))
        e(0)
        if T > 0:
            lg.wait(("V1", T - 1))
            a(f"v_smfmac_f32_32x32x32_bf16 {vr(OA,16)}, {vr(VA+4,4)}, {vr(P+8,8)}, v{IDXD}")
        k.ds(f"ds_read_b128 {vr(VA+4,4)}, {kvaddr(T, 3072)}", ("V1", T))
        if PRP == 0: a(f"s_setprio {3 - ((T + 1) & 3)}")
        e(1); e(2); e(3)
        if PRP != 0 and T < 63: lg.wait(("K", T + 1))
        if T > 0: a(f"v_smfmac_f32_16x16x64_bf16 {vr(LS,4)}, {vr(MA,4)}, {vr(P+8,8)}, v{IDXD}")
        if PRP == 0:
            e(4)
            if T < 63: lg.wait(("K", T + 1))
            nx = 5
        else:
            e(4); e(5); nx = 6
        if T < 63: a(f"v_mfma_f32_32x32x16_bf16 {vr(P,16)}, {vr(KA,4)}, {vr(QF,4)}, {vr(NM,16)}")
        if PRP != 0: a(f"s_setprio {3 - ((T + 1) & 3)}")
        for i in range(nx, 9): e(i)
        if T < 63: a(f"v_mfma_f32_32x32x16_bf16 {vr(P,16)}, {vr(KA+4,4)}, {vr(QF+4,4)}, {vr(P,16)}")
        if t == 6 and c < 7:
            vm.wait(("kv", c + 1))
            a("s_barrier")
        if T + 2 <= 63:
            k.ds(f"ds_read_b128 {vr(KA,4)}, {kvaddr(T + 2, 0)}", ("K", T + 2))
            k.ds(f"ds_read_b128 {vr(KA+4,4)}, {kvaddr(T + 2, 1024)}", ("K", T + 2))
        e(9); e(10); e(11)
        lg.wait(("V0", T))
        a(f"v_smfmac_f32_32x32x32_bf16 {vr(OA,16)}, {vr(VA,4)}, {vr(S,8)}, v{IDXD}")
        if T < 63: k.ds(f"ds_read_b128 {vr(VA,4)}, {kvaddr(T + 1, 2048)}", ("V0", T + 1))
        kvd()
        e(12); e(13); e(14); e(15)
        a(f"v_smfmac_f32_16x16x64_bf16 {vr(LS,4)}, {vr(MA,4)}, {vr(S,8)}, v{IDXD}")
        if "noffn" not in VAR: ffn.tile_end(T)
        if 'nod' not in VAR: k.D.tile_end(T)
    a("s_setprio 0")
    lg.wait_all()
    a(f"v_smfmac_f32_32x32x32_bf16 {vr(OA,16)}, {vr(VA+4,4)}, {vr(SB+8,8)}, v{IDXD}")
    a(f"v_smfmac_f32_16x16x64_bf16 {vr(LS,4)}, {vr(MA,4)}, {vr(SB+8,8)}, v{IDXD}")
    k.stamp("loop_end")
    k.delay(200)
    if "stopC" in VAR: a("s_endpgm")

FBASE = 98304
class FFN:
    VGU, VTR, VOD, VTD, XSL, VL4, XST, TMP, XS, WB, DD = 160, 161, 162, 163, 164, 165, 166, 168, 176, 192, 224
    FB, GSO, DSO, YSO, ASO = 66, 67, 94, 95, 65
    def __init__(self, k): self.k, self.a, self.vm = k, k.a, k.vm
    def early(self, part):
        t = self.TMP
        lines = []
        a = lines.append
        a(f"s_add_u32 s{self.FB}, s{W8K}, {FBASE}")
        a(f"v_lshrrev_b32 v{t}, 3, v2")
        a(f"v_mul_u32_u24 v{t}, 7168, v{t}")
        a(f"v_and_b32 v{t+1}, 7, v2")
        a(f"v_lshl_add_u32 v{self.VGU}, v{t+1}, 4, v{t}")
        a(f"v_bfe_u32 v{t}, v2, 2, 2")
        a(f"v_lshrrev_b32 v{t+1}, 4, v2")
        a(f"v_lshl_add_u32 v{t+1}, v{t+1}, 3, v{t}")
        a(f"v_lshlrev_b32 v{t+1}, 7, v{t+1}")
        a(f"v_and_b32 v{t+2}, 3, v2")
        a(f"v_lshl_add_u32 v{t+1}, v{t+2}, 3, v{t+1}")
        a(f"v_add_u32 v{self.VTR}, s{self.FB}, v{t+1}")
        a(f"v_lshrrev_b32 v{t+1}, 4, v2")
        a(f"v_lshlrev_b32 v{t+3}, 2, v{t+1}")
        a(f"v_xor_b32 v{t+3}, v{t+3}, v2")
        a(f"v_and_b32 v{t+3}, 15, v{t+3}")
        a(f"v_lshlrev_b32 v{t+3}, 4, v{t+3}")
        a(f"v_lshl_add_u32 v{t+3}, v{t+1}, 11, v{t+3}")
        a(f"s_lshl_b32 s{T0}, s3, 8")
        a(f"v_add_u32 v{self.VOD}, s{T0}, v{t+3}")
        a(f"v_mul_u32_u24 v{t}, 320, v{t}")
        a(f"v_lshl_add_u32 v{t}, v{VH}, 11, v{t}")
        a(f"v_bfe_u32 v{t+1}, v2, 4, 1")
        a(f"v_lshl_add_u32 v{t}, v{t+1}, 5, v{t}")
        a(f"v_lshl_add_u32 v{t}, v{t+2}, 3, v{t}")
        a(f"v_add_u32 v{self.VTD}, s{self.FB}, v{t}")
        a(f"v_lshlrev_b32 v{self.VL4}, 2, v2")
        a(f"v_and_b32 v{t}, 60, v{self.VL4}")
        a(f"v_mov_b32 v{t+1}, 0")
        a(f"s_and_b32 s{T0}, s{FCG}, 3")
        a(f"s_lshl_b32 s{T0}, s{T0}, 3")
        a(f"s_add_u32 s{T0}, s{T0}, s3")
        a(f"s_lshl_b32 s{SP}, s{T0}, 6")
        a(f"s_mul_i32 s{self.GSO}, s{T0}, {32*7168}")
        a(f"s_lshr_b32 s{T1}, s{FCG}, 2")
        a(f"s_lshl_b32 s{T2}, s{T1}, 7")
        a(f"s_add_u32 s{self.GSO}, s{self.GSO}, s{T2}")
        a(f"s_lshl_b32 s{self.ASO}, s{T1}, 8")
        a(f"s_add_u32 s{self.ASO}, s{self.ASO}, {WS_GU:#x}")
        a(f"s_lshl_b32 s{self.DSO}, s{FCG}, 15")
        a(f"s_and_b32 s{self.YSO}, s2, 7")
        a(f"s_lshl_b32 s{self.YSO}, s{self.YSO}, 12")
        a(f"s_lshl_b32 s{T0}, s3, 9")
        a(f"s_add_u32 s{self.YSO}, s{self.YSO}, s{T0}")
        a(f"s_add_u32 s{self.YSO}, s{self.YSO}, {WS_YACC:#x}")
        a("s_cmp_lt_u32 s2, 224")
        for r in (self.GSO, self.DSO, self.YSO, self.ASO):
            a(f"s_cselect_b32 s{r}, s{r}, 0x40000000")
        srd(a, S_WD, P_WD, 3584 * 2048)
        srd(a, S_OUT, P_OUT, 2048 * 2048)
        cut = [0, 12, 29, len(lines)]
        for x in lines[cut[part]:cut[part+1]]: self.a(x)
    def argmax1(self):
        a, RK = self.a, self.k.RK
        self.vm.wait('rk')
        a(f"v_max_u32 v5, v{RK}, v{RK+1}")
        for sh in (8, 4, 2, 1):
            a(f"v_max_u32_dpp v5, v5, v5 row_ror:{sh} row_mask:0xf bank_mask:0xf")
        for i, s in enumerate((T0, T1, T2, T3)): a(f"v_readlane_b32 s{s}, v5, {16*i}")
    def argmax2(self):
        a, vm = self.a, self.vm
        a(f"s_max_u32 s{T0}, s{T0}, s{T1}")
        a(f"s_max_u32 s{T2}, s{T2}, s{T3}")
        a(f"s_max_u32 s{RKEY}, s{T0}, s{T2}")
        a(f"s_and_b32 s{IDX}, s{RKEY}, 0xffff")
        a(f"s_sub_u32 s{IDX}, 0xffff, s{IDX}")
        a(f"s_and_b32 s{IDX}, s{IDX}, 2047")
    def arrive(self, soff):
        a, t = self.a, self.TMP
        a(f"v_mov_b32 v{t+6}, 1")
        a("s_mov_b64 exec, 1")
        a(f"buffer_atomic_add v{t+6}, v{self.VL4}, {sr(S_WS)}, s{soff} offen sc1"); self.vm.add("arr")
        a("s_mov_b64 exec, -1")
    def tile_end(self, T):
        k, a, vm, t = self.k, self.a, self.vm, self.TMP
        GU_T = [8*(i // 3) + FTS[i % 3] for i in range(8)]
        WD_T = WDT
        if T == 1: self.argmax1(); self.argmax2()
        if T == 3:
            a(f"s_lshl_b32 s{T0}, s{IDX}, 11")
            a(f"s_add_u32 s{T0}, s{T0}, s{SP}")
            a(f"buffer_load_dword v{self.XSL}, v{t}, {sr(S_X)}, s{T0} offen"); vm.add("xs")
        if T == 5:
            a(f"s_lshl_b32 s{T0}, s{IDX}, 3")
            a(f"s_add_u32 s{T0}, s{T0}, {WS_STAT:#x}")
            a(f"buffer_load_dwordx2 {vr(self.XST,2)}, v{t+1}, {sr(S_WS)}, s{T0} offen sc1"); vm.add("xs")
        if T in GU_T:
            i = GU_T.index(T); mat, j = i >> 2, i & 3
            a(f"s_add_u32 m0, s{self.FB}, {i*1024}")
            a(f"s_add_u32 s{T0}, s{self.GSO}, {j*8*7168}")
            a(f"buffer_load_dwordx4 v{self.VGU}, {sr(S_WU if mat else S_WG)}, s{T0} offen lds"); vm.add("u" if mat else "g")
        if T == 16:
            vm.wait("xs")
            a(f"v_lshlrev_b32 v{t}, 16, v{self.XSL}")
            a(f"v_and_b32 v{t+1}, 0xffff0000, v{self.XSL}")
            a(f"v_sub_f32 v{t}, v{t}, v{self.XST}")
            a(f"v_sub_f32 v{t+1}, v{t+1}, v{self.XST}")
            a(f"v_cvt_pk_bf16_f32 v{t+2}, v{t}, v{t+1}")
            a(f"v_lshlrev_b32 v{t}, 16, v{t+2}")
            a(f"v_and_b32 v{t+1}, 0xffff0000, v{t+2}")
            a(f"v_mul_f32 v{t}, v{t}, v{self.XST+1}")
            a(f"v_mul_f32 v{t+1}, v{t+1}, v{self.XST+1}")
            a(f"v_cvt_pk_bf16_f32 v{t+2}, v{t}, v{t+1}")
            a(f"v_and_b32 v{t+3}, 0x30, v2")
            for j in range(4):
                k.ds(f"ds_bpermute_b32 v{self.XS+j}, v{t+3}, v{t+2} offset:{4*j}", "xsf")
        if 22 <= T <= 25:
            if T == 22: vm.wait("g")
            if T == 24: vm.wait("u")
            m, hf = (T - 22) >> 1, (T - 22) & 1
            for ct in (2*hf, 2*hf+1):
                for u in range(2):
                    k.ds(f"ds_read_b64_tr_b16 {vr(self.WB+16*m+4*ct+2*u,2)}, v{self.VTR} offset:{m*4096 + u*512 + ct*32}", ("gw", T))
        if 24 <= T <= 27:
            m, hf = (T - 24) >> 1, (T - 24) & 1
            k.lg.wait(("gw", T - 2), "xsf")
            for ct in (2*hf, 2*hf+1):
                a(f"v_mfma_f32_16x16x32_bf16 {vr(self.DD+16*m+4*ct,4)}, {vr(self.XS,4)}, {vr(self.WB+16*m+4*ct,4)}, 0")
        if T == 28: k.delay(41)
        if T == 51: k.delay(130)
        if T == 28:
            for ct in range(1, 4):
                for m in range(2):
                    D = self.DD + 16*m
                    a(f"v_mov_b32_dpp v{D}, v{D+4*ct} quad_perm:[0,1,2,3] row_mask:{1 << ct:#x} bank_mask:0xf")
            a(f"s_add_u32 s{T0}, s{self.ASO}, {3584*4}")
            a(f"buffer_atomic_add_f32 v{self.DD}, v{self.VL4}, {sr(S_WS)}, s{self.ASO} offen"); vm.add("at1")
            a(f"buffer_atomic_add_f32 v{self.DD+16}, v{self.VL4}, {sr(S_WS)}, s{T0} offen"); vm.add("at1")
        if T in WD_T:
            j = WD_T.index(T)
            a(f"s_add_u32 m0, s{self.FB}, {j*1024}")
            a(f"s_add_u32 s{T0}, s{self.DSO}, {j*8192}")
            a(f"buffer_load_dwordx4 v{self.VOD}, {sr(S_WD)}, s{T0} offen lds"); vm.add("wd")
        if T == 35:
            vm.wait("at1")
            a(f"s_lshr_b32 s{self.GSO}, s{FCG}, 2")
            a(f"s_lshl_b32 s{self.GSO}, s{self.GSO}, 7")
            a(f"s_add_u32 s{self.GSO}, s{self.GSO}, {SY4:#x}")
            a("s_cmp_lt_u32 s2, 224")
            a(f"s_cselect_b32 s{self.GSO}, s{self.GSO}, 0x40000000")
            self.arrive(self.GSO)
        G = self.DD
        W0F = f"s_cmp_lt_u32 s{CNT}, 224"
        if T == 40:
            a(f"s_lshl_b32 s{CNT}, s3, 8")
            a(f"s_add_u32 s{CNT}, s{CNT}, s2")
            a(f"v_mov_b32 v{t}, 0")
            k.only(W0F, lambda: a(f"buffer_load_dword v{t+1}, v{t}, {sr(S_WS)}, s{self.GSO} offen sc1"))
            vm.mark("p4")
        if T == 42:
            def p2():
                a(f"s_waitcnt vmcnt({vm.since('p4')})")
                k.poll(t, t + 1, self.GSO, 32, cnt=T3)
                a(f"v_and_b32 v{t}, 60, v{self.VL4}")
                a(f"v_bfe_u32 v{t+1}, v2, 4, 1")
                a(f"v_mul_u32_u24 v{t+1}, {3584*4}, v{t+1}")
                a(f"v_add_u32 v{t+1}, v{t+1}, v{t}")
                a(f"s_lshl_b32 s{T0}, s{FCG}, 6")
                a(f"s_add_u32 s{T0}, s{T0}, {WS_GU:#x}")
                a(f"buffer_load_dword v{G}, v{t+1}, {sr(S_WS)}, s{T0} offen sc1")
            k.only(W0F, p2)
            vm.mark("gl")
        if T == 45:
            def hh():
                a(f"s_waitcnt vmcnt({vm.since('gl')})")
                bf16r(a, G, G)
                a(f"v_mov_b32 v{G+1}, v{G}")
                a(f"v_permlane16_swap_b32 v{G}, v{G+1}")
                a(f"v_mul_f32 v{G+2}, {f32(-LOG2E)}, v{G}")
                a(f"v_exp_f32 v{G+2}, v{G+2}")
                a(f"v_add_f32 v{G+2}, 1.0, v{G+2}")
                a(f"v_rcp_f32 v{G+2}, v{G+2}")
                a(f"v_mul_f32 v{G}, v{G}, v{G+2}")
                bf16r(a, G, G)
                a(f"v_mul_f32 v{G}, v{G}, v{G+1}")
                a(f"v_cvt_pk_bf16_f32 v{G}, v{G}, v{G}")
                a(f"v_lshrrev_b32 v{t}, 1, v{t}")
                a(f"v_add_u32 v{t}, {FBASE + 4096}, v{t}")
                a(f"ds_write_b16 v{t}, v{G}")
                a("s_waitcnt lgkmcnt(0)")
            k.only(W0F, hh)
        HF, WD, DD = 168, 176, 192
        if T in (43, 44):
            if T == 43: vm.wait("wd")
            for j in (2*(T-43), 2*(T-43)+1):
                if j: a(f"v_xor_b32 v{t+4+j}, {64*j}, v{self.VTD}")
                ad = (t + 4 + j) if j else self.VTD
                for u in range(2):
                    k.ds(f"ds_read_b64_tr_b16 {vr(WD+4*j+2*u,2)}, v{ad} offset:{u*1024}", "wdf")
        if T == 46:
            a(f"v_lshlrev_b32 v{t+4}, 4, v{VH}")
            a(f"v_add_u32 v{t+4}, {FBASE + 4096}, v{t+4}")
            k.ds(f"ds_read_b128 {vr(HF,4)}, v{t+4}", "hf")
        if 47 <= T <= 50:
            j = T - 47
            k.lg.wait("hf", "wdf")
            a(f"v_mfma_f32_32x32x16_bf16 {vr(DD+16*j,16)}, {vr(HF,4)}, {vr(WD+4*j,4)}, 0")
        if T == 51:
            a(f"v_mov_b32_dpp v{DD}, v{DD+16} quad_perm:[0,1,2,3] row_mask:0xc bank_mask:0xf")
            a(f"v_mov_b32_dpp v{DD+32}, v{DD+48} quad_perm:[0,1,2,3] row_mask:0xc bank_mask:0xf")
            a(f"buffer_atomic_add_f32 v{DD}, v{self.VL4}, {sr(S_WS)}, s{self.YSO} offen"); vm.add("at")
            a(f"buffer_atomic_add_f32 v{DD+32}, v{self.VL4}, {sr(S_WS)}, s{self.YSO} offen offset:256"); vm.add("at")
        if T == 59:
            vm.wait("at")
            a(f"s_lshr_b32 s{T0}, s2, 3")
            a(f"s_lshl_b32 s{T0}, s{T0}, 7")
            a(f"s_add_u32 s{T0}, s{T0}, {SY3:#x}")
            self.arrive(T0)

class PhaseD:
    XR, ST, VXO = 8, 30, 16
    VOF, VWD = 24, (17, 18, 1)
    XFL, G, XF, ACCO, ACCX, WREG = 32, 48, 64, 96, 112, 128
    def __init__(self, k):
        self.k, self.a, self.vm = k, k.a, k.vm
        def rot(c, shift, extra, base):
            return f"""s_add_u32 s{TD}, s{ROT}, {c}
            s_and_b32 s{TD}, s{TD}, 15
            s_lshl_b32 s{TD}, s{TD}, {shift}
            s_add_u32 s{TD}, s{TD}, s{base}""" + (f"\ns_add_u32 s{TD}, s{TD}, {extra}" if extra else "")
        def ldw(n): return lambda p: f"s_add_u32 m0, s{W1K}, {p*8192}\n" + rot(n >> 1, 17, (n & 1) * 16 * 2048, SEL) + f"\nbuffer_load_dwordx4 v{VOW}, {sr(S_W)}, s{TD} offen lds"
        def ldo(c): return lambda p: f"s_add_u32 m0, s{W1K}, {p*8192}\n" + rot(c, 12, 0, OBASE) + f"\nbuffer_load_dwordx4 v{VL16}, {sr(S_WS)}, s{TD} offen sc1 lds"
        seq = [(("w", n), ldw(n), None, list(range(19, -1, -1))) for n in range(24)]
        seq += [(("o", c), ldo(c), None, list(range(16))) for c in range(16)]
        seq += [(("w", n), ldw(n), None, [16, 17, 18, 19]) for n in range(24, 32)]
        self.pg = Pager(k, range(8, 20), seq)
    def tile_end(self, T):
        k, a, vm = self.k, self.a, self.vm
        if T == 44:
            a(f"s_lshr_b32 s{T0}, s2, 3")
            a(f"s_lshl_b32 s{T0}, s{T0}, 16")
            a(f"v_lshlrev_b32 v{self.VXO}, 7, v0")
            a(f"buffer_load_dword v{self.XR}, v{self.VXO}, {sr(S_W)}, s{T0} offen"); vm.add("pf")
        if T == 51:
            a(f"v_lshlrev_b32 v{self.VXO}, 11, v{VN}")
            a(f"v_lshl_add_u32 v{self.VXO}, v{VH}, 5, v{self.VXO}")
            a(f"s_lshl_b32 s{T1}, s{RB2}, 1")
            a(f"s_add_u32 s{T1}, s{T1}, s{RT}")
            a(f"s_lshl_b32 s{XO2}, s{T1}, 16")
            a(f"s_lshl_b32 s{SEL}, s{CB2}, 8")
            a(f"s_add_u32 s{XO2}, s{XO2}, s{SEL}")
            a(f"s_lshl_b32 s{T0}, s{HD}, 6")
            a(f"s_add_u32 s{XO2}, s{XO2}, s{T0}")
            a(f"buffer_load_dwordx4 {vr(self.XR,4)}, v{self.VXO}, {sr(S_X)}, s{XO2} offen"); vm.add("x2")
            a(f"s_lshl_b32 s{ROT}, s{CB2}, 1")
            a(f"s_lshr_b32 s{T0}, s{IDX}, 5")
            a(f"s_cmp_eq_u32 s{T0}, s{T1}")
            a(f"s_cselect_b32 s{MODE}, 1, 0")
        if T == 52:
            a(f"s_lshl_b32 s{T1}, s{RB2}, 1")
            a(f"s_add_u32 s{T1}, s{T1}, s{RT}")
            a(f"s_lshl_b32 s{T0}, s{T1}, 8")
            a(f"s_add_u32 s{T0}, s{T0}, {WS_STAT:#x}")
            a(f"v_lshlrev_b32 v5, 3, v{VN}")
            a(f"buffer_load_dwordx2 {vr(self.ST,2)}, v5, {sr(S_WS)}, s{T0} offen sc1"); vm.add("x2")
        if T == 53:
            a(f"buffer_load_dwordx4 {vr(self.XR+4,4)}, v{self.VXO}, {sr(S_X)}, s{XO2} offen offset:16"); vm.add("x2")
            a(f"s_lshl_b32 s{T0}, s{ROWT}, 5")
            a(f"s_lshl_b32 s{T1}, s{HB}, 2")
            a(f"s_add_u32 s{T0}, s{T0}, s{T1}")
            a(f"s_add_u32 s{T0}, s{T0}, s{HD}")
            a(f"s_lshl_b32 s{T0}, s{T0}, 11")
            a(f"s_add_u32 s{OSO}, s{T0}, {WS_OF:#x}")
        if 54 <= T <= 61:
            ne = (T - 53) * NEARLY // 8 - (T - 54) * NEARLY // 8
            if 'oldne' in VAR: ne = 2 if T < 58 else 1
            for g in self.pg.take(ne): self.pg.issue(g)
    def run(self):
        k, a, vm, lg, pg = self.k, self.a, self.vm, self.k.lg, self.pg
        XR, ST, VXO, VOF, VWD, XFL, G, XF, ACCO, ACCX, WREG = (self.XR, self.ST, self.VXO, self.VOF, self.VWD, self.XFL,
                                                              self.G, self.XF, self.ACCO, self.ACCX, self.WREG)
        a("v_bfe_u32 v5, v2, 2, 2")
        a(f"v_lshl_add_u32 v6, v{VH}, 2, v5")
        a("v_lshlrev_b32 v6, 6, v6")
        a("v_and_b32 v5, 1, v2")
        a("v_lshl_add_u32 v6, v5, 5, v6")
        a("v_bfe_u32 v5, v2, 4, 1")
        a("v_lshl_add_u32 v6, v5, 4, v6")
        a("v_bfe_u32 v5, v2, 1, 1")
        a("v_lshl_add_u32 v6, v5, 3, v6")
        a(f"v_add_u32 v{VWD[0]}, s{W1K}, v6")
        a(f"v_add_u32 v{VWD[1]}, 0x10000, v{VWD[0]}")
        a(f"v_add_u32 v{VWD[2]}, 0x20000, v{VWD[0]}")
        a(f"v_mov_b32 v6, {f32(2.0**64)}")
        for i in range(4): a(f"v_pk_add_f32 {vr(SA+2*i,2)}, {vr(OA+4*i,2)}, {vr(OA+4*i+2,2)}")
        a(f"v_pk_add_f32 {vr(SA,2)}, {vr(SA,2)}, {vr(SA+2,2)}")
        a(f"v_pk_add_f32 {vr(SA+4,2)}, {vr(SA+4,2)}, {vr(SA+6,2)}")
        a(f"v_pk_add_f32 {vr(SA,2)}, {vr(SA,2)}, {vr(SA+4,2)}")
        a(f"v_add_f32 v5, v{SA}, v{SA+1}")
        a(f"v_fma_f32 v5, v5, 0, v{LS}")
        a("v_cmp_nlt_f32 vcc, v5, v6")
        a("s_nop 1")
        if "forcefb" in VAR: a("s_branch L_fallback")
        a("s_cbranch_vccnz L_fallback")
        a.label("L_fin")
        a(f"v_rcp_f32 v6, v{LS}")
        for i in range(8): a(f"v_pk_mul_f32 {vr(OA+2*i,2)}, {vr(OA+2*i,2)}, v[6:7] op_sel_hi:[1,0]")
        for i in range(8): a(f"v_cvt_pk_bf16_f32 v{SA+i}, v{OA+2*i}, v{OA+2*i+1}")
        a(f"buffer_store_dwordx4 {vr(SA,4)}, v{VL16}, {sr(S_WS)}, s{OSO} offen sc1"); vm.add("ost")
        a(f"buffer_store_dwordx4 {vr(SA+4,4)}, v{VL16}, {sr(S_WS)}, s{OSO} offen offset:1024 sc1"); vm.add("ost")
        def wread(n):
            vm.wait(("w", n))
            p = pg.page[("w", n)]
            for u in range(2):
                k.ds(f"ds_read_b64_tr_b16 {vr(WREG+4*n+2*u,2)}, v{VWD[p >> 3]} offset:{(p & 7)*8192 + 8*u*64}", ("wr", n))
        def wfree(n):
            lg.wait(("wr", n)); pg.free.append(pg.page[("w", n)])
        def xn_ops(src, lo, hi, g0, g1, m, ri, t0=6):
            return [f"v_lshlrev_b32 v{lo}, 16, v{src}", f"v_and_b32 v{hi}, 0xffff0000, v{src}",
                    f"v_sub_f32 v{g0}, v{lo}, v{m}", f"v_sub_f32 v{g1}, v{hi}, v{m}",
                    f"v_cvt_pk_bf16_f32 v{t0}, v{g0}, v{g1}",
                    f"v_lshlrev_b32 v{g0}, 16, v{t0}", f"v_and_b32 v{g1}, 0xffff0000, v{t0}",
                    f"v_mul_f32 v{g0}, v{g0}, v{ri}", f"v_mul_f32 v{g1}, v{g1}, v{ri}",
                    f"v_cvt_pk_bf16_f32 v{t0}, v{g0}, v{g1}",
                    f"v_lshlrev_b32 v{g0}, 16, v{t0}", f"v_and_b32 v{g1}, 0xffff0000, v{t0}"]
        def silu_ops(g0, g1, t0=6, t1=7):
            return [f"v_mul_f32 v{t0}, {f32(-LOG2E)}, v{g0}", f"v_mul_f32 v{t1}, {f32(-LOG2E)}, v{g1}",
                    f"v_exp_f32 v{t0}, v{t0}", f"v_exp_f32 v{t1}, v{t1}",
                    f"v_add_f32 v{t0}, 1.0, v{t0}", f"v_add_f32 v{t1}, 1.0, v{t1}",
                    f"v_rcp_f32 v{t0}, v{t0}", f"v_rcp_f32 v{t1}, v{t1}",
                    f"v_mul_f32 v{g0}, v{g0}, v{t0}", f"v_mul_f32 v{g1}, v{g1}, v{t1}",
                    f"v_cvt_pk_bf16_f32 v{t0}, v{g0}, v{g1}",
                    f"v_lshlrev_b32 v{g0}, 16, v{t0}", f"v_and_b32 v{g1}, 0xffff0000, v{t0}"]
        gate = []
        for p in range(8): gate += xn_ops(XR+p, XFL+2*p, XFL+2*p+1, G+2*p, G+2*p+1, ST, ST+1)
        for p in range(8): gate += silu_ops(G+2*p, G+2*p+1)
        def gops(n):
            for _ in range(min(n, len(gate))): a(gate.pop(0))
        for g in pg.take(12 - NEARLY): pg.issue(g)
        for n in range(12): wread(n)
        for n in range(4):
            wfree(n)
            for g in pg.take(1): pg.issue(g)
        a(f"s_lshl_b32 s{T0}, s{RB}, 3")
        a(f"s_add_u32 s{T0}, s{T0}, s{HB}")
        a(f"s_lshl_b32 s{T0}, s{T0}, 7")
        a(f"s_add_u32 s{T0}, s{T0}, {SY2:#x}")
        a("v_mov_b32 v5, 1")
        a("v_mov_b32 v6, 0")
        vm.wait("ost")
        def arr():
            a("s_mov_b64 exec, 1")
            a(f"buffer_store_dword v5, v6, {sr(S_WS)}, s{T0} offen sc1" if "stflag" in VAR else f"buffer_atomic_add v5, v6, {sr(S_WS)}, s{T0} offen sc1")
            a("s_mov_b64 exec, -1")
        if "wgarr" in VAR:
            a("s_barrier")
            k.only("s_cmp_eq_u32 s3, 0", arr)
        else:
            arr(); vm.add("arr")
        k.stamp("E1")
        for n in range(4, 12): wfree(n)
        PV = XF
        a(f"v_and_b32 v{PV}, 7, v2")
        a(f"v_lshlrev_b32 v{PV}, 7, v{PV}")
        a(f"s_lshl_b32 s{T3}, s{RB2}, 10")
        a(f"s_add_u32 s{T3}, s{T3}, {SY2:#x}")
        nxt = 12
        for i, g in enumerate(pg.take(16, stop=("o", 0))):
            pg.issue(g); gops(8)
            if i >= 2: wread(nxt); nxt += 1
            if i == D_POLL:
                k.only("s_cmp_eq_u32 s3, 7", lambda: a(f"buffer_load_dword v{PV+1}, v{PV}, {sr(S_WS)}, s{T3} offen sc1"))
        a(f"s_lshl_b32 s{OBASE}, s{RB2}, 1")
        a(f"s_lshr_b32 s{T0}, s3, 2")
        a(f"s_add_u32 s{OBASE}, s{OBASE}, s{T0}")
        a(f"s_lshl_b32 s{OBASE}, s{OBASE}, 16")
        a(f"s_and_b32 s{T0}, s3, 3")
        a(f"s_lshl_b32 s{T0}, s{T0}, 10")
        a(f"s_add_u32 s{OBASE}, s{OBASE}, s{T0}")
        a(f"s_add_u32 s{OBASE}, s{OBASE}, {WS_OF:#x}")
        a(f"s_mul_i32 s{T0}, s{RT}, {4096 + 2048}")
        a(f"v_add_u32 v{VOF}, s{T0}, v{VL16}")
        a(f"v_xor_b32 v{VOF+1}, 0x1000, v{VOF}")
        a(f"v_add_u32 v{VOF+2}, 0x10000, v{VOF}")
        a(f"v_add_u32 v{VOF+3}, 0x10000, v{VOF+1}")
        while nxt < 24:
            wread(nxt); nxt += 1; gops(6)
        lg.wait_all()
        k.only("s_cmp_eq_u32 s3, 7", lambda: k.poll(PV, PV + 1, T3, 1 if 'wgarr' in VAR else 8, cnt=T2))
        a("s_barrier")
        k.stamp("E2")
        pg.free = list(range(20))
        od = pg.take(20)
        for g in od[:6]:
            pg.issue(g); gops(8)
        od = od[6:]
        gops(1000)
        a(f"s_cmp_eq_u32 s{MODE}, 1")
        a("s_cbranch_scc1 L_own")
        st = (list(vm.tags), vm.total, dict(vm.marks), list(lg.tags), list(pg.free), pg.pos, a.snapshot(), list(STAMP_NAMES))
        self.dloop(False, list(od), wread, wfree, xn_ops, silu_ops)
        a("s_endpgm")
        a.label("L_own")
        vm.tags, vm.total, vm.marks, lg.tags, pg.free, pg.pos = list(st[0]), st[1], dict(st[2]), list(st[3]), list(st[4]), st[5]
        a.hist = st[6][0]; a.alts = [(h, 0) for h in st[6][1:]]
        STAMP_NAMES[:] = st[7]
        self.dloop(True, list(od), wread, wfree, xn_ops, silu_ops)
    def dloop(self, own, od, wread, wfree, xn_ops, silu_ops):
        k, a, vm, lg, pg = self.k, self.a, self.vm, self.k.lg, self.pg
        XR, ST, VXO, VOF, VWD, XFL, G, XF, ACCO, ACCX, WREG = (self.XR, self.ST, self.VXO, self.VOF, self.VWD, self.XFL,
                                                              self.G, self.XF, self.ACCO, self.ACCX, self.WREG)
        Y, X4, XN, YS, YB, YA, YD = WREG + 16, WREG + 20, WREG + 24, WREG + 28, WREG + 32, 28, 29
        ys = {}
        if own:
            def I(x): return lambda: a(x)
            def br(d): return [f"v_cvt_pk_bf16_f32 v{d}, v{d}, v{d}", f"v_lshlrev_b32 v{d}, 16, v{d}"]
            def y_poll():
                a(f"v_lshlrev_b32 v{YA}, 7, v{VN}")
                a(f"s_mov_b32 s{T3}, {SY3:#x}")
                a(f"buffer_load_dword v{YD}, v{YA}, {sr(S_WS)}, s{T3} offen sc1"); vm.add("yp")
            def y_chk():
                vm.wait("yp"); k.poll(YA, YD, T3, 64)
            def y_l1():
                a(f"v_lshrrev_b32 v{YA}, 3, v2")
                a(f"v_lshlrev_b32 v{YA}, 12, v{YA}")
                a(f"v_and_b32 v{YD}, 7, v2")
                a(f"v_lshl_add_u32 v{YA}, v{YD}, 4, v{YA}")
                a(f"s_lshl_b32 s{T0}, s{CB2}, 9")
                a(f"s_lshl_b32 s{T1}, s{HD}, 7")
                a(f"s_add_u32 s{T0}, s{T0}, s{T1}")
                a(f"s_add_u32 s{T1}, s{T0}, {WS_YACC:#x}")
                a(f"buffer_load_dwordx4 {vr(Y,4)}, v{YA}, {sr(S_WS)}, s{T1} offen sc1"); vm.add("yl")
            def y_l2():
                a(f"s_lshr_b32 s{T0}, s{T0}, 1")
                a(f"s_lshl_b32 s{T1}, s{IDX}, 11")
                a(f"s_add_u32 s{T0}, s{T0}, s{T1}")
                a(f"v_lshlrev_b32 v{YD}, 3, v{YD}")
                a(f"buffer_load_dwordx2 {vr(X4,2)}, v{YD}, {sr(S_X)}, s{T0} offen"); vm.add("yl")
            def y_rs():
                a(f"s_and_b32 s{T1}, s{RKEY}, 0xffff0000")
                a(f"s_xor_b32 s{T2}, s{T1}, 0x80000000")
                a(f"s_xor_b32 s{T0}, s{T1}, 0xffff0000")
                a(f"s_bitcmp1_b32 s{T1}, 31")
                a(f"s_cselect_b32 s{T1}, s{T2}, s{T0}")
                a(f"v_mov_b32 v{YA}, s{T1}")
            def y_st():
                a(f"s_and_b32 s{T1}, s{IDX}, 31")
                a(f"v_readlane_b32 s{T0}, v{ST}, s{T1}")
                a(f"v_readlane_b32 s{T2}, v{ST+1}, s{T1}")
                a(f"v_mov_b32 v{YS}, s{T0}")
                a(f"v_mov_b32 v{YS+1}, s{T2}")
            rs2 = [f"v_mul_f32 v{YA}, {f32(-LOG2E)}, v{YA}", f"v_exp_f32 v{YA}, v{YA}", f"v_add_f32 v{YA}, 1.0, v{YA}", f"v_rcp_f32 v{YA}, v{YA}"] + br(YA)
            sm = [f"v_add_f32_dpp v{Y+e}, v{Y+e}, v{Y+e} row_ror:8 row_mask:0xf bank_mask:0xf" for e in range(4)]
            for sw in ("v_permlane16_swap_b32", "v_permlane32_swap_b32"):
                sm += [f"v_mov_b32 v{YB+4+e}, v{Y+e}" for e in range(4)] + [f"{sw} v{Y+e}, v{YB+4+e}" for e in range(4)]
                sm += [f"v_add_f32 v{Y+e}, v{Y+e}, v{YB+4+e}" for e in range(4)]
            def rr(p, q): return [f"v_cvt_pk_bf16_f32 v{YB+2}, v{p}, v{q}", f"v_lshlrev_b32 v{p}, 16, v{YB+2}", f"v_and_b32 v{q}, 0xffff0000, v{YB+2}"]
            sc = []
            for p in (0, 2):
                sc += rr(Y+p, Y+p+1) + [f"v_mul_f32 v{Y+p}, v{Y+p}, v{YA}", f"v_mul_f32 v{Y+p+1}, v{Y+p+1}, v{YA}"] + rr(Y+p, Y+p+1)
            xn = xn_ops(X4, YB, YB+1, XN, XN+1, YS, YS+1, YB+2) + xn_ops(X4+1, YB, YB+1, XN+2, XN+3, YS, YS+1, YB+2)
            ad = []
            for p in (0, 2):
                ad += [f"v_add_f32 v{XN+p}, v{XN+p}, v{Y+p}", f"v_add_f32 v{XN+p+1}, v{XN+p+1}, v{Y+p+1}"] + rr(XN+p, XN+p+1)
            sl = silu_ops(XN, XN+1, YB+2, YB+3) + silu_ops(XN+2, XN+3, YB+2, YB+3) + [f"v_lshlrev_b32 v{YD}, 4, v{VH}"]
            bp = [lambda q=q, e=e: k.ds(f"ds_bpermute_b32 v{YB+4*q+e}, v{YD}, v{XN+e} offset:{4*q}", "yb") for q in range(4) for e in range(4)]
            allv = [I(x) for x in sm + sc + xn + ad + sl]
            ys = {0: [y_poll], 4: [y_chk, y_l1, y_l2], 5: [y_rs, y_st] + [I(x) for x in rs2]}
            per = -(-len(allv) // 5)
            for i in range(5): ys[7 + i] = ([lambda: vm.wait("yl")] if i == 0 else []) + allv[i*per:(i+1)*per]
            ys[12] = bp
            def y_mask():
                lg.wait("yb")
                a(f"s_and_b32 s{T1}, s{IDX}, 31")
                a(f"v_cmp_eq_u32 vcc, s{T1}, v{VN}")
            ys[13] = [y_mask] + [I(f"v_cndmask_b32 v{G+i}, v{G+i}, v{YB+i}, vcc") for i in range(16)]
        avail = {0: 2, 2: 4, 4: 8, 8: 12, 12: 16}
        pool = [XF, XF + 16]
        xb = {}
        def rd_ops(c):
            if not pool: return None
            xb[c] = pool.pop(0)
            def bar():
                vm.wait(*[("o", i) for i in range(avail[c])])
                a("s_barrier")
            def r(e):
                p = pg.page[("o", c)]
                for t in range(2):
                    k.ds(f"ds_read_b128 {vr(xb[c]+4*(2*t+e),4)}, v{VOF + 2*(p >> 3) + t} offset:{(p & 7)*8192 + e*1024}", ("d", c, e))
            return ([bar] if c in avail else []) + [lambda: r(0), lambda: r(1)]
        def rd(c):
            for o in rd_ops(c): o()
        rd(0); k.stamp("D0"); rd(1)
        def mf(c, e, t):
            acc = ACCX if t else ACCO
            cc = "0" if (c == 0 and e == 0) else vr(acc, 16)
            a(f"v_mfma_f32_32x32x16_bf16 {vr(acc,16)}, {vr(WREG+4*(2*c+e),4)}, {vr(xb[c]+4*(2*t+e),4)}, {cc}")
        def d1():
            if od: pg.issue(od.pop(0))
        for c in range(14):
            def m0(e):
                lg.wait(("d", c, e), ("wr", 2*c+e)); mf(c, e, 0)
            ms = [lambda: m0(0), lambda: mf(c, 0, 1), lambda: m0(1), lambda: mf(c, 1, 1)]
            extra = []
            if c == 8: extra = [lambda n=n: wread(n) for n in range(24, 28)]
            if c == 12: extra = [lambda n=n: wread(n) for n in range(28, 32)]
            if c == 9:
                for n in range(24, 28): wfree(n)
                od += pg.take(4)
            ro = rd_ops(c + 2)
            base = [d1, d1] + (ro or []) + extra
            y = ys.get(c, [])
            if y:
                for i, m in enumerate(ms):
                    m()
                    for o in base[i * len(base) // 4:(i + 1) * len(base) // 4]: o()
                    for o in y[i * len(y) // 4:(i + 1) * len(y) // 4]: o()
            else: interleave(ms, base)
            pool.append(xb[c])
            if c == 1: pool.append(WREG)
            if ro is None: rd(c + 2)
        lg.wait_all()
        a(f"v_add_u32 v5, s{W1K}, v{VL16}")
        for c in (14, 15):
            for e in range(2): mf(c, e, 1)
        a("v_add_u32 v5, 0x20000, v5")
        a("v_xor_b32 v6, 0x400, v5")
        mf(14, 0, 0); mf(14, 1, 0); mf(15, 0, 0)
        a("s_nop 6")
        for q in range(4): a(f"ds_write_b128 v5, {vr(ACCX+4*q,4)} offset:{q*8192}")
        mf(15, 1, 0)
        k.stamp("D_end")
        a("s_waitcnt lgkmcnt(0)")
        a("s_barrier")
        for q in range(4): a(f"ds_read_b128 {vr(WREG+16+4*q,4)}, v6 offset:{q*8192}")
        for q in range(4):
            a(f"s_waitcnt lgkmcnt({3-q})")
            for i in (2*q, 2*q+1): a(f"v_pk_add_f32 {vr(ACCO+2*i,2)}, {vr(ACCO+2*i,2)}, {vr(WREG+16+2*i,2)}")
            for i in (2*q, 2*q+1): a(f"v_pk_fma_f32 {vr(ACCO+2*i,2)}, {vr(ACCO+2*i,2)}, {vr(G+2*i,2)}, {vr(XFL+2*i,2)}")
            for i in (2*q, 2*q+1): a(f"v_cvt_pk_bf16_f32 v{XR+i}, v{ACCO+2*i}, v{ACCO+2*i+1}")
            if q == 1: a(f"buffer_store_dwordx4 {vr(XR,4)}, v{VXO}, {sr(S_OUT)}, s{XO2} offen")
        a(f"buffer_store_dwordx4 {vr(XR+4,4)}, v{VXO}, {sr(S_OUT)}, s{XO2} offen offset:16")
        k.stamp("end")

def fallback(k):
    a = k.a
    a.label("L_fallback")
    a.flush()
    a("v_mov_b32 v6, 0xff800000")
    a(f"s_mov_b32 s{T0}, 0")
    a.label("L_fb1")
    a(f"buffer_load_dwordx4 {vr(KA,4)}, v{VL16}, {sr(S_KV)}, s{T0} offen sc1")
    a(f"buffer_load_dwordx4 {vr(KA+4,4)}, v{VL16}, {sr(S_KV)}, s{T0} offen offset:1024 sc1")
    a("s_waitcnt vmcnt(0)")
    a(f"v_mfma_f32_32x32x16_bf16 {vr(SA,16)}, {vr(KA,4)}, {vr(QF,4)}, 0")
    a(f"v_mfma_f32_32x32x16_bf16 {vr(SA,16)}, {vr(KA+4,4)}, {vr(QF+4,4)}, {vr(SA,16)}")
    for i in range(0, 16, 2): a(f"v_max3_f32 v6, v6, v{SA+i}, v{SA+i+1}")
    a(f"s_add_u32 s{T0}, s{T0}, 4096")
    a(f"s_cmp_lt_u32 s{T0}, 0x40000")
    a("s_cbranch_scc1 L_fb1")
    a("v_mov_b32 v5, v6")
    a("v_permlane32_swap_b32 v6, v5")
    a("v_max_f32 v6, v6, v5")
    for i in range(16): a(f"v_sub_f32 v{NM+i}, 0, v6")
    for i in range(16): a(f"v_mov_b32 v{OA+i}, 0")
    for i in range(4): a(f"v_mov_b32 v{LS+i}, 0")
    a(f"s_mov_b32 s{T0}, 0")
    a.label("L_fb2")
    a(f"buffer_load_dwordx4 {vr(KA,4)}, v{VL16}, {sr(S_KV)}, s{T0} offen sc1")
    a(f"buffer_load_dwordx4 {vr(KA+4,4)}, v{VL16}, {sr(S_KV)}, s{T0} offen offset:1024 sc1")
    a(f"buffer_load_dwordx4 {vr(VA,4)}, v{VL16}, {sr(S_KV)}, s{T0} offen offset:2048 sc1")
    a(f"buffer_load_dwordx4 {vr(VA+4,4)}, v{VL16}, {sr(S_KV)}, s{T0} offen offset:3072 sc1")
    a("s_waitcnt vmcnt(0)")
    a(f"v_mfma_f32_32x32x16_bf16 {vr(SA,16)}, {vr(KA,4)}, {vr(QF,4)}, {vr(NM,16)}")
    a(f"v_mfma_f32_32x32x16_bf16 {vr(SA,16)}, {vr(KA+4,4)}, {vr(QF+4,4)}, {vr(SA,16)}")
    for i in range(16): a(f"v_exp_f32 v{SA+i}, v{SA+i}")
    a(f"v_smfmac_f32_32x32x32_bf16 {vr(OA,16)}, {vr(VA,4)}, {vr(SA,8)}, v{IDXD}")
    a(f"v_smfmac_f32_16x16x64_bf16 {vr(LS,4)}, {vr(MA,4)}, {vr(SA,8)}, v{IDXD}")
    a(f"v_smfmac_f32_32x32x32_bf16 {vr(OA,16)}, {vr(VA+4,4)}, {vr(SA+8,8)}, v{IDXD}")
    a(f"v_smfmac_f32_16x16x64_bf16 {vr(LS,4)}, {vr(MA,4)}, {vr(SA+8,8)}, v{IDXD}")
    a(f"s_add_u32 s{T0}, s{T0}, 4096")
    a(f"s_cmp_lt_u32 s{T0}, 0x40000")
    a("s_nop 7")
    a("s_cbranch_scc1 L_fb2")
    a.flush()
    a("s_branch L_fin")
    a.label("L_code_end")

def build(path):
    k = K()
    k.ffn = FFN(k); k.D = PhaseD(k)
    prologue(k); phaseAB(k); attention(k)
    if 'nod' not in VAR: k.D.run()
    else: k.a.label('L_fin')
    k.a.label("L_end"); k.a("s_endpgm")
    fallback(k)
    top = open("cdna_kernels/" + NAME + ".s.ref").read().split("; Override launch geometry")[0]
    if STAMPS: top += "; stamps: " + " ".join(STAMP_NAMES) + "\n"
    top += "; @launch grid=(256,1,1) block=(512,1,1) lds=163840\n"
    top += '.amdgcn_target "amdgcn-amd-amdhsa--gfx950"\n.text\n'
    top += f".set CODE_BYTES, L_code_end - {KN} - 64\n"
    kd = f""".section .rodata,"a"
.p2align 6
.amdhsa_kernel {KN}
  .amdhsa_next_free_vgpr 256
  .amdhsa_next_free_sgpr 102
  .amdhsa_accum_offset 256
  .amdhsa_group_segment_fixed_size 0
  .amdhsa_kernarg_size 104
  .amdhsa_user_sgpr_count 2
  .amdhsa_user_sgpr_kernarg_segment_ptr 1
  .amdhsa_system_sgpr_workgroup_id_x 1
.end_amdhsa_kernel
"""
    lines = k.a.out
    if "noal" not in VAR:
        from align import align
        lines, st = align(top, lines, kd, phase=4 if "ph4" in VAR else 0, nops="alnop" in VAR)
        print(path, st)
    open(path, "w").write(top + "\n".join(lines) + "\n" + kd)
    return k

if __name__ == "__main__":
    out = sys.argv[1] if len(sys.argv) > 1 else "cdna_kernels/" + NAME + ".s"
    if len(sys.argv) > 2 and sys.argv[2] == "stamps": STAMPS = True
    VAR.update(sys.argv[3:])
    for v in VAR:
        if v.startswith('init'): N_INIT = int(v[4:])
        if v.startswith('wt') and '_' in v: WT_IT, WT_POS = [int(x) for x in v[2:].split('_')]
        if v.startswith('chk'): CHK, PI = [int(x) for x in v[3:].split('_')]
        if v.startswith('dp'): D_POLL = int(v[2:])
        if v == 'noskip': S1_SKIP = ()
        if v.startswith('prp'): PRP = int(v[3:])
        if v.startswith('fb'): FB0 = int(v[2:])
        if v.startswith('kvt'): KVT = [int(x) for x in v[3:]]
        if v.startswith('kvp'): KVP = int(v[3:])
        if v.startswith('fts'): FTS = [int(x) for x in v[3:]]; WDT = [28, 29, 32 + FTS[0], 32 + FTS[1]]
        if v.startswith('ne'): NEARLY = int(v[2:])
        if v.startswith('kvf'): KVF = v[3:].replace('_', ' ')
        if v.startswith('pad') and '@' in v: PADAT, PADTO = v[3:].split('@')[0], int(v[3:].split('@')[1])
        if v.startswith('nw'): NW0, ARR, R2C = [int(x) for x in v[2:].split('_')]
        if v.startswith('out'): OUTF = ' ' + v[3:].replace('_', ' ')
    k = build(out)
    if "-v" in VAR:
        for l in k.a.log: print("nop", l)
        for l in k.pgAB.log: print("AB", l)
        for l in k.D.pg.log: print("D", l)
```

```python
import sys, struct
from asmlib import Asm

NAME = "recurrent_scan__grouped_kv_mqa__moe_arch_mod__prompt"
KN = NAME + "_kernel"
WS_KV, WS_STAT, WS_RKEY, WS_SY, WS_YACC, WS_GU, WS_STAMP, WS_OF = 0x0, 0x40000, 0x46000, 0x48000, 0x50000, 0x58000, 0x80000, 0x100000
WS_SIZE = 0x500000
SYB = 0x68000
SY1, SY2, SY3, SY4 = 0x60000, SYB + 0x8000, SYB, SYB + 64 * 128
ONES = 0x3F803F80
LOG2E = 1.4426950408889634
QSCALE = 0.17677669529663687 * LOG2E
def f32(x): return "0x%08x" % struct.unpack("<I", struct.pack("<f", x))[0]
STAMPS = False
VAR = set()
SPIN_MAX = 200000
N_INIT = 9
CHK, PI = 11, 9
D_POLL = 7
VAR.add('wgarr')
WT_IT, WT_POS = 4, 0
ALIGN = 0
DBG_IT = 2
FB0 = 4
PRP = 1
VAR.add('noal')
KVF = 'sc1'
NEARLY = 12
KVT, KVP = [7, 0, 1, 2], 1
FTS, WDT = [2, 4, 6], [28, 30, 34, 36]
S1_SKIP = (5, 7)
PADTO, PADAT = 0, 'end'
ARR, R2C, NW0 = -1, 2, 0
OUTF = ''

S_X, S_W, S_KW, S_WS, S_KV, S_WR, S_WG, S_WU = 4, 8, 12, 16, 20, 24, 28, 32
S_OUT, S_WD = S_WR, S_KW
RB, HB, ROT, T0, T1, T2, T3 = 36, 37, 38, 39, 40, 41, 42
W1K, MODE, W4K, XSO, TD, SP, RT, HD, ROWT, RG = 43, 44, 45, 46, 47, 48, 49, 50, 51, 52
SEL, IDX, RKEY, FCG, RB2, CB2, OSO, XO2, CNT, OBASE = 53, 54, 55, 56, 57, 58, 59, 60, 61, 62
W8K, EXS, FW = 63, 64, 66
PT = 68
P_X, P_WQ, P_WK, P_WV, P_WO, P_BX, P_WR, P_WG, P_WU, P_WD, P_OUT, P_DBG, P_WS = [PT + 2 * i for i in range(13)]
STMP = 96
def sr(b): return f"s[{b}:{b+3}]"
def vr(b, n): return f"v[{b}:{b+n-1}]"

VN, VH, VOX, VOW, VL16, VST = 3, 4, 18, 19, 20, 21
MA, IDXC, IDXD, STAT = 24, 28, 29, 30
QF, NM, VA, SA, SB, OA, LS, KA, VK1 = 32, 40, 56, 64, 80, 96, 112, 116, 17

def srd(a, d, base, nbytes):
    a(f"s_mov_b32 s{d}, s{base}")
    a(f"s_and_b32 s{d+1}, s{base+1}, 0xffff")
    a(f"s_mov_b32 s{d+2}, {nbytes:#x}")
    a(f"s_mov_b32 s{d+3}, 0x20000")

def bf16r(a, dst, src):
    a(f"v_cvt_pk_bf16_f32 v{dst}, v{src}, v{src}")
    a(f"v_lshlrev_b32 v{dst}, 16, v{dst}")

_lbl = [0]
def L(p="L"):
    _lbl[0] += 1
    return f"{p}_{_lbl[0]}"

class Cnt:
    def __init__(self, a, name, mx): self.a, self.name, self.mx, self.tags, self.total, self.marks = a, name, mx, [], 0, {}
    def add(self, tag, n=1): self.tags += [tag] * n; self.total += n
    def mark(self, m): self.marks[m] = self.total
    def since(self, m): return min(self.total - self.marks[m], self.mx)
    def wait(self, *tags):
        idx = [i for i, t in enumerate(self.tags) if t in tags]
        if not idx: return
        n = min(len(self.tags) - 1 - max(idx), self.mx)
        self.a(f"s_waitcnt {self.name}({n})")
        self.tags = self.tags[len(self.tags) - n:] if n else []
    def wait_all(self):
        self.a(f"s_waitcnt {self.name}(0)"); self.tags = []

STAMP_NAMES = []
class K:
    def __init__(self):
        self.a = Asm()
        self.vm = Cnt(self.a, "vmcnt", 63)
        self.lg = Cnt(self.a, "lgkmcnt", 15)
    def stamp(self, name):
        if PADTO and name == PADAT:
            a = self.a; lp = L()
            a.label(lp)
            a(f"s_memrealtime s[{STMP+2}:{STMP+3}]"); a("s_waitcnt lgkmcnt(0)")
            a(f"s_sub_u32 s{STMP+2}, s{STMP+2}, s{STMP}")
            a(f"s_cmp_lt_u32 s{STMP+2}, {PADTO}")
            a(f"s_cbranch_scc1 {lp}")
            return
        if "dbgstamp" in VAR:
            a = self.a
            names = ["entry", "S0", "B0", "B_end", "loop_start", "loop_end", "E2", "end"]
            if name not in names: return
            slot = 8 + names.index(name)
            if name == "entry":
                a(f"s_memrealtime s[{STMP+2}:{STMP+3}]"); a("s_waitcnt lgkmcnt(0)")
                a("s_and_b32 s100, s2, 31"); a("s_lshl_b32 s101, s3, 8"); a("s_add_u32 s100, s100, s101"); return
            def st():
                a(f"s_memrealtime s[{STMP}:{STMP+1}]"); a("s_waitcnt lgkmcnt(0)")
                a(f"s_sub_u32 s{STMP}, s{STMP}, s{STMP+2}")
                a(f"v_mov_b32 v{VST+1}, s{STMP}")
                a(f"v_mov_b32 v{VST}, {slot*4}")
                a("s_mov_b64 exec, 1")
                a(f"global_atomic_umax v{VST}, v{VST+1}, s[{P_DBG}:{P_DBG+1}]")
                a("s_mov_b64 exec, -1")
            self.only("s_cmp_eq_u32 s100, 9", st)
            return
        if not STAMPS: return
        a = self.a
        slot = len(STAMP_NAMES); STAMP_NAMES.append(str(name)); assert slot < 32
        if name != "entry":
            a(f"s_memrealtime s[{STMP}:{STMP+1}]")
            a(f"s_memtime s[{STMP+2}:{STMP+3}]")
        a("s_waitcnt lgkmcnt(0)")
        a(f"s_lshl_b32 s{STMP+1}, s2, 11")
        a(f"s_lshl_b32 s{STMP+3}, s3, 8")
        a(f"s_add_u32 s{STMP+1}, s{STMP+1}, s{STMP+3}")
        a(f"s_add_u32 s{STMP+1}, s{STMP+1}, {WS_STAMP + slot * 8:#x}")
        a(f"v_mov_b32 v{VST+1}, s{STMP}")
        a(f"v_mov_b32 v{VST+2}, s{STMP+2}")
        a(f"v_mov_b32 v{VST}, s{STMP+1}")
        a(f"buffer_store_dwordx2 v[{VST+1}:{VST+2}], v{VST}, {sr(S_WS)}, 0 offen")
        self.vm.add("st")
    def delay(self, wg):
        if "delay" not in VAR: return
        def d():
            for _ in range(6): self.a("s_sleep 127")
        self.only(f"s_cmp_eq_u32 s2, {wg}", d)
    def only(self, cond, fn):
        a = self.a; skip = L()
        a(cond); a(f"s_cbranch_scc0 {skip}")
        snap = a.snapshot(); fn(); a.label(skip); a.join(snap)
    def ifelse(self, cond, f1, f2):
        a = self.a; lv, lj = L(), L()
        a(cond); a(f"s_cbranch_scc0 {lv}")
        snap = a.snapshot(); f1(); a(f"s_branch {lj}"); snap2 = a.snapshot()
        a.label(lv); a.hist = snap[0]; a.alts = [(h, 0) for h in snap[1:]]
        f2(); a.label(lj); a.join(snap2)
    def poll(self, vaddr, vdat, soff, expect, cnt=CNT):
        a = self.a; top, chk, done = L("poll"), L("pchk"), L("pdone")
        a(f"s_mov_b32 s{cnt}, 0")
        a(f"s_branch {chk}")
        a.label(top)
        a(f"buffer_load_dword v{vdat}, v{vaddr}, {sr(S_WS)}, s{soff} offen sc1")
        a("s_waitcnt vmcnt(0)")
        a.label(chk)
        a(f"v_cmp_ne_u32 vcc, {expect}, v{vdat}")
        a(f"s_add_u32 s{cnt}, s{cnt}, 1")
        a(f"s_cbranch_vccz {done}")
        a("s_sleep 2")
        a(f"s_cmp_lt_u32 s{cnt}, {SPIN_MAX}")
        a(f"s_cbranch_scc1 {top}")
        a.label(done)
    def ds(self, text, tag):
        self.a(text); self.lg.add(tag)

class Pager:
    def __init__(self, k, free, seq):
        self.k, self.free, self.seq, self.pos, self.page, self.rel = k, list(free), seq, 0, {}, {}
        self.hold, self.hold_until, self.log = set(), 0, []
    def release(self, it):
        for p in self.rel.pop(it, []): self.free.append(p)
    def take(self, n, stop=None):
        out = []
        while len(out) < n and self.pos < len(self.seq):
            tag, emit, last, pref = self.seq[self.pos]
            if stop is not None and tag == stop: break
            cand = [p for p in pref if p in self.free and not (p in self.hold and (last is None or last + 2 > self.hold_until))]
            if not cand: break
            p = cand[0]; self.free.remove(p); self.page[tag] = p
            if last is not None: self.rel.setdefault(last + 2, []).append(p)
            out.append((tag, emit(p))); self.pos += 1
        self.log.append([(t, self.page[t]) for t, _ in out])
        return out
    def issue(self, grp):
        tag, text = grp
        self.k.a(text); self.k.vm.add(tag)

def spread(groups, extra, first=True):
    n = len(groups)
    per = -(-len(extra) // max(n, 1)) if extra else 0
    for i, g in enumerate(groups):
        for e in extra[i * per:(i + 1) * per]: e()
        g()
    for e in extra[n * per:]: e()

def interleave(ms, os):
    n = len(ms)
    for i, m in enumerate(ms):
        m()
        for o in os[i * len(os) // n:(i + 1) * len(os) // n]: o()

def prologue(k):
    a, vm = k.a, k.vm
    a.raw(f".globl {KN}"); a.raw(".p2align 8"); a.raw(f".type {KN},@function"); a.raw(f"{KN}:")
    if STAMPS or PADTO:
        a(f"s_memrealtime s[{STMP}:{STMP+1}]")
        a(f"s_memtime s[{STMP+2}:{STMP+3}]")
    a("s_cmp_ge_u32 s2, 256")
    a("s_cbranch_scc1 L_end")
    a(f"s_load_dwordx16 s[{PT}:{PT+15}], s[0:1], 0")
    a(f"s_load_dwordx8 s[{PT+16}:{PT+23}], s[0:1], 64")
    a(f"s_load_dwordx2 s[{PT+24}:{PT+25}], s[0:1], 96")
    a("s_getpc_b64 s[94:95]")
    a("v_lshrrev_b32 v1, 6, v0")
    a("v_and_b32 v2, 63, v0")
    a("v_readfirstlane_b32 s3, v1")
    a("s_and_b32 s4, s2, 0xf8")
    a("s_mul_i32 s4, s4, 160")
    a("v_lshlrev_b32 v8, 7, v0")
    a("v_cmp_gt_u32 vcc, 10, v0")
    a("v_add_u32 v8, s4, v8")
    a("v_min_u32 v8, CODE_BYTES, v8")
    a(f"s_and_saveexec_b64 s[{EXS}:{EXS+1}], vcc")
    l2 = L(); a(f"s_cbranch_execz {l2}")
    if "nocpf" not in VAR: a("global_load_dword v47, v8, s[94:95]")
    a.label(l2)
    a(f"s_mov_b64 exec, s[{EXS}:{EXS+1}]")
    a(f"v_lshlrev_b32 v{VL16}, 4, v2")
    a(f"v_and_b32 v{VN}, 31, v2")
    a(f"v_lshrrev_b32 v{VH}, 5, v2")
    a(f"s_and_b32 s{T0}, s2, 7")
    a(f"s_lshr_b32 s{T1}, s2, 3")
    a(f"s_lshr_b32 s{RB}, s{T0}, 1")
    a(f"s_lshl_b32 s{RB}, s{RB}, 3")
    a(f"s_and_b32 s{SEL}, s{T0}, 1")
    a(f"s_lshl_b32 s{T2}, s{SEL}, 2")
    a(f"s_add_u32 s{RB2}, s{RB}, s{T2}")
    a(f"s_and_b32 s{T3}, s{T1}, 3")
    a(f"s_add_u32 s{RB2}, s{RB2}, s{T3}")
    a(f"s_lshr_b32 s{CB2}, s{T1}, 2")
    a(f"s_and_b32 s{ROT}, s{T1}, 7")
    a(f"s_add_u32 s{RB}, s{RB}, s{ROT}")
    a(f"s_lshr_b32 s{T3}, s{T1}, 3")
    a(f"s_add_u32 s{HB}, s{T2}, s{T3}")
    a(f"s_lshl_b32 s{RG}, s{RB}, 2")
    a(f"s_add_u32 s{RG}, s{RG}, s{T3}")
    a(f"s_mul_i32 s{FCG}, s{T0}, 28")
    a(f"s_add_u32 s{FCG}, s{FCG}, s{T1}")
    a(f"s_lshl_b32 s{W1K}, s3, 10")
    a(f"s_lshl_b32 s{W4K}, s3, 12")
    a(f"s_lshl_b32 s{W8K}, s3, 13")
    a(f"s_and_b32 s{RT}, s3, 1")
    a(f"s_lshr_b32 s{HD}, s3, 1")
    a(f"s_lshl_b32 s{ROWT}, s{RB}, 1")
    a(f"s_add_u32 s{ROWT}, s{ROWT}, s{RT}")
    a(f"s_lshl_b32 s{XO2}, s{RB}, 17")
    a(f"s_lshl_b32 s{OSO}, s{HB}, 8")
    a(f"s_sub_u32 s{FW}, s3, {FB0 + 1}")
    a("s_cmp_lt_u32 s3, 4")
    a(f"s_cselect_b32 s{MODE}, s{SEL}, 2")
    a("v_lshrrev_b32 v5, 4, v2")
    a(f"s_lshl_b32 s{T0}, s3, 2")
    a(f"v_add_u32 v6, s{T0}, v5")
    a("v_xor_b32 v7, v6, v2")
    a("v_and_b32 v7, 7, v7")
    a("v_lshlrev_b32 v7, 4, v7")
    a("v_lshrrev_b32 v8, 3, v2")
    a("v_lshl_add_u32 v7, v8, 11, v7")
    a(f"s_lshl_b32 s{T0}, s3, 14")
    a(f"v_add_u32 v{VOX}, s{T0}, v7")
    a("v_lshrrev_b32 v7, 2, v2")
    a("v_lshlrev_b32 v7, 11, v7")
    a("v_and_b32 v8, 3, v2")
    a("v_lshl_add_u32 v7, v8, 4, v7")
    a(f"s_lshl_b32 s{T0}, s{RT}, 16")
    a(f"s_lshl_b32 s{T1}, s{HD}, 6")
    a(f"s_add_u32 s{T0}, s{T0}, s{T1}")
    a(f"v_add_u32 v{VOW}, s{T0}, v7")
    if "fake128" in VAR:
        a("v_lshrrev_b32 v7, 3, v2")
        a("v_lshlrev_b32 v7, 11, v7")
        a("v_and_b32 v8, 7, v2")
        a("v_lshl_add_u32 v7, v8, 4, v7")
        a(f"s_lshl_b32 s{T0}, s{RT}, 16")
        a(f"s_and_b32 s{T1}, s{HD}, 1")
        a(f"s_lshl_b32 s{T1}, s{T1}, 14")
        a(f"s_add_u32 s{T0}, s{T0}, s{T1}")
        a(f"s_lshr_b32 s{T1}, s{HD}, 1")
        a(f"s_lshl_b32 s{T1}, s{T1}, 7")
        a(f"s_add_u32 s{T0}, s{T0}, s{T1}")
        a(f"v_add_u32 v{VOW}, s{T0}, v7")
    a("v_lshlrev_b32 v7, 2, v2")
    a("v_mov_b32 v9, 0")
    a("v_mov_b32 v17, 0")
    a("v_mov_b32 v16, 1")
    a(f"s_xor_b32 s{CNT}, s3, 7")
    a(f"s_lshl_b32 s{CNT}, s{CNT}, 8")
    a(f"s_add_u32 s{CNT}, s{CNT}, s2")
    a("v_and_b32 v1, 28, v7")
    a("s_waitcnt lgkmcnt(0)")
    srd(a, S_X, P_X, 2048 * 2048)
    a(f"s_cmp_eq_u32 s{SEL}, 0")
    a(f"s_cselect_b32 s{S_KW}, s{P_WK}, s{P_WV}")
    a(f"s_cselect_b32 s{S_KW+1}, s{P_WK+1}, s{P_WV+1}")
    a(f"s_and_b32 s{S_KW+1}, s{S_KW+1}, 0xffff")
    a(f"s_mov_b32 s{S_KW+2}, 0x10000")
    a(f"s_mov_b32 s{S_KW+3}, 0x20000")
    srd(a, S_WS, P_WS, WS_SIZE)
    srd(a, S_WR, P_WR, 2048)
    k.stamp("entry")
    k.delay(3)
    def zero():
        a("v_mov_b32 v10, 0"); a("v_mov_b32 v11, 0"); a("v_mov_b32 v8, 0")
        a(f"s_lshl_b32 s{T2}, s2, 12")
        a(f"s_add_u32 s{T2}, s{T2}, {SY1:#x}")
        for i in range(4): a(f"buffer_store_dwordx4 v[8:11], v{VL16}, {sr(S_WS)}, s{T2} offen offset:{i*1024} sc1")
        a(f"s_lshl_b32 s{T2}, s2, 2")
        a("s_waitcnt vmcnt(0)")
        a(f"v_mov_b32 v10, s{T2}")
        a(f"global_store_dword v10, v16, s[{P_DBG}:{P_DBG+1}] sc1")
    k.only(f"s_cmp_lt_u32 s{CNT}, 8", zero)

AUX = 19 * 8192
TAB = AUX + 2304
RED = 4 * 8192

def phaseAB(k):
    a, vm, lg = k.a, k.vm, k.lg
    VXA, VW, ACC, WF, FT, XREG, CS = 32, 44, 48, 64, 96, 128, 12
    XF, ACCX, ACCO = XREG, 48, 80
    def rot(j, shift, extra, base):
        return f"""s_add_u32 s{TD}, s{ROT}, {j}
        s_and_b32 s{TD}, s{TD}, 7
        s_lshl_b32 s{TD}, s{TD}, {shift}
        s_add_u32 s{TD}, s{TD}, s{base}""" + (f"\ns_add_u32 s{TD}, s{TD}, {extra}" if extra else "")
    def ldx(c): return lambda p: f"s_add_u32 m0, s{W1K}, {p*8192}\n" + rot(c >> 1, 8, (c & 1) * 128, XO2) + f"\nbuffer_load_dwordx4 v{VOX}, {sr(S_X)}, s{TD} offen lds"
    def ldk(j): return lambda p: f"s_add_u32 m0, s{W1K}, {p*8192}\n" + rot(j, 13, 0, W1K) + f"\nbuffer_load_dwordx4 v{VL16}, {sr(S_KW)}, s{TD} offen lds"
    def ldw(c, h): return lambda p: f"s_add_u32 m0, s{W1K}, {p*8192}\n" + rot(c >> 1, 18, ((c & 1) * 64 + h * 16) * 2048, OSO) + f"\nbuffer_load_dwordx4 v{VOW}, {sr(S_W)}, s{TD} offen lds"
    seq = []
    hi = list(range(8, 19))
    for j in range(8):
        seq.append((("k", j), ldk(j), j, [4, 5, 6, 7] if 1 <= j <= 4 else hi[::-1]))
        for e in range(2):
            c = 2 * j + e
            seq.append((("x", c), ldx(c), j if c < 8 else None, [0, 1, 2, 3] if 8 <= c <= 11 else hi[::-1] if c < 8 else hi[:3:-1]))
    for c in range(16):
        for h in range(2):
            seq.append((("w", c, h), ldw(c, h), None, hi + [4, 5, 6, 7]))
    pg = Pager(k, range(19), seq)
    pg.hold, pg.hold_until = {4, 5, 6, 7}, 6
    k.pgAB = pg
    srd(a, S_W, P_WQ, 1024 * 2048)
    a(f"v_lshlrev_b32 v8, 7, v{VN}")
    a(f"s_lshl_b32 s{T0}, s{RG}, 15")
    a(f"s_add_u32 s{T0}, s{T0}, s{W4K}")
    a(f"buffer_load_dword v47, v8, {sr(S_X)}, s{T0} offen"); vm.add("xt")
    def wtouch():
        if "wt256" in VAR:
            a(f"v_lshrrev_b32 v8, 1, v{VN}")
            a("v_lshlrev_b32 v8, 11, v8")
            a("v_and_b32 v10, 1, v2")
            a("v_lshl_add_u32 v8, v10, 7, v8")
            a(f"s_lshl_b32 s{T0}, s{ROT}, 3")
            a(f"s_add_u32 s{T0}, s{T0}, s3")
            a(f"s_lshl_b32 s{T0}, s{T0}, 15")
            a(f"s_add_u32 s{T0}, s{T0}, s{OSO}")
        else:
            a(f"v_lshrrev_b32 v8, 3, v{VN}")
            a("v_lshlrev_b32 v8, 11, v8")
            a("v_and_b32 v10, 7, v2")
            a("v_lshl_add_u32 v8, v10, 7, v8")
            a(f"s_lshr_b32 s{T0}, s2, 3")
            a(f"s_lshl_b32 s{T0}, s{T0}, 16")
            a(f"s_add_u32 s{T0}, s{T0}, s{W8K}")
            a(f"s_lshl_b32 s{T1}, s{SEL}, 10")
            a(f"s_add_u32 s{T0}, s{T0}, s{T1}")
        a(f"buffer_load_dword v47, v8, {sr(S_W)}, s{T0} offen"); vm.add("wt")
    if WT_IT < 0: wtouch()
    a(f"s_lshl_b32 s{T1}, s3, 8")
    a(f"s_add_u32 m0, s{T1}, {AUX}")
    a(f"s_add_u32 s{TD}, s{ROT}, s3")
    a(f"s_and_b32 s{TD}, s{TD}, 7")
    a(f"s_lshl_b32 s{TD}, s{TD}, 8")
    a(f"buffer_load_dword v7, {sr(S_WR)}, s{TD} offen lds"); vm.add("wr")
    first = pg.take(N_INIT)
    for g_ in first[:3]: pg.issue(g_)
    k.stamp("issued")
    srd(a, S_KV, P_WS, 0x40000)
    srd(a, S_WG, P_WG, 1024 * 7168)
    srd(a, S_WU, P_WU, 1024 * 7168)
    a(f"v_mov_b32 v8, {ONES:#x}")
    a(f"v_add_u32 v9, {AUX + 2048}, v7")
    k.ds("ds_write_b32 v9, v8", "ones")
    k.ds("ds_write_b32 v9, v17 offset:384", "ones")
    a(f"v_bfe_u32 v5, v{VN}, 1, 3")
    a(f"v_xor_b32 v5, v5, v{VH}")
    a(f"s_lshl_b32 s{T0}, s{RT}, 12")
    a(f"s_lshl_b32 s{T1}, s{RT}, 2")
    a(f"v_lshlrev_b32 v6, 7, v{VN}")
    a(f"v_add_u32 v8, s{T0}, v6")
    a(f"v_xor_b32 v9, s{T1}, v5")
    a(f"v_lshl_add_u32 v{VXA}, v9, 4, v8")
    a(f"v_xor_b32 v{VXA+1}, 32, v{VXA}")
    a(f"v_xor_b32 v{VXA+2}, 0x1000, v{VXA}")
    a(f"v_xor_b32 v{VXA+3}, 0x1020, v{VXA}")
    for s in range(4):
        a(f"v_add_u32 v{VXA+4+s}, 0x10000, v{VXA+s}")
        a(f"v_add_u32 v{VXA+8+s}, 0x20000, v{VXA+s}")
    BX, MX, I17, AX, AW, BW = FT, FT + 2, FT + 3, FT + 4, FT + 6, FT + 7
    a(f"s_and_b32 s{T0}, s{HB}, 3")
    a(f"s_lshl_b32 s{T0}, s{T0}, 11")
    a(f"v_add_u32 v8, s{T0}, v6")
    a(f"s_lshl_b32 s{T1}, s{RT}, 2")
    a(f"v_xor_b32 v9, s{T1}, v5")
    a(f"v_lshl_add_u32 v{BX}, v9, 4, v8")
    a("v_xor_b32 v9, 2, v9")
    a(f"v_lshl_add_u32 v{BX+1}, v9, 4, v8")
    a(f"s_and_b32 s{T2}, s3, 3")
    a(f"s_lshl_b32 s{T3}, s{T2}, 6")
    a(f"s_add_u32 s{T3}, s{T3}, {AUX}")
    a(f"v_lshlrev_b32 v8, 4, v{VH}")
    a(f"v_add_u32 v8, s{T3}, v8")
    a(f"v_mov_b32 v9, {AUX + 2048}")
    a(f"v_cmp_eq_u32 vcc, 17, v{VN}")
    a("v_mov_b32 v10, 256")
    a("v_cndmask_b32 v8, v9, v8, vcc")
    a(f"v_cndmask_b32 v{I17}, 0, v10, vcc")
    a("v_add_u32 v9, 32, v8")
    a(f"v_cmp_gt_u32 vcc, 16, v{VN}")
    a(f"v_cndmask_b32 v{MX}, 0, 1, vcc")
    a(f"v_cndmask_b32 v{BX}, v8, v{BX}, vcc")
    a(f"v_cndmask_b32 v{BX+1}, v9, v{BX+1}, vcc")
    a("v_bfe_u32 v5, v2, 2, 2")
    a(f"v_lshl_add_u32 v6, v{VH}, 3, v5")
    a("v_bfe_u32 v8, v2, 4, 1")
    a("v_lshlrev_b32 v8, 5, v8")
    a("v_and_b32 v9, 3, v2")
    a("v_lshl_add_u32 v8, v9, 3, v8")
    a("v_lshl_add_u32 v9, v6, 6, v8")
    a(f"s_lshl_b32 s{T3}, s{T2}, 11")
    a(f"v_add_u32 v{BW}, s{T3}, v9")
    a(f"v_add_u32 v{VW}, s{W1K}, v9")
    a(f"v_add_u32 v{VW+1}, 0x10000, v{VW}")
    a(f"v_add_u32 v{VW+2}, 0x20000, v{VW}")
    a("v_bfe_u32 v5, v2, 2, 1")
    a("v_cmp_eq_u32 vcc, 0, v5")
    a(f"v_mov_b32 v6, {ONES:#x}")
    a(f"v_cndmask_b32 v{MA}, 0, v6, vcc")
    a(f"v_cndmask_b32 v{MA+1}, 0, v6, vcc")
    a(f"v_cndmask_b32 v{MA+2}, v6, 0, vcc")
    a(f"v_cndmask_b32 v{MA+3}, v6, 0, vcc")
    a("v_and_b32 v5, 2, v2")
    a("v_cmp_eq_u32 vcc, 0, v5")
    for i in range(4): a(f"v_cndmask_b32 v{MA+i}, 0, v{MA+i}, vcc")
    a("v_and_b32 v5, 1, v2")
    a("v_cmp_eq_u32 vcc, 0, v5")
    a("v_mov_b32 v6, 0x44444444")
    a("v_mov_b32 v8, 0xeeeeeeee")
    a(f"v_cndmask_b32 v{IDXC}, v8, v6, vcc")
    a(f"v_mov_b32 v{IDXD}, 0xdddddddd")
    for i in range(4): a(f"v_mov_b32 v{CS+i}, 0")
    for g_ in first[3:]: pg.issue(g_)
    lg.wait_all()

    def xread(c, s, dst, tag):
        p = pg.page[("x", c)]
        k.ds(f"ds_read_b128 {vr(dst, 4)}, v{VXA + 4*(p >> 3) + s} offset:{(p & 7) * 8192}", tag)
    def kv_mfma(j):
        b = WF + 16 * (j & 1)
        def mm(x, y):
            for e in range(2):
                c = "0" if (j == 0 and e == 0) else vr(ACC, 16)
                a(f"v_mfma_f32_32x32x16_bf16 {vr(ACC,16)}, {vr(b+x+4*e,4)}, {vr(b+y+4*e,4)}, {c}")
        k.ifelse(f"s_cmp_eq_u32 s{MODE}, 2", lambda: mm(0, 0),
                 lambda: k.ifelse(f"s_cmp_eq_u32 s{MODE}, 0", lambda: mm(8, 0), lambda: mm(0, 8)))
    for j in range(8):
        if j not in S1_SKIP:
            jj = j + 1 if (j + 1) in S1_SKIP else j
            vm.wait(*[t_ for q in range(j, jj + 1) for t_ in (("x", 2*q), ("x", 2*q+1), ("k", q))])
            a("s_barrier")
            if j == 0: k.stamp(f"S{j}")
            for q in range(j + 1): pg.release(q)
        d = [lambda g=g: pg.issue(g) for g in pg.take(6 if j < 2 else 4, stop=(('w', 0, 0) if 'nohold' not in VAR else None))]
        b = WF + 16 * (j & 1)
        def g0():
            a("s_bitcmp1_b32 s3, 1")
            a(f"s_mov_b32 s{SP}, {pg.page[('x', 2*j)]*8192}")
            a(f"s_cselect_b32 s{SP}, {pg.page[('x', 2*j+1)]*8192}, s{SP}")
            a(f"v_mul_u32_u24 v8, s{SP}, v{MX}")
            a(f"v_add_u32 v{AX}, v8, v{BX}")
            a(f"v_add_u32 v{AX+1}, v8, v{BX+1}")
            a(f"v_add_u32 v{AW}, {pg.page[('k', j)]*8192}, v{BW}")
            for e in range(2): k.ds(f"ds_read_b128 {vr(b+4*e,4)}, v{AX+e}", ("s", j))
            for e in range(2):
                for u in range(2):
                    k.ds(f"ds_read_b64_tr_b16 {vr(b+8+4*e+2*u,2)}, v{AW} offset:{(16*e+4*u)*64}", ("s", j))
            a(f"v_add_u32 v{BX}, v{I17}, v{BX}")
            a(f"v_add_u32 v{BX+1}, v{I17}, v{BX+1}")
        def g1():
            if j > 0:
                lg.wait(("s", j - 1), ("xr", j - 1))
                kv_mfma(j - 1)
        def g2(e):
            if j < 4:
                for s in range(4): xread(2*j+e, s, XREG + 16*(2*j+e) + 4*s, ("xr", j))
        if j == WT_IT: d.insert(WT_POS, wtouch)
        if j == DBG_IT: d.insert(2 if j == 3 else 0, lambda: k.only(f's_cmp_eq_u32 s3, {FB0}', lambda: a(f'global_load_dword v16, v1, s[{P_DBG}:{P_DBG+1}] sc1')))
        g2(0)
        spread([g0, g1, lambda: g2(1)], d)
    F = FT
    R2 = RED + 16384
    SF = WF + 16
    M, RI, R, V = SF + 2, SF + 3, SF + 1, SF + 8
    def st_reads():
        a("v_and_b32 v5, 15, v2")
        a("v_lshlrev_b32 v6, 4, v5")
        for w in range(4): a(f"ds_read_b64 {vr(SF+2*w,2)}, v6 offset:{R2+w*4096+2*1024}")
        a("v_bfe_u32 v8, v5, 2, 1")
        a("v_lshl_add_u32 v8, v8, 9, v6")
        a("v_lshrrev_b32 v9, 3, v5")
        a("v_lshl_add_u32 v8, v9, 10, v8")
        a("v_and_b32 v9, 3, v5")
        a("v_lshl_add_u32 v8, v9, 2, v8")
        for w in range(4): a(f"ds_read_b32 v{SF+8+w}, v8 offset:{R2+w*4096}")
    def st_compute(extra=()):
        extra = list(extra)
        def fill(n):
            for _ in range(min(n, len(extra))): a(extra.pop(0))
        for w in range(1, 4):
            a(f"v_add_f32 v{SF}, v{SF}, v{SF+2*w}")
            a(f"v_add_f32 v{V}, v{V}, v{V+w}")
            a(f"v_add_f32 v{SF+1}, v{SF+1}, v{SF+2*w+1}")
        chain = [f"v_mul_f32 v{SF}, {f32(1/1024)}, v{SF}", f"v_mul_f32 v{V}, {f32(1/1024)}, v{V}",
                 f"v_fma_f32 v{V}, -v{SF}, v{SF}, v{V}", f"v_max_f32 v{V}, 0, v{V}",
                 f"v_cvt_pk_bf16_f32 v{M}, v{SF}, v{SF}", f"v_cvt_pk_bf16_f32 v{V}, v{V}, v{V}",
                 f"v_lshlrev_b32 v{M}, 16, v{M}", f"v_lshlrev_b32 v{V}, 16, v{V}",
                 f"v_add_f32 v{V}, {f32(1e-5)}, v{V}", f"v_cvt_pk_bf16_f32 v{V}, v{V}, v{V}", f"v_lshlrev_b32 v{V}, 16, v{V}",
                 f"v_sqrt_f32 v{V}, v{V}", f"v_cvt_pk_bf16_f32 v{V}, v{V}, v{V}", f"v_lshlrev_b32 v{V}, 16, v{V}",
                 f"v_rcp_f32 v{RI}, v{V}"]
        for x in chain: a(x); fill(2)
        fill(100)
    def fin0():
        st_reads()
        a(f"v_mov_b32 v9, {16*16 + 4}")
        for w in range(4): a(f"ds_read_b32 v{SF+12+w}, v9 offset:{R2+w*4096+2*1024}")
        a(f"s_lshl_b32 s{T0}, s2, 8")
        a(f"s_add_u32 s{T0}, s{T0}, {WS_YACC:#x}")
        a("v_lshlrev_b32 v8, 2, v2")
        a(f"buffer_store_dword v17, v8, {sr(S_WS)}, s{T0} offen sc1")
        a(f"s_add_u32 s{T0}, s{T0}, {SYB - WS_YACC:#x}")
        a(f"buffer_store_dword v17, v8, {sr(S_WS)}, s{T0} offen sc1")
        a("s_waitcnt lgkmcnt(0)")
        def rk():
            st_compute([f"v_add_f32 v{SF+12}, v{SF+12}, v{SF+12+w}" for w in range(1, 4)] +
                       [f"s_lshl_b32 s{T0}, s{RG}, 4", f"v_add_u32 v9, s{T0}, v5", "v_sub_u32 v9, 0xffff, v9", "v_lshlrev_b32 v6, 3, v5",
                        f"s_lshl_b32 s{T0}, s{RG}, 7", f"s_add_u32 s{T0}, s{T0}, {WS_STAT:#x}",
                        f"s_lshl_b32 s{T1}, s{RG}, 2", f"s_add_u32 s{T1}, s{T1}, {WS_RKEY:#x}"])
            a(f"v_fma_f32 v{R}, -v{M}, v{SF+12}, v{R}")
            a("s_mov_b64 exec, 0xffff")
            a(f"buffer_store_dwordx2 v[{M}:{RI}], v6, {sr(S_WS)}, s{T0} offen sc1")
            a(f"v_mul_f32 v{R}, v{R}, v{RI}")
            a(f"v_cvt_pk_bf16_f32 v{R}, v{R}, v{R}")
            a(f"v_ashrrev_i32 v8, 31, v{R}")
            a("v_or_b32 v8, 0x80000000, v8")
            a(f"v_xor_b32 v{R}, v{R}, v8")
            a(f"v_and_b32 v{R}, 0xffff0000, v{R}")
            a(f"v_or_b32 v{R}, v{R}, v9")
            for sh in (8, 4, 2, 1):
                a(f"v_max_u32_dpp v{R}, v{R}, v{R} row_ror:{sh} row_mask:0xf bank_mask:0xf")
            a("s_mov_b64 exec, 1")
            a(f"buffer_store_dword v{R}, v6, {sr(S_WS)}, s{T1} offen sc1")
            a("s_mov_b64 exec, -1")
        k.only(f"s_cmp_eq_u32 s{SEL}, 0", rk)
    def fin12():
        st_reads()
        adds = [f"v_add_f32 v{F+e}, v{F+e}, v{F+4*w+e}" for w in range(1, 4) for e in range(4)]
        a(f"s_lshr_b32 s{T2}, s{RG}, 1")
        a(f"s_lshl_b32 s{T2}, s{T2}, 12")
        a(f"s_and_b32 s{T1}, s{RG}, 1")
        def kk():
            a("v_bfe_u32 v9, v2, 4, 1")
            a("v_lshlrev_b32 v8, 9, v9")
            a(f"v_lshl_add_u32 v8, v{VH}, 10, v8")
            a(f"s_lshl_b32 s{T0}, s{FW}, 11")
            a(f"v_add_u32 v8, s{T0}, v8")
            a("v_add_u32 v9, v6, v8")
            for w in range(4): a(f"ds_read_b128 {vr(F+4*w,4)}, v9 offset:{RED+w*4096}")
            for w in range(4): a(f"ds_read_b128 {vr(F+16+4*w,4)}, v8 offset:{RED+w*4096+256}")
            a("v_and_b32 v8, 3, v5")
            a("v_bfe_u32 v9, v5, 2, 1")
            a("v_lshl_add_u32 v8, v9, 3, v8")
            a("v_bfe_u32 v9, v5, 3, 1")
            a("v_lshl_add_u32 v8, v9, 2, v8")
            a("v_bfe_u32 v9, v2, 4, 1")
            a("v_lshl_add_u32 v8, v9, 5, v8")
            a("v_lshlrev_b32 v8, 4, v8")
            a(f"v_lshl_add_u32 v8, v{VH}, 3, v8")
            a(f"s_lshl_b32 s{T0}, s{FW}, 10")
            a(f"s_add_u32 s{T2}, s{T2}, s{T0}")
            a(f"s_lshl_b32 s{T1}, s{T1}, 8")
            a(f"s_add_u32 s{T2}, s{T2}, s{T1}")
            a("s_waitcnt lgkmcnt(0)")
            st_compute(adds + [f"v_add_f32 v{F+16+e}, v{F+16+e}, v{F+16+4*w+e}" for w in range(1, 4) for e in range(4)])
            for e in range(4): a(f"v_fma_f32 v{F+e}, -v{M}, v{F+16+e}, v{F+e}")
            for e in range(4): a(f"v_mul_f32 v{F+e}, v{F+e}, v{RI}")
        def vv():
            a(f"s_lshl_b32 s{T0}, s{FW}, 10")
            a(f"v_add_u32 v9, s{T0}, v{VL16}")
            for w in range(4): a(f"ds_read_b128 {vr(F+4*w,4)}, v9 offset:{RED+w*4096}")
            a(f"v_lshlrev_b32 v8, 4, v{VN}")
            for w in range(4): a(f"ds_read_b32 v{F+16+w}, v8 offset:{RED+w*4096+2048}")
            a(f"v_mov_b32 v8, v{VL16}")
            a(f"s_lshl_b32 s{T1}, s{T1}, 10")
            a(f"s_add_u32 s{T2}, s{T2}, s{T1}")
            a(f"s_lshl_b32 s{T1}, s{FW}, 3")
            a(f"s_add_u32 s{T2}, s{T2}, s{T1}")
            a(f"s_add_u32 s{T2}, s{T2}, 2048")
            a(f"s_lshl_b32 s{T0}, s{FW}, 5")
            a(f"v_lshlrev_b32 v6, 4, v{VH}")
            a(f"v_add_u32 v6, s{T0}, v6")
            a("s_waitcnt lgkmcnt(0)")
            st_compute(adds + [f"v_add_f32 v{F+16}, v{F+16}, v{F+16+w}" for w in range(1, 4)])
            for e in range(4): a(f"ds_bpermute_b32 v{F+20+e}, v6, v{M} offset:{4*e}")
            for e in range(4): a(f"ds_bpermute_b32 v{F+24+e}, v6, v{RI} offset:{4*e}")
            a("s_waitcnt lgkmcnt(4)")
            for e in range(4): a(f"v_fma_f32 v{F+e}, -v{F+20+e}, v{F+16}, v{F+e}")
            a("s_waitcnt lgkmcnt(0)")
            for e in range(4): a(f"v_mul_f32 v{F+e}, v{F+e}, v{F+24+e}")
        k.ifelse(f"s_cmp_eq_u32 s{SEL}, 0", kk, vv)
        a(f"v_cvt_pk_bf16_f32 v{F+12}, v{F}, v{F+1}")
        a(f"v_cvt_pk_bf16_f32 v{F+13}, v{F+2}, v{F+3}")
        a(f"buffer_store_dwordx2 {vr(F+12,2)}, v8, {sr(S_WS)}, s{T2} offen sc1")
    def fin_arrive():
        a(f"s_waitcnt vmcnt({vm.since('fs')})")
        top, done = L(), L()
        a(f"s_mov_b32 s{CNT}, 0")
        a.label(top)
        a("v_cmp_eq_u32 vcc, 0, v16")
        a(f"s_add_u32 s{CNT}, s{CNT}, 1")
        a(f"s_cbranch_vccz {done}")
        a(f"global_load_dword v16, v1, s[{P_DBG}:{P_DBG+1}] sc1")
        a("s_waitcnt vmcnt(0)")
        a(f"s_cmp_lt_u32 s{CNT}, {SPIN_MAX}")
        a(f"s_cbranch_scc1 {top}")
        a.label(done)
        a("v_mov_b32 v8, 1")
        a(f"v_mov_b32 v9, {TAB + 128}")
        a("s_mov_b64 exec, 1")
        a("ds_add_rtn_u32 v9, v9, v8")
        a("s_waitcnt lgkmcnt(0)")
        a("v_cmp_eq_u32 vcc, 2, v9")
        a("s_mov_b64 exec, 0xff")
        nl = L()
        a(f"s_cbranch_vccz {nl}")
        a(f"s_lshr_b32 s{T0}, s2, 3")
        a(f"s_lshl_b32 s{T0}, s{T0}, 7")
        a(f"s_add_u32 s{T0}, s{T0}, {SY1:#x}")
        a("v_lshlrev_b32 v9, 12, v2")
        a(f"buffer_atomic_add v8, v9, {sr(S_WS)}, s{T0} offen sc1")
        a.label(nl)
        a("s_mov_b64 exec, -1")
    W0, W12, W012 = f"s_cmp_eq_u32 s3, {FB0}", f"s_cmp_lt_u32 s{FW}, 2", ("s_cmp_lt_u32 s3, 3" if FB0 == 0 else f"s_add_u32 s{T0}, s{FW}, 1\ns_cmp_lt_u32 s{T0}, 3")
    def kv_dma(i, chunk):
        a(f"s_add_u32 m0, s{W4K}, {chunk*32768 + i*1024}")
        a(f"s_add_u32 s{XSO}, s{W4K}, {chunk*32768 + i*1024}")
        a(f"buffer_load_dwordx4 v{VL16}, {sr(S_KV)}, s{XSO} offen sc1 lds"); vm.add(("kv", chunk))
    RK, PV, ST2 = 126, 122, 124
    pool = [WF, WF + 8]
    wreg, xreg = {}, {c: (XREG + 16*c, XREG + 16*c + 8) for c in range(8)}
    def rd_ops(c):
        need = 1 if c < 8 else 3
        if len(pool) < need: return None
        wreg[c] = pool.pop(0)
        if c >= 8: xreg[c] = (pool.pop(0), pool.pop(0))
        ops = []
        for e in range(2):
            def w(e=e):
                vm.wait(("w", c, e))
                p = pg.page[("w", c, e)]
                for u in range(2):
                    k.ds(f"ds_read_b64_tr_b16 {vr(wreg[c]+4*e+2*u,2)}, v{VW + (p >> 3)} offset:{(p & 7)*8192 + 4*u*64}", ("q", c, e))
            def x(e=e):
                for t in range(2): xread(c, 2*t+e, xreg[c][t] + 4*e, ("q", c, e))
            if c >= 8: ops.append(x)
            ops.append(w)
        return ops
    def rd(c):
        for o in rd_ops(c): o()
    def mm_ops(c):
        def m(e, t):
            if t == 0:
                lg.wait(("q", c, e)); pg.free.append(pg.page[("w", c, e)])
            acc = ACCX if t else ACCO
            cc = "0" if (c == 0 and e == 0) else vr(acc, 16)
            if 'nomm' not in VAR: a(f"v_mfma_f32_32x32x16_bf16 {vr(acc,16)}, {vr(wreg[c]+4*e,4)}, {vr(xreg[c][t]+4*e,4)}, {cc}")
        def s():
            a(f"v_smfmac_f32_16x16x64_bf16 {vr(CS,4)}, {vr(MA,4)}, {vr(wreg[c],8)}, v{IDXC}")
            pool.append(wreg[c])
            if c not in (2, 5, 6): pool.extend(xreg[c])
        return [lambda: m(0, 0), lambda: m(0, 1), lambda: m(1, 0), lambda: m(1, 1), s]
    def dmas(n):
        for g_ in pg.take(n): pg.issue(g_)
    def ld_stat():
        a(f"s_lshl_b32 s{T0}, s{ROWT}, 8")
        a(f"s_add_u32 s{T0}, s{T0}, {WS_STAT:#x}")
        a(f"v_lshlrev_b32 v5, 3, v{VN}")
        a(f"buffer_load_dwordx2 {vr(STAT,2)}, v5, {sr(S_WS)}, s{T0} offen sc1"); vm.add("stat")
    def ld_stat2():
        a(f"s_xor_b32 s{T0}, s{T0}, 0x100")
        a(f"buffer_load_dword v{ST2}, v5, {sr(S_WS)}, s{T0} offen sc1"); vm.add("stat")
    def ld_rk():
        a("v_lshlrev_b32 v5, 3, v2")
        a(f"s_mov_b32 s{T0}, {WS_RKEY:#x}")
        a(f"buffer_load_dwordx2 {vr(RK,2)}, v5, {sr(S_WS)}, s{T0} offen sc1"); vm.add("rk")
    def kvt():
        a(f"s_lshr_b32 s{T0}, s2, 3")
        a(f"s_lshl_b32 s{T0}, s{T0}, 13")
        a("v_lshlrev_b32 v5, 7, v2")
        a(f"buffer_load_dword v16, v5, {sr(S_KV)}, s{T0} offen sc1")
    pl = [ld_stat, ld_stat2] + [lambda i=i: kv_dma(i, 0) for i in range(4)] + [ld_rk, lambda: k.only("s_cmp_eq_u32 s3, 6", kvt)]
    post = {CHK + 1: pl[:4], CHK + 2: pl[4:]} if CHK <= 11 else {13: pl}
    post.update({
            5: [lambda: k.ffn.early(0)], 6: [lambda: k.ffn.early(1)], 7: [lambda: k.ffn.early(2)]})
    k.stamp("B0")
    k.delay(77)
    lg.wait(("s", 7)); kv_mfma(7)
    dmas(NW0)
    a(f"v_add_u32 v8, s{W4K}, v{VL16}")
    for q in range(4): k.ds(f"ds_write_b128 v8, {vr(ACC+4*q,4)} offset:{RED + q*1024}", "red")
    lg.wait_all()
    a("s_barrier"); pg.release(7); pg.release(8); pg.release(9)
    k.only(W0, fin0); k.only(W12, fin12); vm.mark("fs")
    dmas(7)
    if ARR < 0: k.only(W012, fin_arrive)
    rd(0); rd(1)
    k.stamp('R1')
    for c in range(14):
        if c == PI:
            a(f"v_lshlrev_b32 v{PV}, 7, v{VN}")
            a(f"s_and_b32 s{T3}, s2, 7")
            a(f"s_lshl_b32 s{T3}, s{T3}, 12")
            a(f"s_add_u32 s{T3}, s{T3}, {SY1:#x}")
            k.only(W0, lambda: a(f"buffer_load_dword v{PV+1}, v{PV}, {sr(S_WS)}, s{T3} offen sc1"))
            vm.mark("poll")
        ro = rd_ops(c + 2) if c + 2 < 16 else []
        d1 = lambda: dmas(1)
        extra = post.pop(c, [])
        if 'nopost' in VAR: extra = []
        if ro is None: interleave(mm_ops(c), [d1, d1, d1]); rd(c + 2)
        else:
            h = len(ro) // 2
            interleave(mm_ops(c), [d1] + ro[:h] + [d1] + ro[h:] + [d1] + extra)
        if 'fine' in VAR and c in (1, 2, 4, 6, 8, 10, 12, 13, 14): k.stamp(f'M{c}')
        if c == ARR: k.only(W012, fin_arrive)
        if c == R2C:
            a("s_barrier"); pg.hold = set()
        if c == CHK:
            def chk():
                a(f"s_waitcnt vmcnt({vm.since('poll')})")
                k.poll(PV, PV + 1, T3, 8)
            if 'nopub' not in VAR: k.only(W0, chk)
            if 'nor3' not in VAR: a("s_barrier")
    EX, MB = 208, 224
    assert all(b not in list(wreg[c_] for c_ in (14, 15)) + list(xreg[14]) + list(xreg[15]) for b in (208, 216, 224)), (wreg, xreg)
    m14, m15 = mm_ops(14), mm_ops(15)
    lg.wait(("q", 14, 0), ("q", 14, 1)); m14[4]()
    m14[1]()
    a(f"v_cmp_eq_u32 vcc, 0, v{VH}")
    vm.wait("stat")
    a(f"v_cvt_pk_bf16_f32 v{MB}, -v{STAT}, -v{STAT}")
    a(f"v_cvt_pk_bf16_f32 v{MB+4}, -v{ST2}, -v{ST2}")
    lg.wait(("q", 15, 0), ("q", 15, 1)); m15[4]()
    m14[3]()
    a(f"v_cndmask_b32 v{MB}, 0, v{MB}, vcc")
    a(f"v_cndmask_b32 v{MB+4}, 0, v{MB+4}, vcc")
    a(f"v_mov_b32 v{MB+1}, v{MB}"); a(f"v_mov_b32 v{MB+5}, v{MB+4}")
    for i in (2, 3, 6, 7): a(f"v_mov_b32 v{MB+i}, 0")
    m15[1]()
    a("v_mov_b32 v10, 0"); a("v_mov_b32 v11, 0")
    a(f"v_add_f32 v6, v{CS}, v{CS+1}")
    a("v_cvt_pk_bf16_f32 v5, v6, v6")
    a("v_lshlrev_b32 v5, 16, v5")
    a("v_sub_f32 v5, v6, v5")
    m15[3]()
    a("v_cvt_pk_bf16_f32 v8, v6, v5")
    a("v_and_b32 v6, 0xffff0000, v8")
    a("v_sub_f32 v5, v5, v6")
    a("v_cvt_pk_bf16_f32 v9, v5, 0")
    a(f"v_add_u32 v12, s{W1K}, v{VL16}")
    a("v_add_u32 v12, 0x10000, v12")
    a(f"v_mfma_f32_32x32x16_bf16 {vr(ACCX,16)}, v[8:11], {vr(MB+4,4)}, {vr(ACCX,16)}")
    a("v_and_b32 v5, 1, v2")
    a("v_cmp_eq_u32 vcc, 0, v5")
    m14[0]()
    a(f"v_mul_f32 v6, {f32(QSCALE)}, v{STAT+1}")
    a("v_xor_b32 v13, 0x400, v12")
    for i in range(4): a(f"v_cndmask_b32 v{MA+i}, 0, v{MA+i}, vcc")
    m14[2]()
    for i in range(4): a(f"v_pk_mov_b32 {vr(OA+2*i,2)}, 0, 0")
    for q in range(2): a(f"ds_write_b128 v12, {vr(ACCX+4*q,4)} offset:{q*8192}")
    m15[0]()
    for q in range(2, 4): a(f"ds_write_b128 v12, {vr(ACCX+4*q,4)} offset:{q*8192}")
    for i in range(4, 8): a(f"v_pk_mov_b32 {vr(OA+2*i,2)}, 0, 0")
    m15[2]()
    for i in range(2): a(f"v_pk_mov_b32 {vr(LS+2*i,2)}, 0, 0")
    a(f"v_add_u32 v{VK1}, 0x10000, v{VL16}")
    a(f"v_mfma_f32_32x32x16_bf16 {vr(ACCO,16)}, v[8:11], {vr(MB,4)}, {vr(ACCO,16)}")
    k.EX = EX
    for p in (8, 9, 10, 11): assert p in pg.free
    k.stamp("B_end")
    if "stopB" in VAR: a("s_endpgm")
    k.ACCX, k.ACCO, k.ST2 = ACCX, ACCO, ST2
    k.ACC, k.CS, k.RK = ACC, CS, RK


def attention(k):
    a, vm, lg, ffn = k.a, k.vm, k.lg, k.ffn
    ACCX, ACC, CS, ST2 = k.ACCX, k.ACCO, k.CS, k.ST2
    EX = k.EX
    srd(a, S_W, P_WO, 1024 * 2048)
    vm.wait(("kv", 0))
    a("s_waitcnt lgkmcnt(0)")
    a("s_barrier")
    for q in range(4): a(f"ds_read_b128 {vr(EX+4*q,4)}, v13 offset:{q*8192}")
    a(f"ds_read_b128 {vr(KA,4)}, v{VL16}")
    a(f"ds_read_b128 {vr(KA+4,4)}, v{VL16} offset:1024")
    a(f"s_add_u32 m0, s{W4K}, 32768")
    a(f"s_add_u32 s{XSO}, s{W4K}, 32768")
    a(f"buffer_load_dwordx4 v{VL16}, {sr(S_KV)}, s{XSO} offen sc1 lds"); vm.add(("kv", 1))
    for q in range(4):
        a(f"s_waitcnt lgkmcnt({5-q})")
        for i in (2*q, 2*q+1): a(f"v_pk_add_f32 {vr(ACC+2*i,2)}, {vr(ACC+2*i,2)}, {vr(EX+2*i,2)}")
        for i in (2*q, 2*q+1): a(f"v_pk_mul_f32 {vr(ACC+2*i,2)}, {vr(ACC+2*i,2)}, v[6:7] op_sel_hi:[1,0]")
        for i in (2*q, 2*q+1): a(f"v_cvt_pk_bf16_f32 v{QF+i}, v{ACC+2*i}, v{ACC+2*i+1}")
    a("s_waitcnt lgkmcnt(0)")
    a(f"v_mfma_f32_32x32x16_bf16 {vr(SA,16)}, {vr(KA,4)}, {vr(QF,4)}, 0")
    a(f"v_mfma_f32_32x32x16_bf16 {vr(SA,16)}, {vr(KA+4,4)}, {vr(QF+4,4)}, {vr(SA,16)}")
    def kvaddr(tile, off):
        p = ((tile >> 3) % 3) * 32768 + (tile & 7) * 4096 + off
        return (f"v{VL16} offset:{p}" if p < 65536 else f"v{VK1} offset:{p - 65536}")
    lg.tags = []
    k.ds(f"ds_read_b128 {vr(KA,4)}, {kvaddr(1, 0)}", ("K", 1))
    k.ds(f"ds_read_b128 {vr(KA+4,4)}, {kvaddr(1, 1024)}", ("K", 1))
    k.ds(f"ds_read_b128 {vr(VA,4)}, {kvaddr(0, 2048)}", ("V0", 0))
    a(f"v_max3_f32 v6, v{SA}, v{SA+1}, v{SA+2}")
    a(f"v_max3_f32 v5, v{SA+3}, v{SA+4}, v{SA+5}")
    a(f"v_max3_f32 v6, v6, v{SA+6}, v{SA+7}")
    a(f"v_max3_f32 v5, v5, v{SA+8}, v{SA+9}")
    a(f"v_max3_f32 v6, v6, v{SA+10}, v{SA+11}")
    a(f"v_max3_f32 v5, v5, v{SA+12}, v{SA+13}")
    a(f"v_max3_f32 v6, v6, v{SA+14}, v{SA+15}")
    a("v_max_f32 v6, v6, v5")
    a("v_mov_b32 v5, v6")
    a("v_permlane32_swap_b32 v6, v5")
    a("v_max_f32 v6, v6, v5")
    a(f"v_sub_f32 v{NM}, 0, v6")
    a(f"v_sub_f32 v{NM+1}, 0, v6")
    for i in range(8): a(f"v_pk_add_f32 {vr(SA+2*i,2)}, {vr(SA+2*i,2)}, {vr(NM,2)}")
    for i in range(1, 8): a(f"v_pk_mov_b32 {vr(NM+2*i,2)}, {vr(NM,2)}, {vr(NM,2)}")
    k.stamp("loop_start")
    if "pad4" in VAR: a("s_nop 0")
    if "al64" in VAR: a.raw(".p2align 6")
    for T in range(64):
        c, t = T >> 3, T & 7
        S, P = (SA, SB) if T % 2 == 0 else (SB, SA)
        e = lambda i: a(f"v_exp_f32 v{S+i}, v{S+i}")
        def kvd():
            for kp in range(4):
                if KVT[kp] != t: continue
                kc = c + 2 if t >= 6 else c + 1
                if kc > 7 or (kc == 1 and kp == 0): continue
                a(f"s_add_u32 m0, s{W4K}, {(kc % 3) * 32768 + kp * 1024}")
                a(f"s_add_u32 s{XSO}, s{W4K}, {kc * 32768 + kp * 1024}")
                a(f"buffer_load_dwordx4 v{VL16}, {sr(S_KV)}, s{XSO} offen {KVF} lds"); vm.add(("kv", kc))
        e(0)
        if T > 0:
            lg.wait(("V1", T - 1))
            a(f"v_smfmac_f32_32x32x32_bf16 {vr(OA,16)}, {vr(VA+4,4)}, {vr(P+8,8)}, v{IDXD}")
        k.ds(f"ds_read_b128 {vr(VA+4,4)}, {kvaddr(T, 3072)}", ("V1", T))
        if PRP == 0: a(f"s_setprio {3 - ((T + 1) & 3)}")
        e(1); e(2); e(3)
        if PRP != 0 and T < 63: lg.wait(("K", T + 1))
        if T > 0: a(f"v_smfmac_f32_16x16x64_bf16 {vr(LS,4)}, {vr(MA,4)}, {vr(P+8,8)}, v{IDXD}")
        if PRP == 0:
            e(4)
            if T < 63: lg.wait(("K", T + 1))
            nx = 5
        else:
            e(4); e(5); nx = 6
        if T < 63: a(f"v_mfma_f32_32x32x16_bf16 {vr(P,16)}, {vr(KA,4)}, {vr(QF,4)}, {vr(NM,16)}")
        if PRP != 0: a(f"s_setprio {3 - ((T + 1) & 3)}")
        for i in range(nx, 9): e(i)
        if T < 63: a(f"v_mfma_f32_32x32x16_bf16 {vr(P,16)}, {vr(KA+4,4)}, {vr(QF+4,4)}, {vr(P,16)}")
        if t == 6 and c < 7:
            vm.wait(("kv", c + 1))
            a("s_barrier")
        if T + 2 <= 63:
            k.ds(f"ds_read_b128 {vr(KA,4)}, {kvaddr(T + 2, 0)}", ("K", T + 2))
            k.ds(f"ds_read_b128 {vr(KA+4,4)}, {kvaddr(T + 2, 1024)}", ("K", T + 2))
        e(9); e(10); e(11)
        lg.wait(("V0", T))
        a(f"v_smfmac_f32_32x32x32_bf16 {vr(OA,16)}, {vr(VA,4)}, {vr(S,8)}, v{IDXD}")
        if T < 63: k.ds(f"ds_read_b128 {vr(VA,4)}, {kvaddr(T + 1, 2048)}", ("V0", T + 1))
        kvd()
        e(12); e(13); e(14); e(15)
        a(f"v_smfmac_f32_16x16x64_bf16 {vr(LS,4)}, {vr(MA,4)}, {vr(S,8)}, v{IDXD}")
        if "noffn" not in VAR: ffn.tile_end(T)
        if 'nod' not in VAR: k.D.tile_end(T)
    a("s_setprio 0")
    lg.wait_all()
    a(f"v_smfmac_f32_32x32x32_bf16 {vr(OA,16)}, {vr(VA+4,4)}, {vr(SB+8,8)}, v{IDXD}")
    a(f"v_smfmac_f32_16x16x64_bf16 {vr(LS,4)}, {vr(MA,4)}, {vr(SB+8,8)}, v{IDXD}")
    k.stamp("loop_end")
    k.delay(200)
    if "stopC" in VAR: a("s_endpgm")

FBASE = 98304
class FFN:
    VGU, VTR, VOD, VTD, XSL, VL4, XST, TMP, XS, WB, DD = 160, 161, 162, 163, 164, 165, 166, 168, 176, 192, 224
    FB, GSO, DSO, YSO, ASO = 66, 67, 94, 95, 65
    def __init__(self, k): self.k, self.a, self.vm = k, k.a, k.vm
    def early(self, part):
        t = self.TMP
        lines = []
        a = lines.append
        a(f"s_add_u32 s{self.FB}, s{W8K}, {FBASE}")
        a(f"v_lshrrev_b32 v{t}, 3, v2")
        a(f"v_mul_u32_u24 v{t}, 7168, v{t}")
        a(f"v_and_b32 v{t+1}, 7, v2")
        a(f"v_lshl_add_u32 v{self.VGU}, v{t+1}, 4, v{t}")
        a(f"v_bfe_u32 v{t}, v2, 2, 2")
        a(f"v_lshrrev_b32 v{t+1}, 4, v2")
        a(f"v_lshl_add_u32 v{t+1}, v{t+1}, 3, v{t}")
        a(f"v_lshlrev_b32 v{t+1}, 7, v{t+1}")
        a(f"v_and_b32 v{t+2}, 3, v2")
        a(f"v_lshl_add_u32 v{t+1}, v{t+2}, 3, v{t+1}")
        a(f"v_add_u32 v{self.VTR}, s{self.FB}, v{t+1}")
        a(f"v_lshrrev_b32 v{t+1}, 4, v2")
        a(f"v_lshlrev_b32 v{t+3}, 2, v{t+1}")
        a(f"v_xor_b32 v{t+3}, v{t+3}, v2")
        a(f"v_and_b32 v{t+3}, 15, v{t+3}")
        a(f"v_lshlrev_b32 v{t+3}, 4, v{t+3}")
        a(f"v_lshl_add_u32 v{t+3}, v{t+1}, 11, v{t+3}")
        a(f"s_lshl_b32 s{T0}, s3, 8")
        a(f"v_add_u32 v{self.VOD}, s{T0}, v{t+3}")
        a(f"v_mul_u32_u24 v{t}, 320, v{t}")
        a(f"v_lshl_add_u32 v{t}, v{VH}, 11, v{t}")
        a(f"v_bfe_u32 v{t+1}, v2, 4, 1")
        a(f"v_lshl_add_u32 v{t}, v{t+1}, 5, v{t}")
        a(f"v_lshl_add_u32 v{t}, v{t+2}, 3, v{t}")
        a(f"v_add_u32 v{self.VTD}, s{self.FB}, v{t}")
        a(f"v_lshlrev_b32 v{self.VL4}, 2, v2")
        a(f"v_and_b32 v{t}, 60, v{self.VL4}")
        a(f"v_mov_b32 v{t+1}, 0")
        a(f"s_and_b32 s{T0}, s{FCG}, 3")
        a(f"s_lshl_b32 s{T0}, s{T0}, 3")
        a(f"s_add_u32 s{T0}, s{T0}, s3")
        a(f"s_lshl_b32 s{SP}, s{T0}, 6")
        a(f"s_mul_i32 s{self.GSO}, s{T0}, {32*7168}")
        a(f"s_lshr_b32 s{T1}, s{FCG}, 2")
        a(f"s_lshl_b32 s{T2}, s{T1}, 7")
        a(f"s_add_u32 s{self.GSO}, s{self.GSO}, s{T2}")
        a(f"s_lshl_b32 s{self.ASO}, s{T1}, 8")
        a(f"s_add_u32 s{self.ASO}, s{self.ASO}, {WS_GU:#x}")
        a(f"s_lshl_b32 s{self.DSO}, s{FCG}, 15")
        a(f"s_and_b32 s{self.YSO}, s2, 7")
        a(f"s_lshl_b32 s{self.YSO}, s{self.YSO}, 12")
        a(f"s_lshl_b32 s{T0}, s3, 9")
        a(f"s_add_u32 s{self.YSO}, s{self.YSO}, s{T0}")
        a(f"s_add_u32 s{self.YSO}, s{self.YSO}, {WS_YACC:#x}")
        a("s_cmp_lt_u32 s2, 224")
        for r in (self.GSO, self.DSO, self.YSO, self.ASO):
            a(f"s_cselect_b32 s{r}, s{r}, 0x40000000")
        srd(a, S_WD, P_WD, 3584 * 2048)
        srd(a, S_OUT, P_OUT, 2048 * 2048)
        cut = [0, 12, 29, len(lines)]
        for x in lines[cut[part]:cut[part+1]]: self.a(x)
    def argmax1(self):
        a, RK = self.a, self.k.RK
        self.vm.wait('rk')
        a(f"v_max_u32 v5, v{RK}, v{RK+1}")
        for sh in (8, 4, 2, 1):
            a(f"v_max_u32_dpp v5, v5, v5 row_ror:{sh} row_mask:0xf bank_mask:0xf")
        for i, s in enumerate((T0, T1, T2, T3)): a(f"v_readlane_b32 s{s}, v5, {16*i}")
    def argmax2(self):
        a, vm = self.a, self.vm
        a(f"s_max_u32 s{T0}, s{T0}, s{T1}")
        a(f"s_max_u32 s{T2}, s{T2}, s{T3}")
        a(f"s_max_u32 s{RKEY}, s{T0}, s{T2}")
        a(f"s_and_b32 s{IDX}, s{RKEY}, 0xffff")
        a(f"s_sub_u32 s{IDX}, 0xffff, s{IDX}")
        a(f"s_and_b32 s{IDX}, s{IDX}, 2047")
    def arrive(self, soff):
        a, t = self.a, self.TMP
        a(f"v_mov_b32 v{t+6}, 1")
        a("s_mov_b64 exec, 1")
        a(f"buffer_atomic_add v{t+6}, v{self.VL4}, {sr(S_WS)}, s{soff} offen sc1"); self.vm.add("arr")
        a("s_mov_b64 exec, -1")
    def tile_end(self, T):
        k, a, vm, t = self.k, self.a, self.vm, self.TMP
        GU_T = [8*(i // 3) + FTS[i % 3] for i in range(8)]
        WD_T = WDT
        if T == 1: self.argmax1(); self.argmax2()
        if T == 3:
            a(f"s_lshl_b32 s{T0}, s{IDX}, 11")
            a(f"s_add_u32 s{T0}, s{T0}, s{SP}")
            a(f"buffer_load_dword v{self.XSL}, v{t}, {sr(S_X)}, s{T0} offen"); vm.add("xs")
        if T == 5:
            a(f"s_lshl_b32 s{T0}, s{IDX}, 3")
            a(f"s_add_u32 s{T0}, s{T0}, {WS_STAT:#x}")
            a(f"buffer_load_dwordx2 {vr(self.XST,2)}, v{t+1}, {sr(S_WS)}, s{T0} offen sc1"); vm.add("xs")
        if T in GU_T:
            i = GU_T.index(T); mat, j = i >> 2, i & 3
            a(f"s_add_u32 m0, s{self.FB}, {i*1024}")
            a(f"s_add_u32 s{T0}, s{self.GSO}, {j*8*7168}")
            a(f"buffer_load_dwordx4 v{self.VGU}, {sr(S_WU if mat else S_WG)}, s{T0} offen lds"); vm.add("u" if mat else "g")
        if T == 16:
            vm.wait("xs")
            a(f"v_lshlrev_b32 v{t}, 16, v{self.XSL}")
            a(f"v_and_b32 v{t+1}, 0xffff0000, v{self.XSL}")
            a(f"v_sub_f32 v{t}, v{t}, v{self.XST}")
            a(f"v_sub_f32 v{t+1}, v{t+1}, v{self.XST}")
            a(f"v_cvt_pk_bf16_f32 v{t+2}, v{t}, v{t+1}")
            a(f"v_lshlrev_b32 v{t}, 16, v{t+2}")
            a(f"v_and_b32 v{t+1}, 0xffff0000, v{t+2}")
            a(f"v_mul_f32 v{t}, v{t}, v{self.XST+1}")
            a(f"v_mul_f32 v{t+1}, v{t+1}, v{self.XST+1}")
            a(f"v_cvt_pk_bf16_f32 v{t+2}, v{t}, v{t+1}")
            a(f"v_and_b32 v{t+3}, 0x30, v2")
            for j in range(4):
                k.ds(f"ds_bpermute_b32 v{self.XS+j}, v{t+3}, v{t+2} offset:{4*j}", "xsf")
        if 22 <= T <= 25:
            if T == 22: vm.wait("g")
            if T == 24: vm.wait("u")
            m, hf = (T - 22) >> 1, (T - 22) & 1
            for ct in (2*hf, 2*hf+1):
                for u in range(2):
                    k.ds(f"ds_read_b64_tr_b16 {vr(self.WB+16*m+4*ct+2*u,2)}, v{self.VTR} offset:{m*4096 + u*512 + ct*32}", ("gw", T))
        if 24 <= T <= 27:
            m, hf = (T - 24) >> 1, (T - 24) & 1
            k.lg.wait(("gw", T - 2), "xsf")
            for ct in (2*hf, 2*hf+1):
                a(f"v_mfma_f32_16x16x32_bf16 {vr(self.DD+16*m+4*ct,4)}, {vr(self.XS,4)}, {vr(self.WB+16*m+4*ct,4)}, 0")
        if T == 28: k.delay(41)
        if T == 51: k.delay(130)
        if T == 28:
            for ct in range(1, 4):
                for m in range(2):
                    D = self.DD + 16*m
                    a(f"v_mov_b32_dpp v{D}, v{D+4*ct} quad_perm:[0,1,2,3] row_mask:{1 << ct:#x} bank_mask:0xf")
            a(f"s_add_u32 s{T0}, s{self.ASO}, {3584*4}")
            a(f"buffer_atomic_add_f32 v{self.DD}, v{self.VL4}, {sr(S_WS)}, s{self.ASO} offen"); vm.add("at1")
            a(f"buffer_atomic_add_f32 v{self.DD+16}, v{self.VL4}, {sr(S_WS)}, s{T0} offen"); vm.add("at1")
        if T in WD_T:
            j = WD_T.index(T)
            a(f"s_add_u32 m0, s{self.FB}, {j*1024}")
            a(f"s_add_u32 s{T0}, s{self.DSO}, {j*8192}")
            a(f"buffer_load_dwordx4 v{self.VOD}, {sr(S_WD)}, s{T0} offen lds"); vm.add("wd")
        if T == 35:
            vm.wait("at1")
            a(f"s_lshr_b32 s{self.GSO}, s{FCG}, 2")
            a(f"s_lshl_b32 s{self.GSO}, s{self.GSO}, 7")
            a(f"s_add_u32 s{self.GSO}, s{self.GSO}, {SY4:#x}")
            a("s_cmp_lt_u32 s2, 224")
            a(f"s_cselect_b32 s{self.GSO}, s{self.GSO}, 0x40000000")
            self.arrive(self.GSO)
        G = self.DD
        W0F = f"s_cmp_lt_u32 s{CNT}, 224"
        if T == 40:
            a(f"s_lshl_b32 s{CNT}, s3, 8")
            a(f"s_add_u32 s{CNT}, s{CNT}, s2")
            a(f"v_mov_b32 v{t}, 0")
            k.only(W0F, lambda: a(f"buffer_load_dword v{t+1}, v{t}, {sr(S_WS)}, s{self.GSO} offen sc1"))
            vm.mark("p4")
        if T == 42:
            def p2():
                a(f"s_waitcnt vmcnt({vm.since('p4')})")
                k.poll(t, t + 1, self.GSO, 32, cnt=T3)
                a(f"v_and_b32 v{t}, 60, v{self.VL4}")
                a(f"v_bfe_u32 v{t+1}, v2, 4, 1")
                a(f"v_mul_u32_u24 v{t+1}, {3584*4}, v{t+1}")
                a(f"v_add_u32 v{t+1}, v{t+1}, v{t}")
                a(f"s_lshl_b32 s{T0}, s{FCG}, 6")
                a(f"s_add_u32 s{T0}, s{T0}, {WS_GU:#x}")
                a(f"buffer_load_dword v{G}, v{t+1}, {sr(S_WS)}, s{T0} offen sc1")
            k.only(W0F, p2)
            vm.mark("gl")
        if T == 45:
            def hh():
                a(f"s_waitcnt vmcnt({vm.since('gl')})")
                bf16r(a, G, G)
                a(f"v_mov_b32 v{G+1}, v{G}")
                a(f"v_permlane16_swap_b32 v{G}, v{G+1}")
                a(f"v_mul_f32 v{G+2}, {f32(-LOG2E)}, v{G}")
                a(f"v_exp_f32 v{G+2}, v{G+2}")
                a(f"v_add_f32 v{G+2}, 1.0, v{G+2}")
                a(f"v_rcp_f32 v{G+2}, v{G+2}")
                a(f"v_mul_f32 v{G}, v{G}, v{G+2}")
                bf16r(a, G, G)
                a(f"v_mul_f32 v{G}, v{G}, v{G+1}")
                a(f"v_cvt_pk_bf16_f32 v{G}, v{G}, v{G}")
                a(f"v_lshrrev_b32 v{t}, 1, v{t}")
                a(f"v_add_u32 v{t}, {FBASE + 4096}, v{t}")
                a(f"ds_write_b16 v{t}, v{G}")
                a("s_waitcnt lgkmcnt(0)")
            k.only(W0F, hh)
        HF, WD, DD = 168, 176, 192
        if T in (43, 44):
            if T == 43: vm.wait("wd")
            for j in (2*(T-43), 2*(T-43)+1):
                if j: a(f"v_xor_b32 v{t+4+j}, {64*j}, v{self.VTD}")
                ad = (t + 4 + j) if j else self.VTD
                for u in range(2):
                    k.ds(f"ds_read_b64_tr_b16 {vr(WD+4*j+2*u,2)}, v{ad} offset:{u*1024}", "wdf")
        if T == 46:
            a(f"v_lshlrev_b32 v{t+4}, 4, v{VH}")
            a(f"v_add_u32 v{t+4}, {FBASE + 4096}, v{t+4}")
            k.ds(f"ds_read_b128 {vr(HF,4)}, v{t+4}", "hf")
        if 47 <= T <= 50:
            j = T - 47
            k.lg.wait("hf", "wdf")
            a(f"v_mfma_f32_32x32x16_bf16 {vr(DD+16*j,16)}, {vr(HF,4)}, {vr(WD+4*j,4)}, 0")
        if T == 51:
            a(f"v_mov_b32_dpp v{DD}, v{DD+16} quad_perm:[0,1,2,3] row_mask:0xc bank_mask:0xf")
            a(f"v_mov_b32_dpp v{DD+32}, v{DD+48} quad_perm:[0,1,2,3] row_mask:0xc bank_mask:0xf")
            a(f"buffer_atomic_add_f32 v{DD}, v{self.VL4}, {sr(S_WS)}, s{self.YSO} offen"); vm.add("at")
            a(f"buffer_atomic_add_f32 v{DD+32}, v{self.VL4}, {sr(S_WS)}, s{self.YSO} offen offset:256"); vm.add("at")
        if T == 59:
            vm.wait("at")
            a(f"s_lshr_b32 s{T0}, s2, 3")
            a(f"s_lshl_b32 s{T0}, s{T0}, 7")
            a(f"s_add_u32 s{T0}, s{T0}, {SY3:#x}")
            self.arrive(T0)

class PhaseD:
    XR, ST, VXO = 8, 30, 16
    VOF, VWD = 24, (17, 18, 1)
    XFL, G, XF, ACCO, ACCX, WREG = 32, 48, 64, 96, 112, 128
    def __init__(self, k):
        self.k, self.a, self.vm = k, k.a, k.vm
        def rot(c, shift, extra, base):
            return f"""s_add_u32 s{TD}, s{ROT}, {c}
            s_and_b32 s{TD}, s{TD}, 15
            s_lshl_b32 s{TD}, s{TD}, {shift}
            s_add_u32 s{TD}, s{TD}, s{base}""" + (f"\ns_add_u32 s{TD}, s{TD}, {extra}" if extra else "")
        def ldw(n): return lambda p: f"s_add_u32 m0, s{W1K}, {p*8192}\n" + rot(n >> 1, 17, (n & 1) * 16 * 2048, SEL) + f"\nbuffer_load_dwordx4 v{VOW}, {sr(S_W)}, s{TD} offen lds"
        def ldo(c): return lambda p: f"s_add_u32 m0, s{W1K}, {p*8192}\n" + rot(c, 12, 0, OBASE) + f"\nbuffer_load_dwordx4 v{VL16}, {sr(S_WS)}, s{TD} offen sc1 lds"
        seq = [(("w", n), ldw(n), None, list(range(19, -1, -1))) for n in range(24)]
        seq += [(("o", c), ldo(c), None, list(range(16))) for c in range(16)]
        seq += [(("w", n), ldw(n), None, [16, 17, 18, 19]) for n in range(24, 32)]
        self.pg = Pager(k, range(8, 20), seq)
    def tile_end(self, T):
        k, a, vm = self.k, self.a, self.vm
        if T == 44:
            a(f"s_lshr_b32 s{T0}, s2, 3")
            a(f"s_lshl_b32 s{T0}, s{T0}, 16")
            a(f"v_lshlrev_b32 v{self.VXO}, 7, v0")
            a(f"buffer_load_dword v{self.XR}, v{self.VXO}, {sr(S_W)}, s{T0} offen"); vm.add("pf")
        if T == 51:
            a(f"v_lshlrev_b32 v{self.VXO}, 11, v{VN}")
            a(f"v_lshl_add_u32 v{self.VXO}, v{VH}, 5, v{self.VXO}")
            a(f"s_lshl_b32 s{T1}, s{RB2}, 1")
            a(f"s_add_u32 s{T1}, s{T1}, s{RT}")
            a(f"s_lshl_b32 s{XO2}, s{T1}, 16")
            a(f"s_lshl_b32 s{SEL}, s{CB2}, 8")
            a(f"s_add_u32 s{XO2}, s{XO2}, s{SEL}")
            a(f"s_lshl_b32 s{T0}, s{HD}, 6")
            a(f"s_add_u32 s{XO2}, s{XO2}, s{T0}")
            a(f"buffer_load_dwordx4 {vr(self.XR,4)}, v{self.VXO}, {sr(S_X)}, s{XO2} offen"); vm.add("x2")
            a(f"s_lshl_b32 s{ROT}, s{CB2}, 1")
            a(f"s_lshr_b32 s{T0}, s{IDX}, 5")
            a(f"s_cmp_eq_u32 s{T0}, s{T1}")
            a(f"s_cselect_b32 s{MODE}, 1, 0")
        if T == 52:
            a(f"s_lshl_b32 s{T1}, s{RB2}, 1")
            a(f"s_add_u32 s{T1}, s{T1}, s{RT}")
            a(f"s_lshl_b32 s{T0}, s{T1}, 8")
            a(f"s_add_u32 s{T0}, s{T0}, {WS_STAT:#x}")
            a(f"v_lshlrev_b32 v5, 3, v{VN}")
            a(f"buffer_load_dwordx2 {vr(self.ST,2)}, v5, {sr(S_WS)}, s{T0} offen sc1"); vm.add("x2")
        if T == 53:
            a(f"buffer_load_dwordx4 {vr(self.XR+4,4)}, v{self.VXO}, {sr(S_X)}, s{XO2} offen offset:16"); vm.add("x2")
            a(f"s_lshl_b32 s{T0}, s{ROWT}, 5")
            a(f"s_lshl_b32 s{T1}, s{HB}, 2")
            a(f"s_add_u32 s{T0}, s{T0}, s{T1}")
            a(f"s_add_u32 s{T0}, s{T0}, s{HD}")
            a(f"s_lshl_b32 s{T0}, s{T0}, 11")
            a(f"s_add_u32 s{OSO}, s{T0}, {WS_OF:#x}")
        if 54 <= T <= 61:
            ne = (T - 53) * NEARLY // 8 - (T - 54) * NEARLY // 8
            if 'oldne' in VAR: ne = 2 if T < 58 else 1
            for g in self.pg.take(ne): self.pg.issue(g)
    def run(self):
        k, a, vm, lg, pg = self.k, self.a, self.vm, self.k.lg, self.pg
        XR, ST, VXO, VOF, VWD, XFL, G, XF, ACCO, ACCX, WREG = (self.XR, self.ST, self.VXO, self.VOF, self.VWD, self.XFL,
                                                              self.G, self.XF, self.ACCO, self.ACCX, self.WREG)
        a("v_bfe_u32 v5, v2, 2, 2")
        a(f"v_lshl_add_u32 v6, v{VH}, 2, v5")
        a("v_lshlrev_b32 v6, 6, v6")
        a("v_and_b32 v5, 1, v2")
        a("v_lshl_add_u32 v6, v5, 5, v6")
        a("v_bfe_u32 v5, v2, 4, 1")
        a("v_lshl_add_u32 v6, v5, 4, v6")
        a("v_bfe_u32 v5, v2, 1, 1")
        a("v_lshl_add_u32 v6, v5, 3, v6")
        a(f"v_add_u32 v{VWD[0]}, s{W1K}, v6")
        a(f"v_add_u32 v{VWD[1]}, 0x10000, v{VWD[0]}")
        a(f"v_add_u32 v{VWD[2]}, 0x20000, v{VWD[0]}")
        a(f"v_mov_b32 v6, {f32(2.0**64)}")
        for i in range(4): a(f"v_pk_add_f32 {vr(SA+2*i,2)}, {vr(OA+4*i,2)}, {vr(OA+4*i+2,2)}")
        a(f"v_pk_add_f32 {vr(SA,2)}, {vr(SA,2)}, {vr(SA+2,2)}")
        a(f"v_pk_add_f32 {vr(SA+4,2)}, {vr(SA+4,2)}, {vr(SA+6,2)}")
        a(f"v_pk_add_f32 {vr(SA,2)}, {vr(SA,2)}, {vr(SA+4,2)}")
        a(f"v_add_f32 v5, v{SA}, v{SA+1}")
        a(f"v_fma_f32 v5, v5, 0, v{LS}")
        a("v_cmp_nlt_f32 vcc, v5, v6")
        a("s_nop 1")
        if "forcefb" in VAR: a("s_branch L_fallback")
        a("s_cbranch_vccnz L_fallback")
        a.label("L_fin")
        a(f"v_rcp_f32 v6, v{LS}")
        for i in range(8): a(f"v_pk_mul_f32 {vr(OA+2*i,2)}, {vr(OA+2*i,2)}, v[6:7] op_sel_hi:[1,0]")
        for i in range(8): a(f"v_cvt_pk_bf16_f32 v{SA+i}, v{OA+2*i}, v{OA+2*i+1}")
        a(f"buffer_store_dwordx4 {vr(SA,4)}, v{VL16}, {sr(S_WS)}, s{OSO} offen sc1"); vm.add("ost")
        a(f"buffer_store_dwordx4 {vr(SA+4,4)}, v{VL16}, {sr(S_WS)}, s{OSO} offen offset:1024 sc1"); vm.add("ost")
        def wread(n):
            vm.wait(("w", n))
            p = pg.page[("w", n)]
            for u in range(2):
                k.ds(f"ds_read_b64_tr_b16 {vr(WREG+4*n+2*u,2)}, v{VWD[p >> 3]} offset:{(p & 7)*8192 + 8*u*64}", ("wr", n))
        def wfree(n):
            lg.wait(("wr", n)); pg.free.append(pg.page[("w", n)])
        def xn_ops(src, lo, hi, g0, g1, m, ri, t0=6):
            return [f"v_lshlrev_b32 v{lo}, 16, v{src}", f"v_and_b32 v{hi}, 0xffff0000, v{src}",
                    f"v_sub_f32 v{g0}, v{lo}, v{m}", f"v_sub_f32 v{g1}, v{hi}, v{m}",
                    f"v_cvt_pk_bf16_f32 v{t0}, v{g0}, v{g1}",
                    f"v_lshlrev_b32 v{g0}, 16, v{t0}", f"v_and_b32 v{g1}, 0xffff0000, v{t0}",
                    f"v_mul_f32 v{g0}, v{g0}, v{ri}", f"v_mul_f32 v{g1}, v{g1}, v{ri}",
                    f"v_cvt_pk_bf16_f32 v{t0}, v{g0}, v{g1}",
                    f"v_lshlrev_b32 v{g0}, 16, v{t0}", f"v_and_b32 v{g1}, 0xffff0000, v{t0}"]
        def silu_ops(g0, g1, t0=6, t1=7):
            return [f"v_mul_f32 v{t0}, {f32(-LOG2E)}, v{g0}", f"v_mul_f32 v{t1}, {f32(-LOG2E)}, v{g1}",
                    f"v_exp_f32 v{t0}, v{t0}", f"v_exp_f32 v{t1}, v{t1}",
                    f"v_add_f32 v{t0}, 1.0, v{t0}", f"v_add_f32 v{t1}, 1.0, v{t1}",
                    f"v_rcp_f32 v{t0}, v{t0}", f"v_rcp_f32 v{t1}, v{t1}",
                    f"v_mul_f32 v{g0}, v{g0}, v{t0}", f"v_mul_f32 v{g1}, v{g1}, v{t1}",
                    f"v_cvt_pk_bf16_f32 v{t0}, v{g0}, v{g1}",
                    f"v_lshlrev_b32 v{g0}, 16, v{t0}", f"v_and_b32 v{g1}, 0xffff0000, v{t0}"]
        gate = []
        for p in range(8): gate += xn_ops(XR+p, XFL+2*p, XFL+2*p+1, G+2*p, G+2*p+1, ST, ST+1)
        for p in range(8): gate += silu_ops(G+2*p, G+2*p+1)
        def gops(n):
            for _ in range(min(n, len(gate))): a(gate.pop(0))
        for g in pg.take(12 - NEARLY): pg.issue(g)
        for n in range(12): wread(n)
        for n in range(4):
            wfree(n)
            for g in pg.take(1): pg.issue(g)
        a(f"s_lshl_b32 s{T0}, s{RB}, 3")
        a(f"s_add_u32 s{T0}, s{T0}, s{HB}")
        a(f"s_lshl_b32 s{T0}, s{T0}, 7")
        a(f"s_add_u32 s{T0}, s{T0}, {SY2:#x}")
        a("v_mov_b32 v5, 1")
        a("v_mov_b32 v6, 0")
        vm.wait("ost")
        def arr():
            a("s_mov_b64 exec, 1")
            a(f"buffer_store_dword v5, v6, {sr(S_WS)}, s{T0} offen sc1" if "stflag" in VAR else f"buffer_atomic_add v5, v6, {sr(S_WS)}, s{T0} offen sc1")
            a("s_mov_b64 exec, -1")
        if "wgarr" in VAR:
            a("s_barrier")
            k.only("s_cmp_eq_u32 s3, 0", arr)
        else:
            arr(); vm.add("arr")
        k.stamp("E1")
        for n in range(4, 12): wfree(n)
        PV = XF
        a(f"v_and_b32 v{PV}, 7, v2")
        a(f"v_lshlrev_b32 v{PV}, 7, v{PV}")
        a(f"s_lshl_b32 s{T3}, s{RB2}, 10")
        a(f"s_add_u32 s{T3}, s{T3}, {SY2:#x}")
        nxt = 12
        for i, g in enumerate(pg.take(16, stop=("o", 0))):
            pg.issue(g); gops(8)
            if i >= 2: wread(nxt); nxt += 1
            if i == D_POLL:
                k.only("s_cmp_eq_u32 s3, 7", lambda: a(f"buffer_load_dword v{PV+1}, v{PV}, {sr(S_WS)}, s{T3} offen sc1"))
        a(f"s_lshl_b32 s{OBASE}, s{RB2}, 1")
        a(f"s_lshr_b32 s{T0}, s3, 2")
        a(f"s_add_u32 s{OBASE}, s{OBASE}, s{T0}")
        a(f"s_lshl_b32 s{OBASE}, s{OBASE}, 16")
        a(f"s_and_b32 s{T0}, s3, 3")
        a(f"s_lshl_b32 s{T0}, s{T0}, 10")
        a(f"s_add_u32 s{OBASE}, s{OBASE}, s{T0}")
        a(f"s_add_u32 s{OBASE}, s{OBASE}, {WS_OF:#x}")
        a(f"s_mul_i32 s{T0}, s{RT}, {4096 + 2048}")
        a(f"v_add_u32 v{VOF}, s{T0}, v{VL16}")
        a(f"v_xor_b32 v{VOF+1}, 0x1000, v{VOF}")
        a(f"v_add_u32 v{VOF+2}, 0x10000, v{VOF}")
        a(f"v_add_u32 v{VOF+3}, 0x10000, v{VOF+1}")
        while nxt < 24:
            wread(nxt); nxt += 1; gops(6)
        lg.wait_all()
        k.only("s_cmp_eq_u32 s3, 7", lambda: k.poll(PV, PV + 1, T3, 1 if 'wgarr' in VAR else 8, cnt=T2))
        a("s_barrier")
        k.stamp("E2")
        pg.free = list(range(20))
        od = pg.take(20)
        for g in od[:6]:
            pg.issue(g); gops(8)
        od = od[6:]
        gops(1000)
        a(f"s_cmp_eq_u32 s{MODE}, 1")
        a("s_cbranch_scc1 L_own")
        st = (list(vm.tags), vm.total, dict(vm.marks), list(lg.tags), list(pg.free), pg.pos, a.snapshot(), list(STAMP_NAMES))
        self.dloop(False, list(od), wread, wfree, xn_ops, silu_ops)
        a("s_endpgm")
        a.label("L_own")
        vm.tags, vm.total, vm.marks, lg.tags, pg.free, pg.pos = list(st[0]), st[1], dict(st[2]), list(st[3]), list(st[4]), st[5]
        a.hist = st[6][0]; a.alts = [(h, 0) for h in st[6][1:]]
        STAMP_NAMES[:] = st[7]
        self.dloop(True, list(od), wread, wfree, xn_ops, silu_ops)
    def dloop(self, own, od, wread, wfree, xn_ops, silu_ops):
        k, a, vm, lg, pg = self.k, self.a, self.vm, self.k.lg, self.pg
        XR, ST, VXO, VOF, VWD, XFL, G, XF, ACCO, ACCX, WREG = (self.XR, self.ST, self.VXO, self.VOF, self.VWD, self.XFL,
                                                              self.G, self.XF, self.ACCO, self.ACCX, self.WREG)
        Y, X4, XN, YS, YB, YA, YD = WREG + 16, WREG + 20, WREG + 24, WREG + 28, WREG + 32, 28, 29
        ys = {}
        if own:
            def I(x): return lambda: a(x)
            def br(d): return [f"v_cvt_pk_bf16_f32 v{d}, v{d}, v{d}", f"v_lshlrev_b32 v{d}, 16, v{d}"]
            def y_poll():
                a(f"v_lshlrev_b32 v{YA}, 7, v{VN}")
                a(f"s_mov_b32 s{T3}, {SY3:#x}")
                a(f"buffer_load_dword v{YD}, v{YA}, {sr(S_WS)}, s{T3} offen sc1"); vm.add("yp")
            def y_chk():
                vm.wait("yp"); k.poll(YA, YD, T3, 64)
            def y_l1():
                a(f"v_lshrrev_b32 v{YA}, 3, v2")
                a(f"v_lshlrev_b32 v{YA}, 12, v{YA}")
                a(f"v_and_b32 v{YD}, 7, v2")
                a(f"v_lshl_add_u32 v{YA}, v{YD}, 4, v{YA}")
                a(f"s_lshl_b32 s{T0}, s{CB2}, 9")
                a(f"s_lshl_b32 s{T1}, s{HD}, 7")
                a(f"s_add_u32 s{T0}, s{T0}, s{T1}")
                a(f"s_add_u32 s{T1}, s{T0}, {WS_YACC:#x}")
                a(f"buffer_load_dwordx4 {vr(Y,4)}, v{YA}, {sr(S_WS)}, s{T1} offen sc1"); vm.add("yl")
            def y_l2():
                a(f"s_lshr_b32 s{T0}, s{T0}, 1")
                a(f"s_lshl_b32 s{T1}, s{IDX}, 11")
                a(f"s_add_u32 s{T0}, s{T0}, s{T1}")
                a(f"v_lshlrev_b32 v{YD}, 3, v{YD}")
                a(f"buffer_load_dwordx2 {vr(X4,2)}, v{YD}, {sr(S_X)}, s{T0} offen"); vm.add("yl")
            def y_rs():
                a(f"s_and_b32 s{T1}, s{RKEY}, 0xffff0000")
                a(f"s_xor_b32 s{T2}, s{T1}, 0x80000000")
                a(f"s_xor_b32 s{T0}, s{T1}, 0xffff0000")
                a(f"s_bitcmp1_b32 s{T1}, 31")
                a(f"s_cselect_b32 s{T1}, s{T2}, s{T0}")
                a(f"v_mov_b32 v{YA}, s{T1}")
            def y_st():
                a(f"s_and_b32 s{T1}, s{IDX}, 31")
                a(f"v_readlane_b32 s{T0}, v{ST}, s{T1}")
                a(f"v_readlane_b32 s{T2}, v{ST+1}, s{T1}")
                a(f"v_mov_b32 v{YS}, s{T0}")
                a(f"v_mov_b32 v{YS+1}, s{T2}")
            rs2 = [f"v_mul_f32 v{YA}, {f32(-LOG2E)}, v{YA}", f"v_exp_f32 v{YA}, v{YA}", f"v_add_f32 v{YA}, 1.0, v{YA}", f"v_rcp_f32 v{YA}, v{YA}"] + br(YA)
            sm = [f"v_add_f32_dpp v{Y+e}, v{Y+e}, v{Y+e} row_ror:8 row_mask:0xf bank_mask:0xf" for e in range(4)]
            for sw in ("v_permlane16_swap_b32", "v_permlane32_swap_b32"):
                sm += [f"v_mov_b32 v{YB+4+e}, v{Y+e}" for e in range(4)] + [f"{sw} v{Y+e}, v{YB+4+e}" for e in range(4)]
                sm += [f"v_add_f32 v{Y+e}, v{Y+e}, v{YB+4+e}" for e in range(4)]
            def rr(p, q): return [f"v_cvt_pk_bf16_f32 v{YB+2}, v{p}, v{q}", f"v_lshlrev_b32 v{p}, 16, v{YB+2}", f"v_and_b32 v{q}, 0xffff0000, v{YB+2}"]
            sc = []
            for p in (0, 2):
                sc += rr(Y+p, Y+p+1) + [f"v_mul_f32 v{Y+p}, v{Y+p}, v{YA}", f"v_mul_f32 v{Y+p+1}, v{Y+p+1}, v{YA}"] + rr(Y+p, Y+p+1)
            xn = xn_ops(X4, YB, YB+1, XN, XN+1, YS, YS+1, YB+2) + xn_ops(X4+1, YB, YB+1, XN+2, XN+3, YS, YS+1, YB+2)
            ad = []
            for p in (0, 2):
                ad += [f"v_add_f32 v{XN+p}, v{XN+p}, v{Y+p}", f"v_add_f32 v{XN+p+1}, v{XN+p+1}, v{Y+p+1}"] + rr(XN+p, XN+p+1)
            sl = silu_ops(XN, XN+1, YB+2, YB+3) + silu_ops(XN+2, XN+3, YB+2, YB+3) + [f"v_lshlrev_b32 v{YD}, 4, v{VH}"]
            bp = [lambda q=q, e=e: k.ds(f"ds_bpermute_b32 v{YB+4*q+e}, v{YD}, v{XN+e} offset:{4*q}", "yb") for q in range(4) for e in range(4)]
            allv = [I(x) for x in sm + sc + xn + ad + sl]
            ys = {0: [y_poll], 4: [y_chk, y_l1, y_l2], 5: [y_rs, y_st] + [I(x) for x in rs2]}
            per = -(-len(allv) // 5)
            for i in range(5): ys[7 + i] = ([lambda: vm.wait("yl")] if i == 0 else []) + allv[i*per:(i+1)*per]
            ys[12] = bp
            def y_mask():
                lg.wait("yb")
                a(f"s_and_b32 s{T1}, s{IDX}, 31")
                a(f"v_cmp_eq_u32 vcc, s{T1}, v{VN}")
            ys[13] = [y_mask] + [I(f"v_cndmask_b32 v{G+i}, v{G+i}, v{YB+i}, vcc") for i in range(16)]
        avail = {0: 2, 2: 4, 4: 8, 8: 12, 12: 16}
        pool = [XF, XF + 16]
        xb = {}
        def rd_ops(c):
            if not pool: return None
            xb[c] = pool.pop(0)
            def bar():
                vm.wait(*[("o", i) for i in range(avail[c])])
                a("s_barrier")
            def r(e):
                p = pg.page[("o", c)]
                for t in range(2):
                    k.ds(f"ds_read_b128 {vr(xb[c]+4*(2*t+e),4)}, v{VOF + 2*(p >> 3) + t} offset:{(p & 7)*8192 + e*1024}", ("d", c, e))
            return ([bar] if c in avail else []) + [lambda: r(0), lambda: r(1)]
        def rd(c):
            for o in rd_ops(c): o()
        rd(0); k.stamp("D0"); rd(1)
        def mf(c, e, t):
            acc = ACCX if t else ACCO
            cc = "0" if (c == 0 and e == 0) else vr(acc, 16)
            a(f"v_mfma_f32_32x32x16_bf16 {vr(acc,16)}, {vr(WREG+4*(2*c+e),4)}, {vr(xb[c]+4*(2*t+e),4)}, {cc}")
        def d1():
            if od: pg.issue(od.pop(0))
        for c in range(14):
            def m0(e):
                lg.wait(("d", c, e), ("wr", 2*c+e)); mf(c, e, 0)
            ms = [lambda: m0(0), lambda: mf(c, 0, 1), lambda: m0(1), lambda: mf(c, 1, 1)]
            extra = []
            if c == 8: extra = [lambda n=n: wread(n) for n in range(24, 28)]
            if c == 12: extra = [lambda n=n: wread(n) for n in range(28, 32)]
            if c == 9:
                for n in range(24, 28): wfree(n)
                od += pg.take(4)
            ro = rd_ops(c + 2)
            base = [d1, d1] + (ro or []) + extra
            y = ys.get(c, [])
            if y:
                for i, m in enumerate(ms):
                    m()
                    for o in base[i * len(base) // 4:(i + 1) * len(base) // 4]: o()
                    for o in y[i * len(y) // 4:(i + 1) * len(y) // 4]: o()
            else: interleave(ms, base)
            pool.append(xb[c])
            if c == 1: pool.append(WREG)
            if ro is None: rd(c + 2)
        lg.wait_all()
        a(f"v_add_u32 v5, s{W1K}, v{VL16}")
        for c in (14, 15):
            for e in range(2): mf(c, e, 1)
        a("v_add_u32 v5, 0x20000, v5")
        a("v_xor_b32 v6, 0x400, v5")
        mf(14, 0, 0); mf(14, 1, 0); mf(15, 0, 0)
        a("s_nop 6")
        for q in range(4): a(f"ds_write_b128 v5, {vr(ACCX+4*q,4)} offset:{q*8192}")
        mf(15, 1, 0)
        k.stamp("D_end")
        a("s_waitcnt lgkmcnt(0)")
        a("s_barrier")
        for q in range(4): a(f"ds_read_b128 {vr(WREG+16+4*q,4)}, v6 offset:{q*8192}")
        for q in range(4):
            a(f"s_waitcnt lgkmcnt({3-q})")
            for i in (2*q, 2*q+1): a(f"v_pk_add_f32 {vr(ACCO+2*i,2)}, {vr(ACCO+2*i,2)}, {vr(WREG+16+2*i,2)}")
            for i in (2*q, 2*q+1): a(f"v_pk_fma_f32 {vr(ACCO+2*i,2)}, {vr(ACCO+2*i,2)}, {vr(G+2*i,2)}, {vr(XFL+2*i,2)}")
            for i in (2*q, 2*q+1): a(f"v_cvt_pk_bf16_f32 v{XR+i}, v{ACCO+2*i}, v{ACCO+2*i+1}")
            if q == 1: a(f"buffer_store_dwordx4 {vr(XR,4)}, v{VXO}, {sr(S_OUT)}, s{XO2} offen")
        a(f"buffer_store_dwordx4 {vr(XR+4,4)}, v{VXO}, {sr(S_OUT)}, s{XO2} offen offset:16")
        k.stamp("end")

def fallback(k):
    a = k.a
    a.label("L_fallback")
    a.flush()
    a("v_mov_b32 v6, 0xff800000")
    a(f"s_mov_b32 s{T0}, 0")
    a.label("L_fb1")
    a(f"buffer_load_dwordx4 {vr(KA,4)}, v{VL16}, {sr(S_KV)}, s{T0} offen sc1")
    a(f"buffer_load_dwordx4 {vr(KA+4,4)}, v{VL16}, {sr(S_KV)}, s{T0} offen offset:1024 sc1")
    a("s_waitcnt vmcnt(0)")
    a(f"v_mfma_f32_32x32x16_bf16 {vr(SA,16)}, {vr(KA,4)}, {vr(QF,4)}, 0")
    a(f"v_mfma_f32_32x32x16_bf16 {vr(SA,16)}, {vr(KA+4,4)}, {vr(QF+4,4)}, {vr(SA,16)}")
    for i in range(0, 16, 2): a(f"v_max3_f32 v6, v6, v{SA+i}, v{SA+i+1}")
    a(f"s_add_u32 s{T0}, s{T0}, 4096")
    a(f"s_cmp_lt_u32 s{T0}, 0x40000")
    a("s_cbranch_scc1 L_fb1")
    a("v_mov_b32 v5, v6")
    a("v_permlane32_swap_b32 v6, v5")
    a("v_max_f32 v6, v6, v5")
    for i in range(16): a(f"v_sub_f32 v{NM+i}, 0, v6")
    for i in range(16): a(f"v_mov_b32 v{OA+i}, 0")
    for i in range(4): a(f"v_mov_b32 v{LS+i}, 0")
    a(f"s_mov_b32 s{T0}, 0")
    a.label("L_fb2")
    a(f"buffer_load_dwordx4 {vr(KA,4)}, v{VL16}, {sr(S_KV)}, s{T0} offen sc1")
    a(f"buffer_load_dwordx4 {vr(KA+4,4)}, v{VL16}, {sr(S_KV)}, s{T0} offen offset:1024 sc1")
    a(f"buffer_load_dwordx4 {vr(VA,4)}, v{VL16}, {sr(S_KV)}, s{T0} offen offset:2048 sc1")
    a(f"buffer_load_dwordx4 {vr(VA+4,4)}, v{VL16}, {sr(S_KV)}, s{T0} offen offset:3072 sc1")
    a("s_waitcnt vmcnt(0)")
    a(f"v_mfma_f32_32x32x16_bf16 {vr(SA,16)}, {vr(KA,4)}, {vr(QF,4)}, {vr(NM,16)}")
    a(f"v_mfma_f32_32x32x16_bf16 {vr(SA,16)}, {vr(KA+4,4)}, {vr(QF+4,4)}, {vr(SA,16)}")
    for i in range(16): a(f"v_exp_f32 v{SA+i}, v{SA+i}")
    a(f"v_smfmac_f32_32x32x32_bf16 {vr(OA,16)}, {vr(VA,4)}, {vr(SA,8)}, v{IDXD}")
    a(f"v_smfmac_f32_16x16x64_bf16 {vr(LS,4)}, {vr(MA,4)}, {vr(SA,8)}, v{IDXD}")
    a(f"v_smfmac_f32_32x32x32_bf16 {vr(OA,16)}, {vr(VA+4,4)}, {vr(SA+8,8)}, v{IDXD}")
    a(f"v_smfmac_f32_16x16x64_bf16 {vr(LS,4)}, {vr(MA,4)}, {vr(SA+8,8)}, v{IDXD}")
    a(f"s_add_u32 s{T0}, s{T0}, 4096")
    a(f"s_cmp_lt_u32 s{T0}, 0x40000")
    a("s_nop 7")
    a("s_cbranch_scc1 L_fb2")
    a.flush()
    a("s_branch L_fin")
    a.label("L_code_end")

def build(path):
    k = K()
    k.ffn = FFN(k); k.D = PhaseD(k)
    prologue(k); phaseAB(k); attention(k)
    if 'nod' not in VAR: k.D.run()
    else: k.a.label('L_fin')
    k.a.label("L_end"); k.a("s_endpgm")
    fallback(k)
    top = open("cdna_kernels/" + NAME + ".s.ref").read().split("; Override launch geometry")[0]
    if STAMPS: top += "; stamps: " + " ".join(STAMP_NAMES) + "\n"
    top += "; @launch grid=(256,1,1) block=(512,1,1) lds=163840\n"
    top += '.amdgcn_target "amdgcn-amd-amdhsa--gfx950"\n.text\n'
    top += '''; ---------------------------------------------------------------------------------------------
; One persistent launch, 256 workgroups x 8 waves (one workgroup per CU), generated by a script.
;              statistics and router score first (layernorm folded in algebraically), published with
;              halves of the f32 probabilities.  A run-time check (l < 2^64, O finite) sends a wave to an
;              The routed-token SwiGLU FFN is spread over all workgroups inside this loop.
;  phase D   : O tiles exchanged through the workspace, output projection, gate, residual.
; ---------------------------------------------------------------------------------------------
'''
    top += f".set CODE_BYTES, L_code_end - {KN} - 64\n"
    kd = f""".section .rodata,"a"
.p2align 6
.amdhsa_kernel {KN}
  .amdhsa_next_free_vgpr 256
  .amdhsa_next_free_sgpr 102
  .amdhsa_accum_offset 256
  .amdhsa_group_segment_fixed_size 0
  .amdhsa_kernarg_size 104
  .amdhsa_user_sgpr_count 2
  .amdhsa_user_sgpr_kernarg_segment_ptr 1
  .amdhsa_system_sgpr_workgroup_id_x 1
.end_amdhsa_kernel
"""
    lines = k.a.out
    if "noal" not in VAR:
        from align import align
        lines, st = align(top, lines, kd, phase=4 if "ph4" in VAR else 0, nops="alnop" in VAR)
        print(path, st)
    open(path, "w").write(top + "\n".join(lines) + "\n" + kd)
    return k

if __name__ == "__main__":
    out = sys.argv[1] if len(sys.argv) > 1 else "cdna_kernels/" + NAME + ".s"
    if len(sys.argv) > 2 and sys.argv[2] == "stamps": STAMPS = True
    VAR.update(sys.argv[3:])
    for v in VAR:
        if v.startswith('init'): N_INIT = int(v[4:])
        if v.startswith('wt') and '_' in v: WT_IT, WT_POS = [int(x) for x in v[2:].split('_')]
        if v.startswith('chk'): CHK, PI = [int(x) for x in v[3:].split('_')]
        if v.startswith('dp'): D_POLL = int(v[2:])
        if v == 'noskip': S1_SKIP = ()
        if v.startswith('prp'): PRP = int(v[3:])
        if v.startswith('fb'): FB0 = int(v[2:])
        if v.startswith('kvt'): KVT = [int(x) for x in v[3:]]
        if v.startswith('kvp'): KVP = int(v[3:])
        if v.startswith('fts'): FTS = [int(x) for x in v[3:]]; WDT = [28, 29, 32 + FTS[0], 32 + FTS[1]]
        if v.startswith('ne'): NEARLY = int(v[2:])
        if v.startswith('kvf'): KVF = v[3:].replace('_', ' ')
        if v.startswith('pad') and '@' in v: PADAT, PADTO = v[3:].split('@')[0], int(v[3:].split('@')[1])
        if v.startswith('nw'): NW0, ARR, R2C = [int(x) for x in v[2:].split('_')]
        if v.startswith('out'): OUTF = ' ' + v[3:].replace('_', ' ')
    k = build(out)
    if "-v" in VAR:
        for l in k.a.log: print("nop", l)
        for l in k.pgAB.log: print("AB", l)
        for l in k.D.pg.log: print("D", l)
```

```python
import sys, struct
from asmlib import Asm

NAME = "recurrent_scan__grouped_kv_mqa__moe_arch_mod__prompt"
KN = NAME + "_kernel"
WS_KV, WS_STAT, WS_RKEY, WS_SY, WS_YACC, WS_GU, WS_STAMP, WS_OF = 0x0, 0x40000, 0x46000, 0x48000, 0x50000, 0x58000, 0x80000, 0x100000
WS_SIZE = 0x500000
SYB = 0x68000
SY1, SY2, SY3, SY4 = 0x60000, SYB + 0x8000, SYB, SYB + 64 * 128
ONES = 0x3F803F80
LOG2E = 1.4426950408889634
QSCALE = 0.17677669529663687 * LOG2E
def f32(x): return "0x%08x" % struct.unpack("<I", struct.pack("<f", x))[0]
STAMPS = False
VAR = set()
SPIN_MAX = 200000
N_INIT = 9
CHK, PI = 11, 9
D_POLL = 7
VAR.add('wgarr')
WT_IT, WT_POS = 4, 0
ALIGN = 0
DBG_IT = 2
FB0 = 4
PRP = 1
DPC = 2
NO1 = 6
VAR.add('noal')
KVF = 'sc1'
NEARLY = 12
KVT, KVP = [7, 0, 1, 2], 1
FTS, WDT = [2, 4, 6], [28, 30, 34, 36]
S1_SKIP = (5, 7)
PADTO, PADAT = 0, 'end'
ARR, R2C, NW0 = -1, 2, 0
OUTF = ''

S_X, S_W, S_KW, S_WS, S_KV, S_WR, S_WG, S_WU = 4, 8, 12, 16, 20, 24, 28, 32
S_OUT, S_WD = S_WR, S_KW
RB, HB, ROT, T0, T1, T2, T3 = 36, 37, 38, 39, 40, 41, 42
W1K, MODE, W4K, XSO, TD, SP, RT, HD, ROWT, RG = 43, 44, 45, 46, 47, 48, 49, 50, 51, 52
SEL, IDX, RKEY, FCG, RB2, CB2, OSO, XO2, CNT, OBASE = 53, 54, 55, 56, 57, 58, 59, 60, 61, 62
W8K, EXS, FW = 63, 64, 66
PT = 68
P_X, P_WQ, P_WK, P_WV, P_WO, P_BX, P_WR, P_WG, P_WU, P_WD, P_OUT, P_DBG, P_WS = [PT + 2 * i for i in range(13)]
STMP = 96
def sr(b): return f"s[{b}:{b+3}]"
def vr(b, n): return f"v[{b}:{b+n-1}]"

VN, VH, VOX, VOW, VL16, VST = 3, 4, 18, 19, 20, 21
MA, IDXC, IDXD, STAT = 24, 28, 29, 30
QF, NM, VA, SA, SB, OA, LS, KA, VK1 = 32, 40, 56, 64, 80, 96, 112, 116, 17

def srd(a, d, base, nbytes):
    a(f"s_mov_b32 s{d}, s{base}")
    a(f"s_and_b32 s{d+1}, s{base+1}, 0xffff")
    a(f"s_mov_b32 s{d+2}, {nbytes:#x}")
    a(f"s_mov_b32 s{d+3}, 0x20000")

def bf16r(a, dst, src):
    a(f"v_cvt_pk_bf16_f32 v{dst}, v{src}, v{src}")
    a(f"v_lshlrev_b32 v{dst}, 16, v{dst}")

_lbl = [0]
def L(p="L"):
    _lbl[0] += 1
    return f"{p}_{_lbl[0]}"

class Cnt:
    def __init__(self, a, name, mx): self.a, self.name, self.mx, self.tags, self.total, self.marks = a, name, mx, [], 0, {}
    def add(self, tag, n=1): self.tags += [tag] * n; self.total += n
    def mark(self, m): self.marks[m] = self.total
    def since(self, m): return min(self.total - self.marks[m], self.mx)
    def wait(self, *tags):
        idx = [i for i, t in enumerate(self.tags) if t in tags]
        if not idx: return
        n = min(len(self.tags) - 1 - max(idx), self.mx)
        self.a(f"s_waitcnt {self.name}({n})")
        self.tags = self.tags[len(self.tags) - n:] if n else []
    def wait_all(self):
        self.a(f"s_waitcnt {self.name}(0)"); self.tags = []

STAMP_NAMES = []
class K:
    def __init__(self):
        self.a = Asm()
        self.vm = Cnt(self.a, "vmcnt", 63)
        self.lg = Cnt(self.a, "lgkmcnt", 15)
    def stamp(self, name):
        if PADTO and name == PADAT:
            a = self.a; lp = L()
            a.label(lp)
            a(f"s_memrealtime s[{STMP+2}:{STMP+3}]"); a("s_waitcnt lgkmcnt(0)")
            a(f"s_sub_u32 s{STMP+2}, s{STMP+2}, s{STMP}")
            a(f"s_cmp_lt_u32 s{STMP+2}, {PADTO}")
            a(f"s_cbranch_scc1 {lp}")
            return
        if "dbgstamp" in VAR:
            a = self.a
            names = ["entry", "S0", "B0", "B_end", "loop_start", "loop_end", "E2", "end"]
            if name not in names: return
            slot = 8 + names.index(name)
            if name == "entry":
                a(f"s_memrealtime s[{STMP+2}:{STMP+3}]"); a("s_waitcnt lgkmcnt(0)")
                a("s_and_b32 s100, s2, 31"); a("s_lshl_b32 s101, s3, 8"); a("s_add_u32 s100, s100, s101"); return
            def st():
                a(f"s_memrealtime s[{STMP}:{STMP+1}]"); a("s_waitcnt lgkmcnt(0)")
                a(f"s_sub_u32 s{STMP}, s{STMP}, s{STMP+2}")
                a(f"v_mov_b32 v{VST+1}, s{STMP}")
                a(f"v_mov_b32 v{VST}, {slot*4}")
                a("s_mov_b64 exec, 1")
                a(f"global_atomic_umax v{VST}, v{VST+1}, s[{P_DBG}:{P_DBG+1}]")
                a("s_mov_b64 exec, -1")
            self.only("s_cmp_eq_u32 s100, 9", st)
            return
        if not STAMPS: return
        a = self.a
        slot = len(STAMP_NAMES); STAMP_NAMES.append(str(name)); assert slot < 32
        if name != "entry":
            a(f"s_memrealtime s[{STMP}:{STMP+1}]")
            a(f"s_memtime s[{STMP+2}:{STMP+3}]")
        a("s_waitcnt lgkmcnt(0)")
        a(f"s_lshl_b32 s{STMP+1}, s2, 11")
        a(f"s_lshl_b32 s{STMP+3}, s3, 8")
        a(f"s_add_u32 s{STMP+1}, s{STMP+1}, s{STMP+3}")
        a(f"s_add_u32 s{STMP+1}, s{STMP+1}, {WS_STAMP + slot * 8:#x}")
        a(f"v_mov_b32 v{VST+1}, s{STMP}")
        a(f"v_mov_b32 v{VST+2}, s{STMP+2}")
        a(f"v_mov_b32 v{VST}, s{STMP+1}")
        a(f"buffer_store_dwordx2 v[{VST+1}:{VST+2}], v{VST}, {sr(S_WS)}, 0 offen")
        self.vm.add("st")
    def delay(self, wg):
        if "delay" not in VAR: return
        def d():
            for _ in range(6): self.a("s_sleep 127")
        self.only(f"s_cmp_eq_u32 s2, {wg}", d)
    def only(self, cond, fn):
        a = self.a; skip = L()
        a(cond); a(f"s_cbranch_scc0 {skip}")
        snap = a.snapshot(); fn(); a.label(skip); a.join(snap)
    def ifelse(self, cond, f1, f2):
        a = self.a; lv, lj = L(), L()
        a(cond); a(f"s_cbranch_scc0 {lv}")
        snap = a.snapshot(); f1(); a(f"s_branch {lj}"); snap2 = a.snapshot()
        a.label(lv); a.hist = snap[0]; a.alts = [(h, 0) for h in snap[1:]]
        f2(); a.label(lj); a.join(snap2)
    def poll(self, vaddr, vdat, soff, expect, cnt=CNT):
        a = self.a; top, chk, done = L("poll"), L("pchk"), L("pdone")
        a(f"s_mov_b32 s{cnt}, 0")
        a(f"s_branch {chk}")
        a.label(top)
        a(f"buffer_load_dword v{vdat}, v{vaddr}, {sr(S_WS)}, s{soff} offen sc1")
        a("s_waitcnt vmcnt(0)")
        a.label(chk)
        a(f"v_cmp_ne_u32 vcc, {expect}, v{vdat}")
        a(f"s_add_u32 s{cnt}, s{cnt}, 1")
        a(f"s_cbranch_vccz {done}")
        a("s_sleep 2")
        a(f"s_cmp_lt_u32 s{cnt}, {SPIN_MAX}")
        a(f"s_cbranch_scc1 {top}")
        a.label(done)
    def ds(self, text, tag):
        self.a(text); self.lg.add(tag)

class Pager:
    def __init__(self, k, free, seq):
        self.k, self.free, self.seq, self.pos, self.page, self.rel = k, list(free), seq, 0, {}, {}
        self.hold, self.hold_until, self.log = set(), 0, []
    def release(self, it):
        for p in self.rel.pop(it, []): self.free.append(p)
    def take(self, n, stop=None):
        out = []
        while len(out) < n and self.pos < len(self.seq):
            tag, emit, last, pref = self.seq[self.pos]
            if stop is not None and tag == stop: break
            cand = [p for p in pref if p in self.free and not (p in self.hold and (last is None or last + 2 > self.hold_until))]
            if not cand: break
            p = cand[0]; self.free.remove(p); self.page[tag] = p
            if last is not None: self.rel.setdefault(last + 2, []).append(p)
            out.append((tag, emit(p))); self.pos += 1
        self.log.append([(t, self.page[t]) for t, _ in out])
        return out
    def issue(self, grp):
        tag, text = grp
        self.k.a(text); self.k.vm.add(tag)

def spread(groups, extra, first=True):
    n = len(groups)
    per = -(-len(extra) // max(n, 1)) if extra else 0
    for i, g in enumerate(groups):
        for e in extra[i * per:(i + 1) * per]: e()
        g()
    for e in extra[n * per:]: e()

def interleave(ms, os):
    n = len(ms)
    for i, m in enumerate(ms):
        m()
        for o in os[i * len(os) // n:(i + 1) * len(os) // n]: o()

def prologue(k):
    a, vm = k.a, k.vm
    a.raw(f".globl {KN}"); a.raw(".p2align 8"); a.raw(f".type {KN},@function"); a.raw(f"{KN}:")
    if STAMPS or PADTO:
        a(f"s_memrealtime s[{STMP}:{STMP+1}]")
        a(f"s_memtime s[{STMP+2}:{STMP+3}]")
    a("s_cmp_ge_u32 s2, 256")
    a("s_cbranch_scc1 L_end")
    a(f"s_load_dwordx16 s[{PT}:{PT+15}], s[0:1], 0")
    a(f"s_load_dwordx8 s[{PT+16}:{PT+23}], s[0:1], 64")
    a(f"s_load_dwordx2 s[{PT+24}:{PT+25}], s[0:1], 96")
    a("s_getpc_b64 s[94:95]")
    a("v_lshrrev_b32 v1, 6, v0")
    a("v_and_b32 v2, 63, v0")
    a("v_readfirstlane_b32 s3, v1")
    a("s_and_b32 s4, s2, 0xf8")
    a("s_mul_i32 s4, s4, 160")
    a("v_lshlrev_b32 v8, 7, v0")
    a("v_cmp_gt_u32 vcc, 10, v0")
    a("v_add_u32 v8, s4, v8")
    a("v_min_u32 v8, CODE_BYTES, v8")
    a(f"s_and_saveexec_b64 s[{EXS}:{EXS+1}], vcc")
    l2 = L(); a(f"s_cbranch_execz {l2}")
    if "nocpf" not in VAR: a("global_load_dword v47, v8, s[94:95]")
    a.label(l2)
    a(f"s_mov_b64 exec, s[{EXS}:{EXS+1}]")
    a(f"v_lshlrev_b32 v{VL16}, 4, v2")
    a(f"v_and_b32 v{VN}, 31, v2")
    a(f"v_lshrrev_b32 v{VH}, 5, v2")
    a(f"s_and_b32 s{T0}, s2, 7")
    a(f"s_lshr_b32 s{T1}, s2, 3")
    a(f"s_lshr_b32 s{RB}, s{T0}, 1")
    a(f"s_lshl_b32 s{RB}, s{RB}, 3")
    a(f"s_and_b32 s{SEL}, s{T0}, 1")
    a(f"s_lshl_b32 s{T2}, s{SEL}, 2")
    a(f"s_add_u32 s{RB2}, s{RB}, s{T2}")
    a(f"s_and_b32 s{T3}, s{T1}, 3")
    a(f"s_add_u32 s{RB2}, s{RB2}, s{T3}")
    a(f"s_lshr_b32 s{CB2}, s{T1}, 2")
    a(f"s_and_b32 s{ROT}, s{T1}, 7")
    a(f"s_add_u32 s{RB}, s{RB}, s{ROT}")
    a(f"s_lshr_b32 s{T3}, s{T1}, 3")
    a(f"s_add_u32 s{HB}, s{T2}, s{T3}")
    a(f"s_lshl_b32 s{RG}, s{RB}, 2")
    a(f"s_add_u32 s{RG}, s{RG}, s{T3}")
    a(f"s_mul_i32 s{FCG}, s{T0}, 28")
    a(f"s_add_u32 s{FCG}, s{FCG}, s{T1}")
    a(f"s_lshl_b32 s{W1K}, s3, 10")
    a(f"s_lshl_b32 s{W4K}, s3, 12")
    a(f"s_lshl_b32 s{W8K}, s3, 13")
    a(f"s_and_b32 s{RT}, s3, 1")
    a(f"s_lshr_b32 s{HD}, s3, 1")
    a(f"s_lshl_b32 s{ROWT}, s{RB}, 1")
    a(f"s_add_u32 s{ROWT}, s{ROWT}, s{RT}")
    a(f"s_lshl_b32 s{XO2}, s{RB}, 17")
    a(f"s_lshl_b32 s{OSO}, s{HB}, 8")
    a(f"s_sub_u32 s{FW}, s3, {FB0 + 1}")
    a("s_cmp_lt_u32 s3, 4")
    a(f"s_cselect_b32 s{MODE}, s{SEL}, 2")
    a("v_lshrrev_b32 v5, 4, v2")
    a(f"s_lshl_b32 s{T0}, s3, 2")
    a(f"v_add_u32 v6, s{T0}, v5")
    a("v_xor_b32 v7, v6, v2")
    a("v_and_b32 v7, 7, v7")
    a("v_lshlrev_b32 v7, 4, v7")
    a("v_lshrrev_b32 v8, 3, v2")
    a("v_lshl_add_u32 v7, v8, 11, v7")
    a(f"s_lshl_b32 s{T0}, s3, 14")
    a(f"v_add_u32 v{VOX}, s{T0}, v7")
    a("v_lshrrev_b32 v7, 2, v2")
    a("v_lshlrev_b32 v7, 11, v7")
    a("v_and_b32 v8, 3, v2")
    a("v_lshl_add_u32 v7, v8, 4, v7")
    a(f"s_lshl_b32 s{T0}, s{RT}, 16")
    a(f"s_lshl_b32 s{T1}, s{HD}, 6")
    a(f"s_add_u32 s{T0}, s{T0}, s{T1}")
    a(f"v_add_u32 v{VOW}, s{T0}, v7")
    if "fake128" in VAR:
        a("v_lshrrev_b32 v7, 3, v2")
        a("v_lshlrev_b32 v7, 11, v7")
        a("v_and_b32 v8, 7, v2")
        a("v_lshl_add_u32 v7, v8, 4, v7")
        a(f"s_lshl_b32 s{T0}, s{RT}, 16")
        a(f"s_and_b32 s{T1}, s{HD}, 1")
        a(f"s_lshl_b32 s{T1}, s{T1}, 14")
        a(f"s_add_u32 s{T0}, s{T0}, s{T1}")
        a(f"s_lshr_b32 s{T1}, s{HD}, 1")
        a(f"s_lshl_b32 s{T1}, s{T1}, 7")
        a(f"s_add_u32 s{T0}, s{T0}, s{T1}")
        a(f"v_add_u32 v{VOW}, s{T0}, v7")
    a("v_lshlrev_b32 v7, 2, v2")
    a("v_mov_b32 v9, 0")
    a("v_mov_b32 v17, 0")
    a("v_mov_b32 v16, 1")
    a(f"s_xor_b32 s{CNT}, s3, 7")
    a(f"s_lshl_b32 s{CNT}, s{CNT}, 8")
    a(f"s_add_u32 s{CNT}, s{CNT}, s2")
    a("v_and_b32 v1, 28, v7")
    a("s_waitcnt lgkmcnt(0)")
    srd(a, S_X, P_X, 2048 * 2048)
    a(f"s_cmp_eq_u32 s{SEL}, 0")
    a(f"s_cselect_b32 s{S_KW}, s{P_WK}, s{P_WV}")
    a(f"s_cselect_b32 s{S_KW+1}, s{P_WK+1}, s{P_WV+1}")
    a(f"s_and_b32 s{S_KW+1}, s{S_KW+1}, 0xffff")
    a(f"s_mov_b32 s{S_KW+2}, 0x10000")
    a(f"s_mov_b32 s{S_KW+3}, 0x20000")
    srd(a, S_WS, P_WS, WS_SIZE)
    srd(a, S_WR, P_WR, 2048)
    k.stamp("entry")
    k.delay(3)
    def zero():
        a("v_mov_b32 v10, 0"); a("v_mov_b32 v11, 0"); a("v_mov_b32 v8, 0")
        a(f"s_lshl_b32 s{T2}, s2, 12")
        a(f"s_add_u32 s{T2}, s{T2}, {SY1:#x}")
        for i in range(4): a(f"buffer_store_dwordx4 v[8:11], v{VL16}, {sr(S_WS)}, s{T2} offen offset:{i*1024} sc1")
        a(f"s_lshl_b32 s{T2}, s2, 2")
        a("s_waitcnt vmcnt(0)")
        a(f"v_mov_b32 v10, s{T2}")
        a(f"global_store_dword v10, v16, s[{P_DBG}:{P_DBG+1}] sc1")
    k.only(f"s_cmp_lt_u32 s{CNT}, 8", zero)

AUX = 19 * 8192
TAB = AUX + 2304
RED = 4 * 8192

def phaseAB(k):
    a, vm, lg = k.a, k.vm, k.lg
    VXA, VW, ACC, WF, FT, XREG, CS = 32, 44, 48, 64, 96, 128, 12
    XF, ACCX, ACCO = XREG, 48, 80
    def rot(j, shift, extra, base):
        return f"""s_add_u32 s{TD}, s{ROT}, {j}
        s_and_b32 s{TD}, s{TD}, 7
        s_lshl_b32 s{TD}, s{TD}, {shift}
        s_add_u32 s{TD}, s{TD}, s{base}""" + (f"\ns_add_u32 s{TD}, s{TD}, {extra}" if extra else "")
    def ldx(c): return lambda p: f"s_add_u32 m0, s{W1K}, {p*8192}\n" + rot(c >> 1, 8, (c & 1) * 128, XO2) + f"\nbuffer_load_dwordx4 v{VOX}, {sr(S_X)}, s{TD} offen lds"
    def ldk(j): return lambda p: f"s_add_u32 m0, s{W1K}, {p*8192}\n" + rot(j, 13, 0, W1K) + f"\nbuffer_load_dwordx4 v{VL16}, {sr(S_KW)}, s{TD} offen lds"
    def ldw(c, h): return lambda p: f"s_add_u32 m0, s{W1K}, {p*8192}\n" + rot(c >> 1, 18, ((c & 1) * 64 + h * 16) * 2048, OSO) + f"\nbuffer_load_dwordx4 v{VOW}, {sr(S_W)}, s{TD} offen lds"
    seq = []
    hi = list(range(8, 19))
    for j in range(8):
        seq.append((("k", j), ldk(j), j, [4, 5, 6, 7] if 1 <= j <= 4 else hi[::-1]))
        for e in range(2):
            c = 2 * j + e
            seq.append((("x", c), ldx(c), j if c < 8 else None, [0, 1, 2, 3] if 8 <= c <= 11 else hi[::-1] if c < 8 else hi[:3:-1]))
    for c in range(16):
        for h in range(2):
            seq.append((("w", c, h), ldw(c, h), None, hi + [4, 5, 6, 7]))
    pg = Pager(k, range(19), seq)
    pg.hold, pg.hold_until = {4, 5, 6, 7}, 6
    k.pgAB = pg
    srd(a, S_W, P_WQ, 1024 * 2048)
    a(f"v_lshlrev_b32 v8, 7, v{VN}")
    a(f"s_lshl_b32 s{T0}, s{RG}, 15")
    a(f"s_add_u32 s{T0}, s{T0}, s{W4K}")
    a(f"buffer_load_dword v47, v8, {sr(S_X)}, s{T0} offen"); vm.add("xt")
    def wtouch():
        if "wt256" in VAR:
            a(f"v_lshrrev_b32 v8, 1, v{VN}")
            a("v_lshlrev_b32 v8, 11, v8")
            a("v_and_b32 v10, 1, v2")
            a("v_lshl_add_u32 v8, v10, 7, v8")
            a(f"s_lshl_b32 s{T0}, s{ROT}, 3")
            a(f"s_add_u32 s{T0}, s{T0}, s3")
            a(f"s_lshl_b32 s{T0}, s{T0}, 15")
            a(f"s_add_u32 s{T0}, s{T0}, s{OSO}")
        else:
            a(f"v_lshrrev_b32 v8, 3, v{VN}")
            a("v_lshlrev_b32 v8, 11, v8")
            a("v_and_b32 v10, 7, v2")
            a("v_lshl_add_u32 v8, v10, 7, v8")
            a(f"s_lshr_b32 s{T0}, s2, 3")
            a(f"s_lshl_b32 s{T0}, s{T0}, 16")
            a(f"s_add_u32 s{T0}, s{T0}, s{W8K}")
            a(f"s_lshl_b32 s{T1}, s{SEL}, 10")
            a(f"s_add_u32 s{T0}, s{T0}, s{T1}")
        a(f"buffer_load_dword v47, v8, {sr(S_W)}, s{T0} offen"); vm.add("wt")
    if WT_IT < 0: wtouch()
    a(f"s_lshl_b32 s{T1}, s3, 8")
    a(f"s_add_u32 m0, s{T1}, {AUX}")
    a(f"s_add_u32 s{TD}, s{ROT}, s3")
    a(f"s_and_b32 s{TD}, s{TD}, 7")
    a(f"s_lshl_b32 s{TD}, s{TD}, 8")
    a(f"buffer_load_dword v7, {sr(S_WR)}, s{TD} offen lds"); vm.add("wr")
    first = pg.take(N_INIT)
    for g_ in first[:3]: pg.issue(g_)
    k.stamp("issued")
    srd(a, S_KV, P_WS, 0x40000)
    srd(a, S_WG, P_WG, 1024 * 7168)
    srd(a, S_WU, P_WU, 1024 * 7168)
    a(f"v_mov_b32 v8, {ONES:#x}")
    a(f"v_add_u32 v9, {AUX + 2048}, v7")
    k.ds("ds_write_b32 v9, v8", "ones")
    k.ds("ds_write_b32 v9, v17 offset:384", "ones")
    a(f"v_bfe_u32 v5, v{VN}, 1, 3")
    a(f"v_xor_b32 v5, v5, v{VH}")
    a(f"s_lshl_b32 s{T0}, s{RT}, 12")
    a(f"s_lshl_b32 s{T1}, s{RT}, 2")
    a(f"v_lshlrev_b32 v6, 7, v{VN}")
    a(f"v_add_u32 v8, s{T0}, v6")
    a(f"v_xor_b32 v9, s{T1}, v5")
    a(f"v_lshl_add_u32 v{VXA}, v9, 4, v8")
    a(f"v_xor_b32 v{VXA+1}, 32, v{VXA}")
    a(f"v_xor_b32 v{VXA+2}, 0x1000, v{VXA}")
    a(f"v_xor_b32 v{VXA+3}, 0x1020, v{VXA}")
    for s in range(4):
        a(f"v_add_u32 v{VXA+4+s}, 0x10000, v{VXA+s}")
        a(f"v_add_u32 v{VXA+8+s}, 0x20000, v{VXA+s}")
    BX, MX, I17, AX, AW, BW = FT, FT + 2, FT + 3, FT + 4, FT + 6, FT + 7
    a(f"s_and_b32 s{T0}, s{HB}, 3")
    a(f"s_lshl_b32 s{T0}, s{T0}, 11")
    a(f"v_add_u32 v8, s{T0}, v6")
    a(f"s_lshl_b32 s{T1}, s{RT}, 2")
    a(f"v_xor_b32 v9, s{T1}, v5")
    a(f"v_lshl_add_u32 v{BX}, v9, 4, v8")
    a("v_xor_b32 v9, 2, v9")
    a(f"v_lshl_add_u32 v{BX+1}, v9, 4, v8")
    a(f"s_and_b32 s{T2}, s3, 3")
    a(f"s_lshl_b32 s{T3}, s{T2}, 6")
    a(f"s_add_u32 s{T3}, s{T3}, {AUX}")
    a(f"v_lshlrev_b32 v8, 4, v{VH}")
    a(f"v_add_u32 v8, s{T3}, v8")
    a(f"v_mov_b32 v9, {AUX + 2048}")
    a(f"v_cmp_eq_u32 vcc, 17, v{VN}")
    a("v_mov_b32 v10, 256")
    a("v_cndmask_b32 v8, v9, v8, vcc")
    a(f"v_cndmask_b32 v{I17}, 0, v10, vcc")
    a("v_add_u32 v9, 32, v8")
    a(f"v_cmp_gt_u32 vcc, 16, v{VN}")
    a(f"v_cndmask_b32 v{MX}, 0, 1, vcc")
    a(f"v_cndmask_b32 v{BX}, v8, v{BX}, vcc")
    a(f"v_cndmask_b32 v{BX+1}, v9, v{BX+1}, vcc")
    a("v_bfe_u32 v5, v2, 2, 2")
    a(f"v_lshl_add_u32 v6, v{VH}, 3, v5")
    a("v_bfe_u32 v8, v2, 4, 1")
    a("v_lshlrev_b32 v8, 5, v8")
    a("v_and_b32 v9, 3, v2")
    a("v_lshl_add_u32 v8, v9, 3, v8")
    a("v_lshl_add_u32 v9, v6, 6, v8")
    a(f"s_lshl_b32 s{T3}, s{T2}, 11")
    a(f"v_add_u32 v{BW}, s{T3}, v9")
    a(f"v_add_u32 v{VW}, s{W1K}, v9")
    a(f"v_add_u32 v{VW+1}, 0x10000, v{VW}")
    a(f"v_add_u32 v{VW+2}, 0x20000, v{VW}")
    a("v_bfe_u32 v5, v2, 2, 1")
    a("v_cmp_eq_u32 vcc, 0, v5")
    a(f"v_mov_b32 v6, {ONES:#x}")
    a(f"v_cndmask_b32 v{MA}, 0, v6, vcc")
    a(f"v_cndmask_b32 v{MA+1}, 0, v6, vcc")
    a(f"v_cndmask_b32 v{MA+2}, v6, 0, vcc")
    a(f"v_cndmask_b32 v{MA+3}, v6, 0, vcc")
    a("v_and_b32 v5, 2, v2")
    a("v_cmp_eq_u32 vcc, 0, v5")
    for i in range(4): a(f"v_cndmask_b32 v{MA+i}, 0, v{MA+i}, vcc")
    a("v_and_b32 v5, 1, v2")
    a("v_cmp_eq_u32 vcc, 0, v5")
    a("v_mov_b32 v6, 0x44444444")
    a("v_mov_b32 v8, 0xeeeeeeee")
    a(f"v_cndmask_b32 v{IDXC}, v8, v6, vcc")
    a(f"v_mov_b32 v{IDXD}, 0xdddddddd")
    for i in range(4): a(f"v_mov_b32 v{CS+i}, 0")
    for g_ in first[3:]: pg.issue(g_)
    lg.wait_all()

    def xread(c, s, dst, tag):
        p = pg.page[("x", c)]
        k.ds(f"ds_read_b128 {vr(dst, 4)}, v{VXA + 4*(p >> 3) + s} offset:{(p & 7) * 8192}", tag)
    def kv_mfma(j):
        b = WF + 16 * (j & 1)
        def mm(x, y):
            for e in range(2):
                c = "0" if (j == 0 and e == 0) else vr(ACC, 16)
                a(f"v_mfma_f32_32x32x16_bf16 {vr(ACC,16)}, {vr(b+x+4*e,4)}, {vr(b+y+4*e,4)}, {c}")
        k.ifelse(f"s_cmp_eq_u32 s{MODE}, 2", lambda: mm(0, 0),
                 lambda: k.ifelse(f"s_cmp_eq_u32 s{MODE}, 0", lambda: mm(8, 0), lambda: mm(0, 8)))
    for j in range(8):
        if j not in S1_SKIP:
            jj = j + 1 if (j + 1) in S1_SKIP else j
            vm.wait(*[t_ for q in range(j, jj + 1) for t_ in (("x", 2*q), ("x", 2*q+1), ("k", q))])
            a("s_barrier")
            if j == 0: k.stamp(f"S{j}")
            for q in range(j + 1): pg.release(q)
        d = [lambda g=g: pg.issue(g) for g in pg.take(6 if j < 2 else 4, stop=(('w', 0, 0) if 'nohold' not in VAR else None))]
        b = WF + 16 * (j & 1)
        def g0():
            a("s_bitcmp1_b32 s3, 1")
            a(f"s_mov_b32 s{SP}, {pg.page[('x', 2*j)]*8192}")
            a(f"s_cselect_b32 s{SP}, {pg.page[('x', 2*j+1)]*8192}, s{SP}")
            a(f"v_mul_u32_u24 v8, s{SP}, v{MX}")
            a(f"v_add_u32 v{AX}, v8, v{BX}")
            a(f"v_add_u32 v{AX+1}, v8, v{BX+1}")
            a(f"v_add_u32 v{AW}, {pg.page[('k', j)]*8192}, v{BW}")
            for e in range(2): k.ds(f"ds_read_b128 {vr(b+4*e,4)}, v{AX+e}", ("s", j))
            for e in range(2):
                for u in range(2):
                    k.ds(f"ds_read_b64_tr_b16 {vr(b+8+4*e+2*u,2)}, v{AW} offset:{(16*e+4*u)*64}", ("s", j))
            a(f"v_add_u32 v{BX}, v{I17}, v{BX}")
            a(f"v_add_u32 v{BX+1}, v{I17}, v{BX+1}")
        def g1():
            if j > 0:
                lg.wait(("s", j - 1), ("xr", j - 1))
                kv_mfma(j - 1)
        def g2(e):
            if j < 4:
                for s in range(4): xread(2*j+e, s, XREG + 16*(2*j+e) + 4*s, ("xr", j))
        if j == WT_IT: d.insert(WT_POS, wtouch)
        if j == DBG_IT: d.insert(2 if j == 3 else 0, lambda: k.only(f's_cmp_eq_u32 s3, {FB0}', lambda: a(f'global_load_dword v16, v1, s[{P_DBG}:{P_DBG+1}] sc1')))
        g2(0)
        spread([g0, g1, lambda: g2(1)], d)
    F = FT
    R2 = RED + 16384
    SF = WF + 16
    M, RI, R, V = SF + 2, SF + 3, SF + 1, SF + 8
    def st_reads():
        a("v_and_b32 v5, 15, v2")
        a("v_lshlrev_b32 v6, 4, v5")
        for w in range(4): a(f"ds_read_b64 {vr(SF+2*w,2)}, v6 offset:{R2+w*4096+2*1024}")
        a("v_bfe_u32 v8, v5, 2, 1")
        a("v_lshl_add_u32 v8, v8, 9, v6")
        a("v_lshrrev_b32 v9, 3, v5")
        a("v_lshl_add_u32 v8, v9, 10, v8")
        a("v_and_b32 v9, 3, v5")
        a("v_lshl_add_u32 v8, v9, 2, v8")
        for w in range(4): a(f"ds_read_b32 v{SF+8+w}, v8 offset:{R2+w*4096}")
    def st_compute(extra=()):
        extra = list(extra)
        def fill(n):
            for _ in range(min(n, len(extra))): a(extra.pop(0))
        for w in range(1, 4):
            a(f"v_add_f32 v{SF}, v{SF}, v{SF+2*w}")
            a(f"v_add_f32 v{V}, v{V}, v{V+w}")
            a(f"v_add_f32 v{SF+1}, v{SF+1}, v{SF+2*w+1}")
        chain = [f"v_mul_f32 v{SF}, {f32(1/1024)}, v{SF}", f"v_mul_f32 v{V}, {f32(1/1024)}, v{V}",
                 f"v_fma_f32 v{V}, -v{SF}, v{SF}, v{V}", f"v_max_f32 v{V}, 0, v{V}",
                 f"v_cvt_pk_bf16_f32 v{M}, v{SF}, v{SF}", f"v_cvt_pk_bf16_f32 v{V}, v{V}, v{V}",
                 f"v_lshlrev_b32 v{M}, 16, v{M}", f"v_lshlrev_b32 v{V}, 16, v{V}",
                 f"v_add_f32 v{V}, {f32(1e-5)}, v{V}", f"v_cvt_pk_bf16_f32 v{V}, v{V}, v{V}", f"v_lshlrev_b32 v{V}, 16, v{V}",
                 f"v_sqrt_f32 v{V}, v{V}", f"v_cvt_pk_bf16_f32 v{V}, v{V}, v{V}", f"v_lshlrev_b32 v{V}, 16, v{V}",
                 f"v_rcp_f32 v{RI}, v{V}"]
        for x in chain: a(x); fill(2)
        fill(100)
    def fin0():
        st_reads()
        a(f"v_mov_b32 v9, {16*16 + 4}")
        for w in range(4): a(f"ds_read_b32 v{SF+12+w}, v9 offset:{R2+w*4096+2*1024}")
        a(f"s_lshl_b32 s{T0}, s2, 8")
        a(f"s_add_u32 s{T0}, s{T0}, {WS_YACC:#x}")
        a("v_lshlrev_b32 v8, 2, v2")
        a(f"buffer_store_dword v17, v8, {sr(S_WS)}, s{T0} offen sc1")
        a(f"s_add_u32 s{T0}, s{T0}, {SYB - WS_YACC:#x}")
        a(f"buffer_store_dword v17, v8, {sr(S_WS)}, s{T0} offen sc1")
        a("s_waitcnt lgkmcnt(0)")
        def rk():
            st_compute([f"v_add_f32 v{SF+12}, v{SF+12}, v{SF+12+w}" for w in range(1, 4)] +
                       [f"s_lshl_b32 s{T0}, s{RG}, 4", f"v_add_u32 v9, s{T0}, v5", "v_sub_u32 v9, 0xffff, v9", "v_lshlrev_b32 v6, 3, v5",
                        f"s_lshl_b32 s{T0}, s{RG}, 7", f"s_add_u32 s{T0}, s{T0}, {WS_STAT:#x}",
                        f"s_lshl_b32 s{T1}, s{RG}, 2", f"s_add_u32 s{T1}, s{T1}, {WS_RKEY:#x}"])
            a(f"v_fma_f32 v{R}, -v{M}, v{SF+12}, v{R}")
            a("s_mov_b64 exec, 0xffff")
            a(f"buffer_store_dwordx2 v[{M}:{RI}], v6, {sr(S_WS)}, s{T0} offen sc1")
            a(f"v_mul_f32 v{R}, v{R}, v{RI}")
            a(f"v_cvt_pk_bf16_f32 v{R}, v{R}, v{R}")
            a(f"v_ashrrev_i32 v8, 31, v{R}")
            a("v_or_b32 v8, 0x80000000, v8")
            a(f"v_xor_b32 v{R}, v{R}, v8")
            a(f"v_and_b32 v{R}, 0xffff0000, v{R}")
            a(f"v_or_b32 v{R}, v{R}, v9")
            for sh in (8, 4, 2, 1):
                a(f"v_max_u32_dpp v{R}, v{R}, v{R} row_ror:{sh} row_mask:0xf bank_mask:0xf")
            a("s_mov_b64 exec, 1")
            a(f"buffer_store_dword v{R}, v6, {sr(S_WS)}, s{T1} offen sc1")
            a("s_mov_b64 exec, -1")
        k.only(f"s_cmp_eq_u32 s{SEL}, 0", rk)
    def fin12():
        st_reads()
        adds = [f"v_add_f32 v{F+e}, v{F+e}, v{F+4*w+e}" for w in range(1, 4) for e in range(4)]
        a(f"s_lshr_b32 s{T2}, s{RG}, 1")
        a(f"s_lshl_b32 s{T2}, s{T2}, 12")
        a(f"s_and_b32 s{T1}, s{RG}, 1")
        def kk():
            a("v_bfe_u32 v9, v2, 4, 1")
            a("v_lshlrev_b32 v8, 9, v9")
            a(f"v_lshl_add_u32 v8, v{VH}, 10, v8")
            a(f"s_lshl_b32 s{T0}, s{FW}, 11")
            a(f"v_add_u32 v8, s{T0}, v8")
            a("v_add_u32 v9, v6, v8")
            for w in range(4): a(f"ds_read_b128 {vr(F+4*w,4)}, v9 offset:{RED+w*4096}")
            for w in range(4): a(f"ds_read_b128 {vr(F+16+4*w,4)}, v8 offset:{RED+w*4096+256}")
            a("v_and_b32 v8, 3, v5")
            a("v_bfe_u32 v9, v5, 2, 1")
            a("v_lshl_add_u32 v8, v9, 3, v8")
            a("v_bfe_u32 v9, v5, 3, 1")
            a("v_lshl_add_u32 v8, v9, 2, v8")
            a("v_bfe_u32 v9, v2, 4, 1")
            a("v_lshl_add_u32 v8, v9, 5, v8")
            a("v_lshlrev_b32 v8, 4, v8")
            a(f"v_lshl_add_u32 v8, v{VH}, 3, v8")
            a(f"s_lshl_b32 s{T0}, s{FW}, 10")
            a(f"s_add_u32 s{T2}, s{T2}, s{T0}")
            a(f"s_lshl_b32 s{T1}, s{T1}, 8")
            a(f"s_add_u32 s{T2}, s{T2}, s{T1}")
            a("s_waitcnt lgkmcnt(0)")
            st_compute(adds + [f"v_add_f32 v{F+16+e}, v{F+16+e}, v{F+16+4*w+e}" for w in range(1, 4) for e in range(4)])
            for e in range(4): a(f"v_fma_f32 v{F+e}, -v{M}, v{F+16+e}, v{F+e}")
            for e in range(4): a(f"v_mul_f32 v{F+e}, v{F+e}, v{RI}")
        def vv():
            a(f"s_lshl_b32 s{T0}, s{FW}, 8")
            a(f"v_add_u32 v10, s{T0}, v6")
            a("v_bfe_u32 v11, v2, 4, 1")
            a("v_lshl_add_u32 v8, v11, 9, v10")
            a(f"v_lshl_add_u32 v9, v{VH}, 10, v8")
            for w in range(4): a(f"ds_read_b128 {vr(F+4*w,4)}, v9 offset:{RED+w*4096}")
            for w in range(4): a(f"ds_read_b32 v{F+16+w}, v10 offset:{RED+w*4096+2048}")
            a(f"v_lshl_add_u32 v8, v{VH}, 3, v8")
            a(f"s_lshl_b32 s{T1}, s{T1}, 10")
            a(f"s_add_u32 s{T2}, s{T2}, s{T1}")
            a(f"s_add_u32 s{T2}, s{T2}, 2048")
            a("v_and_b32 v6, 0x30, v2")
            a("s_waitcnt lgkmcnt(0)")
            st_compute(adds + [f"v_add_f32 v{F+16}, v{F+16}, v{F+16+w}" for w in range(1, 4)])
            for e in range(4): a(f"ds_bpermute_b32 v{F+20+e}, v6, v{M} offset:{4*e}")
            for e in range(4): a(f"ds_bpermute_b32 v{F+24+e}, v6, v{RI} offset:{4*e}")
            a("s_waitcnt lgkmcnt(4)")
            for e in range(4): a(f"v_fma_f32 v{F+e}, -v{F+20+e}, v{F+16}, v{F+e}")
            a("s_waitcnt lgkmcnt(0)")
            for e in range(4): a(f"v_mul_f32 v{F+e}, v{F+e}, v{F+24+e}")
        k.ifelse(f"s_cmp_eq_u32 s{SEL}, 0", kk, vv)
        a(f"v_cvt_pk_bf16_f32 v{F+12}, v{F}, v{F+1}")
        a(f"v_cvt_pk_bf16_f32 v{F+13}, v{F+2}, v{F+3}")
        a(f"buffer_store_dwordx2 {vr(F+12,2)}, v8, {sr(S_WS)}, s{T2} offen sc1")
    def fin_arrive():
        a(f"s_waitcnt vmcnt({vm.since('fs')})")
        top, done = L(), L()
        a(f"s_mov_b32 s{CNT}, 0")
        a.label(top)
        a("v_cmp_eq_u32 vcc, 0, v16")
        a(f"s_add_u32 s{CNT}, s{CNT}, 1")
        a(f"s_cbranch_vccz {done}")
        a(f"global_load_dword v16, v1, s[{P_DBG}:{P_DBG+1}] sc1")
        a("s_waitcnt vmcnt(0)")
        a(f"s_cmp_lt_u32 s{CNT}, {SPIN_MAX}")
        a(f"s_cbranch_scc1 {top}")
        a.label(done)
        a("v_mov_b32 v8, 1")
        a(f"v_mov_b32 v9, {TAB + 128}")
        a("s_mov_b64 exec, 1")
        a("ds_add_rtn_u32 v9, v9, v8")
        a("s_waitcnt lgkmcnt(0)")
        a("v_cmp_eq_u32 vcc, 2, v9")
        a("s_mov_b64 exec, 0xff")
        nl = L()
        a(f"s_cbranch_vccz {nl}")
        a(f"s_lshr_b32 s{T0}, s2, 3")
        a(f"s_lshl_b32 s{T0}, s{T0}, 7")
        a(f"s_add_u32 s{T0}, s{T0}, {SY1:#x}")
        a("v_lshlrev_b32 v9, 12, v2")
        a(f"buffer_atomic_add v8, v9, {sr(S_WS)}, s{T0} offen sc1")
        a.label(nl)
        a("s_mov_b64 exec, -1")
    W0, W12, W012 = f"s_cmp_eq_u32 s3, {FB0}", f"s_cmp_lt_u32 s{FW}, 2", ("s_cmp_lt_u32 s3, 3" if FB0 == 0 else f"s_add_u32 s{T0}, s{FW}, 1\ns_cmp_lt_u32 s{T0}, 3")
    def kv_dma(i, chunk):
        a(f"s_add_u32 m0, s{W4K}, {chunk*32768 + i*1024}")
        a(f"s_add_u32 s{XSO}, s{W4K}, {chunk*32768 + i*1024}")
        a(f"buffer_load_dwordx4 v{VL16}, {sr(S_KV)}, s{XSO} offen sc1 lds"); vm.add(("kv", chunk))
    RK, PV, ST2 = 126, 122, 124
    pool = [WF, WF + 8]
    wreg, xreg = {}, {c: (XREG + 16*c, XREG + 16*c + 8) for c in range(8)}
    def rd_ops(c):
        need = 1 if c < 8 else 3
        if len(pool) < need: return None
        wreg[c] = pool.pop(0)
        if c >= 8: xreg[c] = (pool.pop(0), pool.pop(0))
        ops = []
        for e in range(2):
            def w(e=e):
                vm.wait(("w", c, e))
                p = pg.page[("w", c, e)]
                for u in range(2):
                    k.ds(f"ds_read_b64_tr_b16 {vr(wreg[c]+4*e+2*u,2)}, v{VW + (p >> 3)} offset:{(p & 7)*8192 + 4*u*64}", ("q", c, e))
            def x(e=e):
                for t in range(2): xread(c, 2*t+e, xreg[c][t] + 4*e, ("q", c, e))
            if c >= 8: ops.append(x)
            ops.append(w)
        return ops
    def rd(c):
        for o in rd_ops(c): o()
    def mm_ops(c):
        def m(e, t):
            if t == 0:
                lg.wait(("q", c, e)); pg.free.append(pg.page[("w", c, e)])
            acc = ACCX if t else ACCO
            cc = "0" if (c == 0 and e == 0) else vr(acc, 16)
            if 'nomm' not in VAR: a(f"v_mfma_f32_32x32x16_bf16 {vr(acc,16)}, {vr(wreg[c]+4*e,4)}, {vr(xreg[c][t]+4*e,4)}, {cc}")
        def s():
            a(f"v_smfmac_f32_16x16x64_bf16 {vr(CS,4)}, {vr(MA,4)}, {vr(wreg[c],8)}, v{IDXC}")
            pool.append(wreg[c])
            if c not in (2, 5, 6): pool.extend(xreg[c])
        return [lambda: m(0, 0), lambda: m(0, 1), lambda: m(1, 0), lambda: m(1, 1), s]
    def dmas(n):
        for g_ in pg.take(n): pg.issue(g_)
    def ld_stat():
        a(f"s_lshl_b32 s{T0}, s{ROWT}, 8")
        a(f"s_add_u32 s{T0}, s{T0}, {WS_STAT:#x}")
        a(f"v_lshlrev_b32 v5, 3, v{VN}")
        a(f"buffer_load_dwordx2 {vr(STAT,2)}, v5, {sr(S_WS)}, s{T0} offen sc1"); vm.add("stat")
    def ld_stat2():
        a(f"s_xor_b32 s{T0}, s{T0}, 0x100")
        a(f"buffer_load_dword v{ST2}, v5, {sr(S_WS)}, s{T0} offen sc1"); vm.add("stat")
    def ld_rk():
        a("v_lshlrev_b32 v5, 3, v2")
        a(f"s_mov_b32 s{T0}, {WS_RKEY:#x}")
        a(f"buffer_load_dwordx2 {vr(RK,2)}, v5, {sr(S_WS)}, s{T0} offen sc1"); vm.add("rk")
    def kvt():
        a(f"s_lshr_b32 s{T0}, s2, 3")
        a(f"s_lshl_b32 s{T0}, s{T0}, 13")
        a("v_lshlrev_b32 v5, 7, v2")
        a(f"buffer_load_dword v16, v5, {sr(S_KV)}, s{T0} offen sc1")
    pl = [ld_stat, ld_stat2] + [lambda i=i: kv_dma(i, 0) for i in range(4)] + [ld_rk, lambda: k.only("s_cmp_eq_u32 s3, 6", kvt)]
    post = {CHK + 1: pl[:4], CHK + 2: pl[4:]} if CHK <= 11 else {13: pl}
    post.update({
            5: [lambda: k.ffn.early(0)], 6: [lambda: k.ffn.early(1)], 7: [lambda: k.ffn.early(2)]})
    k.stamp("B0")
    k.delay(77)
    lg.wait(("s", 7)); kv_mfma(7)
    dmas(NW0)
    a(f"v_add_u32 v8, s{W4K}, v{VL16}")
    for q in range(4): k.ds(f"ds_write_b128 v8, {vr(ACC+4*q,4)} offset:{RED + q*1024}", "red")
    lg.wait_all()
    a("s_barrier"); pg.release(7); pg.release(8); pg.release(9)
    k.only(W0, fin0); k.only(W12, fin12); vm.mark("fs")
    dmas(7)
    if ARR < 0: k.only(W012, fin_arrive)
    rd(0); rd(1)
    k.stamp('R1')
    for c in range(14):
        if c == PI:
            a(f"v_lshlrev_b32 v{PV}, 7, v{VN}")
            a(f"s_and_b32 s{T3}, s2, 7")
            a(f"s_lshl_b32 s{T3}, s{T3}, 12")
            a(f"s_add_u32 s{T3}, s{T3}, {SY1:#x}")
            k.only(W0, lambda: a(f"buffer_load_dword v{PV+1}, v{PV}, {sr(S_WS)}, s{T3} offen sc1"))
            vm.mark("poll")
        ro = rd_ops(c + 2) if c + 2 < 16 else []
        d1 = lambda: dmas(1)
        extra = post.pop(c, [])
        if 'nopost' in VAR: extra = []
        if ro is None: interleave(mm_ops(c), [d1, d1, d1]); rd(c + 2)
        else:
            h = len(ro) // 2
            interleave(mm_ops(c), [d1] + ro[:h] + [d1] + ro[h:] + [d1] + extra)
        if 'fine' in VAR and c in (1, 2, 4, 6, 8, 10, 12, 13, 14): k.stamp(f'M{c}')
        if c == ARR: k.only(W012, fin_arrive)
        if c == R2C:
            a("s_barrier"); pg.hold = set()
        if c == CHK:
            def chk():
                a(f"s_waitcnt vmcnt({vm.since('poll')})")
                k.poll(PV, PV + 1, T3, 8)
            if 'nopub' not in VAR: k.only(W0, chk)
            if 'nor3' not in VAR: a("s_barrier")
    EX, MB = 208, 224
    assert all(b not in list(wreg[c_] for c_ in (14, 15)) + list(xreg[14]) + list(xreg[15]) for b in (208, 216, 224)), (wreg, xreg)
    m14, m15 = mm_ops(14), mm_ops(15)
    lg.wait(("q", 14, 0), ("q", 14, 1)); m14[4]()
    m14[1]()
    a(f"v_cmp_eq_u32 vcc, 0, v{VH}")
    vm.wait("stat")
    a(f"v_cvt_pk_bf16_f32 v{MB}, -v{STAT}, -v{STAT}")
    a(f"v_cvt_pk_bf16_f32 v{MB+4}, -v{ST2}, -v{ST2}")
    lg.wait(("q", 15, 0), ("q", 15, 1)); m15[4]()
    m14[3]()
    a(f"v_cndmask_b32 v{MB}, 0, v{MB}, vcc")
    a(f"v_cndmask_b32 v{MB+4}, 0, v{MB+4}, vcc")
    a(f"v_mov_b32 v{MB+1}, v{MB}"); a(f"v_mov_b32 v{MB+5}, v{MB+4}")
    for i in (2, 3, 6, 7): a(f"v_mov_b32 v{MB+i}, 0")
    m15[1]()
    a("v_mov_b32 v10, 0"); a("v_mov_b32 v11, 0")
    a(f"v_add_f32 v6, v{CS}, v{CS+1}")
    a("v_cvt_pk_bf16_f32 v5, v6, v6")
    a("v_lshlrev_b32 v5, 16, v5")
    a("v_sub_f32 v5, v6, v5")
    m15[3]()
    a("v_cvt_pk_bf16_f32 v8, v6, v5")
    a("v_and_b32 v6, 0xffff0000, v8")
    a("v_sub_f32 v5, v5, v6")
    a("v_cvt_pk_bf16_f32 v9, v5, 0")
    a(f"v_add_u32 v12, s{W1K}, v{VL16}")
    a("v_add_u32 v12, 0x10000, v12")
    a(f"v_mfma_f32_32x32x16_bf16 {vr(ACCX,16)}, v[8:11], {vr(MB+4,4)}, {vr(ACCX,16)}")
    a("v_and_b32 v5, 1, v2")
    a("v_cmp_eq_u32 vcc, 0, v5")
    m14[0]()
    a(f"v_mul_f32 v6, {f32(QSCALE)}, v{STAT+1}")
    a("v_xor_b32 v13, 0x400, v12")
    for i in range(4): a(f"v_cndmask_b32 v{MA+i}, 0, v{MA+i}, vcc")
    m14[2]()
    for i in range(4): a(f"v_pk_mov_b32 {vr(OA+2*i,2)}, 0, 0")
    for q in range(2): a(f"ds_write_b128 v12, {vr(ACCX+4*q,4)} offset:{q*8192}")
    m15[0]()
    for q in range(2, 4): a(f"ds_write_b128 v12, {vr(ACCX+4*q,4)} offset:{q*8192}")
    for i in range(4, 8): a(f"v_pk_mov_b32 {vr(OA+2*i,2)}, 0, 0")
    m15[2]()
    for i in range(2): a(f"v_pk_mov_b32 {vr(LS+2*i,2)}, 0, 0")
    a(f"v_add_u32 v{VK1}, 0x10000, v{VL16}")
    a(f"v_mfma_f32_32x32x16_bf16 {vr(ACCO,16)}, v[8:11], {vr(MB,4)}, {vr(ACCO,16)}")
    k.EX = EX
    for p in (8, 9, 10, 11): assert p in pg.free
    k.stamp("B_end")
    if "stopB" in VAR: a("s_endpgm")
    k.ACCX, k.ACCO, k.ST2 = ACCX, ACCO, ST2
    k.ACC, k.CS, k.RK = ACC, CS, RK


def attention(k):
    a, vm, lg, ffn = k.a, k.vm, k.lg, k.ffn
    ACCX, ACC, CS, ST2 = k.ACCX, k.ACCO, k.CS, k.ST2
    EX = k.EX
    srd(a, S_W, P_WO, 1024 * 2048)
    vm.wait(("kv", 0))
    a("s_waitcnt lgkmcnt(0)")
    a("s_barrier")
    for q in range(4): a(f"ds_read_b128 {vr(EX+4*q,4)}, v13 offset:{q*8192}")
    a(f"ds_read_b128 {vr(KA,4)}, v{VL16}")
    a(f"ds_read_b128 {vr(KA+4,4)}, v{VL16} offset:1024")
    a(f"s_add_u32 m0, s{W4K}, 32768")
    a(f"s_add_u32 s{XSO}, s{W4K}, 32768")
    a(f"buffer_load_dwordx4 v{VL16}, {sr(S_KV)}, s{XSO} offen sc1 lds"); vm.add(("kv", 1))
    for q in range(4):
        a(f"s_waitcnt lgkmcnt({5-q})")
        for i in (2*q, 2*q+1): a(f"v_pk_add_f32 {vr(ACC+2*i,2)}, {vr(ACC+2*i,2)}, {vr(EX+2*i,2)}")
        for i in (2*q, 2*q+1): a(f"v_pk_mul_f32 {vr(ACC+2*i,2)}, {vr(ACC+2*i,2)}, v[6:7] op_sel_hi:[1,0]")
        for i in (2*q, 2*q+1): a(f"v_cvt_pk_bf16_f32 v{QF+i}, v{ACC+2*i}, v{ACC+2*i+1}")
    a("s_waitcnt lgkmcnt(0)")
    a(f"v_mfma_f32_32x32x16_bf16 {vr(SA,16)}, {vr(KA,4)}, {vr(QF,4)}, 0")
    a(f"v_mfma_f32_32x32x16_bf16 {vr(SA,16)}, {vr(KA+4,4)}, {vr(QF+4,4)}, {vr(SA,16)}")
    def kvaddr(tile, off):
        p = ((tile >> 3) % 3) * 32768 + (tile & 7) * 4096 + off
        return (f"v{VL16} offset:{p}" if p < 65536 else f"v{VK1} offset:{p - 65536}")
    lg.tags = []
    k.ds(f"ds_read_b128 {vr(KA,4)}, {kvaddr(1, 0)}", ("K", 1))
    k.ds(f"ds_read_b128 {vr(KA+4,4)}, {kvaddr(1, 1024)}", ("K", 1))
    k.ds(f"ds_read_b128 {vr(VA,4)}, {kvaddr(0, 2048)}", ("V0", 0))
    a(f"v_max3_f32 v6, v{SA}, v{SA+1}, v{SA+2}")
    a(f"v_max3_f32 v5, v{SA+3}, v{SA+4}, v{SA+5}")
    a(f"v_max3_f32 v6, v6, v{SA+6}, v{SA+7}")
    a(f"v_max3_f32 v5, v5, v{SA+8}, v{SA+9}")
    a(f"v_max3_f32 v6, v6, v{SA+10}, v{SA+11}")
    a(f"v_max3_f32 v5, v5, v{SA+12}, v{SA+13}")
    a(f"v_max3_f32 v6, v6, v{SA+14}, v{SA+15}")
    a("v_max_f32 v6, v6, v5")
    a("v_mov_b32 v5, v6")
    a("v_permlane32_swap_b32 v6, v5")
    a("v_max_f32 v6, v6, v5")
    a(f"v_sub_f32 v{NM}, 0, v6")
    a(f"v_sub_f32 v{NM+1}, 0, v6")
    for i in range(8): a(f"v_pk_add_f32 {vr(SA+2*i,2)}, {vr(SA+2*i,2)}, {vr(NM,2)}")
    for i in range(1, 8): a(f"v_pk_mov_b32 {vr(NM+2*i,2)}, {vr(NM,2)}, {vr(NM,2)}")
    k.stamp("loop_start")
    if "pad4" in VAR: a("s_nop 0")
    if "al64" in VAR: a.raw(".p2align 6")
    for T in range(64):
        c, t = T >> 3, T & 7
        S, P = (SA, SB) if T % 2 == 0 else (SB, SA)
        e = lambda i: a(f"v_exp_f32 v{S+i}, v{S+i}")
        def kvd():
            for kp in range(4):
                if KVT[kp] != t: continue
                kc = c + 2 if t >= 6 else c + 1
                if kc > 7 or (kc == 1 and kp == 0): continue
                a(f"s_add_u32 m0, s{W4K}, {(kc % 3) * 32768 + kp * 1024}")
                a(f"s_add_u32 s{XSO}, s{W4K}, {kc * 32768 + kp * 1024}")
                a(f"buffer_load_dwordx4 v{VL16}, {sr(S_KV)}, s{XSO} offen {KVF} lds"); vm.add(("kv", kc))
        e(0)
        if T > 0:
            lg.wait(("V1", T - 1))
            a(f"v_smfmac_f32_32x32x32_bf16 {vr(OA,16)}, {vr(VA+4,4)}, {vr(P+8,8)}, v{IDXD}")
        k.ds(f"ds_read_b128 {vr(VA+4,4)}, {kvaddr(T, 3072)}", ("V1", T))
        if PRP == 0: a(f"s_setprio {3 - ((T + 1) & 3)}")
        e(1); e(2); e(3)
        if PRP != 0 and T < 63: lg.wait(("K", T + 1))
        if T > 0: a(f"v_smfmac_f32_16x16x64_bf16 {vr(LS,4)}, {vr(MA,4)}, {vr(P+8,8)}, v{IDXD}")
        if PRP == 0:
            e(4)
            if T < 63: lg.wait(("K", T + 1))
            nx = 5
        else:
            e(4); e(5); nx = 6
        if T < 63: a(f"v_mfma_f32_32x32x16_bf16 {vr(P,16)}, {vr(KA,4)}, {vr(QF,4)}, {vr(NM,16)}")
        if PRP != 0: a(f"s_setprio {3 - ((T + 1) & 3)}")
        for i in range(nx, 9): e(i)
        if T < 63: a(f"v_mfma_f32_32x32x16_bf16 {vr(P,16)}, {vr(KA+4,4)}, {vr(QF+4,4)}, {vr(P,16)}")
        if t == 6 and c < 7:
            vm.wait(("kv", c + 1))
            a("s_barrier")
        if T + 2 <= 63:
            k.ds(f"ds_read_b128 {vr(KA,4)}, {kvaddr(T + 2, 0)}", ("K", T + 2))
            k.ds(f"ds_read_b128 {vr(KA+4,4)}, {kvaddr(T + 2, 1024)}", ("K", T + 2))
        e(9); e(10); e(11)
        lg.wait(("V0", T))
        a(f"v_smfmac_f32_32x32x32_bf16 {vr(OA,16)}, {vr(VA,4)}, {vr(S,8)}, v{IDXD}")
        if T < 63: k.ds(f"ds_read_b128 {vr(VA,4)}, {kvaddr(T + 1, 2048)}", ("V0", T + 1))
        kvd()
        e(12); e(13); e(14); e(15)
        a(f"v_smfmac_f32_16x16x64_bf16 {vr(LS,4)}, {vr(MA,4)}, {vr(S,8)}, v{IDXD}")
        if "noffn" not in VAR: ffn.tile_end(T)
        if 'nod' not in VAR: k.D.tile_end(T)
    a("s_setprio 0")
    lg.wait_all()
    a(f"v_smfmac_f32_32x32x32_bf16 {vr(OA,16)}, {vr(VA+4,4)}, {vr(SB+8,8)}, v{IDXD}")
    a(f"v_smfmac_f32_16x16x64_bf16 {vr(LS,4)}, {vr(MA,4)}, {vr(SB+8,8)}, v{IDXD}")
    k.stamp("loop_end")
    k.delay(200)
    if "stopC" in VAR: a("s_endpgm")

FBASE = 98304
class FFN:
    VGU, VTR, VOD, VTD, XSL, VL4, XST, TMP, XS, WB, DD = 160, 161, 162, 163, 164, 165, 166, 168, 176, 192, 224
    FB, GSO, DSO, YSO, ASO = 66, 67, 94, 95, 65
    def __init__(self, k): self.k, self.a, self.vm = k, k.a, k.vm
    def early(self, part):
        t = self.TMP
        lines = []
        a = lines.append
        a(f"s_add_u32 s{self.FB}, s{W8K}, {FBASE}")
        a(f"v_lshrrev_b32 v{t}, 3, v2")
        a(f"v_mul_u32_u24 v{t}, 7168, v{t}")
        a(f"v_and_b32 v{t+1}, 7, v2")
        a(f"v_lshl_add_u32 v{self.VGU}, v{t+1}, 4, v{t}")
        a(f"v_bfe_u32 v{t}, v2, 2, 2")
        a(f"v_lshrrev_b32 v{t+1}, 4, v2")
        a(f"v_lshl_add_u32 v{t+1}, v{t+1}, 3, v{t}")
        a(f"v_lshlrev_b32 v{t+1}, 7, v{t+1}")
        a(f"v_and_b32 v{t+2}, 3, v2")
        a(f"v_lshl_add_u32 v{t+1}, v{t+2}, 3, v{t+1}")
        a(f"v_add_u32 v{self.VTR}, s{self.FB}, v{t+1}")
        a(f"v_lshrrev_b32 v{t+1}, 4, v2")
        a(f"v_lshlrev_b32 v{t+3}, 2, v{t+1}")
        a(f"v_xor_b32 v{t+3}, v{t+3}, v2")
        a(f"v_and_b32 v{t+3}, 15, v{t+3}")
        a(f"v_lshlrev_b32 v{t+3}, 4, v{t+3}")
        a(f"v_lshl_add_u32 v{t+3}, v{t+1}, 11, v{t+3}")
        a(f"s_lshl_b32 s{T0}, s3, 8")
        a(f"v_add_u32 v{self.VOD}, s{T0}, v{t+3}")
        a(f"v_mul_u32_u24 v{t}, 320, v{t}")
        a(f"v_lshl_add_u32 v{t}, v{VH}, 11, v{t}")
        a(f"v_bfe_u32 v{t+1}, v2, 4, 1")
        a(f"v_lshl_add_u32 v{t}, v{t+1}, 5, v{t}")
        a(f"v_lshl_add_u32 v{t}, v{t+2}, 3, v{t}")
        a(f"v_add_u32 v{self.VTD}, s{self.FB}, v{t}")
        a(f"v_lshlrev_b32 v{self.VL4}, 2, v2")
        a(f"v_and_b32 v{t}, 60, v{self.VL4}")
        a(f"v_mov_b32 v{t+1}, 0")
        a(f"s_and_b32 s{T0}, s{FCG}, 3")
        a(f"s_lshl_b32 s{T0}, s{T0}, 3")
        a(f"s_add_u32 s{T0}, s{T0}, s3")
        a(f"s_lshl_b32 s{SP}, s{T0}, 6")
        a(f"s_mul_i32 s{self.GSO}, s{T0}, {32*7168}")
        a(f"s_lshr_b32 s{T1}, s{FCG}, 2")
        a(f"s_lshl_b32 s{T2}, s{T1}, 7")
        a(f"s_add_u32 s{self.GSO}, s{self.GSO}, s{T2}")
        a(f"s_lshl_b32 s{self.ASO}, s{T1}, 8")
        a(f"s_add_u32 s{self.ASO}, s{self.ASO}, {WS_GU:#x}")
        a(f"s_lshl_b32 s{self.DSO}, s{FCG}, 15")
        a(f"s_and_b32 s{self.YSO}, s2, 7")
        a(f"s_lshl_b32 s{self.YSO}, s{self.YSO}, 12")
        a(f"s_lshl_b32 s{T0}, s3, 9")
        a(f"s_add_u32 s{self.YSO}, s{self.YSO}, s{T0}")
        a(f"s_add_u32 s{self.YSO}, s{self.YSO}, {WS_YACC:#x}")
        a("s_cmp_lt_u32 s2, 224")
        for r in (self.GSO, self.DSO, self.YSO, self.ASO):
            a(f"s_cselect_b32 s{r}, s{r}, 0x40000000")
        srd(a, S_WD, P_WD, 3584 * 2048)
        srd(a, S_OUT, P_OUT, 2048 * 2048)
        cut = [0, 12, 29, len(lines)]
        for x in lines[cut[part]:cut[part+1]]: self.a(x)
    def argmax1(self):
        a, RK = self.a, self.k.RK
        self.vm.wait('rk')
        a(f"v_max_u32 v5, v{RK}, v{RK+1}")
        for sh in (8, 4, 2, 1):
            a(f"v_max_u32_dpp v5, v5, v5 row_ror:{sh} row_mask:0xf bank_mask:0xf")
        for i, s in enumerate((T0, T1, T2, T3)): a(f"v_readlane_b32 s{s}, v5, {16*i}")
    def argmax2(self):
        a, vm = self.a, self.vm
        a(f"s_max_u32 s{T0}, s{T0}, s{T1}")
        a(f"s_max_u32 s{T2}, s{T2}, s{T3}")
        a(f"s_max_u32 s{RKEY}, s{T0}, s{T2}")
        a(f"s_and_b32 s{IDX}, s{RKEY}, 0xffff")
        a(f"s_sub_u32 s{IDX}, 0xffff, s{IDX}")
        a(f"s_and_b32 s{IDX}, s{IDX}, 2047")
    def arrive(self, soff):
        a, t = self.a, self.TMP
        a(f"v_mov_b32 v{t+6}, 1")
        a("s_mov_b64 exec, 1")
        a(f"buffer_atomic_add v{t+6}, v{self.VL4}, {sr(S_WS)}, s{soff} offen sc1"); self.vm.add("arr")
        a("s_mov_b64 exec, -1")
    def tile_end(self, T):
        k, a, vm, t = self.k, self.a, self.vm, self.TMP
        GU_T = [8*(i // 3) + FTS[i % 3] for i in range(8)]
        WD_T = WDT
        if T == 1: self.argmax1(); self.argmax2()
        if T == 3:
            a(f"s_lshl_b32 s{T0}, s{IDX}, 11")
            a(f"s_add_u32 s{T0}, s{T0}, s{SP}")
            a(f"buffer_load_dword v{self.XSL}, v{t}, {sr(S_X)}, s{T0} offen"); vm.add("xs")
        if T == 5:
            a(f"s_lshl_b32 s{T0}, s{IDX}, 3")
            a(f"s_add_u32 s{T0}, s{T0}, {WS_STAT:#x}")
            a(f"buffer_load_dwordx2 {vr(self.XST,2)}, v{t+1}, {sr(S_WS)}, s{T0} offen sc1"); vm.add("xs")
        if T in GU_T:
            i = GU_T.index(T); mat, j = i >> 2, i & 3
            a(f"s_add_u32 m0, s{self.FB}, {i*1024}")
            a(f"s_add_u32 s{T0}, s{self.GSO}, {j*8*7168}")
            a(f"buffer_load_dwordx4 v{self.VGU}, {sr(S_WU if mat else S_WG)}, s{T0} offen lds"); vm.add("u" if mat else "g")
        if T == 16:
            vm.wait("xs")
            a(f"v_lshlrev_b32 v{t}, 16, v{self.XSL}")
            a(f"v_and_b32 v{t+1}, 0xffff0000, v{self.XSL}")
            a(f"v_sub_f32 v{t}, v{t}, v{self.XST}")
            a(f"v_sub_f32 v{t+1}, v{t+1}, v{self.XST}")
            a(f"v_cvt_pk_bf16_f32 v{t+2}, v{t}, v{t+1}")
            a(f"v_lshlrev_b32 v{t}, 16, v{t+2}")
            a(f"v_and_b32 v{t+1}, 0xffff0000, v{t+2}")
            a(f"v_mul_f32 v{t}, v{t}, v{self.XST+1}")
            a(f"v_mul_f32 v{t+1}, v{t+1}, v{self.XST+1}")
            a(f"v_cvt_pk_bf16_f32 v{t+2}, v{t}, v{t+1}")
            a(f"v_and_b32 v{t+3}, 0x30, v2")
            for j in range(4):
                k.ds(f"ds_bpermute_b32 v{self.XS+j}, v{t+3}, v{t+2} offset:{4*j}", "xsf")
        if 22 <= T <= 25:
            if T == 22: vm.wait("g")
            if T == 24: vm.wait("u")
            m, hf = (T - 22) >> 1, (T - 22) & 1
            for ct in (2*hf, 2*hf+1):
                for u in range(2):
                    k.ds(f"ds_read_b64_tr_b16 {vr(self.WB+16*m+4*ct+2*u,2)}, v{self.VTR} offset:{m*4096 + u*512 + ct*32}", ("gw", T))
        if 24 <= T <= 27:
            m, hf = (T - 24) >> 1, (T - 24) & 1
            k.lg.wait(("gw", T - 2), "xsf")
            for ct in (2*hf, 2*hf+1):
                a(f"v_mfma_f32_16x16x32_bf16 {vr(self.DD+16*m+4*ct,4)}, {vr(self.XS,4)}, {vr(self.WB+16*m+4*ct,4)}, 0")
        if T == 28: k.delay(41)
        if T == 51: k.delay(130)
        if T == 28:
            for ct in range(1, 4):
                for m in range(2):
                    D = self.DD + 16*m
                    a(f"v_mov_b32_dpp v{D}, v{D+4*ct} quad_perm:[0,1,2,3] row_mask:{1 << ct:#x} bank_mask:0xf")
            a(f"s_add_u32 s{T0}, s{self.ASO}, {3584*4}")
            a(f"buffer_atomic_add_f32 v{self.DD}, v{self.VL4}, {sr(S_WS)}, s{self.ASO} offen"); vm.add("at1")
            a(f"buffer_atomic_add_f32 v{self.DD+16}, v{self.VL4}, {sr(S_WS)}, s{T0} offen"); vm.add("at1")
        if T in WD_T:
            j = WD_T.index(T)
            a(f"s_add_u32 m0, s{self.FB}, {j*1024}")
            a(f"s_add_u32 s{T0}, s{self.DSO}, {j*8192}")
            a(f"buffer_load_dwordx4 v{self.VOD}, {sr(S_WD)}, s{T0} offen lds"); vm.add("wd")
        if T == 35:
            vm.wait("at1")
            a(f"s_lshr_b32 s{self.GSO}, s{FCG}, 2")
            a(f"s_lshl_b32 s{self.GSO}, s{self.GSO}, 7")
            a(f"s_add_u32 s{self.GSO}, s{self.GSO}, {SY4:#x}")
            a("s_cmp_lt_u32 s2, 224")
            a(f"s_cselect_b32 s{self.GSO}, s{self.GSO}, 0x40000000")
            self.arrive(self.GSO)
        G = self.DD
        W0F = f"s_cmp_lt_u32 s{CNT}, 224"
        if T == 40:
            a(f"s_lshl_b32 s{CNT}, s3, 8")
            a(f"s_add_u32 s{CNT}, s{CNT}, s2")
            a(f"v_mov_b32 v{t}, 0")
            k.only(W0F, lambda: a(f"buffer_load_dword v{t+1}, v{t}, {sr(S_WS)}, s{self.GSO} offen sc1"))
            vm.mark("p4")
        if T == 42:
            def p2():
                a(f"s_waitcnt vmcnt({vm.since('p4')})")
                k.poll(t, t + 1, self.GSO, 32, cnt=T3)
                a(f"v_and_b32 v{t}, 60, v{self.VL4}")
                a(f"v_bfe_u32 v{t+1}, v2, 4, 1")
                a(f"v_mul_u32_u24 v{t+1}, {3584*4}, v{t+1}")
                a(f"v_add_u32 v{t+1}, v{t+1}, v{t}")
                a(f"s_lshl_b32 s{T0}, s{FCG}, 6")
                a(f"s_add_u32 s{T0}, s{T0}, {WS_GU:#x}")
                a(f"buffer_load_dword v{G}, v{t+1}, {sr(S_WS)}, s{T0} offen sc1")
            k.only(W0F, p2)
            vm.mark("gl")
        if T == 45:
            def hh():
                a(f"s_waitcnt vmcnt({vm.since('gl')})")
                bf16r(a, G, G)
                a(f"v_mov_b32 v{G+1}, v{G}")
                a(f"v_permlane16_swap_b32 v{G}, v{G+1}")
                a(f"v_mul_f32 v{G+2}, {f32(-LOG2E)}, v{G}")
                a(f"v_exp_f32 v{G+2}, v{G+2}")
                a(f"v_add_f32 v{G+2}, 1.0, v{G+2}")
                a(f"v_rcp_f32 v{G+2}, v{G+2}")
                a(f"v_mul_f32 v{G}, v{G}, v{G+2}")
                bf16r(a, G, G)
                a(f"v_mul_f32 v{G}, v{G}, v{G+1}")
                a(f"v_cvt_pk_bf16_f32 v{G}, v{G}, v{G}")
                a(f"v_lshrrev_b32 v{t}, 1, v{t}")
                a(f"v_add_u32 v{t}, {FBASE + 4096}, v{t}")
                a(f"ds_write_b16 v{t}, v{G}")
                a("s_waitcnt lgkmcnt(0)")
            k.only(W0F, hh)
        HF, WD, DD = 168, 176, 192
        if T in (43, 44):
            if T == 43: vm.wait("wd")
            for j in (2*(T-43), 2*(T-43)+1):
                if j: a(f"v_xor_b32 v{t+4+j}, {64*j}, v{self.VTD}")
                ad = (t + 4 + j) if j else self.VTD
                for u in range(2):
                    k.ds(f"ds_read_b64_tr_b16 {vr(WD+4*j+2*u,2)}, v{ad} offset:{u*1024}", "wdf")
        if T == 46:
            a(f"v_lshlrev_b32 v{t+4}, 4, v{VH}")
            a(f"v_add_u32 v{t+4}, {FBASE + 4096}, v{t+4}")
            k.ds(f"ds_read_b128 {vr(HF,4)}, v{t+4}", "hf")
        if 47 <= T <= 50:
            j = T - 47
            k.lg.wait("hf", "wdf")
            a(f"v_mfma_f32_32x32x16_bf16 {vr(DD+16*j,16)}, {vr(HF,4)}, {vr(WD+4*j,4)}, 0")
        if T == 51:
            a(f"v_mov_b32_dpp v{DD}, v{DD+16} quad_perm:[0,1,2,3] row_mask:0xc bank_mask:0xf")
            a(f"v_mov_b32_dpp v{DD+32}, v{DD+48} quad_perm:[0,1,2,3] row_mask:0xc bank_mask:0xf")
            a(f"buffer_atomic_add_f32 v{DD}, v{self.VL4}, {sr(S_WS)}, s{self.YSO} offen"); vm.add("at")
            a(f"buffer_atomic_add_f32 v{DD+32}, v{self.VL4}, {sr(S_WS)}, s{self.YSO} offen offset:256"); vm.add("at")
        if T == 59:
            vm.wait("at")
            a(f"s_lshr_b32 s{T0}, s2, 3")
            a(f"s_lshl_b32 s{T0}, s{T0}, 7")
            a(f"s_add_u32 s{T0}, s{T0}, {SY3:#x}")
            self.arrive(T0)

class PhaseD:
    XR, ST, VXO = 8, 30, 16
    VOF, VWD = 24, (17, 18, 1)
    XFL, G, XF, ACCO, ACCX, WREG = 32, 48, 64, 96, 112, 128
    def __init__(self, k):
        self.k, self.a, self.vm = k, k.a, k.vm
        def rot(c, shift, extra, base):
            return f"""s_add_u32 s{TD}, s{ROT}, {c}
            s_and_b32 s{TD}, s{TD}, 15
            s_lshl_b32 s{TD}, s{TD}, {shift}
            s_add_u32 s{TD}, s{TD}, s{base}""" + (f"\ns_add_u32 s{TD}, s{TD}, {extra}" if extra else "")
        def ldw(n): return lambda p: f"s_add_u32 m0, s{W1K}, {p*8192}\n" + rot(n >> 1, 17, (n & 1) * 16 * 2048, SEL) + f"\nbuffer_load_dwordx4 v{VOW}, {sr(S_W)}, s{TD} offen lds"
        def ldo(c): return lambda p: f"s_add_u32 m0, s{W1K}, {p*8192}\n" + rot(c, 12, 0, OBASE) + f"\nbuffer_load_dwordx4 v{VL16}, {sr(S_WS)}, s{TD} offen sc1 lds"
        seq = [(("w", n), ldw(n), None, list(range(19, -1, -1))) for n in range(24)]
        seq += [(("o", c), ldo(c), None, list(range(16))) for c in range(16)]
        seq += [(("w", n), ldw(n), None, [16, 17, 18, 19]) for n in range(24, 32)]
        self.pg = Pager(k, range(8, 20), seq)
    def tile_end(self, T):
        k, a, vm = self.k, self.a, self.vm
        if T == 44:
            a(f"s_lshr_b32 s{T0}, s2, 3")
            a(f"s_lshl_b32 s{T0}, s{T0}, 16")
            a(f"v_lshlrev_b32 v{self.VXO}, 7, v0")
            a(f"buffer_load_dword v{self.XR}, v{self.VXO}, {sr(S_W)}, s{T0} offen"); vm.add("pf")
        if T == 51:
            a(f"v_lshlrev_b32 v{self.VXO}, 11, v{VN}")
            a(f"v_lshl_add_u32 v{self.VXO}, v{VH}, 5, v{self.VXO}")
            a(f"s_lshl_b32 s{T1}, s{RB2}, 1")
            a(f"s_add_u32 s{T1}, s{T1}, s{RT}")
            a(f"s_lshl_b32 s{XO2}, s{T1}, 16")
            a(f"s_lshl_b32 s{SEL}, s{CB2}, 8")
            a(f"s_add_u32 s{XO2}, s{XO2}, s{SEL}")
            a(f"s_lshl_b32 s{T0}, s{HD}, 6")
            a(f"s_add_u32 s{XO2}, s{XO2}, s{T0}")
            a(f"buffer_load_dwordx4 {vr(self.XR,4)}, v{self.VXO}, {sr(S_X)}, s{XO2} offen"); vm.add("x2")
            a(f"s_lshl_b32 s{ROT}, s{CB2}, 1")
            a(f"s_lshr_b32 s{T0}, s{IDX}, 5")
            a(f"s_cmp_eq_u32 s{T0}, s{T1}")
            a(f"s_cselect_b32 s{MODE}, 1, 0")
        if T == 52:
            a(f"s_lshl_b32 s{T1}, s{RB2}, 1")
            a(f"s_add_u32 s{T1}, s{T1}, s{RT}")
            a(f"s_lshl_b32 s{T0}, s{T1}, 8")
            a(f"s_add_u32 s{T0}, s{T0}, {WS_STAT:#x}")
            a(f"v_lshlrev_b32 v5, 3, v{VN}")
            a(f"buffer_load_dwordx2 {vr(self.ST,2)}, v5, {sr(S_WS)}, s{T0} offen sc1"); vm.add("x2")
        if T == 53:
            a(f"buffer_load_dwordx4 {vr(self.XR+4,4)}, v{self.VXO}, {sr(S_X)}, s{XO2} offen offset:16"); vm.add("x2")
            a(f"s_lshl_b32 s{T0}, s{ROWT}, 5")
            a(f"s_lshl_b32 s{T1}, s{HB}, 2")
            a(f"s_add_u32 s{T0}, s{T0}, s{T1}")
            a(f"s_add_u32 s{T0}, s{T0}, s{HD}")
            a(f"s_lshl_b32 s{T0}, s{T0}, 11")
            a(f"s_add_u32 s{OSO}, s{T0}, {WS_OF:#x}")
        if 54 <= T <= 61:
            ne = (T - 53) * NEARLY // 8 - (T - 54) * NEARLY // 8
            if 'oldne' in VAR: ne = 2 if T < 58 else 1
            for g in self.pg.take(ne): self.pg.issue(g)
    def run(self):
        k, a, vm, lg, pg = self.k, self.a, self.vm, self.k.lg, self.pg
        XR, ST, VXO, VOF, VWD, XFL, G, XF, ACCO, ACCX, WREG = (self.XR, self.ST, self.VXO, self.VOF, self.VWD, self.XFL,
                                                              self.G, self.XF, self.ACCO, self.ACCX, self.WREG)
        a("v_bfe_u32 v5, v2, 2, 2")
        a(f"v_lshl_add_u32 v6, v{VH}, 2, v5")
        a("v_lshlrev_b32 v6, 6, v6")
        a("v_and_b32 v5, 1, v2")
        a("v_lshl_add_u32 v6, v5, 5, v6")
        a("v_bfe_u32 v5, v2, 4, 1")
        a("v_lshl_add_u32 v6, v5, 4, v6")
        a("v_bfe_u32 v5, v2, 1, 1")
        a("v_lshl_add_u32 v6, v5, 3, v6")
        a(f"v_add_u32 v{VWD[0]}, s{W1K}, v6")
        a(f"v_add_u32 v{VWD[1]}, 0x10000, v{VWD[0]}")
        a(f"v_add_u32 v{VWD[2]}, 0x20000, v{VWD[0]}")
        a(f"v_mov_b32 v6, {f32(2.0**64)}")
        for i in range(4): a(f"v_pk_add_f32 {vr(SA+2*i,2)}, {vr(OA+4*i,2)}, {vr(OA+4*i+2,2)}")
        a(f"v_pk_add_f32 {vr(SA,2)}, {vr(SA,2)}, {vr(SA+2,2)}")
        a(f"v_pk_add_f32 {vr(SA+4,2)}, {vr(SA+4,2)}, {vr(SA+6,2)}")
        a(f"v_pk_add_f32 {vr(SA,2)}, {vr(SA,2)}, {vr(SA+4,2)}")
        a(f"v_add_f32 v5, v{SA}, v{SA+1}")
        a(f"v_fma_f32 v5, v5, 0, v{LS}")
        a("v_cmp_nlt_f32 vcc, v5, v6")
        a("s_nop 1")
        if "forcefb" in VAR: a("s_branch L_fallback")
        a("s_cbranch_vccnz L_fallback")
        a.label("L_fin")
        a(f"v_rcp_f32 v6, v{LS}")
        for i in range(8): a(f"v_pk_mul_f32 {vr(OA+2*i,2)}, {vr(OA+2*i,2)}, v[6:7] op_sel_hi:[1,0]")
        for i in range(8): a(f"v_cvt_pk_bf16_f32 v{SA+i}, v{OA+2*i}, v{OA+2*i+1}")
        a(f"buffer_store_dwordx4 {vr(SA,4)}, v{VL16}, {sr(S_WS)}, s{OSO} offen sc1"); vm.add("ost")
        a(f"buffer_store_dwordx4 {vr(SA+4,4)}, v{VL16}, {sr(S_WS)}, s{OSO} offen offset:1024 sc1"); vm.add("ost")
        def wread(n):
            vm.wait(("w", n))
            p = pg.page[("w", n)]
            for u in range(2):
                k.ds(f"ds_read_b64_tr_b16 {vr(WREG+4*n+2*u,2)}, v{VWD[p >> 3]} offset:{(p & 7)*8192 + 8*u*64}", ("wr", n))
        def wfree(n):
            lg.wait(("wr", n)); pg.free.append(pg.page[("w", n)])
        def xn_ops(src, lo, hi, g0, g1, m, ri, t0=6):
            return [f"v_lshlrev_b32 v{lo}, 16, v{src}", f"v_and_b32 v{hi}, 0xffff0000, v{src}",
                    f"v_sub_f32 v{g0}, v{lo}, v{m}", f"v_sub_f32 v{g1}, v{hi}, v{m}",
                    f"v_cvt_pk_bf16_f32 v{t0}, v{g0}, v{g1}",
                    f"v_lshlrev_b32 v{g0}, 16, v{t0}", f"v_and_b32 v{g1}, 0xffff0000, v{t0}",
                    f"v_mul_f32 v{g0}, v{g0}, v{ri}", f"v_mul_f32 v{g1}, v{g1}, v{ri}",
                    f"v_cvt_pk_bf16_f32 v{t0}, v{g0}, v{g1}",
                    f"v_lshlrev_b32 v{g0}, 16, v{t0}", f"v_and_b32 v{g1}, 0xffff0000, v{t0}"]
        def silu_ops(g0, g1, t0=6, t1=7):
            return [f"v_mul_f32 v{t0}, {f32(-LOG2E)}, v{g0}", f"v_mul_f32 v{t1}, {f32(-LOG2E)}, v{g1}",
                    f"v_exp_f32 v{t0}, v{t0}", f"v_exp_f32 v{t1}, v{t1}",
                    f"v_add_f32 v{t0}, 1.0, v{t0}", f"v_add_f32 v{t1}, 1.0, v{t1}",
                    f"v_rcp_f32 v{t0}, v{t0}", f"v_rcp_f32 v{t1}, v{t1}",
                    f"v_mul_f32 v{g0}, v{g0}, v{t0}", f"v_mul_f32 v{g1}, v{g1}, v{t1}",
                    f"v_cvt_pk_bf16_f32 v{t0}, v{g0}, v{g1}",
                    f"v_lshlrev_b32 v{g0}, 16, v{t0}", f"v_and_b32 v{g1}, 0xffff0000, v{t0}"]
        gate = []
        for p in range(8): gate += xn_ops(XR+p, XFL+2*p, XFL+2*p+1, G+2*p, G+2*p+1, ST, ST+1)
        for p in range(8): gate += silu_ops(G+2*p, G+2*p+1)
        def gops(n):
            for _ in range(min(n, len(gate))): a(gate.pop(0))
        for g in pg.take(12 - NEARLY): pg.issue(g)
        for n in range(12): wread(n)
        for n in range(4):
            wfree(n)
            for g in pg.take(1): pg.issue(g)
        a(f"s_lshl_b32 s{T0}, s{RB}, 3")
        a(f"s_add_u32 s{T0}, s{T0}, s{HB}")
        a(f"s_lshl_b32 s{T0}, s{T0}, 7")
        a(f"s_add_u32 s{T0}, s{T0}, {SY2:#x}")
        a("v_mov_b32 v5, 1")
        a("v_mov_b32 v6, 0")
        vm.wait("ost")
        def arr():
            a("s_mov_b64 exec, 1")
            a(f"buffer_store_dword v5, v6, {sr(S_WS)}, s{T0} offen sc1" if "stflag" in VAR else f"buffer_atomic_add v5, v6, {sr(S_WS)}, s{T0} offen sc1")
            a("s_mov_b64 exec, -1")
        if "wgarr" in VAR:
            a("s_barrier")
            k.only("s_cmp_eq_u32 s3, 0", arr)
        else:
            arr(); vm.add("arr")
        k.stamp("E1")
        for n in range(4, 12): wfree(n)
        PV = XF
        a(f"v_and_b32 v{PV}, 7, v2")
        a(f"v_lshlrev_b32 v{PV}, 7, v{PV}")
        a(f"s_lshl_b32 s{T3}, s{RB2}, 10")
        a(f"s_add_u32 s{T3}, s{T3}, {SY2:#x}")
        nxt = 12
        for i, g in enumerate(pg.take(16, stop=("o", 0))):
            pg.issue(g); gops(8)
            if i >= 2: wread(nxt); nxt += 1
            if i == D_POLL:
                k.only("s_cmp_eq_u32 s3, 7", lambda: a(f"buffer_load_dword v{PV+1}, v{PV}, {sr(S_WS)}, s{T3} offen sc1"))
        a(f"s_lshl_b32 s{OBASE}, s{RB2}, 1")
        a(f"s_lshr_b32 s{T0}, s3, 2")
        a(f"s_add_u32 s{OBASE}, s{OBASE}, s{T0}")
        a(f"s_lshl_b32 s{OBASE}, s{OBASE}, 16")
        a(f"s_and_b32 s{T0}, s3, 3")
        a(f"s_lshl_b32 s{T0}, s{T0}, 10")
        a(f"s_add_u32 s{OBASE}, s{OBASE}, s{T0}")
        a(f"s_add_u32 s{OBASE}, s{OBASE}, {WS_OF:#x}")
        a(f"s_mul_i32 s{T0}, s{RT}, {4096 + 2048}")
        a(f"v_add_u32 v{VOF}, s{T0}, v{VL16}")
        a(f"v_xor_b32 v{VOF+1}, 0x1000, v{VOF}")
        a(f"v_add_u32 v{VOF+2}, 0x10000, v{VOF}")
        a(f"v_add_u32 v{VOF+3}, 0x10000, v{VOF+1}")
        while nxt < 24:
            wread(nxt); nxt += 1; gops(6)
        lg.wait_all()
        k.only("s_cmp_eq_u32 s3, 7", lambda: k.poll(PV, PV + 1, T3, 1 if 'wgarr' in VAR else 8, cnt=T2))
        a("s_barrier")
        k.stamp("E2")
        pg.free = list(range(20))
        od = pg.take(20)
        for g in od[:NO1]:
            pg.issue(g); gops(48 // NO1)
        od = od[NO1:]
        gops(1000)
        a(f"s_cmp_eq_u32 s{MODE}, 1")
        a("s_cbranch_scc1 L_own")
        st = (list(vm.tags), vm.total, dict(vm.marks), list(lg.tags), list(pg.free), pg.pos, a.snapshot(), list(STAMP_NAMES))
        self.dloop(False, list(od), wread, wfree, xn_ops, silu_ops)
        a("s_endpgm")
        a.label("L_own")
        vm.tags, vm.total, vm.marks, lg.tags, pg.free, pg.pos = list(st[0]), st[1], dict(st[2]), list(st[3]), list(st[4]), st[5]
        a.hist = st[6][0]; a.alts = [(h, 0) for h in st[6][1:]]
        STAMP_NAMES[:] = st[7]
        self.dloop(True, list(od), wread, wfree, xn_ops, silu_ops)
    def dloop(self, own, od, wread, wfree, xn_ops, silu_ops):
        k, a, vm, lg, pg = self.k, self.a, self.vm, self.k.lg, self.pg
        XR, ST, VXO, VOF, VWD, XFL, G, XF, ACCO, ACCX, WREG = (self.XR, self.ST, self.VXO, self.VOF, self.VWD, self.XFL,
                                                              self.G, self.XF, self.ACCO, self.ACCX, self.WREG)
        Y, X4, XN, YS, YB, YA, YD = WREG + 16, WREG + 20, WREG + 24, WREG + 28, WREG + 32, 28, 29
        ys = {}
        if own:
            def I(x): return lambda: a(x)
            def br(d): return [f"v_cvt_pk_bf16_f32 v{d}, v{d}, v{d}", f"v_lshlrev_b32 v{d}, 16, v{d}"]
            def y_poll():
                a(f"v_lshlrev_b32 v{YA}, 7, v{VN}")
                a(f"s_mov_b32 s{T3}, {SY3:#x}")
                a(f"buffer_load_dword v{YD}, v{YA}, {sr(S_WS)}, s{T3} offen sc1"); vm.add("yp")
            def y_chk():
                vm.wait("yp"); k.poll(YA, YD, T3, 64)
            def y_l1():
                a(f"v_lshrrev_b32 v{YA}, 3, v2")
                a(f"v_lshlrev_b32 v{YA}, 12, v{YA}")
                a(f"v_and_b32 v{YD}, 7, v2")
                a(f"v_lshl_add_u32 v{YA}, v{YD}, 4, v{YA}")
                a(f"s_lshl_b32 s{T0}, s{CB2}, 9")
                a(f"s_lshl_b32 s{T1}, s{HD}, 7")
                a(f"s_add_u32 s{T0}, s{T0}, s{T1}")
                a(f"s_add_u32 s{T1}, s{T0}, {WS_YACC:#x}")
                a(f"buffer_load_dwordx4 {vr(Y,4)}, v{YA}, {sr(S_WS)}, s{T1} offen sc1"); vm.add("yl")
            def y_l2():
                a(f"s_lshr_b32 s{T0}, s{T0}, 1")
                a(f"s_lshl_b32 s{T1}, s{IDX}, 11")
                a(f"s_add_u32 s{T0}, s{T0}, s{T1}")
                a(f"v_lshlrev_b32 v{YD}, 3, v{YD}")
                a(f"buffer_load_dwordx2 {vr(X4,2)}, v{YD}, {sr(S_X)}, s{T0} offen"); vm.add("yl")
            def y_rs():
                a(f"s_and_b32 s{T1}, s{RKEY}, 0xffff0000")
                a(f"s_xor_b32 s{T2}, s{T1}, 0x80000000")
                a(f"s_xor_b32 s{T0}, s{T1}, 0xffff0000")
                a(f"s_bitcmp1_b32 s{T1}, 31")
                a(f"s_cselect_b32 s{T1}, s{T2}, s{T0}")
                a(f"v_mov_b32 v{YA}, s{T1}")
            def y_st():
                a(f"s_and_b32 s{T1}, s{IDX}, 31")
                a(f"v_readlane_b32 s{T0}, v{ST}, s{T1}")
                a(f"v_readlane_b32 s{T2}, v{ST+1}, s{T1}")
                a(f"v_mov_b32 v{YS}, s{T0}")
                a(f"v_mov_b32 v{YS+1}, s{T2}")
            rs2 = [f"v_mul_f32 v{YA}, {f32(-LOG2E)}, v{YA}", f"v_exp_f32 v{YA}, v{YA}", f"v_add_f32 v{YA}, 1.0, v{YA}", f"v_rcp_f32 v{YA}, v{YA}"] + br(YA)
            sm = [f"v_add_f32_dpp v{Y+e}, v{Y+e}, v{Y+e} row_ror:8 row_mask:0xf bank_mask:0xf" for e in range(4)]
            for sw in ("v_permlane16_swap_b32", "v_permlane32_swap_b32"):
                sm += [f"v_mov_b32 v{YB+4+e}, v{Y+e}" for e in range(4)] + [f"{sw} v{Y+e}, v{YB+4+e}" for e in range(4)]
                sm += [f"v_add_f32 v{Y+e}, v{Y+e}, v{YB+4+e}" for e in range(4)]
            def rr(p, q): return [f"v_cvt_pk_bf16_f32 v{YB+2}, v{p}, v{q}", f"v_lshlrev_b32 v{p}, 16, v{YB+2}", f"v_and_b32 v{q}, 0xffff0000, v{YB+2}"]
            sc = []
            for p in (0, 2):
                sc += rr(Y+p, Y+p+1) + [f"v_mul_f32 v{Y+p}, v{Y+p}, v{YA}", f"v_mul_f32 v{Y+p+1}, v{Y+p+1}, v{YA}"] + rr(Y+p, Y+p+1)
            xn = xn_ops(X4, YB, YB+1, XN, XN+1, YS, YS+1, YB+2) + xn_ops(X4+1, YB, YB+1, XN+2, XN+3, YS, YS+1, YB+2)
            ad = []
            for p in (0, 2):
                ad += [f"v_add_f32 v{XN+p}, v{XN+p}, v{Y+p}", f"v_add_f32 v{XN+p+1}, v{XN+p+1}, v{Y+p+1}"] + rr(XN+p, XN+p+1)
            sl = silu_ops(XN, XN+1, YB+2, YB+3) + silu_ops(XN+2, XN+3, YB+2, YB+3) + [f"v_lshlrev_b32 v{YD}, 4, v{VH}"]
            bp = [lambda q=q, e=e: k.ds(f"ds_bpermute_b32 v{YB+4*q+e}, v{YD}, v{XN+e} offset:{4*q}", "yb") for q in range(4) for e in range(4)]
            allv = [I(x) for x in sm + sc + xn + ad + sl]
            ys = {0: [y_poll], 4: [y_chk, y_l1, y_l2], 5: [y_rs, y_st] + [I(x) for x in rs2]}
            per = -(-len(allv) // 5)
            for i in range(5): ys[7 + i] = ([lambda: vm.wait("yl")] if i == 0 else []) + allv[i*per:(i+1)*per]
            ys[12] = bp
            def y_mask():
                lg.wait("yb")
                a(f"s_and_b32 s{T1}, s{IDX}, 31")
                a(f"v_cmp_eq_u32 vcc, s{T1}, v{VN}")
            ys[13] = [y_mask] + [I(f"v_cndmask_b32 v{G+i}, v{G+i}, v{YB+i}, vcc") for i in range(16)]
        avail = {0: 2, 2: 4, 4: 8, 8: 12, 12: 16}
        pool = [XF, XF + 16]
        xb = {}
        def rd_ops(c):
            if not pool: return None
            xb[c] = pool.pop(0)
            def bar():
                vm.wait(*[("o", i) for i in range(avail[c])])
                a("s_barrier")
            def r(e):
                p = pg.page[("o", c)]
                for t in range(2):
                    k.ds(f"ds_read_b128 {vr(xb[c]+4*(2*t+e),4)}, v{VOF + 2*(p >> 3) + t} offset:{(p & 7)*8192 + e*1024}", ("d", c, e))
            return ([bar] if c in avail else []) + [lambda: r(0), lambda: r(1)]
        def rd(c):
            for o in rd_ops(c): o()
        rd(0); k.stamp("D0"); rd(1)
        def mf(c, e, t):
            acc = ACCX if t else ACCO
            cc = "0" if (c == 0 and e == 0) else vr(acc, 16)
            a(f"v_mfma_f32_32x32x16_bf16 {vr(acc,16)}, {vr(WREG+4*(2*c+e),4)}, {vr(xb[c]+4*(2*t+e),4)}, {cc}")
        def d1():
            if od: pg.issue(od.pop(0))
        for c in range(14):
            def m0(e):
                lg.wait(("d", c, e), ("wr", 2*c+e)); mf(c, e, 0)
            ms = [lambda: m0(0), lambda: mf(c, 0, 1), lambda: m0(1), lambda: mf(c, 1, 1)]
            extra = []
            if c == 8: extra = [lambda n=n: wread(n) for n in range(24, 28)]
            if c == 12: extra = [lambda n=n: wread(n) for n in range(28, 32)]
            if c == 9:
                for n in range(24, 28): wfree(n)
                od += pg.take(4)
            ro = rd_ops(c + 2)
            base = [d1] * DPC + (ro or []) + extra
            y = ys.get(c, [])
            if y:
                for i, m in enumerate(ms):
                    m()
                    for o in base[i * len(base) // 4:(i + 1) * len(base) // 4]: o()
                    for o in y[i * len(y) // 4:(i + 1) * len(y) // 4]: o()
            else: interleave(ms, base)
            pool.append(xb[c])
            if c == 1: pool.append(WREG)
            if ro is None: rd(c + 2)
            if 'fined' in VAR and c in (0, 1, 2, 3, 5, 7, 9, 11, 13): k.stamp(f'd{c}')
        lg.wait_all()
        a(f"v_add_u32 v5, s{W1K}, v{VL16}")
        for c in (14, 15):
            for e in range(2): mf(c, e, 1)
        a("v_add_u32 v5, 0x20000, v5")
        a("v_xor_b32 v6, 0x400, v5")
        mf(14, 0, 0); mf(14, 1, 0); mf(15, 0, 0)
        a("s_nop 6")
        for q in range(4): a(f"ds_write_b128 v5, {vr(ACCX+4*q,4)} offset:{q*8192}")
        mf(15, 1, 0)
        k.stamp("D_end")
        a("s_waitcnt lgkmcnt(0)")
        a("s_barrier")
        for q in range(4): a(f"ds_read_b128 {vr(WREG+16+4*q,4)}, v6 offset:{q*8192}")
        for q in range(4):
            a(f"s_waitcnt lgkmcnt({3-q})")
            for i in (2*q, 2*q+1): a(f"v_pk_add_f32 {vr(ACCO+2*i,2)}, {vr(ACCO+2*i,2)}, {vr(WREG+16+2*i,2)}")
            for i in (2*q, 2*q+1): a(f"v_pk_fma_f32 {vr(ACCO+2*i,2)}, {vr(ACCO+2*i,2)}, {vr(G+2*i,2)}, {vr(XFL+2*i,2)}")
            for i in (2*q, 2*q+1): a(f"v_cvt_pk_bf16_f32 v{XR+i}, v{ACCO+2*i}, v{ACCO+2*i+1}")
            if q == 1: a(f"buffer_store_dwordx4 {vr(XR,4)}, v{VXO}, {sr(S_OUT)}, s{XO2} offen")
        a(f"buffer_store_dwordx4 {vr(XR+4,4)}, v{VXO}, {sr(S_OUT)}, s{XO2} offen offset:16")
        k.stamp("end")

def fallback(k):
    a = k.a
    a.label("L_fallback")
    a.flush()
    a("v_mov_b32 v6, 0xff800000")
    a(f"s_mov_b32 s{T0}, 0")
    a.label("L_fb1")
    a(f"buffer_load_dwordx4 {vr(KA,4)}, v{VL16}, {sr(S_KV)}, s{T0} offen sc1")
    a(f"buffer_load_dwordx4 {vr(KA+4,4)}, v{VL16}, {sr(S_KV)}, s{T0} offen offset:1024 sc1")
    a("s_waitcnt vmcnt(0)")
    a(f"v_mfma_f32_32x32x16_bf16 {vr(SA,16)}, {vr(KA,4)}, {vr(QF,4)}, 0")
    a(f"v_mfma_f32_32x32x16_bf16 {vr(SA,16)}, {vr(KA+4,4)}, {vr(QF+4,4)}, {vr(SA,16)}")
    for i in range(0, 16, 2): a(f"v_max3_f32 v6, v6, v{SA+i}, v{SA+i+1}")
    a(f"s_add_u32 s{T0}, s{T0}, 4096")
    a(f"s_cmp_lt_u32 s{T0}, 0x40000")
    a("s_cbranch_scc1 L_fb1")
    a("v_mov_b32 v5, v6")
    a("v_permlane32_swap_b32 v6, v5")
    a("v_max_f32 v6, v6, v5")
    for i in range(16): a(f"v_sub_f32 v{NM+i}, 0, v6")
    for i in range(16): a(f"v_mov_b32 v{OA+i}, 0")
    for i in range(4): a(f"v_mov_b32 v{LS+i}, 0")
    a(f"s_mov_b32 s{T0}, 0")
    a.label("L_fb2")
    a(f"buffer_load_dwordx4 {vr(KA,4)}, v{VL16}, {sr(S_KV)}, s{T0} offen sc1")
    a(f"buffer_load_dwordx4 {vr(KA+4,4)}, v{VL16}, {sr(S_KV)}, s{T0} offen offset:1024 sc1")
    a(f"buffer_load_dwordx4 {vr(VA,4)}, v{VL16}, {sr(S_KV)}, s{T0} offen offset:2048 sc1")
    a(f"buffer_load_dwordx4 {vr(VA+4,4)}, v{VL16}, {sr(S_KV)}, s{T0} offen offset:3072 sc1")
    a("s_waitcnt vmcnt(0)")
    a(f"v_mfma_f32_32x32x16_bf16 {vr(SA,16)}, {vr(KA,4)}, {vr(QF,4)}, {vr(NM,16)}")
    a(f"v_mfma_f32_32x32x16_bf16 {vr(SA,16)}, {vr(KA+4,4)}, {vr(QF+4,4)}, {vr(SA,16)}")
    for i in range(16): a(f"v_exp_f32 v{SA+i}, v{SA+i}")
    a(f"v_smfmac_f32_32x32x32_bf16 {vr(OA,16)}, {vr(VA,4)}, {vr(SA,8)}, v{IDXD}")
    a(f"v_smfmac_f32_16x16x64_bf16 {vr(LS,4)}, {vr(MA,4)}, {vr(SA,8)}, v{IDXD}")
    a(f"v_smfmac_f32_32x32x32_bf16 {vr(OA,16)}, {vr(VA+4,4)}, {vr(SA+8,8)}, v{IDXD}")
    a(f"v_smfmac_f32_16x16x64_bf16 {vr(LS,4)}, {vr(MA,4)}, {vr(SA+8,8)}, v{IDXD}")
    a(f"s_add_u32 s{T0}, s{T0}, 4096")
    a(f"s_cmp_lt_u32 s{T0}, 0x40000")
    a("s_nop 7")
    a("s_cbranch_scc1 L_fb2")
    a.flush()
    a("s_branch L_fin")
    a.label("L_code_end")

def build(path):
    k = K()
    k.ffn = FFN(k); k.D = PhaseD(k)
    prologue(k); phaseAB(k); attention(k)
    if 'nod' not in VAR: k.D.run()
    else: k.a.label('L_fin')
    k.a.label("L_end"); k.a("s_endpgm")
    fallback(k)
    top = open("cdna_kernels/" + NAME + ".s.ref").read().split("; Override launch geometry")[0]
    if STAMPS: top += "; stamps: " + " ".join(STAMP_NAMES) + "\n"
    top += "; @launch grid=(256,1,1) block=(512,1,1) lds=163840\n"
    top += '.amdgcn_target "amdgcn-amd-amdhsa--gfx950"\n.text\n'
    top += '''; ---------------------------------------------------------------------------------------------
; One persistent launch, 256 workgroups x 8 waves (one workgroup per CU), generated by a script.
;              statistics and router score first (layernorm folded in algebraically), published with
;              halves of the f32 probabilities.  A run-time check (l < 2^64, O finite) sends a wave to an
;              The routed-token SwiGLU FFN is spread over all workgroups inside this loop.
;  phase D   : O tiles exchanged through the workspace, output projection, gate, residual.
; ---------------------------------------------------------------------------------------------
'''
    top += f".set CODE_BYTES, L_code_end - {KN} - 64\n"
    kd = f""".section .rodata,"a"
.p2align 6
.amdhsa_kernel {KN}
  .amdhsa_next_free_vgpr 256
  .amdhsa_next_free_sgpr 102
  .amdhsa_accum_offset 256
  .amdhsa_group_segment_fixed_size 0
  .amdhsa_kernarg_size 104
  .amdhsa_user_sgpr_count 2
  .amdhsa_user_sgpr_kernarg_segment_ptr 1
  .amdhsa_system_sgpr_workgroup_id_x 1
.end_amdhsa_kernel
"""
    lines = k.a.out
    if "noal" not in VAR:
        from align import align
        lines, st = align(top, lines, kd, phase=4 if "ph4" in VAR else 0, nops="alnop" in VAR)
        print(path, st)
    open(path, "w").write(top + "\n".join(lines) + "\n" + kd)
    return k

if __name__ == "__main__":
    out = sys.argv[1] if len(sys.argv) > 1 else "cdna_kernels/" + NAME + ".s"
    if len(sys.argv) > 2 and sys.argv[2] == "stamps": STAMPS = True
    VAR.update(sys.argv[3:])
    for v in VAR:
        if v.startswith('init'): N_INIT = int(v[4:])
        if v.startswith('wt') and '_' in v: WT_IT, WT_POS = [int(x) for x in v[2:].split('_')]
        if v.startswith('chk'): CHK, PI = [int(x) for x in v[3:].split('_')]
        if v == 'noskip': S1_SKIP = ()
        if v.startswith('prp'): PRP = int(v[3:])
        if v.startswith('dpc'): DPC = int(v[3:])
        if v.startswith('noi'): NO1 = int(v[3:])
        if v.startswith('fb'): FB0 = int(v[2:])
        if v.startswith('kvt'): KVT = [int(x) for x in v[3:]]
        if v.startswith('kvp'): KVP = int(v[3:])
        if v.startswith('fts'): FTS = [int(x) for x in v[3:]]; WDT = [28, 29, 32 + FTS[0], 32 + FTS[1]]
        if v.startswith('ne'): NEARLY = int(v[2:])
        if v.startswith('kvf'): KVF = v[3:].replace('_', ' ')
        if v.startswith('pad') and '@' in v: PADAT, PADTO = v[3:].split('@')[0], int(v[3:].split('@')[1])
        if v.startswith('nw'): NW0, ARR, R2C = [int(x) for x in v[2:].split('_')]
        if v.startswith('out'): OUTF = ' ' + v[3:].replace('_', ' ')
    k = build(out)
    if "-v" in VAR:
        for l in k.a.log: print("nop", l)
        for l in k.pgAB.log: print("AB", l)
        for l in k.D.pg.log: print("D", l)
```
